```python
import torch

def _softmax(x, axis=-1):
    return torch.softmax(x, dim=axis)
def _gelu(x):
    return torch.nn.functional.gelu(x, approximate="tanh")
def _silu(x):
    return torch.nn.functional.silu(x)
def _sigmoid(x):
    return torch.sigmoid(x)
def _layernorm(x, axis=-1, eps=1e-5):
    m = x.mean(dim=axis, keepdim=True)
    v = x.var(dim=axis, keepdim=True, unbiased=False)
    return (x - m) / torch.sqrt(v + eps)
def _scatter_add(tgt, idx, src, axis=0):
    return tgt.clone().index_add_(axis, idx, src)
def _segment_sum(src, seg, n):
    out = torch.zeros((n,) + src.shape[1:], dtype=src.dtype)
    return out.index_add_(0, seg, src)
def _pad(x, pw):
    flat = tuple(v for pair in reversed(pw) for v in pair)
    return torch.nn.functional.pad(x, flat)

kernel_name = 'standalone__gqa_block_cached__near_ridge'

def setup_inputs():

    _w = (lambda a: (lambda t: t.to(torch.bfloat16) if t.is_floating_point() else t)(torch.as_tensor(a)))
    B, Sq, D = 8, 80, 512
    Hq, Hkv, Sk, Dh = 32, 8, 1024, 128
    assert Hq % Hkv == 0, (Hq, Hkv)
    return {
        "x": _w((lambda *s: torch.randn(*s, dtype=torch.bfloat16) * 0.8)(B, Sq, D)),
        "k_cache": _w((lambda *s: torch.randn(*s, dtype=torch.bfloat16) * 0.8)(B, Hkv, Sk, Dh)),
        "v_cache": _w((lambda *s: torch.randn(*s, dtype=torch.bfloat16) * 0.05)(B, Hkv, Sk, Dh)),
        "wq": _w((lambda *s: torch.randn(*s, dtype=torch.bfloat16) * 0.8)(D, Hq * Dh) * (D ** -0.5)),
        "wo": _w((lambda *s: torch.randn(*s, dtype=torch.bfloat16) * 0.05)(Hq * Dh, D) * ((Hq * Dh) ** -0.5)),
    }

def reference(x, k_cache, v_cache, wq, wo):
    B, Sq, D = x.shape
    Hq, Dh = 32, 128
    Hkv = k_cache.shape[1]
    rep = Hq // Hkv
    q = (lambda x, *d: x.permute(*d))((x @ wq).reshape(B, Sq, Hq, Dh), 0, 2, 1, 3)
    k = (lambda x, n, axis: torch.repeat_interleave(x, n, dim=axis))(k_cache, rep, axis=1)
    v = (lambda x, n, axis: torch.repeat_interleave(x, n, dim=axis))(v_cache, rep, axis=1)
    scores = torch.einsum("bhqd,bhkd->bhqk", q, k) * (Dh ** -0.5)
    p = _softmax(scores, axis=-1)
    o = torch.einsum("bhqk,bhkd->bhqd", p, v)
    return (lambda x, *d: x.permute(*d))(o, 0, 2, 1, 3).reshape(B, Sq, Hq * Dh) @ wo
```

```python
import sys, math

STAMPS = "--stamps" in sys.argv
L = []
def e(s): L.append("    " + s)
def lab(s): L.append(s + ":")
def cmt(s): L.append("    ; " + s)

QSCALE = 1.4426950408889634 / math.sqrt(128.0)
import struct
def f2u(x): return struct.unpack("<I", struct.pack("<f", x))[0]

S_ST = [0, 53248, 106496, 0]
R_D, R_QX, R_A, R_B, R_C, R_SP = 0, 32768, 53248, 86016, 118784, 151552
KSLOT = [R_A, R_B]; VSLOT = [R_C, R_D]
WS_O = 0
WS_PART = 8 << 20
WS_STAMP = 128 << 20

sW, sHKV, sB, sI = 3, 20, 21, 22
SRD_X, SRD_WQ, SRD_K, SRD_V, SRD_O, SRD_WO = 24, 28, 32, 36, 40, 44
sTK, sTK2, sTV, sTV2, sSLOT, sCNT = 48, 49, 50, 51, 52, 53
sT0, sT1, sT2, sT3 = 54, 55, 56, 57
sSTAMP = 64

vLANE = 0
vKR = 8
vVR = 12
vOK = 20
vOV = 24
vP = 28
vS = 48
vNM = 64
vTMP = 84
vO = 96
aQ = 0; aK = 80; aV = 144; aL = 208; aONE = 248

def srd(r): return f"s[{r}:{r+3}]"
def v(r, n=1): return f"v{r}" if n == 1 else f"v[{r}:{r+n-1}]"
def a(r, n=1): return f"a{r}" if n == 1 else f"a[{r}:{r+n-1}]"
MF = "v_mfma_f32_16x16x32_bf16"

nstamp = [0]
def stamp():
    if not STAMPS: return
    i = nstamp[0]; nstamp[0] += 1
    e(f"s_memrealtime s[{sSTAMP+2*i}:{sSTAMP+2*i+1}]")
    e("s_waitcnt lgkmcnt(0)")

def write_stamps(first, total):
    if not STAMPS: return
    n = nstamp[0]
    e("s_lshl_b32 s60, s2, 2"); e(f"s_add_u32 s60, s60, s{sW}"); e(f"s_mul_i32 s60, s60, {total*8}")
    e(f"s_add_u32 s60, s60, {WS_STAMP + first*8}")
    e("s_add_u32 s60, s18, s60"); e("s_addc_u32 s61, s19, 0")
    e("s_mov_b64 exec, 1")
    e("v_mov_b32 v1, 0")
    for i in range(n):
        e(f"v_mov_b32 v2, s{sSTAMP+2*i}"); e(f"v_mov_b32 v3, s{sSTAMP+2*i+1}")
        e(f"global_store_dwordx2 v1, v[2:3], s[60:61] offset:{i*8}")
        e("s_nop 1")
    nstamp[0] = 0

def head(name):
    L.append(f".globl {name}"); L.append(".p2align 8"); L.append(f".type {name},@function"); lab(name)
    e("s_cmp_ge_u32 s2, 256"); e(f"s_cbranch_scc1 L_done_{name}")
    e("s_load_dwordx16 s[4:19], s[0:1], 0")
    e("v_lshrrev_b32 v1, 6, v0")
    e("v_and_b32 v0, 63, v0")
    e(f"v_readfirstlane_b32 s{sW}, v1")
    e(f"s_and_b32 s{sHKV}, s2, 7"); e(f"s_lshr_b32 s{sB}, s2, 3"); e(f"s_and_b32 s{sB}, s{sB}, 7"); e(f"s_lshr_b32 s{sI}, s2, 6")

def mk_srd(r, pbase, off_sgpr, size):
    e(f"s_add_u32 s{r}, s{pbase}, s{off_sgpr}"); e(f"s_addc_u32 s{r+1}, s{pbase+1}, 0")
    e(f"s_mov_b32 s{r+2}, {size}"); e(f"s_mov_b32 s{r+3}, 0x20000")

def interleave(mfmas, gaps):
    for s in gaps.get(-1, []): e(s)
    for i, m in enumerate(mfmas):
        e(m)
        for s in gaps.get(i, []): e(s)

def lane_consts():
    e("v_and_b32 v4, 15, v0")
    e("v_lshrrev_b32 v5, 4, v0")
    e("v_bfe_u32 v6, v0, 2, 2")
    e("v_and_b32 v7, 3, v0")

def gemm_stage_loop(xr, wr, aX, aWf, acc, stage_delta, dma_plan, extra_vm, after_last_reads=None, linearB=False):
    for cc in range(4):
        e(f"s_waitcnt vmcnt({extra_vm[cc]})")
        e("s_barrier")
        def reads(ks):
            r = []
            buf = ks & 1
            for dd in range(2):
                for jh in range(2):
                    off = ks * 8192 + (jh * 1024 if not linearB else jh * 4096)
                    r.append(f"ds_read_b64_tr_b16 {a(aWf + buf*8 + dd*4 + jh*2, 2)}, {v(wr+dd)} offset:{off}")
            for j in range(5):
                if linearB:
                    r.append(f"ds_read_b128 {a(aX + buf*20 + j*4, 4)}, {v(xr)} offset:{(ks*5+j)*1024}")
                else:
                    r.append(f"ds_read_b128 {a(aX + buf*20 + j*4, 4)}, {v(xr+ks)} offset:{j*4096}")
            return r
        for s in reads(0): e(s)
        dm = list(dma_plan.get(cc, []))
        for _ in range(min(3, len(dm))):
            for s in dm.pop(0): e(s)
        for ks in range(4):
            e("s_waitcnt lgkmcnt(0)")
            if cc == 3 and ks == 3 and after_last_reads:
                for s in after_last_reads: e(s)
            buf = ks & 1
            m = []
            for j in range(5):
                for dd in range(2):
                    d = v(acc + (j*2+dd)*4, 4)
                    c = "0" if (cc == 0 and ks == 0) else d
                    m.append(f"{MF} {d}, {a(aWf + buf*8 + dd*4, 4)}, {a(aX + buf*20 + j*4, 4)}, {c}")
            gaps = {}
            if ks < 3:
                r = reads(ks + 1)
                for gi in range(5):
                    gaps[gi] = r[2*gi:2*gi+2]
            else:
                if cc < 3:
                    adj = []
                    n = 1 if linearB else 4
                    e(f"s_mov_b32 s{sT3}, {stage_delta[cc]}")
                    for q in range(n): adj.append(f"v_add_u32 {v(xr+q)}, s{sT3}, {v(xr+q)}")
                    for q in range(2): adj.append(f"v_add_u32 {v(wr+q)}, s{sT3}, {v(wr+q)}")
                    for gi in range(3): gaps[gi] = adj[2*gi:2*gi+2]
            for gi in range(5, 10):
                if dm: gaps.setdefault(gi, []).extend(dm.pop(0))
            interleave(m, gaps)
        for grp in dm:
            for s in grp: e(s)

def e_onehot(dst):
    e(f"v_mov_b32 {v(dst)}, 0"); e(f"v_mov_b32 {v(dst+1)}, 0"); e(f"v_mov_b32 {v(dst+4)}, 0"); e(f"v_mov_b32 {v(dst+5)}, 0")
    e("v_lshlrev_b32 v1, 2, v5")
    e("v_sub_u32 v1, v4, v1")
    e("v_and_b32 v2, 1, v1"); e("v_lshlrev_b32 v2, 4, v2")
    e("v_mov_b32 v3, 0x3f80"); e("v_lshlrev_b32 v2, v2, v3")
    e("v_lshrrev_b32 v1, 1, v1")
    e("v_cmp_eq_u32 vcc, 0, v1"); e("s_nop 1"); e(f"v_cndmask_b32 {v(dst+2)}, 0, v2, vcc")
    e("v_cmp_eq_u32 vcc, 1, v1"); e("s_nop 1"); e(f"v_cndmask_b32 {v(dst+3)}, 0, v2, vcc")

def kernel1(name):
    head(name)
    stamp()
    lane_consts()
    vXO = vTMP
    vWO = vTMP + 4
    vXR = vTMP + 6
    vWR = vTMP + 10
    e("v_xor_b32 v1, v4, v5")
    for pp in range(4):
        e(f"s_add_u32 s{sT0}, s{sW}, {pp}"); e(f"s_and_b32 s{sT0}, s{sT0}, 3"); e(f"s_lshl_b32 s{sT0}, s{sT0}, 2")
        e(f"v_xor_b32 v2, s{sT0}, v1"); e("v_lshlrev_b32 v2, 4, v2"); e(f"v_lshl_add_u32 {v(vXO+pp)}, v5, 10, v2")
    e("v_lshlrev_b32 v2, 1, v5"); e("v_xor_b32 v2, v4, v2"); e("v_lshlrev_b32 v2, 4, v2")
    e(f"v_lshl_add_u32 {v(vWO)}, v5, 13, v2"); e(f"v_xor_b32 {v(vWO+1)}, 128, {v(vWO)}")
    e(f"v_lshl_add_u32 {v(vOV)}, v5, 8, v2"); e(f"v_xor_b32 {v(vOV+1)}, 128, {v(vOV)}")
    e("s_waitcnt lgkmcnt(0)")
    e(f"s_mul_i32 s{sT0}, s{sB}, 81920"); mk_srd(SRD_X, 4, sT0, 81920)
    e(f"s_lshl_b32 s{sT0}, s{sHKV}, 2"); e(f"s_add_u32 s{sT0}, s{sT0}, s{sI}"); e(f"s_lshl_b32 s{sT0}, s{sT0}, 8")
    e(f"s_sub_u32 s{sT1}, 4194304, s{sT0}"); mk_srd(SRD_WQ, 10, sT0, f"s{sT1}")
    e(f"s_mul_i32 s{sT0}, s{sW}, 20480")
    e(f"s_mul_i32 s{sT1}, s{sW}, 5120")
    e(f"s_lshl_b32 s{sT2}, s{sW}, 18")
    e(f"s_lshl_b32 s{sSLOT}, s{sW}, 13")
    def p1_dma(cc):
        g = []
        for pp in range(5):
            g.append([f"s_add_u32 m0, s{sT1}, {S_ST[cc] + pp*1024}", f"s_add_u32 s{sT3}, s{sT0}, {pp*4096 + cc*256}",
                      f"buffer_load_dwordx4 {v(vXO + (pp & 3))}, {srd(SRD_X)}, s{sT3} offen lds"])
        for pp in range(8):
            g.append([f"s_add_u32 m0, s{sSLOT}, {S_ST[cc] + 20480 + pp*1024}", f"s_add_u32 s{sT3}, s{sT2}, {(cc*128 + 4*pp)*8192}",
                      f"buffer_load_dwordx4 {v(vWO + ((pp >> 1) & 1))}, {srd(SRD_WQ)}, s{sT3} offen lds"])
        return g
    for cc in range(3):
        for grp in p1_dma(cc):
            for s in grp: e(s)
    e(f"s_lshl_b32 s58, s{sB}, 3"); e(f"s_add_u32 s58, s58, s{sHKV}"); e("s_lshl_b32 s58, s58, 18")
    e(f"s_lshl_b32 s59, s{sW}, 16"); e("s_add_u32 s58, s58, s59")
    mk_srd(SRD_K, 6, 58, 65536); mk_srd(SRD_V, 8, 58, 65536)
    e(f"s_mul_i32 s58, s2, 20480"); e(f"s_add_u32 s58, s58, {WS_O}") if WS_O else None
    mk_srd(SRD_O, 18, 58, 20480)
    e("v_lshlrev_b32 v2, 4, v1"); e(f"v_lshl_add_u32 {v(vXR)}, v4, 8, v2")
    for ks in range(1, 4): e(f"v_xor_b32 {v(vXR+ks)}, {ks*64}, {v(vXR)}")
    e("v_lshrrev_b32 v3, 2, v4"); e("v_lshlrev_b32 v3, 3, v3"); e("v_and_b32 v2, 3, v4"); e("v_add_u32 v3, v3, v2")
    e("v_lshlrev_b32 v2, 4, v1"); e("v_lshl_add_u32 v2, v3, 8, v2"); e(f"v_add_u32 v2, s{sSLOT}, v2")
    e(f"v_add_u32 {v(vKR)}, {R_A}, v2")
    for ds in range(1, 4): e(f"v_xor_b32 {v(vKR+ds)}, {ds*64}, {v(vKR)}")
    e("v_lshlrev_b32 v2, 4, v1"); e(f"v_lshl_add_u32 {v(vOK)}, v5, 8, v2")
    for vv in range(1, 4): e(f"v_xor_b32 {v(vOK+vv)}, {vv*64}, {v(vOK)}")
    e("v_lshl_add_u32 v2, v5, 3, v6"); e("v_lshlrev_b32 v2, 8, v2"); e("v_lshl_add_u32 v2, v7, 3, v2")
    e("v_and_b32 v3, 1, v5"); e("v_lshl_add_u32 v3, v3, 2, v6")
    e(f"s_lshl_b32 s58, s{sW}, 1")
    for k in range(8):
        e(f"s_add_u32 s59, s58, {k}"); e("s_and_b32 s59, s59, 7")
        e("v_xor_b32 v1, s59, v3"); e("v_lshl_add_u32 v1, v1, 5, v2")
        if k < 2: e(f"v_add_u32 {v(vWR+k)}, 20480, v1")
        e(f"v_add_u32 {v(vVR+k)}, s{sSLOT}, v1")
    for r in range(160): e(f"v_mov_b32 {v(vO+r)}, 0")
    for r in range(20): e(f"v_accvgpr_write_b32 {a(aL+r)}, 0")
    e("v_mov_b32 v1, 0x3f803f80")
    for r in range(4): e(f"v_accvgpr_write_b32 {a(aONE+r)}, v1")
    stamp()
    def kv_dma(isK, slot_base, sT, sT_hi):
        g = []
        for p in range(8):
            grp = []
            if p % 4 == 0: grp.append(f"s_add_u32 m0, s{sSLOT}, {slot_base + (p // 4) * 4096}")
            if p % 4 == 0: grp.append("s_nop 0")
            vo = vOK + (p >> 1) if isK else vOV + ((p >> 1) & 1)
            so = sT if p < 4 else sT_hi
            grp.append(f"buffer_load_dwordx4 {v(vo)}, {srd(SRD_K if isK else SRD_V)}, s{so} offen offset:{(p % 4)*1024} lds")
            g.append(grp)
        return g
    def set_T(isK, t):
        r = sTK if isK else sTV
        return [f"s_mov_b32 s{r}, {t*8192}", f"s_mov_b32 s{r+1}, {t*8192+4096}"]
    plan = {1: p1_dma(3),
            2: [set_T(True, 0)] + kv_dma(True, R_A, sTK, sTK2),
            3: [set_T(True, 1)] + kv_dma(True, R_B, sTK, sTK2) + [set_T(False, 0)] + kv_dma(False, R_C, sTV, sTV2)}
    vm = {0: 26, 1: 13, 2: 13, 3: 8}
    acc = vP
    gemm_stage_loop(vXR, vWR, aK, aK + 40, acc, [53248, 53248, -106496], plan, vm, after_last_reads=["s_barrier"])
    stamp()
    e(f"s_mov_b32 s{sT0}, {f2u(QSCALE)}")
    e(f"s_lshl_b32 s58, s{sW}, 2")
    e("v_lshrrev_b32 v1, 1, v5"); e("v_add_u32 v1, s58, v1"); e("v_xor_b32 v1, v1, v4"); e("v_lshlrev_b32 v1, 4, v1")
    e("v_lshl_add_u32 v1, v4, 8, v1"); e("v_and_b32 v2, 1, v5"); e("v_lshl_add_u32 v1, v2, 3, v1")
    e(f"v_add_u32 v1, {R_QX}, v1"); e("v_xor_b32 v2, 32, v1")
    e("s_waitcnt vmcnt(16)")
    for kt in range(2):
        for ds in range(4):
            e(f"ds_read_b128 {a(aK + (kt*4+ds)*4, 4)}, {v(vKR+ds)} offset:{kt*1024}")
    for j in range(5):
        for dd in range(2):
            r = acc + (j*2+dd)*4
            for q in range(4): e(f"v_mul_f32 {v(r+q)}, s{sT0}, {v(r+q)}")
            e(f"v_cvt_pk_bf16_f32 {v(r)}, {v(r)}, {v(r+1)}"); e(f"v_cvt_pk_bf16_f32 {v(r+1)}, {v(r+2)}, {v(r+3)}")
            e(f"ds_write_b64 {'v1' if dd == 0 else 'v2'}, {v(r, 2)} offset:{j*4096}")
    e("s_waitcnt lgkmcnt(0)")
    e("s_barrier")
    for ks in range(4): e(f"v_add_u32 {v(vXR+ks)}, {R_QX}, {v(vXR+ks)}")
    for j in range(3):
        for ds in range(4):
            e(f"ds_read_b128 {a(aQ + (j*4+ds)*4, 4)}, {v(vXR+ds)} offset:{j*4096}")
    for grp in [set_T(True, 2)] + kv_dma(True, R_A, sTK, sTK2) + [set_T(False, 1)] + kv_dma(False, R_D, sTV, sTV2):
        for s in grp: e(s)
    for r in range(20): e(f"v_mov_b32 {v(vNM+r)}, 0")
    e("s_waitcnt lgkmcnt(4)")
    for j in range(3, 5):
        for ds in range(4):
            e(f"ds_read_b128 {a(aQ + (j*4+ds)*4, 4)}, {v(vXR+ds)} offset:{j*4096}")
    stamp()
    vVRC = vTMP
    e("s_waitcnt lgkmcnt(0)")
    for k in range(8): e(f"v_add_u32 {v(vVRC+k)}, {R_C}, {v(vVR+k)}")
    def kreads(slot):
        r = []
        buf = slot
        for kt in range(2):
            for ds in range(4):
                r.append(f"ds_read_b128 {a(aK + buf*32 + (kt*4+ds)*4, 4)}, {v(vKR+ds)} offset:{(KSLOT[slot]-R_A) + kt*1024}")
        return r
    def vreads(slot):
        r = []
        base = vVRC if slot == 0 else vVR
        for k in range(8):
            for jh in range(2):
                r.append(f"ds_read_b64_tr_b16 {a(aV + slot*32 + k*4 + jh*2, 2)}, {v(base+k)} offset:{jh*1024}")
        return r
    def qk(j, kbuf, sbuf):
        m = []
        for ds in range(4):
            for kt in range(2):
                d = v(vS + sbuf*8 + kt*4, 4)
                c = v(vNM + j*4, 4) if ds == 0 else d
                m.append(f"{MF} {d}, {a(aK + kbuf*32 + (kt*4+ds)*4, 4)}, {a(aQ + (j*4+ds)*4, 4)}, {c}")
        return m
    def pv(j, vbuf, ks=range(8), withl=True):
        m = []
        for k in ks:
            d = v(vO + (k*5+j)*4, 4)
            m.append(f"{MF} {d}, {a(aV + vbuf*32 + k*4, 4)}, {v(vP + j*4, 4)}, {d}")
        if withl:
            m.append(f"{MF} {a(aL + j*4, 4)}, {a(aONE, 4)}, {v(vP + j*4, 4)}, {a(aL + j*4, 4)}")
        return m
    def exps(sbuf): return [f"v_exp_f32 {v(vS + sbuf*8 + n)}, {v(vS + sbuf*8 + n)}" for n in range(8)]
    def cvts(sbuf, j): return [f"v_cvt_pk_bf16_f32 {v(vP + j*4 + n)}, {v(vS + sbuf*8 + 2*n)}, {v(vS + sbuf*8 + 2*n+1)}" for n in range(4)]
    e("s_waitcnt vmcnt(16)")
    rd = kreads(1) + vreads(0)
    for j in range(5):
        sb = (5 + j) & 1
        m = qk(j, 0, sb)
        gaps = {}
        if j > 0:
            ex = exps(sb ^ 1); cv = cvts(sb ^ 1, j - 1)
            for n in range(8): gaps.setdefault(n, []).append(ex[n])
            gaps[2].append(cv[0]); gaps[4].append(cv[1]); gaps[6].append(cv[2]); gaps[7] += ["s_nop 0", cv[3]]
        else:
            for n in range(2, 8): gaps[n] = [rd.pop(0), rd.pop(0)]
        if j == 1: gaps[0].insert(0, "s_nop 1")
        if j in (1, 2, 3):
            for n in (1, 3, 5, 7): gaps[n].append(rd.pop(0))
        interleave(m, gaps)
    assert not rd
    e("s_waitcnt lgkmcnt(0)")
    e(f"s_mov_b32 s{sCNT}, 0")
    for s in set_T(True, 3) + set_T(False, 2): e(s)
    stamp()
    def half(par):
        dma = kv_dma(True, KSLOT[par ^ 1], sTK, sTK2) + kv_dma(False, VSLOT[par], sTV, sTV2)
        flat = []
        for grp in dma:
            for s in grp:
                if s != "s_nop 0": flat.append(s)
        kr = kreads(par); vr = vreads(par ^ 1)
        free = [1, 5, 9, 13, 16, 3, 7, 11, 15]
        for j in range(5):
            sb = (5*par + j) & 1
            m = qk(j, par ^ 1, sb) + pv(j, par)
            jp = (j - 1) % 5
            ex = exps(sb ^ 1); cv = cvts(sb ^ 1, jp)
            gaps = {g: [] for g in range(-1, 17)}
            for n in range(8): gaps[2*n].append(ex[n])
            for n in range(4): gaps[4*n+3].append(cv[n])
            if j <= 1:
                order = [1, 3, 5, 7, 9, 11, 13, 15, 16]
                todo = flat[:10]; flat[:] = flat[10:]
                gi = 0
                for s in todo:
                    if s.startswith("s_add_u32 m0"):
                        gaps[order[gi] - 1].append(s) if order[gi] != 1 else gaps[-1].append(s)
                    else:
                        gaps[order[gi]].append(s); gi += 1
            if j == 2:
                assert not flat
                gaps[-1].append("s_waitcnt vmcnt(24)")
                gaps[1] += kr[0:2]; gaps[5] += kr[2:4]; gaps[9] += kr[4:6]; gaps[13] += kr[6:8]
                gaps[16] += [f"s_add_u32 s{sTK}, s{sTK}, 8192", f"s_add_u32 s{sTK2}, s{sTK2}, 8192"]
            if j == 3:
                gaps[-1].append("s_waitcnt vmcnt(16)")
                gaps[1] += vr[0:2]; gaps[5] += vr[2:4]; gaps[9] += vr[4:6]; gaps[13] += vr[6:8]; gaps[16] += vr[8:10]
                gaps[3].append(f"s_add_u32 s{sTV}, s{sTV}, 8192"); gaps[7].append(f"s_add_u32 s{sTV2}, s{sTV2}, 8192")
            if j == 4:
                gaps[1] += vr[10:12]; gaps[5] += vr[12:14]; gaps[9] += vr[14:16]
                if par == 0:
                    gaps[13] += [f"s_add_u32 s{sCNT}, s{sCNT}, 1", f"s_cmp_eq_u32 s{sCNT}, 4"]
                gaps[16].append("s_waitcnt lgkmcnt(0)")
            interleave(m, gaps)
    L.append(".p2align 6")
    lab("L_loop")
    half(0)
    e("s_cbranch_scc1 L_exit")
    half(1)
    e("s_branch L_loop")
    lab("L_exit")
    stamp()
    ex = exps(0); cv = cvts(0, 4)
    for n in range(8): e(ex[n])
    lane_consts()
    for n in range(4): e(cv[n])
    vXW = vKR
    vXRD = vKR + 3
    vLW = vOK; vLR = vOK + 1
    def xbase(dst, sreg):
        e(f"s_mul_i32 s58, s{sreg}, 15360"); e(f"s_cmp_ge_u32 s{sreg}, 2"); e(f"s_cselect_b32 s59, {R_C - 2*15360}, 0"); e("s_add_u32 s58, s58, s59")
        e(f"v_lshl_add_u32 {v(dst)}, v0, 4, s58")
    for mrel in range(1, 4):
        e(f"s_add_u32 s{sT0}, s{sW}, {mrel}"); e(f"s_and_b32 s{sT0}, s{sT0}, 3")
        xbase(vXW + mrel - 1, sT0)
    xbase(vXRD, sW)
    e(f"s_lshl_b32 s58, s{sW}, 2"); e(f"s_add_u32 s58, s58, {R_SP}")
    e(f"v_lshl_add_u32 {v(vLW)}, v4, 4, s58")
    e(f"v_lshlrev_b32 {v(vLR)}, 4, v4"); e(f"v_add_u32 {v(vLR)}, {R_SP}, {v(vLR)}")
    e("s_waitcnt vmcnt(0)")
    e("s_barrier")
    vC = vS
    def packwrite(mrel, j, slot):
        k0 = 2 * mrel
        r0 = vO + (k0*5+j)*4; r1 = vO + ((k0+1)*5+j)*4
        t = vC + slot*4
        return [f"v_cvt_pk_bf16_f32 {v(t)}, {v(r0)}, {v(r0+1)}", f"v_cvt_pk_bf16_f32 {v(t+1)}, {v(r0+2)}, {v(r0+3)}",
                f"v_cvt_pk_bf16_f32 {v(t+2)}, {v(r1)}, {v(r1+1)}", f"v_cvt_pk_bf16_f32 {v(t+3)}, {v(r1+2)}, {v(r1+3)}",
                f"ds_write_b128 {v(vXW + mrel - 1)}, {v(t, 4)} offset:{((mrel-1)*5 + j)*1024}"]
    m = []
    for mrel in (1, 2, 3, 0):
        for j in range(5):
            m += pv(j, 1, ks=(2*mrel, 2*mrel+1), withl=(mrel == 0))
    gaps = {}
    items = []
    cnt = 0
    for mrel in (1, 2, 3):
        for j in range(5):
            items.append((mrel, j))
    stream = []
    for n, (mrel, j) in enumerate(items):
        ready = (mrel-1)*10 + 2*j + 1 + 8
        for s in packwrite(mrel, j, n & 3): stream.append((ready, s))
    gi = 0
    while stream and gi < len(m):
        put = 0
        while stream and stream[0][0] <= gi and put < 2:
            gaps.setdefault(gi, []).append(stream.pop(0)[1]); put += 1
        gi += 1
    interleave(m, gaps)
    for _, s in stream: e(s)
    e("s_nop 7")
    for j in range(5): e(f"ds_write_b32 {v(vLW)}, {a(aL + j*4)} offset:{j*256}")
    vE = vP
    e_onehot(vE)
    e("s_waitcnt lgkmcnt(0)")
    e("s_barrier")
    stamp()
    for j in range(5): e(f"ds_read_b128 {v(vNM + j*4, 4)}, {v(vLR)} offset:{j*256}")
    for j in range(5):
        for s in range(2): e(f"ds_read_b128 {a(aK + (j*3+s)*4, 4)}, {v(vXRD)} offset:{(s*5+j)*1024}")
    e("s_waitcnt lgkmcnt(10)")
    for j in range(5): e(f"ds_read_b128 {a(aK + (j*3+2)*4, 4)}, {v(vXRD)} offset:{(10+j)*1024}")
    for j in range(5):
        r = vNM + j*4
        e(f"v_add_f32 {v(r)}, {v(r)}, {v(r+1)}"); e(f"v_add_f32 {v(r+2)}, {v(r+2)}, {v(r+3)}"); e(f"v_add_f32 {v(r)}, {v(r)}, {v(r+2)}")
        e(f"v_rcp_f32 {v(r)}, {v(r)}")
    e("s_waitcnt lgkmcnt(0)")
    m = []
    for j in range(5):
        for s in range(3):
            for k in range(2):
                d = v(vO + (k*5+j)*4, 4)
                m.append(f"{MF} {d}, {v(vE + (2 if k == 0 else 0), 4)}, {a(aK + (j*3+s)*4, 4)}, {d}")
    e(f"v_lshlrev_b32 v1, 4, v0")
    e(f"s_mul_i32 s{sT0}, s{sW}, 5120"); e(f"s_add_u32 s{sT1}, s{sT0}, 4096")
    stream = []
    for j in range(5):
        ready = 6*j + 5 + 8
        r0 = vO + j*4; r1 = vO + (5+j)*4; t = vC + (j & 3)*4
        ins = [f"v_mul_f32 {v(r0+q)}, {v(vNM+j*4)}, {v(r0+q)}" for q in range(4)] + [f"v_mul_f32 {v(r1+q)}, {v(vNM+j*4)}, {v(r1+q)}" for q in range(4)]
        ins += [f"v_cvt_pk_bf16_f32 {v(t)}, {v(r0)}, {v(r0+1)}", f"v_cvt_pk_bf16_f32 {v(t+1)}, {v(r0+2)}, {v(r0+3)}",
                f"v_cvt_pk_bf16_f32 {v(t+2)}, {v(r1)}, {v(r1+1)}", f"v_cvt_pk_bf16_f32 {v(t+3)}, {v(r1+2)}, {v(r1+3)}"]
        if j < 4: ins.append(f"buffer_store_dwordx4 {v(t, 4)}, v1, {srd(SRD_O)}, s{sT0} offen offset:{j*1024}")
        else: ins = ["s_nop 1"] + ins + [f"buffer_store_dwordx4 {v(t, 4)}, v1, {srd(SRD_O)}, s{sT1} offen"]
        for s in ins: stream.append((ready, s))
    gaps = {}; gi = 0
    while stream and gi < len(m):
        put = 0
        while stream and stream[0][0] <= gi and put < 2:
            gaps.setdefault(gi, []).append(stream.pop(0)[1]); put += 1
        gi += 1
    interleave(m, gaps)
    e("s_nop 7")
    for _, s in stream: e(s)
    stamp()
    write_stamps(0, NST)
    lab(f"L_done_{name}")
    e("s_endpgm")

def kernel2(name):
    head(name)
    stamp()
    lane_consts()
    vLIN = 8; vWO = 9; vXR = 11; vWR = 12
    e(f"v_lshlrev_b32 {v(vLIN)}, 4, v0")
    e("v_lshlrev_b32 v2, 1, v5"); e("v_xor_b32 v2, v4, v2"); e("v_lshlrev_b32 v2, 4, v2")
    e(f"v_lshl_add_u32 {v(vWO)}, v5, 10, v2"); e(f"v_xor_b32 {v(vWO+1)}, 128, {v(vWO)}")
    e("s_waitcnt lgkmcnt(0)")
    e(f"s_lshl_b32 s{sT0}, s{sHKV}, 19"); e(f"s_lshl_b32 s{sT1}, s{sI}, 8"); e(f"s_add_u32 s{sT0}, s{sT0}, s{sT1}")
    e(f"s_sub_u32 s{sT1}, 524288, s{sT1}"); mk_srd(SRD_WO, 12, sT0, f"s{sT1}")
    e(f"s_and_b32 s{sT0}, s2, 63"); e(f"s_mul_i32 s{sT0}, s{sT0}, 20480"); mk_srd(SRD_O, 18, sT0, 64*20480*3 + 20480)
    e(f"s_mul_i32 s{sT1}, s{sW}, 5120")
    e(f"s_lshl_b32 s{sT2}, s{sW}, 15")
    e(f"s_lshl_b32 s{sSLOT}, s{sW}, 13")
    def dma(cc):
        g = []
        for pp in range(5):
            g.append([f"s_add_u32 m0, s{sT1}, {S_ST[cc] + pp*1024}", f"s_add_u32 s{sT3}, s{sT1}, {pp*1024 + cc*64*20480}",
                      f"buffer_load_dwordx4 {v(vLIN)}, {srd(SRD_O)}, s{sT3} offen lds"])
        for pp in range(8):
            g.append([f"s_add_u32 m0, s{sSLOT}, {S_ST[cc] + 20480 + pp*1024}", f"s_add_u32 s{sT3}, s{sT2}, {(cc*128 + 4*pp)*1024}",
                      f"buffer_load_dwordx4 {v(vWO + (pp & 1))}, {srd(SRD_WO)}, s{sT3} offen lds"])
        return g
    for cc in range(3):
        for grp in dma(cc):
            for s in grp: e(s)
    e(f"v_mov_b32 {v(vXR)}, {v(vLIN)}")
    e("v_lshl_add_u32 v2, v5, 2, v6"); e("v_lshlrev_b32 v2, 8, v2"); e("v_lshl_add_u32 v2, v7, 3, v2")
    e("v_and_b32 v3, 1, v5"); e("v_lshl_add_u32 v3, v3, 2, v6")
    e(f"s_lshl_b32 s58, s{sW}, 1")
    for k in range(2):
        e(f"s_add_u32 s59, s58, {k}")
        e("v_xor_b32 v1, s59, v3"); e("v_lshl_add_u32 v1, v1, 5, v2"); e(f"v_add_u32 {v(vWR+k)}, 20480, v1")
    acc = 16
    gemm_stage_loop(vXR, vWR, 0, 40, acc, [53248, 53248, -106496], {1: dma(3)}, {0: 26, 1: 13, 2: 13, 3: 0}, linearB=True)
    stamp()
    e(f"s_and_b32 s{sT0}, s2, 0xf8"); e(f"s_lshl_b32 s{sT1}, s{sW}, 1"); e(f"s_add_u32 s{sT0}, s{sT0}, s{sT1}")
    e(f"s_mul_i32 s{sT0}, s{sT0}, 24576"); e(f"s_mul_i32 s{sT1}, s{sHKV}, 3072"); e(f"s_add_u32 s{sT0}, s{sT0}, s{sT1}")
    e(f"s_add_u32 s{sT0}, s{sT0}, {WS_PART}")
    mk_srd(SRD_X, 18, sT0, 24576 + 3072)
    e(f"s_mov_b32 s{sT1}, 24576")
    e("s_nop 4")
    for j in range(5):
        r0 = acc + j*8; r1 = r0 + 4
        e(f"v_cvt_pk_bf16_f32 {v(r0)}, {v(r0)}, {v(r0+1)}"); e(f"v_cvt_pk_bf16_f32 {v(r0+1)}, {v(r0+2)}, {v(r0+3)}")
        e(f"v_cvt_pk_bf16_f32 {v(r0+2)}, {v(r1)}, {v(r1+1)}"); e(f"v_cvt_pk_bf16_f32 {v(r0+3)}, {v(r1+2)}, {v(r1+3)}")
        if j < 3: e(f"buffer_store_dwordx4 {v(r0, 4)}, {v(vLIN)}, {srd(SRD_X)}, 0 offen offset:{j*1024}")
        else: e(f"buffer_store_dwordx4 {v(r0, 4)}, {v(vLIN)}, {srd(SRD_X)}, s{sT1} offen offset:{(j-3)*1024}")
    stamp()
    write_stamps(8, NST)
    lab(f"L_done_{name}")
    e("s_endpgm")

def kernel3(name):
    head(name)
    stamp()
    lane_consts()
    e(f"s_and_b32 s{sT0}, s{sHKV}, 1"); e(f"s_sub_u32 s{sT1}, 3, s{sT0}"); e(f"s_cmp_ge_u32 s{sW}, s{sT1}")
    e(f"s_cbranch_scc1 L_done_{name}")
    e("v_lshlrev_b32 v8, 4, v0")
    e("s_waitcnt lgkmcnt(0)")
    e(f"s_mul_i32 s{sT1}, s2, 24576"); e(f"s_lshl_b32 s{sT2}, s{sW}, 10"); e(f"s_add_u32 s{sT1}, s{sT1}, s{sT2}"); e(f"s_add_u32 s{sT1}, s{sT1}, {WS_PART}")
    mk_srd(SRD_X, 18, sT1, 24576)
    e(f"s_mov_b32 s{sT1}, 0")
    for p in range(8):
        e(f"buffer_load_dwordx4 {v(32 + p*4, 4)}, v8, {srd(SRD_X)}, s{sT1} offen")
        e(f"s_add_u32 s{sT1}, s{sT1}, 3072")
    e_onehot(16)
    e(f"s_mul_i32 s{sT0}, s{sT0}, 3"); e(f"s_add_u32 s{sT0}, s{sT0}, s{sW}"); e(f"s_lshl_b32 s{sT0}, s{sT0}, 4")
    e(f"s_mul_i32 s{sT1}, s{sB}, 80"); e(f"s_add_u32 s{sT0}, s{sT0}, s{sT1}"); e(f"s_lshl_b32 s{sT0}, s{sT0}, 10")
    e(f"s_lshl_b32 s{sT1}, s{sI}, 8"); e(f"s_add_u32 s{sT0}, s{sT0}, s{sT1}")
    e(f"s_lshr_b32 s{sT1}, s{sHKV}, 1"); e(f"s_lshl_b32 s{sT1}, s{sT1}, 6"); e(f"s_add_u32 s{sT0}, s{sT0}, s{sT1}")
    e("v_lshlrev_b32 v9, 10, v4"); e("v_lshl_add_u32 v9, v5, 3, v9")
    e(f"s_mov_b32 s{SRD_O}, s14"); e(f"s_mov_b32 s{SRD_O+1}, s15"); e(f"s_mov_b32 s{SRD_O+2}, 655360"); e(f"s_mov_b32 s{SRD_O+3}, 0x20000")
    for p in range(8):
        e(f"s_waitcnt vmcnt({7-p})")
        for k in range(2):
            d = v(24 + k*4, 4)
            e(f"{MF} {d}, {v(16 + (2 if k == 0 else 0), 4)}, {v(32 + p*4, 4)}, {'0' if p == 0 else d}")
    e("s_nop 7")
    e("v_cvt_pk_bf16_f32 v24, v24, v25"); e("v_cvt_pk_bf16_f32 v25, v26, v27")
    e("v_cvt_pk_bf16_f32 v28, v28, v29"); e("v_cvt_pk_bf16_f32 v29, v30, v31")
    e(f"buffer_store_dwordx2 v[24:25], v9, {srd(SRD_O)}, s{sT0} offen")
    e(f"buffer_store_dwordx2 v[28:29], v9, {srd(SRD_O)}, s{sT0} offen offset:32")
    stamp()
    write_stamps(11, NST)
    lab(f"L_done_{name}")
    e("s_endpgm")

NST = 13
hdr = open("standalone__gqa_block_cached__near_ridge.s.ref").read().split("\n")
for ln in hdr:
    if ln.startswith("; Override") or ln.startswith("; grid=") or ln.startswith("; @launch"): continue
    if not ln.startswith(";"): break
    L.append(ln)
L.append("; @launch kernel=attn_kernel grid=(256,1,1) block=(256,1,1) lds=163840")
L.append("; @launch kernel=proj_kernel grid=(256,1,1) block=(256,1,1) lds=163840")
L.append("; @launch kernel=red_kernel grid=(256,1,1) block=(256,1,1) lds=0")
L.append('.amdgcn_target "amdgcn-amd-amdhsa--gfx950"')
L.append(".text")
kernel1("attn_kernel")
kernel2("proj_kernel")
kernel3("red_kernel")
L.append('.section .rodata,"a"')
for KN, nv, acc in (("attn_kernel", 512, 256), ("proj_kernel", 128, 64), ("red_kernel", 64, 64)):
    L.append(".p2align 6"); L.append(f".amdhsa_kernel {KN}")
    for s in [f"next_free_vgpr {nv}", "next_free_sgpr 102", f"accum_offset {acc}", "group_segment_fixed_size 0", "kernarg_size 64", "user_sgpr_count 2", "user_sgpr_kernarg_segment_ptr 1", "system_sgpr_workgroup_id_x 1"]:
        L.append("  .amdhsa_" + s)
    L.append(".end_amdhsa_kernel")
print("\n".join(L))
```

```python
import sys, math, struct

X = set(a[2:] for a in sys.argv[1:] if a.startswith("--") and "=" not in a)
OPT = dict(a[2:].split("=") for a in sys.argv[1:] if a.startswith("--") and "=" in a)
STAMPS = "stamps" in X
KN = "standalone__gqa_block_cached__near_ridge_kernel"
L = []

class Tr:
    def __init__(s): s.ops = []
    def add(s, tag): s.ops.append(tag)
    def need(s, tag):
        idx = max(i for i, t in enumerate(s.ops) if t == tag)
        return len(s.ops) - 1 - idx
VM = Tr(); LG = Tr()

def e(s):
    tag = None
    if " @" in s:
        s, tag = s.split(" @")
    op = s.split()[0]
    if op == "WAITVM":
        n = VM.need(s.split()[1]); s = f"s_waitcnt vmcnt({n})"; assert n < 64
    elif op == "WAITLG":
        n = LG.need(s.split()[1]); s = f"s_waitcnt lgkmcnt({min(n, 15)})"
    elif op.startswith("buffer_") or op.startswith("global_"): VM.add(tag)
    elif op.startswith("ds_"): LG.add(tag)
    L.append("    " + s)
def lab(s): L.append(s + ":")

QSCALE = 1.4426950408889634 / math.sqrt(128.0)
def f2u(x): return struct.unpack("<I", struct.pack("<f", x))[0]

S_ST = [0, 53248, 106496, 0]
R_D, R_QX, R_A, R_B, R_C, R_SP = 0, 32768, 53248, 86016, 118784, 151552
KSLOT = [R_A, R_B]; VSLOT = [R_C, R_D]
WS_PART = 8 << 20
WS_STAMP = 128 << 20
HEADSTRIDE = 64 * 20480

sW, sHKV, sB, sI = 3, 20, 21, 22
sPASS = 23
SRD_X, SRD_WQ, SRD_K, SRD_V, SRD_O, SRD_WO = 24, 28, 32, 36, 40, 44
SRD_P, SRD_D = 24, 28
sTK, sTK2, sTV, sTV2, sSLOT, sCNT = 48, 49, 50, 51, 52, 53
sT0, sT1, sT2, sT3 = 54, 55, 56, 57
sOOWN, sW5K, sSPIN = 60, 61, 62
SRD_PI = 64
sSTAMP = 68

vKR = 8; vVR = 12; vOK = 20; vOV = 24; vLIN = 26; vJUNK = 27
vP = 28; vS = 48; vNM = 64; vTMP = 84; vO = 96
aQ = 0; aK = 80; aV = 144; aL = 208; aONE = 248

def srd(r): return f"s[{r}:{r+3}]"
def v(r, n=1): return f"v{r}" if n == 1 else f"v[{r}:{r+n-1}]"
def a(r, n=1): return f"a{r}" if n == 1 else f"a[{r}:{r+n-1}]"
MF = "v_mfma_f32_16x16x32_bf16"
SC = "sc1"
SPIN_MAX = 400000

nstamp = [0]
def stamp():
    if not STAMPS: return
    i = nstamp[0]; nstamp[0] += 1
    L.append(f"    {'s_memtime' if 'cyc' in X else 's_memrealtime'} s[{sSTAMP+2*i}:{sSTAMP+2*i+1}]")
    L.append("    s_waitcnt lgkmcnt(0)")

def write_stamps():
    if not STAMPS: return
    n = nstamp[0]
    e("s_lshl_b32 s58, s2, 2"); e(f"s_add_u32 s58, s58, s{sW}"); e(f"s_mul_i32 s58, s58, {n*8}")
    e(f"s_add_u32 s58, s58, {WS_STAMP}")
    e("s_add_u32 s58, s18, s58"); e("s_addc_u32 s59, s19, 0")
    e("s_mov_b64 exec, 1")
    e("v_mov_b32 v1, 0")
    for i in range(n):
        e(f"v_mov_b32 v2, s{sSTAMP+2*i}"); e(f"v_mov_b32 v3, s{sSTAMP+2*i+1}")
        e(f"global_store_dwordx2 v1, v[2:3], s[58:59] offset:{i*8}")
        e("s_nop 1")
    sys.stderr.write(f"stamps: {n}\n")

def mk_srd(r, pbase, off_sgpr, size):
    return [f"s_add_u32 s{r}, s{pbase}, s{off_sgpr}", f"s_addc_u32 s{r+1}, s{pbase+1}, 0",
            f"s_mov_b32 s{r+2}, {size}", f"s_mov_b32 s{r+3}, 0x20000"]

def emit(lst):
    for s in lst: e(s)

def interleave(mfmas, gaps):
    emit(gaps.get(-1, []))
    for i, m in enumerate(mfmas):
        e(m)
        emit(gaps.get(i, []))

def place(nm, stream, per=2, gaps=None):
    gaps = gaps if gaps is not None else {}
    stream = list(stream)
    for gi in range(nm):
        while stream and stream[0][0] <= gi and len(gaps.setdefault(gi, [])) < per:
            gaps[gi].append(stream.pop(0)[1])
    return gaps, [s for _, s in stream]

def onehot(dst):
    return [f"v_mov_b32 {v(dst)}, 0", f"v_mov_b32 {v(dst+1)}, 0", f"v_mov_b32 {v(dst+4)}, 0", f"v_mov_b32 {v(dst+5)}, 0",
            "v_lshlrev_b32 v1, 2, v5", "v_sub_u32 v1, v4, v1", "v_and_b32 v2, 1, v1", "v_lshlrev_b32 v2, 4, v2",
            "v_mov_b32 v3, 0x3f80", "v_lshlrev_b32 v2, v2, v3", "v_lshrrev_b32 v1, 1, v1",
            "v_cmp_eq_u32 vcc, 0, v1", "s_nop 1", f"v_cndmask_b32 {v(dst+2)}, 0, v2, vcc",
            "v_cmp_eq_u32 vcc, 1, v1", "s_nop 1", f"v_cndmask_b32 {v(dst+3)}, 0, v2, vcc"]

def kv_dma(isK, slot_base, tag, nop=True):
    g = []
    for p in range(8):
        grp = []
        if p % 4 == 0:
            grp.append(f"s_add_u32 m0, s{sSLOT}, {slot_base + (p // 4) * 4096}")
            if nop: grp.append("s_nop 0")
        vo = vOK + (p >> 1) if isK else vOV + ((p >> 1) & 1)
        so = (sTK if isK else sTV) + (0 if p < 4 else 1)
        grp.append(f"buffer_load_dwordx4 {v(vo)}, {srd(SRD_K if isK else SRD_V)}, s{so} offen offset:{(p % 4)*1024} lds @{tag}")
        g.append(grp)
    return g
def set_T(isK, t):
    r = sTK if isK else sTV
    return [f"s_mov_b32 s{r}, {t*8192}", f"s_mov_b32 s{r+1}, {t*8192+4096}"]
def flat(groups): return [s for g in groups for s in g]

vVRC = vTMP
def kreads(slot, tag="kr"):
    return [f"ds_read_b128 {a(aK + slot*32 + (kt*4+ds)*4, 4)}, {v(vKR+ds)} offset:{(KSLOT[slot]-R_A) + kt*1024} @{tag}"
            for kt in range(2) for ds in range(4)]
def vreads(slot, tag="vr"):
    base = vVRC if slot == 0 else vVR
    return [f"ds_read_b64_tr_b16 {a(aV + slot*32 + k*4 + jh*2, 2)}, {v(base+k)} offset:{jh*1024} @{tag}"
            for k in range(8) for jh in range(2)]
def qk(j, kbuf, sbuf, cinit=None):
    m = []
    order = [(ds, kt) for kt in range(2) for ds in range(4)] if "nochain" not in X else [(ds, kt) for ds in range(4) for kt in range(2)]
    for ds, kt in order:
        d = v(vS + sbuf*8 + kt*4, 4)
        c = (cinit or v(vNM + j*4, 4)) if ds == 0 else d
        m.append(f"{MF} {d}, {a(aK + kbuf*32 + (kt*4+ds)*4, 4)}, {a(aQ + (j*4+ds)*4, 4)}, {c}")
    return m
def pv(j, vbuf, ks=range(8), withl=True):
    m = []
    for k in ks:
        d = v(vO + (k*5+j)*4, 4)
        m.append(f"{MF} {d}, {a(aV + vbuf*32 + k*4, 4)}, {v(vP + j*4, 4)}, {d}")
    if withl:
        m.append(f"{MF} {a(aL + j*4, 4)}, {a(aONE, 4)}, {v(vP + j*4, 4)}, {a(aL + j*4, 4)}")
    return m
def exps(sbuf): return [f"v_exp_f32 {v(vS + sbuf*8 + n)}, {v(vS + sbuf*8 + n)}" for n in range(8)]
def cvts(sbuf, j): return [f"v_cvt_pk_bf16_f32 {v(vP + j*4 + n)}, {v(vS + sbuf*8 + 2*n)}, {v(vS + sbuf*8 + 2*n+1)}" for n in range(4)]
def pack4(t, r0, r1):
    return [f"v_cvt_pk_bf16_f32 {v(t)}, {v(r0)}, {v(r0+1)}", f"v_cvt_pk_bf16_f32 {v(t+1)}, {v(r0+2)}, {v(r0+3)}",
            f"v_cvt_pk_bf16_f32 {v(t+2)}, {v(r1)}, {v(r1+1)}", f"v_cvt_pk_bf16_f32 {v(t+3)}, {v(r1+2)}, {v(r1+3)}"]
def sanit(t): return [f"v_min_u32 {v(t+q)}, -2, {v(t+q)}" for q in range(4)]

def pf(n):
    return [f"s_lshr_b32 s58, s{sI}, 1", f"s_add_u32 s58, s58, {2*n}", "s_lshl_b32 s58, s58, 13",
            f"s_bitcmp1_b32 s{sI}, 0", f"s_cbranch_scc1 L_pfv{n}",
            f"buffer_load_dword {v(vJUNK)}, v3, {srd(SRD_K)}, s58 offen @pf{n}", f"s_branch L_pfe{n}",
            f"LABEL L_pfv{n}", f"RAW buffer_load_dword {v(vJUNK)}, v3, {srd(SRD_V)}, s58 offen", f"LABEL L_pfe{n}"]
_e0 = e
def e(s):
    if s.startswith("LABEL "): lab(s[6:]); return
    if s.startswith("RAW "): L.append("    " + s[4:]); return
    _e0(s)

def kernel():
    L.append(f".globl {KN}"); L.append(".p2align 8"); L.append(f".type {KN},@function"); lab(KN)
    e("s_cmp_ge_u32 s2, 256"); e("s_cbranch_scc1 L_done")
    e("s_load_dwordx16 s[4:19], s[0:1], 0")
    e("v_lshrrev_b32 v1, 6, v0")
    e("v_and_b32 v0, 63, v0")
    e(f"v_readfirstlane_b32 s{sW}, v1")
    e(f"s_and_b32 s{sHKV}, s2, 7"); e(f"s_lshr_b32 s{sB}, s2, 3"); e(f"s_and_b32 s{sB}, s{sB}, 7"); e(f"s_lshr_b32 s{sI}, s2, 6")
    stamp()
    e("v_and_b32 v4, 15, v0"); e("v_lshrrev_b32 v5, 4, v0"); e("v_bfe_u32 v6, v0, 2, 2"); e("v_and_b32 v7, 3, v0")
    vXO = vTMP; vWO = vTMP + 4; vXR = vTMP + 6; vWR = vTMP + 10
    e("v_xor_b32 v1, v4, v5")
    for pp in range(4):
        e(f"s_add_u32 s{sT0}, s{sW}, {pp}"); e(f"s_and_b32 s{sT0}, s{sT0}, 3"); e(f"s_lshl_b32 s{sT0}, s{sT0}, 2")
        e(f"v_xor_b32 v2, s{sT0}, v1"); e("v_lshlrev_b32 v2, 4, v2"); e(f"v_lshl_add_u32 {v(vXO+pp)}, v5, 10, v2")
    e("v_lshlrev_b32 v2, 1, v5"); e("v_xor_b32 v2, v4, v2"); e("v_lshlrev_b32 v2, 4, v2")
    e(f"v_lshl_add_u32 {v(vWO)}, v5, 13, v2"); e(f"v_xor_b32 {v(vWO+1)}, 128, {v(vWO)}")
    e(f"v_lshl_add_u32 {v(vOV)}, v5, 8, v2"); e(f"v_xor_b32 {v(vOV+1)}, 128, {v(vOV)}")
    e(f"s_mul_i32 s58, s{sB}, 81920")
    e(f"s_lshl_b32 s59, s{sHKV}, 2"); e(f"s_add_u32 s59, s59, s{sI}"); e("s_lshl_b32 s59, s59, 8")
    e(f"s_sub_u32 s{sT3}, 4194304, s59")
    e(f"s_mul_i32 s{sT0}, s{sW}, 20480"); e(f"s_mul_i32 s{sW5K}, s{sW}, 5120")
    e(f"s_lshl_b32 s{sT2}, s{sW}, 18"); e(f"s_lshl_b32 s{sSLOT}, s{sW}, 13")
    e("s_waitcnt lgkmcnt(0)")
    emit(mk_srd(SRD_X, 4, 58, 81920)); emit(mk_srd(SRD_WQ, 10, 59, f"s{sT3}"))
    def p1_dma(cc):
        g = []
        for pp in range(5):
            g.append([f"s_add_u32 m0, s{sW5K}, {S_ST[cc] + pp*1024}", f"s_add_u32 s{sT3}, s{sT0}, {pp*4096 + cc*256}",
                      f"buffer_load_dwordx4 {v(vXO + (pp & 3))}, {srd(SRD_X)}, s{sT3} offen lds @c{cc}"])
        for pp in range(8):
            g.append([f"s_add_u32 m0, s{sSLOT}, {S_ST[cc] + 20480 + pp*1024}", f"s_add_u32 s{sT3}, s{sT2}, {(cc*128 + 4*pp)*8192}",
                      f"buffer_load_dwordx4 {v(vWO + ((pp >> 1) & 1))}, {srd(SRD_WQ)}, s{sT3} offen lds @c{cc}"])
        return g
    if "pfx" in X:
        e(f"s_lshl_b32 s58, s{sB}, 2"); e(f"s_add_u32 s58, s58, s{sW}"); e("s_lshl_b32 s58, s58, 17")
        e("v_lshrrev_b32 v2, 1, v0"); e("v_lshlrev_b32 v2, 13, v2"); e("v_and_b32 v3, 1, v0"); e("v_lshl_add_u32 v2, v3, 7, v2")
        e(f"s_lshl_b32 s59, s{sI}, 2"); e(f"s_add_u32 s59, s59, s{sW}"); e("s_mul_i32 s59, s59, 5120")
        e("v_lshlrev_b32 v3, 7, v0")
        e("s_mov_b64 exec, 0xffffffff")
        e(f"buffer_load_dword {v(vJUNK)}, v2, {srd(SRD_WQ)}, s58 offen @pfx")
        e("s_mov_b32 exec_hi, 0xff")
        e(f"buffer_load_dword {v(vJUNK)}, v3, {srd(SRD_X)}, s59 offen @pfx")
        e("s_mov_b64 exec, -1")
    emit(flat(p1_dma(0)))
    c1 = p1_dma(1)
    emit(flat(c1[:3]))
    e(f"s_lshl_b32 s58, s{sB}, 3"); e(f"s_add_u32 s58, s58, s{sHKV}"); e("s_lshl_b32 s58, s58, 18")
    e(f"s_lshl_b32 s59, s{sW}, 16"); e("s_add_u32 s58, s58, s59")
    emit(mk_srd(SRD_K, 6, 58, 65536)); emit(mk_srd(SRD_V, 8, 58, 65536))
    e("s_and_b32 s58, s2, 63"); e("s_mul_i32 s58, s58, 20480"); emit(mk_srd(SRD_O, 18, 58, 3*HEADSTRIDE + 20480))
    e(f"s_mul_i32 s{sOOWN}, s{sI}, {HEADSTRIDE}"); e(f"s_add_u32 s{sOOWN}, s{sOOWN}, s{sW5K}")
    e("s_and_b32 s58, s2, 0xf8"); e(f"s_lshl_b32 s59, s{sW}, 1"); e("s_add_u32 s58, s58, s59"); e("s_mul_i32 s58, s58, 24576")
    e(f"s_mul_i32 s59, s{sHKV}, 3072"); e("s_add_u32 s58, s58, s59"); e(f"s_add_u32 s58, s58, {WS_PART}")
    emit(mk_srd(SRD_PI, 18, 58, 24576 + 3072))
    e(f"s_lshl_b32 s58, s{sHKV}, 19"); e(f"s_lshl_b32 s59, s{sI}, 8"); e("s_add_u32 s58, s58, s59"); e("s_sub_u32 s59, 524288, s59")
    emit(mk_srd(SRD_WO, 12, 58, "s59"))
    e(f"s_mov_b32 s{sPASS}, 0")
    e(f"v_lshlrev_b32 {v(vLIN)}, 4, v0")
    e("v_lshlrev_b32 v2, 4, v1"); e(f"v_lshl_add_u32 {v(vXR)}, v4, 8, v2")
    for ks in range(1, 4): e(f"v_xor_b32 {v(vXR+ks)}, {ks*64}, {v(vXR)}")
    e(f"v_lshl_add_u32 {v(vOK)}, v5, 8, v2")
    for vv in range(1, 4): e(f"v_xor_b32 {v(vOK+vv)}, {vv*64}, {v(vOK)}")
    e("v_lshrrev_b32 v3, 2, v4"); e("v_lshlrev_b32 v3, 3, v3"); e("v_and_b32 v1, 3, v4"); e("v_add_u32 v3, v3, v1")
    e("v_lshl_add_u32 v2, v3, 8, v2"); e(f"v_add_u32 v2, s{sSLOT}, v2"); e(f"v_add_u32 {v(vKR)}, {R_A}, v2")
    for ds in range(1, 4): e(f"v_xor_b32 {v(vKR+ds)}, {ds*64}, {v(vKR)}")
    e("v_lshl_add_u32 v2, v5, 3, v6"); e("v_lshlrev_b32 v2, 8, v2"); e("v_lshl_add_u32 v2, v7, 3, v2")
    e("v_and_b32 v3, 1, v5"); e("v_lshl_add_u32 v3, v3, 2, v6")
    e(f"s_lshl_b32 s58, s{sW}, 1")
    for k in range(8):
        e(f"s_add_u32 s59, s58, {k}"); e("s_and_b32 s59, s59, 7")
        e("v_xor_b32 v1, s59, v3"); e("v_lshl_add_u32 v1, v1, 5, v2")
        if k < 2: e(f"v_add_u32 {v(vWR+k)}, 20480, v1")
        e(f"v_add_u32 {v(vVR+k)}, s{sSLOT}, v1")
    e("v_lshlrev_b32 v3, 7, v0")
    for r in range(160): e(f"v_mov_b32 {v(vO+r)}, 0")
    for r in range(20): e(f"v_accvgpr_write_b32 {a(aL+r)}, 0")
    e("v_mov_b32 v1, 0x3f803f80")
    for r in range(4): e(f"v_accvgpr_write_b32 {a(aONE+r)}, v1")
    vSENT = vNM + 4
    for r in range(4): e(f"v_mov_b32 {v(vSENT+r)}, -1")
    emit(flat(c1[3:]))
    stamp()
    init = []
    for j in range(5):
        if j < 4: init.append([f"buffer_store_dwordx4 {v(vSENT, 4)}, {v(vLIN)}, {srd(SRD_O)}, s{sOOWN} offen offset:{j*1024} {SC} @init"])
        else: init.append([f"s_add_u32 s{sT3}, s{sOOWN}, 4096", f"buffer_store_dwordx4 {v(vSENT, 4)}, {v(vLIN)}, {srd(SRD_O)}, s{sT3} offen {SC} @init"])
    for j in range(5):
        if j < 3: init.append([f"buffer_store_dwordx4 {v(vSENT, 4)}, {v(vLIN)}, {srd(SRD_PI)}, 0 offen offset:{j*1024} {SC} @init"])
        else: init.append([f"s_mov_b32 s{sT3}, 24576", f"buffer_store_dwordx4 {v(vSENT, 4)}, {v(vLIN)}, {srd(SRD_PI)}, s{sT3} offen offset:{(j-3)*1024} {SC} @init"])
    if "noinit" in X: init = [[f"s_nop 0"]] * 10
    if "lateinit" in X: late_init = init; init = [[]] * 10
    PF = OPT.get("pf", "")
    def pfs(where):
        r = []
        for it in PF.split(","):
            if it and it[1:] == where: r.append(pf(int(it[0])))
        return r
    plan = {0: pfs("a") + p1_dma(2) + init[:5] + pfs("A"), 1: pfs("b") + p1_dma(3) + init[5:] + pfs("B"),
            2: pfs("c") + [set_T(True, 0)] + kv_dma(True, R_A, "K0") + pfs("C")}
    acc = vP
    aX = aV; aWf = aV + 40
    for cc in range(3):
        e(f"WAITVM c{cc}")
        e("s_barrier")
        if "p1st" in X: stamp()
        def reads(ks):
            buf = ks & 1
            r = [f"ds_read_b64_tr_b16 {a(aWf + buf*8 + dd*4 + jh*2, 2)}, {v(vWR+dd)} offset:{ks*8192 + jh*1024}" for dd in range(2) for jh in range(2)]
            r += [f"ds_read_b128 {a(aX + buf*20 + j*4, 4)}, {v(vXR+ks)} offset:{j*4096}" for j in range(5)]
            return r
        emit(reads(0))
        dm = list(plan[cc])
        for _ in range(2): emit(dm.pop(0))
        for ks in range(4):
            e("s_waitcnt lgkmcnt(0)")
            buf = ks & 1
            m = []
            for j in range(5):
                for dd in range(2):
                    d = v(acc + (j*2+dd)*4, 4)
                    c = "0" if (cc == 0 and ks == 0) else d
                    m.append(f"{MF} {d}, {a(aWf + buf*8 + dd*4, 4)}, {a(aX + buf*20 + j*4, 4)}, {c}")
            gaps = {}
            if ks < 3:
                r = reads(ks + 1)
                for gi in range(5): gaps[gi] = r[2*gi:2*gi+2]
            else:
                e(f"s_mov_b32 s58, {[53248, 53248, -106496][cc]}")
                adj = [f"v_add_u32 {v(vXR+q)}, s58, {v(vXR+q)}" for q in range(4)] + [f"v_add_u32 {v(vWR+q)}, s58, {v(vWR+q)}" for q in range(2)]
                for gi in range(3): gaps[gi] = adj[2*gi:2*gi+2]
            for gi in (5, 6, 7, 8, 9):
                if dm: gaps.setdefault(gi, []).extend(dm.pop(0))
            interleave(m, gaps)
        emit(flat(dm))
    aX3 = aQ; aW3 = aK + 32
    e("WAITVM c3")
    e("s_barrier")
    if "p1st" in X: stamp()
    def wrd(ks): return [f"ds_read_b64_tr_b16 {a(aW3 + (ks*2+dd)*4 + jh*2, 2)}, {v(vWR+dd)} offset:{ks*8192 + jh*1024} @w{ks}" for dd in range(2) for jh in range(2)]
    def xrd(j, ks): return f"ds_read_b128 {a(aX3 + (j*4+ks)*4, 4)}, {v(vXR+ks)} offset:{j*4096} @x{j}{ks}"
    for ks in range(3): emit(wrd(ks)); e(xrd(0, ks))
    e(f"s_mov_b32 s{sT0}, {f2u(QSCALE)}")
    e(f"s_lshl_b32 s58, s{sW}, 2")
    e("v_lshrrev_b32 v1, 1, v5"); e("v_add_u32 v1, s58, v1"); e("v_xor_b32 v1, v1, v4"); e("v_lshlrev_b32 v1, 4, v1")
    e("v_lshl_add_u32 v1, v4, 8, v1"); e("v_and_b32 v2, 1, v5"); e("v_lshl_add_u32 v1, v2, 3, v1")
    e(f"v_add_u32 v1, {R_QX}, v1"); e("v_xor_b32 v2, 32, v1")
    dm = [set_T(True, 1)] + kv_dma(True, R_B, "K1") + [set_T(False, 0)] + kv_dma(False, R_C, "V0")[:4]
    post = []
    rq = [xrd(0, 3)] + [xrd(j, ks) for j in range(1, 5) for ks in range(4)]
    for j in range(5):
        for ks in range(4):
            e(f"WAITLG x{j}{ks}")
            if j == 0 and ks == 3: e("s_barrier")
            for dd in range(2):
                d = v(acc + (j*2+dd)*4, 4)
                e(f"{MF} {d}, {a(aW3 + (ks*2+dd)*4, 4)}, {a(aX3 + (j*4+ks)*4, 4)}, {d}")
                if j == 0 and ks == 0 and dd == 0: emit(wrd(3))
                elif dd == 1 and rq: e(rq.pop(0))
                if dd == 0 and ks != 3 and dm and not (j == 0 and ks == 0): emit(dm.pop(0))
                if j > 0 and (ks, dd) != (0, 0) and (ks, dd) != (0, 1):
                    for _ in range(3):
                        if post: e(post.pop(0))
        emit(post); post = []
        for dd in range(2):
            r = acc + (j*2+dd)*4
            post += [f"v_mul_f32 {v(r+q)}, s{sT0}, {v(r+q)}" for q in range(4)]
            post += [f"v_cvt_pk_bf16_f32 {v(r)}, {v(r)}, {v(r+1)}", f"v_cvt_pk_bf16_f32 {v(r+1)}, {v(r+2)}, {v(r+3)}",
                     f"ds_write_b64 {'v1' if dd == 0 else 'v2'}, {v(r, 2)} offset:{j*4096} @qw"]
        if j < 4: post = ["s_nop 1"] + post
    emit(flat(dm))
    e("WAITVM K0")
    emit(kreads(0, "k0"))
    emit(post)
    for ks in range(4): e(f"v_add_u32 {v(vXR+ks)}, {R_QX}, {v(vXR+ks)}")
    if "noinit" not in X: e("WAITVM init")
    e("s_waitcnt lgkmcnt(0)")
    e("s_barrier")
    stamp()
    for j in range(3):
        for ds in range(4):
            e(f"ds_read_b128 {a(aQ + (j*4+ds)*4, 4)}, {v(vXR+ds)} offset:{j*4096} @q{j}")
    e(f"s_mov_b32 s{SRD_D}, s16"); e(f"s_mov_b32 s{SRD_D+1}, s17"); e(f"s_mov_b32 s{SRD_D+2}, 256"); e(f"s_mov_b32 s{SRD_D+3}, 0x20000")
    e(f"s_lshl_b32 s{sT1}, s{sB}, 5")
    e(f"s_cmp_lg_u32 s{sW}, 0"); e("s_cbranch_scc1 L_noat")
    e("s_mov_b64 exec, 1"); e("v_mov_b32 v1, 1"); e("v_mov_b32 v2, 0")
    L.append(f"    buffer_atomic_add v1, v2, {srd(SRD_D)}, s{sT1} offen sc1")
    e("s_mov_b64 exec, -1")
    lab("L_noat")
    for r in range(20): e(f"v_mov_b32 {v(vNM+r)}, 0")
    e("WAITLG q0")
    def qrd(j): return [f"ds_read_b128 {a(aQ + (j*4+ds)*4, 4)}, {v(vXR+ds)} offset:{j*4096} @q{j}" for ds in range(4)]
    emit(qrd(3))
    dm = kv_dma(False, R_C, "V0")[4:] + [set_T(True, 2)] + kv_dma(True, R_A, "K2") + [set_T(False, 1)] + kv_dma(False, R_D, "V1")
    dm = pfs("p") + dm + pfs("P")
    rdk = kreads(1, "k1"); rdv = vreads(0, "v0")
    for j in range(5):
        sb = (5 + j) & 1
        m = qk(j, 0, sb)
        gaps = {g: [] for g in range(-1, 8)}
        gaps[-1].append(f"WAITLG q{j}") if j in (1, 2, 3, 4) else None
        if j > 0:
            ex = exps(sb ^ 1); cv = cvts(sb ^ 1, j - 1)
            for n in range(8): gaps[n].append(ex[n])
            gaps[2].append(cv[0]); gaps[4].append(cv[1]); gaps[6].append(cv[2]); gaps[7] += ["s_nop 0", cv[3]]
            if "nochain" in X: gaps[0].insert(0, "s_nop 3")
        if j == 1: gaps[-1] += [f"v_add_u32 {v(vVRC+k)}, {R_C}, {v(vVR+k)}" for k in range(8)]
        if j == 0:
            for n in range(8):
                if dm: gaps[n] += dm.pop(0)
            gaps[3] += ["WAITLG q1"] + qrd(4)
        elif j in (1, 2):
            for n in (1, 3, 5, 7):
                if dm: gaps[n] += dm.pop(0)
            if j == 2:
                gaps[1].append("WAITVM K1")
                for n in (1, 3, 5, 7): gaps[n] += [rdk.pop(0), rdk.pop(0)]
        else:
            for n in (1, 3, 5, 7):
                if dm: gaps[n] += dm.pop(0)
            if j == 3: gaps[1].append("WAITVM V0")
            for n in (1, 3, 5, 7): gaps[n] += [rdv.pop(0), rdv.pop(0)]
        interleave(m, gaps)
    emit(flat(dm))
    assert not rdk and not rdv
    e(f"s_mov_b32 s{sCNT}, 0")
    emit(set_T(True, 3) + set_T(False, 2))
    e("s_waitcnt lgkmcnt(0)")
    stamp()
    def half(par):
        dma = [s for s in flat(kv_dma(True, KSLOT[par ^ 1], "lk", nop=False) + kv_dma(False, VSLOT[par], "lv", nop=False))]
        kr = kreads(par); vr = vreads(par ^ 1)
        G = {g: [] for g in range(-1, 85)}
        M = []
        for j in range(5):
            sb = (5*par + j) & 1
            M += qk(j, par ^ 1, sb) + pv(j, par)
            ex = exps(sb ^ 1); cv = cvts(sb ^ 1, (j - 1) % 5)
            for n in range(8): G[17*j + 2*n].append(ex[n])
            for n in range(4): G[17*j + 4*n + 3].append(cv[n])
        sched = OPT.get("sched", "a")
        if sched == "a":
            dpos = [1, 5, 9, 13, 20, 24, 28, 32, 37, 43, 49, 54, 60, 66, 71, 77]; mpos = [-1, 16, 35, 58]
            kw = 33; kpos = [33, 35, 39, 39, 41, 43, 45, 47]
            vw = 50; vpos = [50, 52, 52, 56, 56, 60, 62, 64, 64, 67, 67, 69, 69, 73, 73, 75]
            tpos = [18, 47, 77, 79]
        elif sched == "b":
            dpos = [1, 5, 9, 13, 16, 20, 24, 28, 32, 35, 39, 43, 47, 52, 56, 60]; mpos = [-1, 15, 30, 45]
            kw = 41; kpos = [43, 47, 49, 50, 50, 52, 54, 56]
            vw = 58; vpos = [60, 62, 64, 64, 66, 67, 67, 69, 69, 71, 73, 73, 75, 77, 77, 79]
            tpos = [18, 33, 37, 81]
            tpos = [18, 33, 81, 84]
        elif sched == "old":
            dpos = [1, 3, 5, 7, 9, 11, 13, 15, 18, 20, 22, 24, 26, 28, 30, 32]; mpos = [-1, 8, 16, 25]
            kw = 33; kpos = [35, 35, 39, 39, 43, 43, 47, 47]
            vw = 50; vpos = [52, 52, 56, 56, 60, 60, 64, 64, 67, 67, 69, 69, 73, 73, 77, 77]
            tpos = [37, 41, 79, 81]
        n = 0; nm = 0
        for s in dma:
            if "m0" in s: G[mpos[nm]].append(s); nm += 1
        for s in dma:
            if "m0" not in s: G[dpos[n]].append(s); n += 1
        G[kw].append(f"s_waitcnt vmcnt({8 + sum(1 for p in dpos if p <= kw)})")
        for p, s in zip(kpos, kr): G[p].append(s)
        G[vw].append(f"s_waitcnt vmcnt({sum(1 for p in dpos if p <= vw)})")
        for p, s in zip(vpos, vr): G[p].append(s)
        for p, r in zip(tpos, (sTK, sTK2, sTV, sTV2)): G[p].insert(len([x for x in G[p] if "s_cmp" not in x]), f"s_add_u32 s{r}, s{r}, 8192")
        if par == 0: G[81].append(f"s_add_u32 s{sCNT}, s{sCNT}, 1"); G[84].append(f"s_cmp_eq_u32 s{sCNT}, 4")
        G[83].append("s_waitcnt lgkmcnt(15)")
        G[7].append("s_waitcnt lgkmcnt(0)")
        for k in ("nodma", "noexp", "nods"):
            if k in X:
                pats = {"nodma": ("buffer_load", "m0"), "noexp": ("v_exp", "v_cvt"), "nods": ("ds_read",)}[k]
                G = {g: [s for s in l if not any(p in s for p in pats)] for g, l in G.items()}
        interleave(M, G)
    L.append(".p2align 6")
    lab("L_loop")
    half(0)
    e("s_cbranch_scc1 L_exit")
    half(1)
    e("s_branch L_loop")
    lab("L_exit")
    e("s_waitcnt lgkmcnt(0)")
    stamp()
    VM.ops = ["z"]; LG.ops = []
    e("v_mov_b32 v1, 0")
    e(f"buffer_load_dword {v(vJUNK)}, v1, {srd(SRD_D)}, s{sT1} offen sc1 @hs")
    emit(exps(0))
    vXW = vKR; vXRD = vKR + 3
    vLW = vOK; vLR = vOK + 1; vWOO = vOK + 2
    def xbase(dst, sreg):
        return [f"s_mul_i32 s58, s{sreg}, 15360", f"s_cmp_ge_u32 s{sreg}, 2", f"s_cselect_b32 s59, {R_C - 2*15360}, 0", "s_add_u32 s58, s58, s59",
                f"v_add_u32 {v(dst)}, s58, {v(vLIN)}"]
    e("v_lshlrev_b32 v2, 1, v5"); e("v_xor_b32 v2, v4, v2"); e("v_lshlrev_b32 v2, 4, v2")
    emit(cvts(0, 4))
    e(f"v_lshl_add_u32 {v(vWOO)}, v5, 10, v2"); e(f"v_xor_b32 {v(vWOO+1)}, 128, {v(vWOO)}")
    pre = []
    for mrel in range(1, 4):
        pre += [f"s_add_u32 s{sT0}, s{sW}, {mrel}", f"s_and_b32 s{sT0}, s{sT0}, 3"] + xbase(vXW + mrel - 1, sT0)
    pre += ["WAITVM z", "s_barrier"]
    pre2 = xbase(vXRD, sW) + [f"s_lshl_b32 s58, s{sW}, 2", f"s_add_u32 s58, s58, {R_SP}", f"v_lshl_add_u32 {v(vLW)}, v4, 4, s58",
                              f"v_lshlrev_b32 {v(vLR)}, 4, v4", f"v_add_u32 {v(vLR)}, {R_SP}, {v(vLR)}"]
    WREG = [R_A, R_B, R_C, R_D]
    def wo_dma(h):
        g = [[f"s_add_u32 s{sT2}, s{sI}, {h}", f"s_and_b32 s{sT2}, s{sT2}, 3", f"s_lshl_b32 s{sT2}, s{sT2}, 2", f"s_add_u32 s{sT2}, s{sT2}, s{sW}",
              f"s_lshl_b32 s{sT2}, s{sT2}, 15"]]
        for pp in range(8):
            g.append([f"s_add_u32 m0, s{sSLOT}, {WREG[h] + pp*1024}", f"s_add_u32 s{sT3}, s{sT2}, {pp*4096}",
                      f"buffer_load_dwordx4 {v(vWOO + (pp & 1))}, {srd(SRD_WO)}, s{sT3} offen lds @wo{h}"])
        return g
    vC = vS
    m = []
    for mrel in (1, 2, 3, 0):
        for j in range(5):
            m += pv(j, 1, ks=(2*mrel, 2*mrel+1), withl=(mrel == 0))
    stream = [(0, s) for s in pre]
    n = 0
    wo01 = wo_dma(0) + wo_dma(1)
    for mrel in (1, 2, 3):
        for j in range(5):
            ready = (mrel-1)*10 + 2*j + 1 + 8
            t = vC + (n & 3)*4; n += 1
            k0 = 2*mrel
            ins = pack4(t, vO + (k0*5+j)*4, vO + ((k0+1)*5+j)*4) + [f"ds_write_b128 {v(vXW + mrel - 1)}, {v(t, 4)} offset:{((mrel-1)*5 + j)*1024} @xw"]
            if wo01: ins += wo01.pop(0)
            stream += [(ready, s) for s in ins]
    gaps, left = place(len(m), stream, per=3)
    interleave(m, gaps)
    emit(left); emit(flat(wo01)); emit(pre2)
    for j in range(5): e(f"ds_write_b32 {v(vLW)}, {a(aL + j*4)} offset:{j*256}")
    vE = vP
    emit(onehot(vE))
    e("s_waitcnt lgkmcnt(0)")
    e("s_barrier")
    stamp()
    for j in range(5): e(f"ds_read_b128 {v(vNM + j*4, 4)}, {v(vLR)} offset:{j*256} @l")
    for j in range(5):
        for s in range(2): e(f"ds_read_b128 {a(aK + (j*3+s)*4, 4)}, {v(vXRD)} offset:{(s*5+j)*1024} @xr{j}{s}")
    e("WAITLG l")
    for j in range(5): e(f"ds_read_b128 {a(aK + (j*3+2)*4, 4)}, {v(vXRD)} offset:{(10+j)*1024} @xr{j}2")
    for j in range(5):
        r = vNM + j*4
        e(f"v_add_f32 {v(r)}, {v(r)}, {v(r+1)}"); e(f"v_add_f32 {v(r+2)}, {v(r+2)}, {v(r+3)}"); e(f"v_add_f32 {v(r)}, {v(r)}, {v(r+2)}")
    for j in range(5): e(f"v_rcp_f32 {v(vNM + j*4)}, {v(vNM + j*4)}")
    m = []; gaps = {}
    order = [(j, s) for s in range(2) for j in range(5)] + [(j, 2) for j in range(5)]
    for n, (j, s) in enumerate(order):
        gaps.setdefault(2*n - 1, []).append(f"WAITLG xr{j}{s}")
        for k in range(2):
            d = v(vO + (k*5+j)*4, 4)
            m.append(f"{MF} {d}, {v(vE + (2 if k == 0 else 0), 4)}, {a(aK + (j*3+s)*4, 4)}, {d}")
    interleave(m, gaps)
    e(f"s_add_u32 s{sT0}, s{sOOWN}, 4096")
    e(f"v_add_u32 v1, s{sW5K}, {v(vLIN)}")
    for j in range(5):
        r0 = vO + j*4; r1 = vO + (5+j)*4; t = vO + 40 + j*4
        emit([f"v_mul_f32 {v(r0+q)}, {v(vNM+j*4)}, {v(r0+q)}" for q in range(4)] + [f"v_mul_f32 {v(r1+q)}, {v(vNM+j*4)}, {v(r1+q)}" for q in range(4)])
        emit(pack4(t, r0, r1)); emit(sanit(t))
        if j < 4: e(f"buffer_store_dwordx4 {v(t, 4)}, {v(vLIN)}, {srd(SRD_O)}, s{sOOWN} offen offset:{j*1024} {SC} @ost")
        else: e(f"buffer_store_dwordx4 {v(t, 4)}, {v(vLIN)}, {srd(SRD_O)}, s{sT0} offen {SC} @ost")
        e(f"ds_write_b128 v1, {v(t, 4)} offset:{R_QX + j*1024}")
    stamp()
    vWR2 = vVR; vB2 = vVR + 2; vB3 = vVR + 3; vCHK = vVR + 4; vPRB = vVR + 5
    e("v_lshl_add_u32 v2, v5, 2, v6"); e("v_lshlrev_b32 v2, 8, v2"); e("v_lshl_add_u32 v2, v7, 3, v2")
    e("v_and_b32 v3, 1, v5"); e("v_lshl_add_u32 v3, v3, 2, v6")
    e(f"s_lshl_b32 s58, s{sW}, 1")
    for k in range(2):
        e(f"s_add_u32 s59, s58, {k}")
        e("v_xor_b32 v1, s59, v3"); e("v_lshl_add_u32 v1, v1, 5, v2"); e(f"v_add_u32 {v(vWR2+k)}, {R_A}, v1")
    e(f"v_add_u32 {v(vB2)}, {R_A}, {v(vLIN)}"); e(f"v_add_u32 {v(vB3)}, {R_SP + 2048 - 12*1024}, {v(vLIN)}")
    e("WAITVM wo1")
    e("s_waitcnt lgkmcnt(0)")
    e("s_barrier")
    pacc = vO + 60; pcopy = vO + 100; pB = vO + 0
    aW = aK
    def p4_chunk(h, dm, check, first):
        def baddr(n):
            if h <= 1: return vLIN, R_QX + n*1024
            if h == 2: return vB2, n*1024
            return (vB2, 20480 + n*1024) if n < 12 else (vB3, n*1024)
        def reads(ks):
            buf = ks & 1
            r = [f"ds_read_b64_tr_b16 {a(aW + buf*8 + nn*4 + jh*2, 2)}, {v(vWR2+nn)} offset:{ks*8192 + jh*4096}" for nn in range(2) for jh in range(2)]
            for j in range(5):
                b, o = baddr(ks*5 + j)
                r.append(f"ds_read_b128 {v(pB + buf*20 + j*4, 4)}, {v(b)} offset:{o}")
            return r
        emit(reads(0))
        dm = list(dm)
        for _ in range(2):
            if dm: emit(dm.pop(0))
        for ks in range(4):
            e("s_waitcnt lgkmcnt(0)")
            buf = ks & 1
            m = []
            for j in range(5):
                for nn in range(2):
                    d = v(pacc + (j*2+nn)*4, 4)
                    c = "0" if (first and ks == 0) else d
                    m.append(f"{MF} {d}, {a(aW + buf*8 + nn*4, 4)}, {v(pB + buf*20 + j*4, 4)}, {c}")
            gaps = {}
            if ks < 3:
                r = reads(ks + 1)
                for gi in range(5): gaps[gi] = r[2*gi:2*gi+2]
            elif h < 3:
                e(f"s_mov_b32 s58, {WREG[h+1] - WREG[h]}")
                gaps[0] = [f"v_add_u32 {v(vWR2+q)}, s58, {v(vWR2+q)}" for q in range(2)]
            if check:
                for q in range(10):
                    r = pB + buf*20 + 2*q
                    gaps.setdefault(5 + q // 2, []).append(f"v_max3_u32 {v(vCHK)}, {v(vCHK)}, {v(r)}, {v(r+1)}")
            for gi in (5, 6, 7, 8, 9):
                if dm: gaps.setdefault(gi, []).extend(dm.pop(0))
            interleave(m, gaps)
        emit(flat(dm))
    p4_chunk(0, wo_dma(2) + wo_dma(3), False, True)
    e("v_lshrrev_b32 v1, 2, v0"); e("v_min_u32 v1, 14, v1"); e("v_mul_u32_u24 v2, 13, v1"); e("v_lshrrev_b32 v2, 6, v2")
    e("v_mul_u32_u24 v3, 5, v2"); e("v_sub_u32 v1, v1, v3")
    e(f"s_add_u32 s58, s{sI}, 1"); e("v_add_u32 v2, s58, v2"); e("v_and_b32 v2, 3, v2")
    e(f"s_mov_b32 s58, {HEADSTRIDE}"); e("v_mul_lo_u32 v2, v2, s58"); e("v_lshl_add_u32 v2, v1, 10, v2")
    e(f"v_lshl_add_u32 v2, v7, 8, v2"); e(f"v_add_u32 {v(vPRB)}, 252, v2")
    e("s_barrier")
    for r in range(40): e(f"v_mov_b32 {v(pcopy + r)}, {v(pacc + r)}")
    e(f"s_mov_b32 s{sSPIN}, 0")
    e("WAITVM hs")
    lab("L_hs")
    e(f"v_readfirstlane_b32 s58, {v(vJUNK)}"); e("s_nop 0"); e("s_cmp_eq_u32 s58, 32"); e("s_cbranch_scc1 L_hsok")
    e("v_mov_b32 v1, 0")
    L.append(f"    buffer_load_dword {v(vJUNK)}, v1, {srd(SRD_D)}, s{sT1} offen sc1")
    e("s_waitcnt vmcnt(0)")
    e(f"s_add_u32 s{sSPIN}, s{sSPIN}, 1"); e(f"s_cmp_lt_u32 s{sSPIN}, {SPIN_MAX}"); e("s_cbranch_scc1 L_hs")
    lab("L_hsok")
    stamp()
    lab("L_probe")
    e(f"buffer_load_dword v1, {v(vPRB)}, {srd(SRD_O)}, s{sW5K} offen sc1")
    e("s_waitcnt vmcnt(0)")
    e("v_cmp_eq_u32 vcc, -1, v1")
    e(f"s_add_u32 s{sSPIN}, s{sSPIN}, 1")
    e("s_nop 3")
    e("s_cbranch_vccz L_probed")
    e(f"s_cmp_lt_u32 s{sSPIN}, {SPIN_MAX}"); e("s_cbranch_scc1 L_probe")
    lab("L_probed")
    stamp()
    VM.ops = []
    for h in (1, 2, 3):
        e(f"s_add_u32 s{sT2}, s{sI}, {h}"); e(f"s_and_b32 s{sT2}, s{sT2}, 3"); e(f"s_mul_i32 s{sT2}, s{sT2}, {HEADSTRIDE}"); e(f"s_add_u32 s{sT2}, s{sT2}, s{sW5K}")
        for j in range(5):
            if h < 3:
                e(f"s_add_u32 m0, s{sW5K}, {(R_QX if h == 1 else R_A) + j*1024}")
            else:
                e(f"s_add_u32 s58, s{sW5K}, {j*1024}"); e("s_cmp_lt_u32 s58, 12288")
                e(f"s_cselect_b32 s59, 0, {R_SP + 2048 - 12288 - R_A - 20480}"); e("s_add_u32 s58, s58, s59"); e(f"s_add_u32 m0, s58, {R_A + 20480}")
            e(f"s_add_u32 s{sT3}, s{sT2}, {j*1024}")
            e(f"buffer_load_dwordx4 {v(vLIN)}, {srd(SRD_O)}, s{sT3} offen sc1 lds @sib{h}")
    e(f"v_mov_b32 {v(vCHK)}, 0")
    for h in (1, 2, 3):
        e(f"WAITVM sib{h}")
        e("s_barrier")
        p4_chunk(h, [], True, False)
    e(f"v_cmp_eq_u32 vcc, -1, {v(vCHK)}")
    e(f"s_add_u32 s{sSPIN}, s{sSPIN}, 1")
    e("s_nop 3")
    e("s_cbranch_vccz L_p4ok")
    e(f"s_cmp_ge_u32 s{sSPIN}, {SPIN_MAX}"); e("s_cbranch_scc1 L_p4ok")
    e("s_barrier")
    e("s_nop 7")
    for r in range(40): e(f"v_mov_b32 {v(pacc + r)}, {v(pcopy + r)}")
    e(f"s_mov_b32 s58, {R_B - R_D}")
    for q in range(2): e(f"v_add_u32 {v(vWR2+q)}, s58, {v(vWR2+q)}")
    e("s_branch L_probe")
    lab("L_p4ok")
    stamp()
    e(f"s_mov_b32 s{sT3}, 24576")
    for j in range(5):
        r0 = pacc + j*8
        emit(pack4(r0, r0, r0 + 4)); emit(sanit(r0))
        if j < 3: e(f"buffer_store_dwordx4 {v(r0, 4)}, {v(vLIN)}, {srd(SRD_PI)}, 0 offen offset:{j*1024} {SC}")
        else: e(f"buffer_store_dwordx4 {v(r0, 4)}, {v(vLIN)}, {srd(SRD_PI)}, s{sT3} offen offset:{(j-3)*1024} {SC}")
    stamp()
    e(f"s_and_b32 s{sT0}, s{sHKV}, 1"); e(f"s_sub_u32 s{sT1}, 3, s{sT0}"); e(f"s_cmp_ge_u32 s{sW}, s{sT1}")
    e("s_cbranch_scc1 L_fin")
    e("s_mul_i32 s58, s2, 24576"); e(f"s_lshl_b32 s59, s{sW}, 10"); e("s_add_u32 s58, s58, s59"); e(f"s_add_u32 s58, s58, {WS_PART}")
    emit(mk_srd(SRD_P, 18, 58, 24576))
    e(f"s_mul_i32 s{sT0}, s{sT0}, 3"); e(f"s_add_u32 s{sT0}, s{sT0}, s{sW}"); e(f"s_lshl_b32 s{sT0}, s{sT0}, 4")
    e(f"s_mul_i32 s{sT1}, s{sB}, 80"); e(f"s_add_u32 s{sT0}, s{sT0}, s{sT1}"); e(f"s_lshl_b32 s{sT0}, s{sT0}, 10")
    e(f"s_lshl_b32 s{sT1}, s{sI}, 8"); e(f"s_add_u32 s{sT0}, s{sT0}, s{sT1}")
    e(f"s_lshr_b32 s{sT1}, s{sHKV}, 1"); e(f"s_lshl_b32 s{sT1}, s{sT1}, 6"); e(f"s_add_u32 s{sT0}, s{sT0}, s{sT1}")
    e("v_lshlrev_b32 v9, 10, v4"); e("v_lshl_add_u32 v9, v5, 3, v9")
    e(f"s_mov_b32 s{SRD_K}, s14"); e(f"s_mov_b32 s{SRD_K+1}, s15"); e(f"s_mov_b32 s{SRD_K+2}, 655360"); e(f"s_mov_b32 s{SRD_K+3}, 0x20000")
    fB = vO
    lab("L_red")
    e(f"s_mov_b32 s{sT1}, 0")
    for p in range(8):
        e(f"buffer_load_dwordx4 {v(fB + p*4, 4)}, {v(vLIN)}, {srd(SRD_P)}, s{sT1} offen sc1")
        e(f"s_add_u32 s{sT1}, s{sT1}, 3072")
    e(f"v_mov_b32 {v(vCHK)}, 0")
    for p in range(8):
        e(f"s_waitcnt vmcnt({7-p})")
        for k in range(2):
            d = v(vS + k*4, 4)
            e(f"{MF} {d}, {v(vE + (2 if k == 0 else 0), 4)}, {v(fB + p*4, 4)}, {'0' if p == 0 else d}")
            e(f"v_max3_u32 {v(vCHK)}, {v(vCHK)}, {v(fB + p*4 + 2*k)}, {v(fB + p*4 + 2*k + 1)}")
    e(f"v_cmp_eq_u32 vcc, -1, {v(vCHK)}")
    e(f"s_add_u32 s{sSPIN}, s{sSPIN}, 1")
    e("s_nop 3")
    e("s_cbranch_vccz L_redok")
    e(f"s_cmp_lt_u32 s{sSPIN}, {SPIN_MAX}"); e("s_cbranch_scc1 L_red")
    lab("L_redok")
    e("s_nop 1")
    e(f"v_cvt_pk_bf16_f32 {v(vS)}, {v(vS)}, {v(vS+1)}"); e(f"v_cvt_pk_bf16_f32 {v(vS+1)}, {v(vS+2)}, {v(vS+3)}")
    e(f"v_cvt_pk_bf16_f32 {v(vS+4)}, {v(vS+4)}, {v(vS+5)}"); e(f"v_cvt_pk_bf16_f32 {v(vS+5)}, {v(vS+6)}, {v(vS+7)}")
    e(f"buffer_store_dwordx2 {v(vS, 2)}, v9, {srd(SRD_K)}, s{sT0} offen")
    e(f"buffer_store_dwordx2 {v(vS+4, 2)}, v9, {srd(SRD_K)}, s{sT0} offen offset:32")
    lab("L_fin")
    stamp()
    write_stamps()
    lab("L_done")
    e("s_endpgm")

hdr = open("standalone__gqa_block_cached__near_ridge.s.ref").read().split("\n")
for ln in hdr:
    if ln.startswith("; @launch"): continue
    if not ln.startswith(";"): break
    L.append(ln)
L.append("; @launch grid=(256,1,1) block=(256,1,1) lds=163840")
L.append('.amdgcn_target "amdgcn-amd-amdhsa--gfx950"')
L.append(".text")
kernel()
L.append('.section .rodata,"a"')
L.append(".p2align 6"); L.append(f".amdhsa_kernel {KN}")
for s in ["next_free_vgpr 512", "next_free_sgpr 102", "accum_offset 256", "group_segment_fixed_size 0", "kernarg_size 64", "user_sgpr_count 2", "user_sgpr_kernarg_segment_ptr 1", "system_sgpr_workgroup_id_x 1"]:
    L.append("  .amdhsa_" + s)
L.append(".end_amdhsa_kernel")
print("\n".join(L))
```

```python
import sys, math, struct

X = set(a[2:] for a in sys.argv[1:] if a.startswith("--") and "=" not in a)
OPT = dict(a[2:].split("=") for a in sys.argv[1:] if a.startswith("--") and "=" in a)
STAMPS = "stamps" in X
KVF = OPT.get("kvf", "").replace("_", " "); XF = OPT.get("xf", "").replace("_", " ")
KN = "standalone__gqa_block_cached__near_ridge_kernel"
L = []

class Tr:
    def __init__(s): s.ops = []
    def add(s, tag): s.ops.append(tag)
    def need(s, tag):
        idx = max(i for i, t in enumerate(s.ops) if t == tag)
        return len(s.ops) - 1 - idx
VM = Tr(); LG = Tr()

def lab(s): L.append(s + ":")
def e(s):
    if s.startswith("LABEL "): lab(s[6:]); return
    if s.startswith("RAW "): L.append("    " + s[4:]); return
    if s.startswith("MARK "): return
    if s.startswith("STAMP "): stamp(s[6:]); return
    if s == "NEXTGAP": s = "s_nop 0"
    tag = None
    if " @" in s: s, tag = s.split(" @")
    op = s.split()[0]
    if op == "WAITVM":
        n = VM.need(s.split()[1]); s = f"s_waitcnt vmcnt({min(n, 63)})"
    elif op == "WAITLG":
        n = LG.need(s.split()[1]); s = f"s_waitcnt lgkmcnt({min(n, 15)})"
    elif op.startswith("buffer_") or op.startswith("global_"): VM.add(tag)
    elif op.startswith("ds_"): LG.add(tag)
    L.append("    " + s)
def emit(lst):
    for s in lst: e(s)
def flat(groups): return [s for g in groups for s in g]

QSCALE = 1.4426950408889634 / math.sqrt(128.0)
def f2u(x): return struct.unpack("<I", struct.pack("<f", x))[0]

S_ST = [0, 53248, 106496, 0]
R_D, R_QX, R_A, R_B, R_C, R_SP = 0, 32768, 53248, 86016, 118784, 151552
KSLOT = [R_A, R_B]; VSLOT = [R_C, R_D]
XSLOT = [0, 28672, 40960, 0, 12288]
WS_PART = 8 << 20
WS_FLG = 16 << 20
WS_STAMP = 128 << 20
HEADSTRIDE = 64 * 20480
LO_BITS = 0x21800000
RANGE = 0x3C000000

sW, sHKV, sB, sI = 3, 20, 21, 22
sRANGE = 23
SRD_X, SRD_WQ, SRD_K, SRD_V, SRD_O, SRD_WO = 24, 28, 32, 36, 40, 44
SRD_WS, SRD_D = 24, 28
sTK, sTK2, sTV, sTV2, sSLOT, sCNT = 48, 49, 50, 51, 52, 53
sT0, sT1, sT2, sT3 = 54, 55, 56, 57
sOOWN, sW5K, sSPIN, sFOWN = 60, 61, 62, 63
sOI, sIS3, sIS12 = 11, 12, 13
sPT, sPF0, sPF1 = 96, 97, 95
sMIR, sSTEP, sXB, sWB = 94, 93, 92, 91
sRET = 100
SRD_PI = 64
sSTAMP = 68

vKR = 8; vVR = 12; vOK = 20; vOV = 24; vLIN = 26; vJUNK = 27
vP = 28; vS = 48; vNM = 64; vTMP = 84; vO = 96
vVRC = vTMP; vSENT = vTMP + 8
aQ = 0; aK = 80; aV = 144; aL = 208; aE = 228; aPRB = 234; aADR = 235; aONE = 248
sWOB = 4; sSIB = 7

def srd(r): return f"s[{r}:{r+3}]"
def v(r, n=1): return f"v{r}" if n == 1 else f"v[{r}:{r+n-1}]"
def a(r, n=1): return f"a{r}" if n == 1 else f"a[{r}:{r+n-1}]"
MF = "v_mfma_f32_16x16x32_bf16"
SC = "sc1"
SPIN_MAX = 400000

nstamp = [0]
def stamp(name=""):
    if not STAMPS: return
    sel = OPT.get("st")
    if sel and name not in sel.split(","): return
    i = nstamp[0]; nstamp[0] += 1
    assert sSTAMP + 2*i + 1 < 91
    sys.stderr.write(f"{i}:{name} ")
    L.append(f"    {'s_memtime' if 'cyc' in X else 's_memrealtime'} s[{sSTAMP+2*i}:{sSTAMP+2*i+1}]")
    L.append("    s_waitcnt lgkmcnt(0)")

def write_stamps():
    if not STAMPS: return
    n = nstamp[0]
    e("s_lshl_b32 s58, s2, 2"); e(f"s_add_u32 s58, s58, s{sW}"); e(f"s_mul_i32 s58, s58, {n*8}")
    e(f"s_add_u32 s58, s58, {WS_STAMP}")
    e("s_add_u32 s58, s18, s58"); e("s_addc_u32 s59, s19, 0")
    e("s_mov_b64 exec, 1")
    e("v_mov_b32 v1, 0")
    for i in range(n):
        e(f"v_mov_b32 v2, s{sSTAMP+2*i}"); e(f"v_mov_b32 v3, s{sSTAMP+2*i+1}")
        e(f"global_store_dwordx2 v1, v[2:3], s[58:59] offset:{i*8}")
        e("s_nop 1")
    sys.stderr.write(f"\nstamps: {n}\n")

def mk_srd(r, pbase, off_sgpr, size):
    return [f"s_add_u32 s{r}, s{pbase}, s{off_sgpr}", f"s_addc_u32 s{r+1}, s{pbase+1}, 0",
            f"s_mov_b32 s{r+2}, {size}", f"s_mov_b32 s{r+3}, 0x20000"]

def interleave(mfmas, gaps):
    emit(gaps.get(-1, []))
    for i, m in enumerate(mfmas):
        e(m)
        emit(gaps.get(i, []))

def cost(s):
    if s.startswith("MARK") or s.startswith("LABEL") or s.startswith("STAMP"): return 0
    return 2 if s.startswith(("v_exp", "v_rcp")) else 1

def sched(mfmas, fixed, streams, need=None, budget=2):
    need = need or {}
    streams = [list(s) for s in streams]
    done = set()
    def put(it):
        for s in (it if isinstance(it, list) else [it]):
            if s.startswith("MARK "): done.add(s[5:])
            e(s)
    def icost(it): return sum(cost(s) for s in (it if isinstance(it, list) else [it]))
    def flush(mark):
        if mark in done: return
        for st in streams:
            if any((f"MARK {mark}" in (it if isinstance(it, list) else [it])) for _, it in st):
                while mark not in done: put(st.pop(0)[1])
                return
        raise Exception("mark " + mark)
    emit(fixed.get(-1, []))
    for i, m in enumerate(mfmas):
        for mk in need.get(i, []): flush(mk)
        e(m)
        fx = list(fixed.get(i, []))
        room = budget - sum(cost(s) for s in fx)
        picked = []
        prog = True
        blocked = set()
        while prog:
            prog = False
            for k, st in enumerate(streams):
                if st and st[0][1] == "NEXTGAP" and k not in blocked:
                    st.pop(0); blocked.add(k)
                if k in blocked: continue
                if st and st[0][0] <= i and (icost(st[0][1]) <= room or (room == budget and not fx) or icost(st[0][1]) == 0):
                    it = st.pop(0)[1]; room -= icost(it); picked.append(it); prog = True
                    break
        items = fx + picked
        def indep(k):
            x = items[k]
            if isinstance(x, list) or x.startswith(("v_", "MARK", "STAMP", "ds_write", "buffer_store")): return False
            return all(isinstance(y, str) and y.startswith("v_") and not y.startswith(("v_accvgpr_read", "v_mov")) for y in items[:k])
        for k in range(1, len(items)):
            if indep(k): items.insert(0, items.pop(k)); break
        for it in items: put(it)
    return streams

def kv_dma(isK, slot_base, tag, nop=True):
    g = []
    for p in range(8):
        grp = []
        if p % 4 == 0:
            grp.append(f"s_add_u32 m0, s{sSLOT}, {slot_base + (p // 4) * 4096}")
            if nop: grp.append("s_nop 0")
        vo = vOK + (p >> 1) if isK else vOV + ((p >> 1) & 1)
        so = (sTK if isK else sTV) + (0 if p < 4 else 1)
        grp.append(f"buffer_load_dwordx4 {v(vo)}, {srd(SRD_K if isK else SRD_V)}, s{so} offen offset:{(p % 4)*1024} {KVF} lds @{tag}")
        g.append(grp)
    return g
def set_T(isK, t):
    r = sTK if isK else sTV
    if "mirror" in X: return [f"s_xor_b32 s{r}, s{sMIR}, {t*8192}", f"s_xor_b32 s{r+1}, s{sMIR}, {t*8192+4096}"]
    return [f"s_mov_b32 s{r}, {t*8192}", f"s_mov_b32 s{r+1}, {t*8192+4096}"]
def kreads(slot, tag="kr"):
    return [f"ds_read_b128 {a(aK + slot*32 + (kt*4+ds)*4, 4)}, {v(vKR+ds)} offset:{(KSLOT[slot]-R_A) + kt*1024} @{tag}"
            for kt in range(2) for ds in range(4)]
def vreads(slot, tag="vr"):
    base = vVRC if slot == 0 else vVR
    return [f"ds_read_b64_tr_b16 {a(aV + slot*32 + k*4 + jh*2, 2)}, {v(base+k)} offset:{jh*1024} @{tag}"
            for k in range(8) for jh in range(2)]
def qk(j, kbuf, sbuf, cinit=None):
    m = []
    for kt in range(2):
        for ds in range(4):
            d = v(vS + sbuf*8 + kt*4, 4)
            c = (cinit or v(vNM + j*4, 4)) if ds == 0 else d
            m.append(f"{MF} {d}, {a(aK + kbuf*32 + (kt*4+ds)*4, 4)}, {a(aQ + (j*4+ds)*4, 4)}, {c}")
    return m
def pv(j, vbuf, ks=range(8)):
    m = []
    for k in ks:
        d = v(vO + (k*5+j)*4, 4)
        m.append(f"{MF} {d}, {a(aV + vbuf*32 + k*4, 4)}, {v(vP + j*4, 4)}, {d}")
    m.append(f"{MF} {a(aL + j*4, 4)}, {a(aONE, 4)}, {v(vP + j*4, 4)}, {a(aL + j*4, 4)}")
    return m
def exps(sbuf): return [f"v_exp_f32 {v(vS + sbuf*8 + n)}, {v(vS + sbuf*8 + n)}" for n in range(8)]
def cvts(sbuf, j): return [f"v_cvt_pk_bf16_f32 {v(vP + j*4 + n)}, {v(vS + sbuf*8 + 2*n)}, {v(vS + sbuf*8 + 2*n+1)}" for n in range(4)]
def put_exp(G, base, sbuf, j):
    ex = exps(sbuf); cv = cvts(sbuf, j)
    for n in range(8): G.setdefault(base + 2*n, []).append(ex[n])
    for n in range(4): G.setdefault(base + 4*n + 3, []).append(cv[n])
def pack4(t, r0, r1):
    return [f"v_cvt_pk_bf16_f32 {v(t)}, {v(r0)}, {v(r0+1)}", f"v_cvt_pk_bf16_f32 {v(t+1)}, {v(r0+2)}, {v(r0+3)}",
            f"v_cvt_pk_bf16_f32 {v(t+2)}, {v(r1)}, {v(r1+1)}", f"v_cvt_pk_bf16_f32 {v(t+3)}, {v(r1+2)}, {v(r1+3)}"]
def sanit(t): return [f"v_min_u32 {v(t)}, -2, {v(t)}"]

P_INIT0 = f"buffer_store_dwordx4 {v(vSENT, 4)}, {v(vLIN)}, {srd(SRD_PI)}, 0 offen {SC}"
npf = [0]
def pf(n):
    u = npf[0]; npf[0] += 1
    return [f"s_lshr_b32 s58, s{sI}, 1", f"s_add_u32 s58, s58, {2*n}", "s_lshl_b32 s58, s58, 13",
            f"s_bitcmp1_b32 s{sI}, 0", f"s_cbranch_scc1 L_pfv{u}",
            f"buffer_load_dword {v(vJUNK)}, v3, {srd(SRD_K)}, s58 offen @pf", f"s_branch L_pfe{u}",
            f"LABEL L_pfv{u}", f"RAW buffer_load_dword {v(vJUNK)}, v3, {srd(SRD_V)}, s58 offen", f"LABEL L_pfe{u}"]
def pf_wo():
    return [f"s_lshl_b32 s58, s{sB}, 2", f"s_add_u32 s58, s58, s{sI}", "s_lshl_b32 s58, s58, 2", f"s_add_u32 s58, s58, s{sW}",
            "s_lshl_b32 s58, s58, 12", f"s_lshl_b32 s59, s{sI}, 8", "s_sub_u32 s58, s58, s59",
            f"v_add_u32 v2, s58, v3", "s_mov_b32 exec_hi, 0",
            f"buffer_load_dword {v(vJUNK)}, v2, {srd(SRD_WO)}, 0 offen @pf", "s_mov_b32 exec_hi, -1"]
npt = [0]; stubs = []
def point():
    if "pts" not in OPT: return []
    k = npt[0]; npt[0] += 1
    stubs.append(k)
    return [f"s_sub_u32 s{sPT}, s{sPT}, 1", f"s_cbranch_scc1 L_pt{k}", f"LABEL L_ptr{k}"]
def point_stubs():
    for k in stubs:
        lab(f"L_pt{k}")
        for so in (sPF0, sPF1):
            L.append(f"    buffer_load_dword {v(vJUNK)}, v3, {srd(SRD_K)}, s{so} offen")
            L.append(f"    buffer_load_dword {v(vJUNK)}, v3, {srd(SRD_V)}, s{so} offen")
        e(f"s_branch L_ptr{k}")
def point_setup():
    if "pts" not in OPT: return
    base = [int(x) for x in OPT["pts"].split(",")]
    step = int(OPT.get("pstep", 0)); toff = int(OPT.get("toff", 0))
    e(f"s_mov_b32 s{sPT}, {base[0]}")
    for i in (1, 2, 3):
        e(f"s_cmp_eq_u32 s{sI}, {i}"); e(f"s_cselect_b32 s{sPT}, {base[i]}, s{sPT}")
    e(f"s_mul_i32 s58, s{sB}, {step}"); e("s_lshr_b32 s58, s58, 3"); e(f"s_add_u32 s{sPT}, s{sPT}, s58")
    e(f"s_lshl_b32 s{sPF0}, s{sI}, 14"); e(f"s_add_u32 s{sPF0}, s{sPF0}, {toff*8192}"); e(f"s_add_u32 s{sPF1}, s{sPF0}, 8192")
PF = OPT.get("pf", "")
def pfs(where):
    r = []
    for it in PF.split(","):
        if it and it[1:] == where: r.append(pf_wo() if it[0] == "w" else pf(int(it[0])))
    return r

SCHED = {
 "a": dict(dpos=[1, 5, 9, 13, 20, 24, 28, 32, 37, 43, 49, 54, 60, 66, 71, 77], mpos=[-1, 16, 35, 58],
           kw=33, kpos=[33, 35, 39, 39, 41, 43, 45, 47],
           vw=50, vpos=[50, 52, 52, 56, 56, 60, 62, 64, 64, 67, 67, 69, 69, 73, 73, 75], tpos=[18, 47, 77, 79]),
 "b": dict(dpos=[1, 5, 9, 13, 16, 20, 24, 28, 32, 35, 39, 43, 47, 52, 56, 60], mpos=[-1, 15, 30, 45],
           kw=41, kpos=[43, 47, 49, 50, 50, 52, 54, 56],
           vw=58, vpos=[60, 62, 64, 64, 66, 67, 67, 69, 69, 71, 73, 73, 75, 77, 77, 79], tpos=[18, 33, 81, 84]),
 "c": dict(dpos=[0, 5, 10, 16, 21, 26, 32, 37, 42, 48, 53, 58, 64, 69, 74, 80], mpos=[-1, 18, 40, 61],
           kw=38, kpos=[39, 41, 43, 44, 45, 46, 47, 49],
           vw=62, vpos=[63, 65, 66, 67, 68, 70, 71, 72, 73, 75, 76, 77, 78, 79, 81, 82], tpos=[20, 39, 60, 81]),
 "d": dict(dpos=[0, 4, 8, 12, 16, 20, 24, 28, 32, 36, 40, 44, 48, 52, 56, 60], mpos=[-1, 14, 30, 46],
           kw=45, kpos=[46, 47, 49, 50, 51, 53, 54, 55],
           vw=62, vpos=[63, 64, 65, 66, 67, 68, 69, 70, 71, 72, 73, 74, 75, 76, 77, 78], tpos=[18, 33, 58, 79]),
 "old": dict(dpos=[1, 3, 5, 7, 9, 11, 13, 15, 18, 20, 22, 24, 26, 28, 30, 32], mpos=[-1, 8, 16, 25],
           kw=33, kpos=[35, 35, 39, 39, 43, 43, 47, 47],
           vw=50, vpos=[52, 52, 56, 56, 60, 60, 64, 64, 67, 67, 69, 69, 73, 73, 77, 77], tpos=[37, 41, 79, 81]),
}[OPT.get("sched", "a")]

def kernel():
    L.append(f".globl {KN}"); L.append(".p2align 8"); L.append(f".type {KN},@function"); lab(KN)
    e("s_cmp_ge_u32 s2, 256"); e("s_cbranch_scc1 L_done")
    e("s_load_dwordx16 s[4:19], s[0:1], 0")
    e("v_lshrrev_b32 v1, 6, v0")
    e("v_and_b32 v0, 63, v0")
    e(f"v_readfirstlane_b32 s{sW}, v1")
    e(f"s_and_b32 s{sHKV}, s2, 7"); e(f"s_lshr_b32 s{sB}, s2, 3"); e(f"s_and_b32 s{sB}, s{sB}, 7"); e(f"s_lshr_b32 s{sI}, s2, 6")
    stamp("start")
    if "pfct" in X:
        e("s_getpc_b64 s[58:59]"); lab("L_pc0")
        e(f"s_sub_u32 s58, s58, L_pc0-{KN}"); e("s_subb_u32 s59, s59, 0")
        e(f"s_lshr_b32 s{sT3}, s2, 3"); e(f"s_lshl_b32 s{sT3}, s{sT3}, 2"); e(f"s_add_u32 s{sT3}, s{sT3}, s{sW}"); e(f"s_lshl_b32 s{sT3}, s{sT3}, 8")
        e("v_lshlrev_b32 v3, 7, v0"); e(f"v_add_u32 v2, s{sT3}, v3"); e(f"v_min_u32 v2, L_end-{KN}-4, v2")
        e("s_mov_b64 exec, 3")
        e(f"global_load_dword {v(vJUNK)}, v2, s[58:59] @pfc0")
        e("s_mov_b64 exec, -1")
    e("v_and_b32 v4, 15, v0"); e("v_lshrrev_b32 v5, 4, v0"); e("v_bfe_u32 v6, v0, 2, 2"); e("v_and_b32 v7, 3, v0")
    vXO = vTMP; vWO = vTMP + 4; vXR = vTMP + 6; vWR = vTMP + 10
    e("v_xor_b32 v1, v4, v5")
    for pp in range(4):
        e(f"s_add_u32 s{sT0}, s{sW}, {pp}"); e(f"s_and_b32 s{sT0}, s{sT0}, 3"); e(f"s_lshl_b32 s{sT0}, s{sT0}, 2")
        e(f"v_xor_b32 v2, s{sT0}, v1"); e("v_lshlrev_b32 v2, 4, v2"); e(f"v_lshl_add_u32 {v(vXO+pp)}, v5, 10, v2")
    e("v_lshlrev_b32 v2, 1, v5"); e("v_xor_b32 v2, v4, v2"); e("v_lshlrev_b32 v2, 4, v2")
    e(f"v_lshl_add_u32 {v(vWO)}, v5, 13, v2"); e(f"v_xor_b32 {v(vWO+1)}, 128, {v(vWO)}")
    e(f"v_lshl_add_u32 {v(vOV)}, v5, 8, v2"); e(f"v_xor_b32 {v(vOV+1)}, 128, {v(vOV)}")
    e(f"s_mul_i32 s58, s{sB}, 81920")
    e(f"s_lshl_b32 s59, s{sHKV}, 2"); e(f"s_add_u32 s59, s59, s{sI}"); e("s_lshl_b32 s59, s59, 8")
    e(f"s_sub_u32 s{sT3}, 4194304, s59")
    e(f"s_mul_i32 s{sT0}, s{sW}, 20480"); e(f"s_mul_i32 s{sW5K}, s{sW}, 5120")
    e(f"s_lshl_b32 s{sT2}, s{sW}, 18"); e(f"s_lshl_b32 s{sSLOT}, s{sW}, 13")
    e(f"s_add_u32 s{sXB}, s{sT0}, 512"); e(f"s_add_u32 s{sWB}, s{sT2}, {256*8192}")
    if "rot2" in X:
        e(f"s_xor_b32 s{sTK}, s{sB}, s{sI}"); e(f"s_bitcmp1_b32 s{sTK}, 0")
        e(f"s_cselect_b32 s{sTK}, s{sXB}, s{sT0}"); e(f"s_cselect_b32 s{sXB}, s{sT0}, s{sXB}"); e(f"s_mov_b32 s{sT0}, s{sTK}")
        e(f"s_cselect_b32 s{sTK}, s{sWB}, s{sT2}"); e(f"s_cselect_b32 s{sWB}, s{sT2}, s{sWB}"); e(f"s_mov_b32 s{sT2}, s{sTK}")
    if "pfx" in X:
        e(f"s_lshl_b32 s{sTK}, s{sB}, 2"); e(f"s_add_u32 s{sTK}, s{sTK}, s{sW}"); e(f"s_lshl_b32 s{sTK}, s{sTK}, 17")
        e("v_lshrrev_b32 v2, 1, v0"); e("v_lshlrev_b32 v2, 13, v2"); e("v_and_b32 v3, 1, v0"); e("v_lshl_add_u32 v2, v3, 7, v2")
        e(f"s_lshl_b32 s{sTV}, s{sI}, 2"); e(f"s_add_u32 s{sTV}, s{sTV}, s{sW}"); e(f"s_mul_i32 s{sTV}, s{sTV}, 5120")
    e("v_lshlrev_b32 v3, 7, v0")
    e("s_waitcnt lgkmcnt(0)")
    emit(mk_srd(SRD_X, 4, 58, 81920)); emit(mk_srd(SRD_WQ, 10, 59, f"s{sT3}"))
    def p1_dma(cc):
        g = []
        for pp in range(5):
            g.append([f"s_add_u32 m0, s{sW5K}, {S_ST[cc] + pp*1024}", f"s_add_u32 s{sT3}, s{sT0 if cc < 2 else sXB}, {pp*4096 + (cc & 1)*256}",
                      f"buffer_load_dwordx4 {v(vXO + (pp & 3))}, {srd(SRD_X)}, s{sT3} offen {XF} lds @c{cc}"])
        for pp in range(8):
            g.append([f"s_add_u32 m0, s{sSLOT}, {S_ST[cc] + 20480 + pp*1024}", f"s_add_u32 s{sT3}, s{sT2 if cc < 2 else sWB}, {((cc & 1)*128 + 4*pp)*8192}",
                      f"buffer_load_dwordx4 {v(vWO + ((pp >> 1) & 1))}, {srd(SRD_WQ)}, s{sT3} offen {XF} lds @c{cc}"])
        return g
    if "pfx" in X:
        e("s_mov_b32 exec_hi, 0")
        e(f"buffer_load_dword {v(vJUNK)}, v2, {srd(SRD_WQ)}, s{sTK} offen @pfx")
        e("s_mov_b32 exec_hi, 0xff")
        e(f"buffer_load_dword {v(vJUNK)}, v3, {srd(SRD_X)}, s{sTV} offen @pfx")
        e("s_mov_b32 exec_hi, -1")
    c01 = p1_dma(0) + p1_dma(1)
    n0 = int(OPT.get("n0", 11 if "pfx" in X else 15))
    keepE = list(L); del L[:]
    e("v_lshlrev_b32 v2, 4, v1"); e(f"v_lshl_add_u32 {v(vXR)}, v4, 8, v2")
    for ks in range(1, 4): e(f"v_xor_b32 {v(vXR+ks)}, {ks*64}, {v(vXR)}")
    e("v_lshl_add_u32 v2, v5, 3, v6"); e("v_lshlrev_b32 v2, 8, v2"); e("v_lshl_add_u32 v2, v7, 3, v2")
    e(f"v_and_b32 {v(vS+16+4)}, 1, v5"); e(f"v_lshl_add_u32 {v(vS+16+4)}, {v(vS+16+4)}, 2, v6")
    e(f"s_lshl_b32 s58, s{sW}, 1")
    for k in range(8):
        e(f"s_add_u32 s59, s58, {k}"); e("s_and_b32 s59, s59, 7")
        e(f"v_xor_b32 v1, s59, {v(vS+16+4)}"); e("v_lshl_add_u32 v1, v1, 5, v2")
        if k < 2: e(f"v_add_u32 {v(vWR+k)}, 20480, v1")
        e(f"v_add_u32 {v(vVR+k)}, s{sSLOT}, v1")
    e(f"s_lshl_b32 s58, s{sB}, 3"); e(f"s_add_u32 s58, s58, s{sHKV}"); e("s_lshl_b32 s58, s58, 18")
    e(f"s_lshl_b32 s59, s{sW}, 16"); e("s_add_u32 s58, s58, s59")
    emit(mk_srd(SRD_K, 6, 58, 65536)); emit(mk_srd(SRD_V, 8, 58, 65536))
    point_setup()
    if "mirror" in X:
        e(f"s_bitcmp1_b32 s{sI}, 0"); e(f"s_cselect_b32 s{sMIR}, 0xe000, 0"); e(f"s_cselect_b32 s{sSTEP}, -1, 1"); e(f"s_lshl_b32 s{sSTEP}, s{sSTEP}, 13")
    early0 = [x.strip() for x in L]; L[:] = keepE
    keepL = list(L); del L[:]
    if "pfc" in X:
        e("s_getpc_b64 s[58:59]"); lab("L_pc")
        e(f"s_sub_u32 s58, s58, L_pc-{KN}"); e("s_subb_u32 s59, s59, 0")
        e(f"s_lshr_b32 s{sT3}, s2, 3"); e(f"s_lshl_b32 s{sT3}, s{sT3}, 2"); e(f"s_add_u32 s{sT3}, s{sT3}, s{sW}"); e(f"s_lshl_b32 s{sT3}, s{sT3}, 8")
        e(f"v_add_u32 v2, s{sT3}, v3"); e(f"v_min_u32 v2, L_end-{KN}-4, v2")
        e("s_mov_b64 exec, 3")
        e(f"global_load_dword {v(vJUNK)}, v2, s[58:59] @pfc")
        e("s_mov_b64 exec, -1")
    e("s_and_b32 s58, s2, 63"); e("s_mul_i32 s58, s58, 20480"); emit(mk_srd(SRD_O, 18, 58, 3*HEADSTRIDE + 20480))
    e(f"s_mul_i32 s{sOOWN}, s{sI}, {HEADSTRIDE}"); e(f"s_add_u32 s{sOOWN}, s{sOOWN}, s{sW5K}")
    e(f"s_lshl_b32 s{sFOWN}, s2, 2"); e(f"s_add_u32 s{sFOWN}, s{sFOWN}, s{sW}"); e(f"s_lshl_b32 s{sFOWN}, s{sFOWN}, 6"); e(f"s_add_u32 s{sFOWN}, s{sFOWN}, {WS_FLG}")
    t0, t1, t2 = vNM + 4, vNM + 5, vNM + 6
    e(f"v_mul_u32_u24 {v(t2)}, 43, v0"); e(f"v_lshrrev_b32 {v(t2)}, 7, {v(t2)}")
    e(f"v_mul_u32_u24 {v(t1)}, 3, {v(t2)}"); e(f"v_sub_u32 {v(t1)}, v0, {v(t1)}")
    e(f"v_cmp_le_u32 vcc, s{sI}, {v(t2)}"); e("s_nop 1"); e(f"v_addc_co_u32 {v(t2)}, vcc, 0, {v(t2)}, vcc"); e(f"v_and_b32 {v(t2)}, 3, {v(t2)}")
    e(f"s_mov_b32 s{sT3}, {HEADSTRIDE}"); e(f"v_mul_lo_u32 {v(t0)}, {v(t2)}, s{sT3}")
    e(f"s_add_u32 s58, s58, s{sW5K}"); e(f"s_add_u32 s58, s58, {3*1024 + 1008}")
    e(f"v_lshl_add_u32 {v(t0)}, {v(t1)}, 10, {v(t0)}"); e(f"v_add_u32 {v(t0)}, s58, {v(t0)}")
    e("s_and_b32 s58, s2, 63"); e("s_lshl_b32 s58, s58, 2"); e(f"s_add_u32 s58, s58, s{sW}"); e("s_lshl_b32 s58, s58, 6"); e(f"s_add_u32 s58, s58, {WS_FLG}")
    e(f"v_lshl_add_u32 {v(t2)}, {v(t2)}, 14, s58")
    e(f"v_cmp_eq_u32 vcc, 2, {v(t1)}"); e("s_and_b32 s58, s2, 0xf8"); e("s_lshl_b32 s58, s58, 8")
    e(f"v_cndmask_b32 {v(t0)}, {v(t0)}, {v(t2)}, vcc")
    e(f"s_lshr_b32 s59, s{sHKV}, 1"); e("s_lshl_b32 s59, s59, 6"); e("s_add_u32 s58, s58, s59"); e(f"s_add_u32 s58, s58, {WS_FLG}")
    e(f"v_and_b32 {v(t1)}, 7, v0"); e(f"v_lshl_add_u32 {v(t1)}, {v(t1)}, 8, s58")
    e("v_cmp_gt_u32 vcc, 16, v0"); e("s_nop 1")
    e(f"v_cndmask_b32 {v(t0)}, {v(t1)}, {v(t0)}, vcc")
    e(f"v_accvgpr_write_b32 {a(aPRB)}, {v(t0)}")
    e("s_and_b32 s58, s2, 0xf8"); e(f"s_lshl_b32 s59, s{sW}, 1"); e("s_add_u32 s58, s58, s59"); e("s_mul_i32 s58, s58, 24576")
    e(f"s_mul_i32 s59, s{sHKV}, 3072"); e("s_add_u32 s58, s58, s59"); e(f"s_add_u32 s58, s58, {WS_PART}")
    emit(mk_srd(SRD_PI, 18, 58, 24576 + 3072))
    e(f"s_lshl_b32 s58, s{sHKV}, 19"); e(f"s_lshl_b32 s59, s{sI}, 8"); e("s_add_u32 s58, s58, s59"); e("s_sub_u32 s59, 524288, s59")
    emit(mk_srd(SRD_WO, 12, 58, "s59"))
    e(f"s_mov_b32 s{sRANGE}, {RANGE}")
    e(f"v_lshlrev_b32 {v(vLIN)}, 4, v0")
    e("v_xor_b32 v1, v4, v5"); e("v_lshlrev_b32 v2, 4, v1")
    e(f"v_lshl_add_u32 {v(vOK)}, v5, 8, v2")
    for vv in range(1, 4): e(f"v_xor_b32 {v(vOK+vv)}, {vv*64}, {v(vOK)}")
    e(f"v_lshrrev_b32 {v(t0)}, 2, v4"); e(f"v_lshlrev_b32 {v(t0)}, 3, {v(t0)}"); e("v_and_b32 v1, 3, v4"); e(f"v_add_u32 {v(t0)}, {v(t0)}, v1")
    e(f"v_lshl_add_u32 v2, {v(t0)}, 8, v2"); e(f"v_add_u32 v2, s{sSLOT}, v2"); e(f"v_add_u32 {v(vKR)}, {R_A}, v2")
    for ds in range(1, 4): e(f"v_xor_b32 {v(vKR+ds)}, {ds*64}, {v(vKR)}")
    e("v_lshlrev_b32 v1, 2, v5"); e("v_sub_u32 v1, v4, v1"); e("v_and_b32 v2, 1, v1"); e("v_lshlrev_b32 v2, 4, v2")
    e(f"v_mov_b32 {v(t0)}, 0x3f80"); e(f"v_lshlrev_b32 v2, v2, {v(t0)}"); e("v_lshrrev_b32 v1, 1, v1")
    e("v_cmp_eq_u32 vcc, 0, v1"); e(f"v_accvgpr_write_b32 {a(aE)}, 0"); e(f"v_accvgpr_write_b32 {a(aE+1)}, 0"); e(f"v_cndmask_b32 {v(t0)}, 0, v2, vcc")
    e("v_cmp_eq_u32 vcc, 1, v1"); e(f"v_accvgpr_write_b32 {a(aE+4)}, 0"); e(f"v_accvgpr_write_b32 {a(aE+5)}, 0"); e(f"v_cndmask_b32 {v(t1)}, 0, v2, vcc")
    e(f"v_accvgpr_write_b32 {a(aE+2)}, {v(t0)}"); e(f"v_accvgpr_write_b32 {a(aE+3)}, {v(t1)}")
    for mrel in (1, 2, 3, 0):
        e(f"s_add_u32 s59, s{sW}, {mrel}"); e("s_and_b32 s59, s59, 3"); e("s_mul_i32 s58, s59, 3072")
        if mrel > 1: e(f"s_add_u32 s58, s58, {(mrel-1)*1024}")
        e(f"v_add_u32 v1, s58, {v(vLIN)}")
        e(f"v_accvgpr_write_b32 {a(aADR + (mrel - 1) % 4)}, v1")
    e(f"s_lshl_b32 s58, s{sW}, 2"); e(f"s_add_u32 s58, s58, {R_SP}"); e("v_lshl_add_u32 v1, v4, 4, s58"); e(f"v_accvgpr_write_b32 {a(aADR+4)}, v1")
    e("v_lshlrev_b32 v1, 4, v4"); e(f"v_add_u32 v1, {R_SP}, v1"); e(f"v_accvgpr_write_b32 {a(aADR+5)}, v1")
    e("v_and_b32 v1, 1, v5"); e("v_lshlrev_b32 v1, 1, v1"); e("v_xor_b32 v1, v4, v1"); e("v_lshlrev_b32 v1, 4, v1"); e("v_lshl_add_u32 v1, v5, 12, v1")
    for q in range(4):
        e(f"v_xor_b32 v2, {q*64}, v1"); e(f"v_accvgpr_write_b32 {a(aADR+6+q)}, v2")
    e("v_lshl_add_u32 v2, v6, 2, v5"); e("v_lshlrev_b32 v2, 8, v2"); e("v_lshl_add_u32 v2, v7, 3, v2")
    e(f"v_and_b32 {v(t0)}, 1, v5"); e(f"v_lshl_add_u32 {v(t0)}, v6, 1, {v(t0)}")
    e(f"s_lshl_b32 s58, s{sW}, 1")
    for k in range(2):
        e(f"s_add_u32 s59, s58, {k}")
        e(f"v_xor_b32 v1, s59, {v(t0)}"); e("v_lshl_add_u32 v1, v1, 5, v2"); e(f"v_add_u32 v1, {R_A}, v1"); e(f"v_accvgpr_write_b32 {a(aADR+10+k)}, v1")
    for h in range(4):
        if h == 0: e(f"s_mov_b32 s58, s{sI}")
        else:
            e(f"s_cmp_le_u32 s{sI}, {h-1}"); e(f"s_cselect_b32 s58, {h}, {h-1}")
            e(f"s_mul_i32 s59, s58, {HEADSTRIDE}"); e(f"s_add_u32 s{sSIB+h}, s59, s{sW5K}")
        e("s_lshl_b32 s58, s58, 2"); e(f"s_add_u32 s58, s58, s{sW}"); e(f"s_lshl_b32 s{sWOB+h}, s58, 15")
    for r in range(160): e(f"v_mov_b32 {v(vO+r)}, 0")
    for r in range(20): e(f"v_accvgpr_write_b32 {a(aL+r)}, 0")
    e("v_mov_b32 v1, 0x3f803f80")
    for r in range(4): e(f"v_accvgpr_write_b32 {a(aONE+r)}, v1")
    fill = [x.strip() for x in L]; L[:] = keepL
    nearly = int(OPT.get("nearly", 150))
    zero = [x for x in fill if x.startswith("v_mov_b32 v") and x.endswith(", 0") and int(x.split()[1][1:-1]) >= vO]
    fill = [x for x in fill if x not in zero]
    early = zero[:nearly]; fill = fill + zero[nearly:]
    if "allearly" in X:
        early = fill + early; fill = []
    early = early0 + early
    if "weave0" in X:
        groups = list(c01[:n0])
        for _ in range(4): emit(groups.pop(0))
        per = max(1, len(early) // (len(groups) + 1))
        k = 0
        while early:
            x = early.pop(0); L.append("    " + x); k += 1
            nxt = early[0].split()[0] if early else ""
            if k >= per and groups and nxt not in ("s_addc_u32", "s_cselect_b32", "s_subb_u32"):
                emit(groups.pop(0)); k = 0
        emit(flat(groups))
    else:
        emit(flat(c01[:n0]))
        for x in early: L.append(x if x.endswith(":") else "    " + x)
    stamp("setup")
    flag_reset = ["s_mov_b64 exec, 1", "v_mov_b32 v1, -1", f"v_mov_b32 v2, s{sFOWN}", f"global_store_dword v2, v1, s[18:19] {SC} @frst", "s_mov_b64 exec, -1"]
    import re
    def ren(x):
        x = re.sub(r"\bs58\b", "s98", x); x = re.sub(r"\bs59\b", "s99", x); x = re.sub(rf"\bs{sT3}\b", "s100", x)
        x = x.replace("s[58:59]", "s[98:99]")
        x = re.sub(r"\bv1\b", f"v{vNM+7}", x); x = re.sub(r"\bv2\b", f"v{vNM+8}", x)
        return x
    fill = [ren(x) for x in fill]
    fg = []
    for x in fill:
        op = x.split()[0]
        glue = fg and (op in ("s_addc_u32", "s_subb_u32", "s_cselect_b32") or x.endswith(":") or fg[-1][-1].endswith(":") or fg[-1][-1].startswith("s_getpc")
                       or any(y.startswith("s_mov_b64 exec, 3") for y in fg[-1]) and not fg[-1][-1].startswith("s_mov_b64 exec, -1"))
        if x.endswith(":"): x = "LABEL " + x[:-1]
        elif x.startswith("global_load"): x = x + " @pfc"
        if glue: fg[-1].append(x)
        else: fg.append([x])
    if "pfc" in X and "allearly" not in X: VM.ops.remove("pfc")
    c2 = p1_dma(2); c3 = p1_dma(3); k0 = [set_T(True, 0)] + kv_dma(True, R_A, "K0")
    n1 = int(OPT.get("n1", 3))
    pfx2 = []
    if "pfx2" in X:
        pfx2 = [[f"s_lshl_b32 s58, s{sB}, 2", f"s_add_u32 s58, s58, s{sW}", "s_add_u32 s58, s58, 32", "s_lshl_b32 s58, s58, 16",
                 "v_lshrrev_b32 v1, 1, v0", "v_lshlrev_b32 v1, 13, v1", "v_and_b32 v2, 1, v0", "v_lshl_add_u32 v1, v2, 7, v1",
                 "s_mov_b64 exec, 0xffff", f"buffer_load_dword {v(vJUNK)}, v1, {srd(SRD_WQ)}, s58 offen @pfx", "s_mov_b64 exec, -1"],
                [f"s_lshl_b32 s58, s{sI}, 2", f"s_add_u32 s58, s58, s{sW}", "s_mul_i32 s58, s58, 5120", "s_add_u32 s58, s58, 512",
                 "v_lshrrev_b32 v1, 2, v0", "v_lshlrev_b32 v1, 10, v1", "v_lshl_add_u32 v1, v7, 7, v1",
                 "s_mov_b64 exec, 0xfffff", f"buffer_load_dword {v(vJUNK)}, v1, {srd(SRD_X)}, s58 offen @pfx", "s_mov_b64 exec, -1"]]
    plan = {0: pfs("a") + c01[n0:] + pfx2 + c2[:n1] + pfs("A"), 1: pfs("b") + c2[n1:] + c3[:n1] + pfs("B"),
            2: pfs("c") + c3[n1:] + k0[:n1+1] + [flag_reset] + pfs("C")}
    acc = vP
    aX = aV; aWf = aV + 40
    for cc in range(3):
        e(f"WAITVM c{cc}")
        e("s_barrier")
        stamp(f"c{cc}")
        emit(point())
        def reads(ks):
            buf = ks & 1
            r = [f"ds_read_b64_tr_b16 {a(aWf + buf*8 + dd*4 + jh*2, 2)}, {v(vWR+dd)} offset:{ks*8192 + jh*1024}" for dd in range(2) for jh in range(2)]
            r += [f"ds_read_b128 {a(aX + buf*20 + j*4, 4)}, {v(vXR+ks)} offset:{j*4096}" for j in range(5)]
            return r
        emit(reads(0))
        dm = list(plan[cc])
        for _ in range(2): emit(dm.pop(0))
        for ks in range(4):
            e("s_waitcnt lgkmcnt(0)")
            buf = ks & 1
            m = []
            for j in range(5):
                for dd in range(2):
                    d = v(acc + (j*2+dd)*4, 4)
                    c = "0" if (cc == 0 and ks == 0) else d
                    m.append(f"{MF} {d}, {a(aWf + buf*8 + dd*4, 4)}, {a(aX + buf*20 + j*4, 4)}, {c}")
            gaps = {}
            if ks < 3:
                r = reads(ks + 1)
                for gi in range(5): gaps[gi] = r[2*gi:2*gi+2]
            else:
                e(f"s_mov_b32 s58, {[53248, 53248, -106496][cc]}")
                adj = [f"v_add_u32 {v(vXR+q)}, s58, {v(vXR+q)}" for q in range(4)] + [f"v_add_u32 {v(vWR+q)}, s58, {v(vWR+q)}" for q in range(2)]
                for gi in range(3): gaps[gi] = adj[2*gi:2*gi+2]
            for gi in (1, 4, 7) if len(dm) <= 3*(4-ks) else (0, 2, 4, 6, 8):
                if dm: gaps.setdefault(gi, []).extend(dm.pop(0))
            for gi in range(10):
                for _ in range(3 if gi >= 5 else 2):
                    if fg: gaps.setdefault(gi, []).extend(fg.pop(0))
            interleave(m, gaps)
        emit(flat(dm))
    emit(flat(fg))
    aX3 = aQ; aW3 = aK + 32
    e("WAITVM c3")
    e("s_barrier")
    stamp("c3")
    emit(point())
    def wrd(ks): return [f"ds_read_b64_tr_b16 {a(aW3 + (ks*2+dd)*4 + jh*2, 2)}, {v(vWR+dd)} offset:{ks*8192 + jh*1024} @w{ks}" for dd in range(2) for jh in range(2)]
    def xrd(j, ks): return f"ds_read_b128 {a(aX3 + (j*4+ks)*4, 4)}, {v(vXR+ks)} offset:{j*4096} @x{j}{ks}"
    for ks in range(3): emit(wrd(ks)); e(xrd(0, ks))
    e(f"s_mov_b32 s{sT0}, {f2u(QSCALE)}")
    e(f"s_lshl_b32 s58, s{sW}, 2")
    e("v_lshrrev_b32 v1, 1, v5"); e("v_add_u32 v1, s58, v1"); e("v_xor_b32 v1, v1, v4"); e("v_lshlrev_b32 v1, 4, v1")
    e("v_lshl_add_u32 v1, v4, 8, v1"); e("v_and_b32 v2, 1, v5"); e("v_lshl_add_u32 v1, v2, 3, v1")
    e(f"v_add_u32 v1, {R_QX}, v1"); e("v_xor_b32 v2, 32, v1")
    dm = k0[n1+1:] + [set_T(True, 1)] + kv_dma(True, R_B, "K1")
    post = []
    rq = [xrd(0, 3)] + [xrd(j, ks) for j in range(1, 5) for ks in range(4)]
    for j in range(5):
        for ks in range(4):
            e(f"WAITLG x{j}{ks}")
            if j == 0 and ks == 3: e("s_barrier")
            for dd in range(2):
                d = v(acc + (j*2+dd)*4, 4)
                e(f"{MF} {d}, {a(aW3 + (ks*2+dd)*4, 4)}, {a(aX3 + (j*4+ks)*4, 4)}, {d}")
                if j == 0 and ks == 0 and dd == 0: emit(wrd(3))
                elif dd == 1 and rq: e(rq.pop(0))
                if dd == 0 and ks != 3 and dm and not (j == 0 and ks == 0): emit(dm.pop(0))
                if j > 0 and ks > 0:
                    for _ in range(3):
                        if post: e(post.pop(0))
        emit(post); post = []
        for dd in range(2):
            r = acc + (j*2+dd)*4
            post += [f"v_mul_f32 {v(r+q)}, s{sT0}, {v(r+q)}" for q in range(4)]
            post += [f"v_cvt_pk_bf16_f32 {v(r)}, {v(r)}, {v(r+1)}", f"v_cvt_pk_bf16_f32 {v(r+1)}, {v(r+2)}, {v(r+3)}",
                     f"ds_write_b64 {'v1' if dd == 0 else 'v2'}, {v(r, 2)} offset:{j*4096} @qw"]
        if j < 4: post = ["s_nop 1"] + post
    emit(flat(dm))
    for ks in range(4): e(f"v_add_u32 {v(vXR+ks)}, {R_QX}, {v(vXR+ks)}")
    e(f"s_mov_b32 s{SRD_D}, s16"); e(f"s_mov_b32 s{SRD_D+1}, s17"); e(f"s_mov_b32 s{SRD_D+2}, 256"); e(f"s_mov_b32 s{SRD_D+3}, 0x20000")
    emit(post)
    if "v0early" in X: emit(set_T(False, 0) + flat(kv_dma(False, R_C, "V0")))
    e("WAITVM frst")
    e("WAITLG qw")
    e("s_barrier")
    stamp("Bq")
    emit(point())
    def qrd(j): return [f"ds_read_b128 {a(aQ + (j*4+ds)*4, 4)}, {v(vXR+ds)} offset:{j*4096} @q{j}" for ds in range(4)]
    emit(qrd(0))
    e("WAITVM K0")
    emit(kreads(0, "k0"))
    e(f"s_lshl_b32 s{sT1}, s{sB}, 5")
    e(f"s_cmp_lg_u32 s{sW}, 0"); e("s_cbranch_scc1 L_noat")
    e("s_mov_b64 exec, 1"); e("v_mov_b32 v1, 1"); e("v_mov_b32 v2, 0")
    L.append(f"    buffer_atomic_add v1, v2, {srd(SRD_D)}, s{sT1} offen sc1")
    e("s_mov_b64 exec, -1")
    lab("L_noat")
    for r in range(20): e(f"v_mov_b32 {v(vNM+r)}, 0")
    e("WAITLG q0")
    emit(qrd(1))
    e("WAITLG k0")
    emit(qrd(2) + qrd(3))
    dm = ([] if "v0early" in X else [set_T(False, 0)] + kv_dma(False, R_C, "V0")) + [set_T(True, 2)] + kv_dma(True, R_A, "K2") + [set_T(False, 1)] + kv_dma(False, R_D, "V1")
    dm = pfs("p") + dm + pfs("P")
    rdk = kreads(1, "k1"); rdv = vreads(0, "v0")
    for j in range(5):
        sb = (5 + j) & 1
        m = qk(j, 0, sb)
        gaps = {g: [] for g in range(-1, 8)}
        if j > 0:
            gaps[-1].append(f"WAITLG q{j}")
            gaps[-1] += point()
            ex = exps(sb ^ 1); cv = cvts(sb ^ 1, j - 1)
            for n in range(8): gaps[n].append(ex[n])
            gaps[2].append(cv[0]); gaps[4].append(cv[1]); gaps[6].append(cv[2]); gaps[7] += ["s_nop 0", cv[3]]
        if j == 1: gaps[-1] += [f"v_add_u32 {v(vVRC+k)}, {R_C}, {v(vVR+k)}" for k in range(8)]
        if j == 0:
            for n in range(8):
                if dm: gaps[n] += dm.pop(0)
            gaps[3] += ["WAITLG q1"] + qrd(4)
        else:
            for n in (0, 1, 3, 5, 7):
                if dm: gaps[n] += dm.pop(0)
            if j == 2:
                gaps[1].append("WAITVM K1")
                for n in (1, 3, 5, 7): gaps[n] += [rdk.pop(0), rdk.pop(0)]
            if j == 3: gaps[1].append("WAITVM V0")
            if j >= 3:
                for n in (1, 3, 5, 7): gaps[n] += [rdv.pop(0), rdv.pop(0)]
        interleave(m, gaps)
    emit(flat(dm))
    assert not rdk and not rdv
    e(f"s_mov_b32 s{sCNT}, 0")
    emit(set_T(True, 3) + set_T(False, 2))
    e(f"s_mov_b32 s{sOI}, s{sOOWN}")
    for q in range(4): e(f"v_mov_b32 {v(vSENT+q)}, -1")
    if "noinit" not in X and "lateinit" not in X: e(P_INIT0)
    e("s_waitcnt lgkmcnt(0)")
    stamp("pro")
    def base_iter(par):
        G = {g: [] for g in range(-1, 85)}
        M = []
        for j in range(5):
            sb = (5*par + j) & 1
            M += qk(j, par ^ 1, sb) + pv(j, par)
            put_exp(G, 17*j, sb ^ 1, (j - 1) % 5)
        return M, G
    def half(par):
        S = SCHED
        dma = flat(kv_dma(True, KSLOT[par ^ 1], "lk", nop=False) + kv_dma(False, VSLOT[par], "lv", nop=False))
        kr = kreads(par); vr = vreads(par ^ 1)
        M, G = base_iter(par)
        for p, s in zip(S["mpos"], [s for s in dma if "m0" in s]): G[p].append(s)
        for p, s in zip(S["dpos"], [s for s in dma if "m0" not in s]): G[p].append(s)
        ip = 81
        if "noinit" not in X and "lateinit" not in X:
            G[ip].append(f"buffer_store_dwordx4 {v(vSENT, 4)}, {v(vLIN)}, {srd(SRD_O)}, s{sOI} offen {SC}")
            G[18].append(f"s_add_u32 s{sOI}, s{sOI}, 1024") if False else None
        ni = 0 if ("noinit" in X or "lateinit" in X) else 1
        G[S["kw"]].append(f"s_waitcnt vmcnt({8 + ni + sum(1 for p in S['dpos'] if p <= S['kw'])})")
        for p, s in zip(S["kpos"], kr): G[p].append(s)
        G[S["vw"]].append(f"s_waitcnt vmcnt({ni + sum(1 for p in S['dpos'] if p <= S['vw'])})")
        G[83].append(f"s_add_u32 s{sOI}, s{sOI}, 1024")
        for p, s in zip(S["vpos"], vr): G[p].append(s)
        for p, r in zip(S["tpos"], (sTK, sTK2, sTV, sTV2)): G[p].append(f"s_add_u32 s{r}, s{r}, " + (f"s{sSTEP}" if "mirror" in X else "8192"))
        if par == 0: G[81].append(f"s_add_u32 s{sCNT}, s{sCNT}, 1"); G[84].append(f"s_cmp_eq_u32 s{sCNT}, 3")
        G[84].insert(0, "s_waitcnt lgkmcnt(15)")
        G[7].append("s_waitcnt lgkmcnt(0)")
        for g in (3, 22, 37, 54, 71): G[g] = point() + G[g]
        if "sfirst" in X:
            G = {g: [s for s in l if not s.startswith("v_")] + [s for s in l if s.startswith("v_")] for g, l in G.items()}
        for k in ("nodma", "noexp", "nods", "novm", "hot"):
            if k in X:
                pats = {"nodma": ("buffer_load", "m0"), "noexp": ("v_exp", "v_cvt"), "nods": ("ds_read",), "novm": ("vmcnt",), "hot": ("8192",)}[k]
                G = {g: [s for s in l if not any(p in s for p in pats)] for g, l in G.items()}
        interleave(M, G)
    L.append(".p2align 6")
    lab("L_loop")
    half(0)
    e("s_cbranch_scc1 L_exit")
    hooks = [n for n in (1, 2) if pfs(f"h{n}")]
    npf[0] -= 0
    for n in hooks:
        e(f"s_cmp_eq_u32 s{sCNT}, {n}"); e(f"s_cbranch_scc1 L_hook{n}"); lab(f"L_back{n}")
    half(1)
    e("s_branch L_loop")
    for n in hooks:
        lab(f"L_hook{n}"); emit(flat(pfs(f"h{n}"))); e(f"s_branch L_back{n}")
    lab("L_exit")
    stamp("exit")
    VM.ops = ["K6"]*8 + ["V5"]*8 + ["io"] + ["K7"]*8 + ["V6"]*8 + ["io"]; LG.ops = ["kr"]*8 + ["vr"]*16
    vXW = vKR; vXRD = vKR + 3; vWOO = vOK; vLW = vOV; vLR = vOV + 1
    WREG = [R_A, R_B, R_C, R_A]
    def wo_dma(h):
        g = [f"s_add_u32 m0, s{sSLOT}, {WREG[h]}", f"s_add_u32 s{sT3}, s{sWOB+h}, 16384"]
        for pp in range(8):
            if pp == 4: g += [f"s_add_u32 m0, s{sSLOT}, {WREG[h] + 4096}", "NEXTGAP"]
            g.append(f"buffer_load_dwordx4 {v(vWOO + (pp & 3))}, {srd(SRD_WO)}, s{sWOB+h if pp < 4 else sT3} offen offset:{(pp & 3)*1024} lds @wo{h}")
        return g
    def unpark(dst, k): return f"v_accvgpr_read_b32 {v(dst)}, {a(aADR + k)}"
    def ostore(j, data, tag):
        SC = "sc1" if tag != "ost" else OPT.get("osf", "sc1").replace("_", " ").replace("pl", "")
        if j < 4: return f"buffer_store_dwordx4 {v(data, 4)}, {v(vLIN)}, {srd(SRD_O)}, s{sOOWN} offen offset:{j*1024} {SC} @{tag}"
        return f"buffer_store_dwordx4 {v(data, 4)}, {v(vLIN)}, {srd(SRD_O)}, s{sTK} offen {SC} @{tag}"
    def pstore(j, data, tag):
        if j < 3: return f"buffer_store_dwordx4 {v(data, 4)}, {v(vLIN)}, {srd(SRD_PI)}, 0 offen offset:{j*1024} {SC} @{tag}"
        return f"buffer_store_dwordx4 {v(data, 4)}, {v(vLIN)}, {srd(SRD_PI)}, s{sTK2} offen offset:{(j-3)*1024} {SC} @{tag}"
    inits = [pstore(j, vSENT, "ip") for j in range(1, 5)]
    if "lateinit" in X:
        inits = [ostore(j, vSENT, "io") for j in range(5)] + [pstore(j, vSENT, "ip") for j in range(5)]
        VM.ops = [x for x in VM.ops if x != "io"]
    if "noinit" in X: inits = [f"buffer_load_dword {v(vJUNK)}, {v(vLIN)}, {srd(SRD_K)}, 0 offen @ip" for j in range(5)]
    isp = int(OPT.get("isp", 16)); ist = int(OPT.get("ist", 26))
    ipos = [ist + isp*n for n in range(len(inits))]
    M, G = base_iter(1)
    G[7].append("s_waitcnt lgkmcnt(0)")
    S = SCHED
    G[S["kw"]].append("WAITVM K7")
    for p, s in zip(S["kpos"], kreads(1, "k7")): G[p].append(s)
    G[S["vw"]].append("WAITVM V6")
    for p, s in zip(S["vpos"], vreads(0, "v6")): G[p].append(s)
    G[83].append("WAITLG k7")
    vm = [(5 if "m0" in x and n == 0 else 8 + 2*n, x.replace("s_nop 0", "NEXTGAP")) for n, g in enumerate(kv_dma(False, VSLOT[1], "V7")) for x in g]
    G[1] += [f"s_add_u32 s{sTK}, s{sOOWN}, 4096", f"s_mov_b32 s{sTK2}, 24576"]
    vm += [(20, unpark(vWOO + q, 6 + q)) for q in range(4)]
    vm += [(24 + 4*n, g) for n, g in enumerate(wo_dma(0))]
    st = [(p, x) for p, x in zip(ipos, inits) if p < 85]
    rest = sched(M, G, [st, vm])
    for r in rest:
        for _, it in r: emit(it if isinstance(it, list) else [it])
    st = [(p - 85, x) for p, x in zip(ipos, inits) if p >= 85]
    stamp("t5")
    FO = [2, 3, 4, 5, 6, 7, 0, 1]
    M = []; G = {7: ["s_waitcnt lgkmcnt(0)"]}
    blk = {}
    for j in range(5):
        blk[j] = len(M)
        sb = j & 1
        put_exp(G, len(M), sb ^ 1, (j - 1) % 5)
        M += qk(j, 1, sb) + pv(j, 0)
        if j >= 3: blk[f"p{j-3}"] = len(M); M += pv(j - 3, 1, FO)
    put_exp(G, len(M), 0, 4)
    for j in (2, 3, 4): blk[f"p{j}"] = len(M); M += pv(j, 1, FO)
    mem = [(0, ["v_mov_b32 v1, 0", f"buffer_load_dword {v(vJUNK)}, v1, {srd(SRD_D)}, s{sT1} offen sc1 @hs"])]
    mem += [(1 + 3*n, s) for n, s in enumerate(wo_dma(1))]
    mem += [(40, "WAITVM V7")] + [(40, s) for s in vreads(1, "v7")] + [(40, "MARK v7")]
    mem += [(60 + 3*n, s) for n, s in enumerate(wo_dma(2))]
    adr = [(0, unpark(vXW + q, q)) for q in range(4)] + [(0, unpark(vLW, 4)), (0, unpark(vLR, 5)), (0, "MARK adr")]
    nx = [0]
    def xw(j):
        r = []; p = blk[f"p{j}"]
        for mrel in (1, 2, 3):
            t = vTMP + (nx[0] & 1)*4; nx[0] += 1
            k0 = 2*mrel
            ins = pack4(t, vO + (k0*5+j)*4, vO + ((k0+1)*5+j)*4) + [f"ds_write_b128 {v(vXW + mrel - 1)}, {v(t, 4)} offset:{XSLOT[j]} @x{j}"]
            r += [(p + 2*mrel - 1 + 8, s) for s in ins]
        r.append((p + 8 + 8, f"ds_write_b32 {v(vLW)}, {a(aL + j*4)} offset:{j*256} @x{j}"))
        r.append((0, f"MARK x{j}"))
        return r
    def xr(j):
        return [f"ds_read_b128 {v(vNM + j*4, 4)}, {v(vLR)} offset:{j*256} @l{j}"] + \
               [f"ds_read_b128 {a(aK + (j*3+s)*4, 4)}, {v(vXRD)} offset:{XSLOT[j] + s*1024} @r{j}" for s in range(3)]
    def lsum(j):
        r = vNM + j*4
        return [f"WAITLG l{j}", f"v_add_f32 {v(r)}, {v(r)}, {v(r+1)}", f"v_add_f32 {v(r+2)}, {v(r+2)}, {v(r+3)}", f"v_add_f32 {v(r)}, {v(r)}, {v(r+2)}",
                f"v_subrev_u32 {v(r+1)}, {LO_BITS}, {v(r)}", f"v_cmp_lt_u32 vcc, s{sRANGE}, {v(r+1)}", f"v_rcp_f32 {v(r)}, {v(r)}", "s_nop 0", "s_cbranch_vccnz L_fallback"]
    def msum(j):
        m = []
        for s in range(3):
            for k in range(2):
                d = v(vO + (k*5+j)*4, 4)
                m.append(f"{MF} {d}, {a(aE + (2 if k == 0 else 0), 4)}, {a(aK + (j*3+s)*4, 4)}, {d}")
        return m
    def norm(j):
        r0 = vO + j*4; r1 = vO + (5+j)*4; t = vO + 40 + j*4
        return [f"v_mul_f32 {v(r0+q)}, {v(vNM+j*4)}, {v(r0+q)}" for q in range(4)] + [f"v_mul_f32 {v(r1+q)}, {v(vNM+j*4)}, {v(r1+q)}" for q in range(4)] + \
               pack4(t, r0, r1) + sanit(t) + (["WAITVM io"] if j == 0 else []) + [ostore(j, t, "ost"), f"ds_write_b128 v1, {v(t, 4)} offset:{R_QX + j*1024} @ew"]
    p0, p1, p2, p3, p4 = (blk[f"p{j}"] for j in range(5))
    G.setdefault(p0 - 1, []).extend(["STAMP bD0", "WAITLG v7", "s_barrier", "STAMP bD"])
    xs = xw(0) + [(0, ["STAMP ba0", "WAITLG x0", "s_barrier", "STAMP ba"])] + [(0, s) for s in xr(0)] + [(0, "MARK r0")] + xw(1) + xw(2) + \
         [(0, ["STAMP bb0", "WAITLG x2", "s_barrier", "STAMP bb"])] + [(0, s) for s in xr(1) + xr(2)] + [(0, "MARK r2")] + xw(3) + xw(4)
    n1 = len(M)
    M += msum(0) + msum(1) + msum(2)
    need = {p0 - 1: ["v7"], p0 + 8: ["adr"], n1: ["r0"], n1 + 6: ["r2"]}
    G.setdefault(n1 - 1, []).append("WAITLG r0")
    G.setdefault(n1 + 5, []).append("MARK dummy")
    Mx = list(M)
    rest = None
    def run():
        nonlocal rest
        rest = sched(Mx[:n1], G, [st, xs, mem, adr], need={k: x for k, x in need.items() if k < n1})
    G[n1 - 1].remove("WAITLG r0"); G[n1 + 5].remove("MARK dummy")
    run()
    st2, xs2, mem2, adr2 = rest
    assert not mem2 and not adr2 and not st2, (mem2, adr2)
    xs2 = [it for _, it in xs2]
    def take(mark):
        out = []
        while True:
            it = xs2.pop(0); out.append(it)
            if it == f"MARK {mark}": return out
    def em(items):
        for it in items: emit(it if isinstance(it, list) else [it])
    def weave(mf, items, per=2):
        items = [s for it in items for s in (it if isinstance(it, list) else [it])]
        for m in mf:
            e(m)
            k = 0
            while items and k < per:
                s = items.pop(0); e(s); k += cost(s)
        emit(items)
    if any(it == "MARK r0" for it in xs2): em(take("r0"))
    e(f"v_add_u32 v1, s{sW5K}, {v(vLIN)}")
    e("WAITLG r0")
    weave(msum(0), take("r2") if any(it == "MARK r2" for it in xs2) else [], per=3)
    em(take("x3") if any(it == "MARK x3" for it in xs2) else [])
    e("WAITLG r1")
    x4 = take("x4")
    weave(msum(1), x4, per=3)
    stamp("bc0")
    e("WAITLG x4"); e("s_barrier")
    emit(xr(3) + xr(4))
    stamp("B1")
    vWR2 = vVR; vB2 = vVR + 2; vB3 = vVR + 3; vCHK = vVR + 4
    vPRB = vKR; vPRD = vKR + 1
    e(f"s_mov_b32 s{sSPIN}, 0")
    e("WAITVM hs")
    e(f"v_readfirstlane_b32 s58, {v(vJUNK)}")
    e(f"v_accvgpr_read_b32 {v(vPRB)}, {a(aPRB)}")
    emit([f"s_mov_b32 s{SRD_WS}, s18", f"s_mov_b32 s{SRD_WS+1}, s19", f"s_mov_b32 s{SRD_WS+2}, {WS_FLG + 65536}", f"s_mov_b32 s{SRD_WS+3}, 0x20000"])
    e("s_cmp_ge_u32 s58, 32"); e("s_cbranch_scc0 L_hs")
    lab("L_hsok")
    emit(lsum(0))
    e("WAITLG r2")
    weave(msum(2), norm(0), per=2)
    emit(lsum(1))
    e("WAITLG r3")
    weave(msum(3), norm(1), per=2)
    emit(lsum(2))
    e("WAITLG r4")
    weave(msum(4), norm(2), per=2)
    def probe(mask, tag=""): return [f"s_mov_b64 exec, {mask}", f"buffer_load_dword {v(vPRD)}, {v(vPRB)}, {srd(SRD_WS)}, 0 offen sc1" + tag, "s_mov_b64 exec, -1"]
    M12, M3, MP = 0x3F, 0x1C0, 0xFF0000
    SLP = int(OPT.get("slp", 2))
    emit(lsum(3)); emit(norm(3)); emit(lsum(4))
    emit(probe(M12, " @prb"))
    emit(norm(4))
    stamp("ost")
    e("WAITVM ip")
    emit(["s_mov_b64 exec, 1", "v_mov_b32 v2, 0", f"v_mov_b32 v3, s{sFOWN}", f"global_store_dword v3, v2, s[18:19] {SC} @fset", "s_mov_b64 exec, -1"])
    e(unpark(vWR2, 10)); e(unpark(vWR2 + 1, 11))
    e(f"v_add_u32 {v(vB3)}, {R_SP + 2048 - 12*1024}, {v(vLIN)}")
    e("WAITVM wo2")
    e("s_waitcnt lgkmcnt(0)")
    e("s_barrier")
    stamp("B2")
    pown = vO + 100; pacc = vO + 60; pB = vO + 0
    aW = aK
    def baddr(h, n):
        if h in (0, 3): return vLIN, R_QX + n*1024
        if h == 1: return vLIN, R_D + n*1024
        return (vLIN, 20480 + n*1024) if n < 12 else (vB3, n*1024)
    def p4reads(h, ks):
        buf = ks & 1
        r = [f"ds_read_b64_tr_b16 {a(aW + buf*8 + nn*4 + jh*2, 2)}, {v(vWR2+nn)} offset:{ks*8192 + jh*4096}" for nn in range(2) for jh in range(2)]
        for j in range(5):
            b, o = baddr(h, ks*5 + j)
            r.append(f"ds_read_b128 {v(pB + buf*20 + j*4, 4)}, {v(b)} offset:{o}")
        return r
    aW3 = aV
    def b3reg(j, ks): return (vP + (j*4+ks)*4) if j < 4 else (vO + 140 + ks*4)
    def w3rd(ks): return [f"ds_read_b64_tr_b16 {a(aW3 + (ks*2+nn)*4 + jh*2, 2)}, {v(vWR2+nn)} offset:{ks*8192 + jh*4096} @w{ks}" for nn in range(2) for jh in range(2)]
    def x3rd(j, ks):
        b, o = baddr(3, ks*5 + j)
        return f"ds_read_b128 {v(b3reg(j, ks), 4)}, {v(b)} offset:{o} @y{j}{ks}"
    def sib_dma(h):
        r = []
        for j in range(5):
            if h != 2:
                if j in (0, 4):
                    r += [f"s_add_u32 m0, s{sW5K}, {(R_D if h == 1 else R_QX) + j*1024}", f"s_add_u32 s{sT3}, s{sSIB+h}, {j*1024}"]
                r.append(f"buffer_load_dwordx4 {v(vLIN)}, {srd(SRD_O)}, s{sT3} offen offset:{(j & 3)*1024} sc1 lds @sib{h}")
            else:
                r += [f"s_add_u32 s58, s{sW5K}, {j*1024}", "s_cmp_lt_u32 s58, 12288", f"s_cselect_b32 s59, 0, {R_SP + 2048 - 12288 - 20480}",
                      "s_add_u32 s58, s58, s59", "s_add_u32 m0, s58, 20480", f"s_add_u32 s{sT3}, s{sSIB+h}, {j*1024}",
                      f"buffer_load_dwordx4 {v(vLIN)}, {srd(SRD_O)}, s{sT3} offen sc1 lds @sib{h}"]
        return r
    def p4_chunk(h, dm, last_gaps, mid=None):
        dm = list(dm)
        for ks in range(4):
            e("s_waitcnt lgkmcnt(0)")
            buf = ks & 1
            m = []
            for j in range(5):
                for nn in range(2):
                    d = v((pown if h == 0 else pacc) + (j*2+nn)*4, 4)
                    c = d
                    if ks == 0 and h == 0: c = "0"
                    if ks == 0 and h == 1: c = v(pown + (j*2+nn)*4, 4)
                    m.append(f"{MF} {d}, {a(aW + buf*8 + nn*4, 4)}, {v(pB + buf*20 + j*4, 4)}, {c}")
            gaps = {}
            if ks < 3:
                r = p4reads(h, ks + 1)
                for gi in range(5): gaps[gi] = r[2*gi:2*gi+2]
            else:
                e(f"s_mov_b32 s58, {WREG[h+1] - WREG[h]}")
                gaps = {g: list(x) for g, x in last_gaps.items()}
                gaps[0] = [f"v_add_u32 {v(vWR2+q)}, s58, {v(vWR2+q)}" for q in range(2)] + gaps.get(0, [])
            if h > 0:
                r = pB + buf*20
                chk = [f"v_max3_u32 {v(vCHK)}, {v(vCHK)}, {v(r)}, {v(r+4)}", f"v_max3_u32 {v(vCHK)}, {v(vCHK)}, {v(r+8)}, {v(r+12)}", f"v_max_u32 {v(vCHK)}, {v(vCHK)}, {v(r+16)}"]
                for q in range(3): gaps.setdefault(7 + q, []).append(chk[q])
            for gi in (5, 6, 7, 8, 9):
                for _ in range(2 if ks == 0 else 1):
                    if dm:
                        it = dm.pop(0); gaps.setdefault(gi, []).insert(len([x for x in gaps[gi] if not x.startswith("v_")]), it)
            if mid and ks == 2: gaps.setdefault(6, []).extend(mid)
            interleave(m, gaps)
        assert not dm
    def test(mask): return [f"v_cmp_eq_u32 vcc, -1, {v(vPRD)}", "s_nop 0", f"s_and_b32 s58, vcc_lo, {mask}"]
    emit(p4reads(0, 0))
    e(f"s_mov_b32 s{sIS12}, 0"); e(f"s_mov_b32 s{sIS3}, 0")
    e(f"v_mov_b32 {v(vCHK)}, 0")
    e("WAITVM prb")
    e(f"s_call_b64 s[{sRET}:{sRET+1}], L_try12")
    p4_chunk(0, [], {})
    e(f"s_cmp_eq_u32 s{sIS12}, 0"); e("s_cbranch_scc1 L_wait12")
    lab("L_got12")
    stamp("probed")
    e("s_waitcnt vmcnt(6)")
    e("s_barrier")
    stamp("B3")
    emit(p4reads(1, 0))
    lab("L_ch1")
    nextr = p4reads(2, 0)
    w3 = [x for x in wo_dma(3)]
    w3 = [x.replace("NEXTGAP", "s_nop 0") for x in w3]
    p4_chunk(1, w3, {1: ["s_barrier"], 2: nextr[0:2], 3: nextr[2:4], 4: nextr[4:6], 5: nextr[6:8], 6: nextr[8:9]},
             mid=[f"s_cmp_eq_u32 s{sIS3}, 0", "s_cbranch_scc1 L_try3a", "LABEL L_ch1b"])
    e(f"s_cmp_eq_u32 s{sIS3}, 0"); e("s_cbranch_scc1 L_try3b")
    lab("L_ch2")
    nextr = w3rd(0) + [x3rd(0, 0)] + w3rd(1) + [x3rd(0, 1)]
    p4_chunk(2, [], {1: [f"s_cmp_eq_u32 s{sIS3}, 0", "s_cbranch_scc1 L_wait3", "LABEL L_ch2b", "s_waitcnt vmcnt(0)", "s_barrier"],
                     2: nextr[0:2], 3: nextr[2:4], 4: nextr[4:6], 5: nextr[6:8], 6: nextr[8:10]})
    stamp("p4b")
    rq = w3rd(2) + [x3rd(0, 2)] + w3rd(3) + [x3rd(0, 3)] + [x3rd(j, ks) for j in range(1, 5) for ks in range(4)]
    post = []
    for j in range(5):
        for ks in range(4):
            e(f"WAITLG y{j}{ks}")
            for nn in range(2):
                d = v(pacc + (j*2+nn)*4, 4)
                e(f"{MF} {d}, {a(aW3 + (ks*2+nn)*4, 4)}, {v(b3reg(j, ks), 4)}, {d}")
                if j == 0 and ks == 0:
                    for _ in range(5): e(rq.pop(0))
                elif nn == 0 and rq: e(rq.pop(0))
                if nn == 0 and ks in (1, 3): e(f"v_max3_u32 {v(vCHK)}, {v(vCHK)}, {v(b3reg(j, ks-1))}, {v(b3reg(j, ks))}")
                elif j > 0 and (ks > 0 or nn == 1):
                    for _ in range(2):
                        if post: e(post.pop(0))
        emit(post)
        r0 = pacc + j*8
        post = [f"v_cmp_eq_u32 vcc, -1, {v(vCHK)}", "s_nop 1", "s_cbranch_vccnz L_retry"] + pack4(r0, r0, r0 + 4) + sanit(r0) + [pstore(j, r0, "pst")]
    e(post.pop(0))
    e("s_mul_i32 s58, s2, 24576"); e(f"s_lshl_b32 s59, s{sW}, 10"); e("s_add_u32 s58, s58, s59"); e(f"s_add_u32 s{sT3}, s58, {WS_PART}")
    e(f"s_and_b32 s{sT0}, s{sHKV}, 1"); e(f"s_sub_u32 s{sT2}, 3, s{sT0}")
    emit(post[1:])
    lab("L_p4ok")
    stamp("pst")
    e(f"s_cmp_ge_u32 s{sW}, s{sT2}")
    e("s_cbranch_scc1 L_fin")
    e(f"s_mul_i32 s{sT0}, s{sT0}, 3"); e(f"s_add_u32 s{sT0}, s{sT0}, s{sW}"); e(f"s_lshl_b32 s{sT0}, s{sT0}, 4")
    e(f"s_mul_i32 s{sT1}, s{sB}, 80"); e(f"s_add_u32 s{sT0}, s{sT0}, s{sT1}"); e(f"s_lshl_b32 s{sT0}, s{sT0}, 10")
    e(f"s_lshl_b32 s{sT1}, s{sI}, 8"); e(f"s_add_u32 s{sT0}, s{sT0}, s{sT1}")
    e(f"s_lshr_b32 s{sT1}, s{sHKV}, 1"); e(f"s_lshl_b32 s{sT1}, s{sT1}, 6"); e(f"s_add_u32 s{sT0}, s{sT0}, s{sT1}")
    emit(test(MP)); e("s_cbranch_scc1 L_waitp")
    lab("L_pok")
    e("v_lshlrev_b32 v9, 10, v4"); e("v_lshl_add_u32 v9, v5, 3, v9")
    e(f"s_mov_b32 s{SRD_K}, s14"); e(f"s_mov_b32 s{SRD_K+1}, s15"); e(f"s_mov_b32 s{SRD_K+2}, 655360"); e(f"s_mov_b32 s{SRD_K+3}, 0x20000")
    fB = vO
    lab("L_red")
    e(f"s_mov_b32 s{sT1}, s{sT3}")
    for p in range(8):
        e(f"buffer_load_dwordx4 {v(fB + p*4, 4)}, {v(vLIN)}, {srd(SRD_WS)}, s{sT1} offen sc1")
        e(f"s_add_u32 s{sT1}, s{sT1}, 3072")
    e(f"v_mov_b32 {v(vCHK)}, 0")
    for p in range(8):
        e(f"s_waitcnt vmcnt({7-p})")
        for k in range(2):
            d = v(vS + k*4, 4)
            e(f"{MF} {d}, {a(aE + (2 if k == 0 else 0), 4)}, {v(fB + p*4, 4)}, {'0' if p == 0 else d}")
            if k == 0: e(f"v_max_u32 {v(vCHK)}, {v(vCHK)}, {v(fB + p*4)}")
    e(f"v_cmp_eq_u32 vcc, -1, {v(vCHK)}")
    e(f"s_add_u32 s{sSPIN}, s{sSPIN}, 1")
    e("s_nop 4")
    e("s_cbranch_vccz L_redok")
    e(f"s_cmp_lt_u32 s{sSPIN}, {SPIN_MAX}"); e("s_cbranch_scc1 L_red")
    lab("L_redok")
    e("s_nop 1")
    e(f"v_cvt_pk_bf16_f32 {v(vS)}, {v(vS)}, {v(vS+1)}"); e(f"v_cvt_pk_bf16_f32 {v(vS+1)}, {v(vS+2)}, {v(vS+3)}")
    e(f"v_cvt_pk_bf16_f32 {v(vS+4)}, {v(vS+4)}, {v(vS+5)}"); e(f"v_cvt_pk_bf16_f32 {v(vS+5)}, {v(vS+6)}, {v(vS+7)}")
    e(f"buffer_store_dwordx2 {v(vS, 2)}, v9, {srd(SRD_K)}, s{sT0} offen")
    e(f"buffer_store_dwordx2 {v(vS+4, 2)}, v9, {srd(SRD_K)}, s{sT0} offen offset:32")
    lab("L_fin")
    stamp("fin")
    write_stamps()
    lab("L_done")
    e("s_endpgm")
    def spin(lbl_fail): return [f"s_add_u32 s{sSPIN}, s{sSPIN}, 1", f"s_cmp_ge_u32 s{sSPIN}, {SPIN_MAX}", f"s_cbranch_scc1 {lbl_fail}"]
    lab("L_hs")
    e("v_mov_b32 v2, 0"); e("s_sleep 4")
    e(f"buffer_load_dword {v(vJUNK)}, v2, {srd(SRD_D)}, s{sT1} offen sc1")
    e("s_waitcnt vmcnt(0)")
    emit(spin("L_hsok"))
    e(f"v_readfirstlane_b32 s58, {v(vJUNK)}"); e("s_nop 0"); e("s_cmp_ge_u32 s58, 32"); e("s_cbranch_scc0 L_hs")
    e("s_branch L_hsok")
    lab("L_try12")
    emit(test(M12))
    e("s_cbranch_scc1 L_try12no")
    emit(sib_dma(1)); emit(sib_dma(2)); emit(probe(M3 | MP))
    e(f"s_mov_b32 s{sIS12}, 1")
    e(f"s_setpc_b64 s[{sRET}:{sRET+1}]")
    lab("L_try12no")
    emit(probe(M12))
    e(f"s_setpc_b64 s[{sRET}:{sRET+1}]")
    lab("L_wait12")
    e("s_waitcnt vmcnt(0)")
    e(f"s_call_b64 s[{sRET}:{sRET+1}], L_try12")
    emit(spin("L_got12"))
    e(f"s_cmp_eq_u32 s{sIS12}, 0"); e("s_cbranch_scc1 L_wait12")
    e("s_branch L_got12")
    lab("L_try3a")
    e("s_waitcnt vmcnt(8)")
    e(f"s_call_b64 s[{sRET}:{sRET+1}], L_try3")
    e("s_branch L_ch1b")
    lab("L_try3")
    emit(test(M3))
    e("s_cbranch_scc1 L_try3no")
    emit(sib_dma(3))
    e(f"s_mov_b32 s{sIS3}, 1")
    e(f"s_setpc_b64 s[{sRET}:{sRET+1}]")
    lab("L_try3no")
    emit(probe(M3))
    e(f"s_setpc_b64 s[{sRET}:{sRET+1}]")
    lab("L_try3b")
    e("s_waitcnt vmcnt(0)")
    e(f"s_call_b64 s[{sRET}:{sRET+1}], L_try3")
    e("s_branch L_ch2")
    lab("L_wait3")
    e("s_waitcnt vmcnt(0)")
    e(f"s_call_b64 s[{sRET}:{sRET+1}], L_try3")
    emit(spin("L_ch2b"))
    e(f"s_cmp_eq_u32 s{sIS3}, 0"); e("s_cbranch_scc1 L_wait3")
    e("s_branch L_ch2b")
    lab("L_waitp")
    e(f"s_sleep {SLP}"); emit(probe(MP)); e("s_waitcnt vmcnt(0)")
    emit(spin("L_pok"))
    emit(test(MP)); e("s_cbranch_scc1 L_waitp")
    e("s_branch L_pok")
    lab("L_retry")
    emit(spin("L_done"))
    e("s_waitcnt lgkmcnt(0)")
    e("s_barrier")
    emit(sib_dma(1) + sib_dma(2) + sib_dma(3))
    e(f"s_mov_b32 s58, {R_B - R_A}")
    for q in range(2): e(f"v_add_u32 {v(vWR2+q)}, s58, {v(vWR2+q)}")
    e(f"v_mov_b32 {v(vCHK)}, 0")
    e("s_waitcnt vmcnt(0)")
    e("s_barrier")
    emit(p4reads(1, 0))
    e("s_branch L_ch1")
    point_stubs()
    lab("L_fallback")
    fallback()
    lab("L_end")

def fallback():
    e("s_waitcnt vmcnt(0) lgkmcnt(0)")
    e("s_barrier")
    e("v_xor_b32 v1, v4, v5"); e("v_lshlrev_b32 v2, 4, v1"); e(f"v_lshl_add_u32 {v(vOK)}, v5, 8, v2")
    for vv in range(1, 4): e(f"v_xor_b32 {v(vOK+vv)}, {vv*64}, {v(vOK)}")
    e("v_lshrrev_b32 v3, 2, v4"); e("v_lshlrev_b32 v3, 3, v3"); e("v_and_b32 v1, 3, v4"); e("v_add_u32 v3, v3, v1")
    e("v_lshl_add_u32 v2, v3, 8, v2"); e(f"v_add_u32 v2, s{sSLOT}, v2"); e(f"v_add_u32 {v(vKR)}, {R_A}, v2")
    for ds in range(1, 4): e(f"v_xor_b32 {v(vKR+ds)}, {ds*64}, {v(vKR)}")
    e("v_lshlrev_b32 v2, 1, v5"); e("v_xor_b32 v2, v4, v2"); e("v_lshlrev_b32 v2, 4, v2")
    e(f"v_lshl_add_u32 {v(vOV)}, v5, 8, v2"); e(f"v_xor_b32 {v(vOV+1)}, 128, {v(vOV)}")
    for k in range(8): e(f"v_add_u32 {v(vVRC+k)}, {R_C}, {v(vVR+k)}")
    e("v_lshlrev_b32 v3, 7, v0")
    vM = vP
    for j in range(5): e(f"v_mov_b32 {v(vM+j)}, 0xff800000")
    emit(set_T(True, 0))
    lab("L_fbmax")
    emit(flat(kv_dma(True, R_A, "f")))
    e("s_waitcnt vmcnt(0)")
    emit(kreads(0))
    e("s_waitcnt lgkmcnt(0)")
    for j in range(5):
        emit(qk(j, 0, 0, cinit="0"))
        e("s_nop 7")
        for n in range(4): e(f"v_max3_f32 {v(vM+j)}, {v(vM+j)}, {v(vS+2*n)}, {v(vS+2*n+1)}")
    st = f"s{sSTEP}" if "mirror" in X else "8192"
    e(f"s_add_u32 s{sTK}, s{sTK}, {st}"); e(f"s_add_u32 s{sTK2}, s{sTK2}, {st}")
    e(f"s_cmp_lt_u32 s{sTK}, 65536"); e("s_cbranch_scc1 L_fbmax")
    for j in range(5):
        for op in ("v_permlane32_swap_b32", "v_permlane16_swap_b32"):
            e(f"v_mov_b32 v1, {v(vM+j)}"); e("s_nop 1"); e(f"{op} {v(vM+j)}, v1"); e("s_nop 1"); e(f"v_max_f32 {v(vM+j)}, {v(vM+j)}, v1")
    e(f"s_lshl_b32 s58, s{sW}, 2"); e(f"s_add_u32 s58, s58, {R_SP}"); e("v_lshl_add_u32 v1, v4, 4, s58")
    e("v_lshlrev_b32 v2, 4, v4"); e(f"v_add_u32 v2, {R_SP}, v2")
    for j in range(5): e(f"ds_write_b32 v1, {v(vM+j)} offset:{j*256}")
    e("s_waitcnt lgkmcnt(0)"); e("s_barrier")
    for j in range(5): e(f"ds_read_b128 {v(vNM+j*4, 4)}, v2 offset:{j*256}")
    emit(set_T(True, 0) + flat(kv_dma(True, R_A, "f")) + set_T(True, 1) + flat(kv_dma(True, R_B, "f")) + set_T(False, 0) + flat(kv_dma(False, R_C, "f")))
    e("s_waitcnt lgkmcnt(0)")
    for j in range(5):
        r = vNM + j*4
        e(f"v_max3_f32 {v(r)}, {v(r)}, {v(r+1)}, {v(r+2)}"); e(f"v_max_f32 {v(r)}, {v(r)}, {v(r+3)}"); e(f"v_sub_f32 {v(r)}, 0, {v(r)}")
        for q in (1, 2, 3): e(f"v_mov_b32 {v(r+q)}, {v(r)}")
    for r in range(160): e(f"v_mov_b32 {v(vO+r)}, 0")
    for r in range(20): e(f"v_accvgpr_write_b32 {a(aL+r)}, 0")
    e("s_waitcnt vmcnt(0)")
    emit(kreads(0)); e("s_waitcnt lgkmcnt(0)"); emit(kreads(1)); e("s_waitcnt lgkmcnt(0)")
    vr = vreads(0); emit(vr[:8]); e("s_waitcnt lgkmcnt(0)"); emit(vr[8:]); e("s_waitcnt lgkmcnt(0)")
    emit(set_T(True, 2) + flat(kv_dma(True, R_A, "f")) + set_T(False, 1) + flat(kv_dma(False, R_D, "f")))
    for j in range(5):
        sb = (5 + j) & 1
        emit(qk(j, 0, sb))
        if j < 4:
            e("s_nop 7"); emit(exps(sb)); e("s_nop 0"); emit(cvts(sb, j))
    e(f"s_mov_b32 s{sCNT}, 0")
    emit(set_T(True, 3) + set_T(False, 2))
    e(f"s_mov_b32 s{sRANGE}, -1")
    e(f"s_mov_b32 s{sOI}, s{sOOWN}")
    e(P_INIT0)
    e("s_nop 7")
    e("s_branch L_loop")

hdr = open("standalone__gqa_block_cached__near_ridge.s.ref").read().split("\n")
for ln in hdr:
    if ln.startswith("; @launch"): continue
    if not ln.startswith(";"): break
    L.append(ln)
L.append("; @launch grid=(256,1,1) block=(256,1,1) lds=163840")
L.append('.amdgcn_target "amdgcn-amd-amdhsa--gfx950"')
L.append(".text")
kernel()
L.append('.section .rodata,"a"')
L.append(".p2align 6"); L.append(f".amdhsa_kernel {KN}")
for s in ["next_free_vgpr 512", "next_free_sgpr 102", "accum_offset 256", "group_segment_fixed_size 0", "kernarg_size 64", "user_sgpr_count 2", "user_sgpr_kernarg_segment_ptr 1", "system_sgpr_workgroup_id_x 1"]:
    L.append("  .amdhsa_" + s)
L.append(".end_amdhsa_kernel")
print("\n".join(L))
```

```python
import sys, math, struct

X = set(a[2:] for a in sys.argv[1:] if a.startswith("--") and "=" not in a)
OPT = dict(a[2:].split("=") for a in sys.argv[1:] if a.startswith("--") and "=" in a)
STAMPS = "stamps" in X
KVF = OPT.get("kvf", "").replace("_", " "); XF = OPT.get("xf", "").replace("_", " ")
KN = "standalone__gqa_block_cached__near_ridge_kernel"
L = []

class Tr:
    def __init__(s): s.ops = []
    def add(s, tag): s.ops.append(tag)
    def need(s, tag):
        idx = max(i for i, t in enumerate(s.ops) if t == tag)
        return len(s.ops) - 1 - idx
VM = Tr(); LG = Tr()

def lab(s): L.append(s + ":")
def e(s):
    if s.startswith("LABEL "): lab(s[6:]); return
    if s.startswith("RAW "): L.append("    " + s[4:]); return
    if s.startswith("MARK "): return
    if s.startswith("STAMP "): stamp(s[6:]); return
    if s == "NEXTGAP": s = "s_nop 0"
    tag = None
    if " @" in s: s, tag = s.split(" @")
    op = s.split()[0]
    if op == "WAITVM":
        n = VM.need(s.split()[1]); s = f"s_waitcnt vmcnt({min(n, 63)})"
    elif op == "WAITLG":
        n = LG.need(s.split()[1]); s = f"s_waitcnt lgkmcnt({min(n, 15)})"
    elif op.startswith("buffer_") or op.startswith("global_"): VM.add(tag)
    elif op.startswith("ds_"): LG.add(tag)
    L.append("    " + s)
def emit(lst):
    for s in lst: e(s)
def flat(groups): return [s for g in groups for s in g]

QSCALE = 1.4426950408889634 / math.sqrt(128.0)
def f2u(x): return struct.unpack("<I", struct.pack("<f", x))[0]

S_ST = [0, 53248, 106496, 0]
R_D, R_QX, R_A, R_B, R_C, R_SP = 0, 32768, 53248, 86016, 118784, 151552
KSLOT = [R_A, R_B]; VSLOT = [R_C, R_D]
XSLOT = [0, 28672, 40960, 0, 12288]
WS_PART = 8 << 20
WS_FLG = 16 << 20
WS_STAMP = 128 << 20
HEADSTRIDE = 64 * 20480
LO_BITS = 0x21800000
RANGE = 0x3C000000

sW, sHKV, sB, sI = 3, 20, 21, 22
sRANGE = 23
SRD_X, SRD_WQ, SRD_K, SRD_V, SRD_O, SRD_WO = 24, 28, 32, 36, 40, 44
SRD_WS, SRD_D = 24, 28
sTK, sTK2, sTV, sTV2, sSLOT, sCNT = 48, 49, 50, 51, 52, 53
sT0, sT1, sT2, sT3 = 54, 55, 56, 57
sOOWN, sW5K, sSPIN, sFOWN = 60, 61, 62, 63
sOI, sIS3, sIS12 = 11, 12, 13
sPT, sPF0, sPF1 = 96, 97, 95
sMIR, sSTEP, sXB, sWB = 94, 93, 92, 91
sRET = 100
SRD_PI = 64
sSTAMP = 68

vKR = 8; vVR = 12; vOK = 20; vOV = 24; vLIN = 26; vJUNK = 27
vP = 28; vS = 48; vNM = 64; vTMP = 84; vO = 96
vVRC = vTMP; vSENT = vTMP + 8
aQ = 0; aK = 80; aV = 144; aL = 208; aE = 228; aPRB = 234; aADR = 235; aONE = 248
sWOB = 4; sSIB = 7

def srd(r): return f"s[{r}:{r+3}]"
def v(r, n=1): return f"v{r}" if n == 1 else f"v[{r}:{r+n-1}]"
def a(r, n=1): return f"a{r}" if n == 1 else f"a[{r}:{r+n-1}]"
MF = "v_mfma_f32_16x16x32_bf16"
SC = "sc1"
SPIN_MAX = 400000

nstamp = [0]
def stamp(name=""):
    if not STAMPS: return
    sel = OPT.get("st")
    if sel and name not in sel.split(","): return
    i = nstamp[0]; nstamp[0] += 1
    assert sSTAMP + 2*i + 1 < 91
    sys.stderr.write(f"{i}:{name} ")
    L.append(f"    {'s_memtime' if 'cyc' in X else 's_memrealtime'} s[{sSTAMP+2*i}:{sSTAMP+2*i+1}]")
    L.append("    s_waitcnt lgkmcnt(0)")

def write_stamps():
    if not STAMPS: return
    if "amp" in X:
        e("s_cmp_ge_u32 s2, " + OPT.get("ampn", "8")); e("s_cbranch_scc1 L_done")
        e(f"s_cmp_lg_u32 s{sW}, 0"); e("s_cbranch_scc1 L_done")
        e("s_memrealtime s[80:81]"); e("s_waitcnt lgkmcnt(0)")
        e(f"s_sub_u32 s82, s{sSTAMP+2}, s{sSTAMP}"); e("s_min_u32 s82, s82, 5000"); e("s_mul_i32 s82, s82, 10"); e("s_add_u32 s82, s82, s80")
        lab("L_amp")
        e("s_memrealtime s[84:85]"); e("s_waitcnt lgkmcnt(0)"); e("s_sub_u32 s86, s84, s82"); e("s_cmp_lt_i32 s86, 0"); e("s_cbranch_scc1 L_amp")
        return
    n = nstamp[0]
    e("s_lshl_b32 s58, s2, 2"); e(f"s_add_u32 s58, s58, s{sW}"); e(f"s_mul_i32 s58, s58, {n*8}")
    e(f"s_add_u32 s58, s58, {WS_STAMP}")
    e("s_add_u32 s58, s18, s58"); e("s_addc_u32 s59, s19, 0")
    e("s_mov_b64 exec, 1")
    e("v_mov_b32 v1, 0")
    for i in range(n):
        e(f"v_mov_b32 v2, s{sSTAMP+2*i}"); e(f"v_mov_b32 v3, s{sSTAMP+2*i+1}")
        e(f"global_store_dwordx2 v1, v[2:3], s[58:59] offset:{i*8}")
        e("s_nop 1")
    sys.stderr.write(f"\nstamps: {n}\n")

def mk_srd(r, pbase, off_sgpr, size):
    return [f"s_add_u32 s{r}, s{pbase}, s{off_sgpr}", f"s_addc_u32 s{r+1}, s{pbase+1}, 0",
            f"s_mov_b32 s{r+2}, {size}", f"s_mov_b32 s{r+3}, 0x20000"]

def interleave(mfmas, gaps):
    emit(gaps.get(-1, []))
    for i, m in enumerate(mfmas):
        e(m)
        emit(gaps.get(i, []))

def cost(s):
    if s.startswith("MARK") or s.startswith("LABEL") or s.startswith("STAMP"): return 0
    return 2 if s.startswith(("v_exp", "v_rcp")) else 1

def sched(mfmas, fixed, streams, need=None, budget=2):
    need = need or {}
    streams = [list(s) for s in streams]
    done = set()
    def put(it):
        for s in (it if isinstance(it, list) else [it]):
            if s.startswith("MARK "): done.add(s[5:])
            e(s)
    def icost(it): return sum(cost(s) for s in (it if isinstance(it, list) else [it]))
    def flush(mark):
        if mark in done: return
        for st in streams:
            if any((f"MARK {mark}" in (it if isinstance(it, list) else [it])) for _, it in st):
                while mark not in done: put(st.pop(0)[1])
                return
        raise Exception("mark " + mark)
    emit(fixed.get(-1, []))
    for i, m in enumerate(mfmas):
        for mk in need.get(i, []): flush(mk)
        e(m)
        fx = list(fixed.get(i, []))
        room = budget - sum(cost(s) for s in fx)
        picked = []
        prog = True
        blocked = set()
        while prog:
            prog = False
            for k, st in enumerate(streams):
                if st and st[0][1] == "NEXTGAP" and k not in blocked:
                    st.pop(0); blocked.add(k)
                if k in blocked: continue
                if st and st[0][0] <= i and (icost(st[0][1]) <= room or (room == budget and not fx) or icost(st[0][1]) == 0):
                    it = st.pop(0)[1]; room -= icost(it); picked.append(it); prog = True
                    break
        items = fx + picked
        def indep(k):
            x = items[k]
            if isinstance(x, list) or x.startswith(("v_", "MARK", "STAMP", "ds_write", "buffer_store")): return False
            return all(isinstance(y, str) and y.startswith("v_") and not y.startswith(("v_accvgpr_read", "v_mov")) for y in items[:k])
        for k in range(1, len(items)):
            if indep(k): items.insert(0, items.pop(k)); break
        for it in items: put(it)
    return streams

def kv_dma(isK, slot_base, tag, nop=True):
    g = []
    for p in range(8):
        grp = []
        if p % 4 == 0:
            grp.append(f"s_add_u32 m0, s{sSLOT}, {slot_base + (p // 4) * 4096}")
            if nop: grp.append("s_nop 0")
        vo = vOK + (p >> 1) if isK else vOV + ((p >> 1) & 1)
        so = (sTK if isK else sTV) + (0 if p < 4 else 1)
        grp.append(f"buffer_load_dwordx4 {v(vo)}, {srd(SRD_K if isK else SRD_V)}, s{so} offen offset:{(p % 4)*1024} {KVF} lds @{tag}")
        g.append(grp)
    return g
def set_T(isK, t):
    r = sTK if isK else sTV
    if "mirror" in X: return [f"s_xor_b32 s{r}, s{sMIR}, {t*8192}", f"s_xor_b32 s{r+1}, s{sMIR}, {t*8192+4096}"]
    return [f"s_mov_b32 s{r}, {t*8192}", f"s_mov_b32 s{r+1}, {t*8192+4096}"]
def kreads(slot, tag="kr"):
    return [f"ds_read_b128 {a(aK + slot*32 + (kt*4+ds)*4, 4)}, {v(vKR+ds)} offset:{(KSLOT[slot]-R_A) + kt*1024} @{tag}"
            for kt in range(2) for ds in range(4)]
def vreads(slot, tag="vr"):
    base = vVRC if slot == 0 else vVR
    return [f"ds_read_b64_tr_b16 {a(aV + slot*32 + k*4 + jh*2, 2)}, {v(base+k)} offset:{jh*1024} @{tag}"
            for k in range(8) for jh in range(2)]
def qk(j, kbuf, sbuf, cinit=None):
    m = []
    for kt in range(2):
        for ds in range(4):
            d = v(vS + sbuf*8 + kt*4, 4)
            c = (cinit or v(vNM + j*4, 4)) if ds == 0 else d
            m.append(f"{MF} {d}, {a(aK + kbuf*32 + (kt*4+ds)*4, 4)}, {a(aQ + (j*4+ds)*4, 4)}, {c}")
    return m
def pv(j, vbuf, ks=range(8)):
    m = []
    for k in ks:
        d = v(vO + (k*5+j)*4, 4)
        m.append(f"{MF} {d}, {a(aV + vbuf*32 + k*4, 4)}, {v(vP + j*4, 4)}, {d}")
    m.append(f"{MF} {a(aL + j*4, 4)}, {a(aONE, 4)}, {v(vP + j*4, 4)}, {a(aL + j*4, 4)}")
    return m
def exps(sbuf): return [f"v_exp_f32 {v(vS + sbuf*8 + n)}, {v(vS + sbuf*8 + n)}" for n in range(8)]
def cvts(sbuf, j): return [f"v_cvt_pk_bf16_f32 {v(vP + j*4 + n)}, {v(vS + sbuf*8 + 2*n)}, {v(vS + sbuf*8 + 2*n+1)}" for n in range(4)]
def put_exp(G, base, sbuf, j):
    ex = exps(sbuf); cv = cvts(sbuf, j)
    for n in range(8): G.setdefault(base + 2*n, []).append(ex[n])
    for n in range(4): G.setdefault(base + 4*n + 3, []).append(cv[n])
def pack4(t, r0, r1):
    return [f"v_cvt_pk_bf16_f32 {v(t)}, {v(r0)}, {v(r0+1)}", f"v_cvt_pk_bf16_f32 {v(t+1)}, {v(r0+2)}, {v(r0+3)}",
            f"v_cvt_pk_bf16_f32 {v(t+2)}, {v(r1)}, {v(r1+1)}", f"v_cvt_pk_bf16_f32 {v(t+3)}, {v(r1+2)}, {v(r1+3)}"]
def sanit(t): return [f"v_min_u32 {v(t)}, -2, {v(t)}"]

P_INIT0 = f"buffer_store_dwordx4 {v(vSENT, 4)}, {v(vLIN)}, {srd(SRD_PI)}, 0 offen {SC}"
npf = [0]
def pf(n):
    u = npf[0]; npf[0] += 1
    return [f"s_lshr_b32 s58, s{sI}, 1", f"s_add_u32 s58, s58, {2*n}", "s_lshl_b32 s58, s58, 13",
            f"s_bitcmp1_b32 s{sI}, 0", f"s_cbranch_scc1 L_pfv{u}",
            f"buffer_load_dword {v(vJUNK)}, v3, {srd(SRD_K)}, s58 offen @pf", f"s_branch L_pfe{u}",
            f"LABEL L_pfv{u}", f"RAW buffer_load_dword {v(vJUNK)}, v3, {srd(SRD_V)}, s58 offen", f"LABEL L_pfe{u}"]
def pf_wo():
    return [f"s_lshl_b32 s58, s{sB}, 2", f"s_add_u32 s58, s58, s{sI}", "s_lshl_b32 s58, s58, 2", f"s_add_u32 s58, s58, s{sW}",
            "s_lshl_b32 s58, s58, 12", f"s_lshl_b32 s59, s{sI}, 8", "s_sub_u32 s58, s58, s59",
            f"v_add_u32 v2, s58, v3", "s_mov_b32 exec_hi, 0",
            f"buffer_load_dword {v(vJUNK)}, v2, {srd(SRD_WO)}, 0 offen @pf", "s_mov_b32 exec_hi, -1"]
npt = [0]; stubs = []
def point():
    if "pts" not in OPT: return []
    k = npt[0]; npt[0] += 1
    stubs.append(k)
    return [f"s_sub_u32 s{sPT}, s{sPT}, 1", f"s_cbranch_scc1 L_pt{k}", f"LABEL L_ptr{k}"]
def point_stubs():
    for k in stubs:
        lab(f"L_pt{k}")
        for so in (sPF0, sPF1):
            L.append(f"    buffer_load_dword {v(vJUNK)}, v3, {srd(SRD_K)}, s{so} offen")
            L.append(f"    buffer_load_dword {v(vJUNK)}, v3, {srd(SRD_V)}, s{so} offen")
        e(f"s_branch L_ptr{k}")
def point_setup():
    if "pts" not in OPT: return
    base = [int(x) for x in OPT["pts"].split(",")]
    step = int(OPT.get("pstep", 0)); toff = int(OPT.get("toff", 0))
    e(f"s_mov_b32 s{sPT}, {base[0]}")
    for i in (1, 2, 3):
        e(f"s_cmp_eq_u32 s{sI}, {i}"); e(f"s_cselect_b32 s{sPT}, {base[i]}, s{sPT}")
    e(f"s_mul_i32 s58, s{sB}, {step}"); e("s_lshr_b32 s58, s58, 3"); e(f"s_add_u32 s{sPT}, s{sPT}, s58")
    e(f"s_lshl_b32 s{sPF0}, s{sI}, 14"); e(f"s_add_u32 s{sPF0}, s{sPF0}, {toff*8192}"); e(f"s_add_u32 s{sPF1}, s{sPF0}, 8192")
PF = OPT.get("pf", "")
def pfs(where):
    r = []
    for it in PF.split(","):
        if it and it[1:] == where: r.append(pf_wo() if it[0] == "w" else pf(int(it[0])))
    return r

SCHED = {
 "a": dict(dpos=[1, 5, 9, 13, 20, 24, 28, 32, 37, 43, 49, 54, 60, 66, 71, 77], mpos=[-1, 16, 35, 58],
           kw=33, kpos=[33, 35, 39, 39, 41, 43, 45, 47],
           vw=50, vpos=[50, 52, 52, 56, 56, 60, 62, 64, 64, 67, 67, 69, 69, 73, 73, 75], tpos=[18, 47, 77, 79]),
 "b": dict(dpos=[1, 5, 9, 13, 16, 20, 24, 28, 32, 35, 39, 43, 47, 52, 56, 60], mpos=[-1, 15, 30, 45],
           kw=41, kpos=[43, 47, 49, 50, 50, 52, 54, 56],
           vw=58, vpos=[60, 62, 64, 64, 66, 67, 67, 69, 69, 71, 73, 73, 75, 77, 77, 79], tpos=[18, 33, 81, 84]),
 "c": dict(dpos=[0, 5, 10, 16, 21, 26, 32, 37, 42, 48, 53, 58, 64, 69, 74, 80], mpos=[-1, 18, 40, 61],
           kw=38, kpos=[39, 41, 43, 44, 45, 46, 47, 49],
           vw=62, vpos=[63, 65, 66, 67, 68, 70, 71, 72, 73, 75, 76, 77, 78, 79, 81, 82], tpos=[20, 39, 60, 81]),
 "d": dict(dpos=[0, 4, 8, 12, 16, 20, 24, 28, 32, 36, 40, 44, 48, 52, 56, 60], mpos=[-1, 14, 30, 46],
           kw=45, kpos=[46, 47, 49, 50, 51, 53, 54, 55],
           vw=62, vpos=[63, 64, 65, 66, 67, 68, 69, 70, 71, 72, 73, 74, 75, 76, 77, 78], tpos=[18, 33, 58, 79]),
 "old": dict(dpos=[1, 3, 5, 7, 9, 11, 13, 15, 18, 20, 22, 24, 26, 28, 30, 32], mpos=[-1, 8, 16, 25],
           kw=33, kpos=[35, 35, 39, 39, 43, 43, 47, 47],
           vw=50, vpos=[52, 52, 56, 56, 60, 60, 64, 64, 67, 67, 69, 69, 73, 73, 77, 77], tpos=[37, 41, 79, 81]),
}[OPT.get("sched", "a")]

def kernel():
    L.append(f".globl {KN}"); L.append(".p2align 8"); L.append(f".type {KN},@function"); lab(KN)
    e("s_cmp_ge_u32 s2, 256"); e("s_cbranch_scc1 L_done")
    e("s_load_dwordx16 s[4:19], s[0:1], 0")
    e("v_lshrrev_b32 v1, 6, v0")
    e("v_and_b32 v0, 63, v0")
    e(f"v_readfirstlane_b32 s{sW}, v1")
    e(f"s_and_b32 s{sHKV}, s2, 7"); e(f"s_lshr_b32 s{sB}, s2, 3"); e(f"s_and_b32 s{sB}, s{sB}, 7"); e(f"s_lshr_b32 s{sI}, s2, 6")
    stamp("start")
    if "pfct" in X:
        e("s_getpc_b64 s[58:59]"); lab("L_pc0")
        e(f"s_sub_u32 s58, s58, L_pc0-{KN}"); e("s_subb_u32 s59, s59, 0")
        e(f"s_lshr_b32 s{sT3}, s2, 3"); e(f"s_lshl_b32 s{sT3}, s{sT3}, 2"); e(f"s_add_u32 s{sT3}, s{sT3}, s{sW}"); e(f"s_lshl_b32 s{sT3}, s{sT3}, 8")
        e("v_lshlrev_b32 v3, 7, v0"); e(f"v_add_u32 v2, s{sT3}, v3"); e(f"v_min_u32 v2, L_end-{KN}-4, v2")
        e("s_mov_b64 exec, 3")
        e(f"global_load_dword {v(vJUNK)}, v2, s[58:59] @pfc0")
        e("s_mov_b64 exec, -1")
    e("v_and_b32 v4, 15, v0"); e("v_lshrrev_b32 v5, 4, v0"); e("v_bfe_u32 v6, v0, 2, 2"); e("v_and_b32 v7, 3, v0")
    vXO = vTMP; vWO = vTMP + 4; vXR = vTMP + 6; vWR = vTMP + 10
    e("v_xor_b32 v1, v4, v5")
    for pp in range(4):
        e(f"s_add_u32 s{sT0}, s{sW}, {pp}"); e(f"s_and_b32 s{sT0}, s{sT0}, 3"); e(f"s_lshl_b32 s{sT0}, s{sT0}, 2")
        e(f"v_xor_b32 v2, s{sT0}, v1"); e("v_lshlrev_b32 v2, 4, v2"); e(f"v_lshl_add_u32 {v(vXO+pp)}, v5, 10, v2")
    e("v_lshlrev_b32 v2, 1, v5"); e("v_xor_b32 v2, v4, v2"); e("v_lshlrev_b32 v2, 4, v2")
    e(f"v_lshl_add_u32 {v(vWO)}, v5, 13, v2"); e(f"v_xor_b32 {v(vWO+1)}, 128, {v(vWO)}")
    e(f"v_lshl_add_u32 {v(vOV)}, v5, 8, v2"); e(f"v_xor_b32 {v(vOV+1)}, 128, {v(vOV)}")
    e(f"s_mul_i32 s58, s{sB}, 81920")
    e(f"s_lshl_b32 s59, s{sHKV}, 2"); e(f"s_add_u32 s59, s59, s{sI}"); e("s_lshl_b32 s59, s59, 8")
    e(f"s_sub_u32 s{sT3}, 4194304, s59")
    e(f"s_mul_i32 s{sT0}, s{sW}, 20480"); e(f"s_mul_i32 s{sW5K}, s{sW}, 5120")
    e(f"s_lshl_b32 s{sT2}, s{sW}, 18"); e(f"s_lshl_b32 s{sSLOT}, s{sW}, 13")
    e(f"s_add_u32 s{sXB}, s{sT0}, 512"); e(f"s_add_u32 s{sWB}, s{sT2}, {256*8192}")
    if "rot2" in X:
        e(f"s_xor_b32 s{sTK}, s{sB}, s{sI}"); e(f"s_bitcmp1_b32 s{sTK}, 0")
        e(f"s_cselect_b32 s{sTK}, s{sXB}, s{sT0}"); e(f"s_cselect_b32 s{sXB}, s{sT0}, s{sXB}"); e(f"s_mov_b32 s{sT0}, s{sTK}")
        e(f"s_cselect_b32 s{sTK}, s{sWB}, s{sT2}"); e(f"s_cselect_b32 s{sWB}, s{sT2}, s{sWB}"); e(f"s_mov_b32 s{sT2}, s{sTK}")
    if "pfx" in X:
        e(f"s_lshl_b32 s{sTK}, s{sB}, 2"); e(f"s_add_u32 s{sTK}, s{sTK}, s{sW}"); e(f"s_lshl_b32 s{sTK}, s{sTK}, 17")
        e("v_lshrrev_b32 v2, 1, v0"); e("v_lshlrev_b32 v2, 13, v2"); e("v_and_b32 v3, 1, v0"); e("v_lshl_add_u32 v2, v3, 7, v2")
        e(f"s_lshl_b32 s{sTV}, s{sI}, 2"); e(f"s_add_u32 s{sTV}, s{sTV}, s{sW}"); e(f"s_mul_i32 s{sTV}, s{sTV}, 5120")
    e("v_lshlrev_b32 v3, 7, v0")
    e("s_waitcnt lgkmcnt(0)")
    emit(mk_srd(SRD_X, 4, 58, 81920)); emit(mk_srd(SRD_WQ, 10, 59, f"s{sT3}"))
    def p1_dma(cc):
        g = []
        for pp in range(5):
            g.append([f"s_add_u32 m0, s{sW5K}, {S_ST[cc] + pp*1024}", f"s_add_u32 s{sT3}, s{sT0 if cc < 2 else sXB}, {pp*4096 + (cc & 1)*256}",
                      f"buffer_load_dwordx4 {v(vXO + (pp & 3))}, {srd(SRD_X)}, s{sT3} offen {XF} lds @c{cc}"])
        for pp in range(8):
            g.append([f"s_add_u32 m0, s{sSLOT}, {S_ST[cc] + 20480 + pp*1024}", f"s_add_u32 s{sT3}, s{sT2 if cc < 2 else sWB}, {((cc & 1)*128 + 4*pp)*8192}",
                      f"buffer_load_dwordx4 {v(vWO + ((pp >> 1) & 1))}, {srd(SRD_WQ)}, s{sT3} offen {XF} lds @c{cc}"])
        return g
    if "pfx" in X:
        e("s_mov_b32 exec_hi, 0")
        e(f"buffer_load_dword {v(vJUNK)}, v2, {srd(SRD_WQ)}, s{sTK} offen @pfx")
        e("s_mov_b32 exec_hi, 0xff")
        e(f"buffer_load_dword {v(vJUNK)}, v3, {srd(SRD_X)}, s{sTV} offen @pfx")
        e("s_mov_b32 exec_hi, -1")
    c01 = p1_dma(0) + p1_dma(1)
    n0 = int(OPT.get("n0", 11 if "pfx" in X else 15))
    keepE = list(L); del L[:]
    e("v_lshlrev_b32 v2, 4, v1"); e(f"v_lshl_add_u32 {v(vXR)}, v4, 8, v2")
    for ks in range(1, 4): e(f"v_xor_b32 {v(vXR+ks)}, {ks*64}, {v(vXR)}")
    e("v_lshl_add_u32 v2, v5, 3, v6"); e("v_lshlrev_b32 v2, 8, v2"); e("v_lshl_add_u32 v2, v7, 3, v2")
    e(f"v_and_b32 {v(vS+16+4)}, 1, v5"); e(f"v_lshl_add_u32 {v(vS+16+4)}, {v(vS+16+4)}, 2, v6")
    e(f"s_lshl_b32 s58, s{sW}, 1")
    for k in range(8):
        e(f"s_add_u32 s59, s58, {k}"); e("s_and_b32 s59, s59, 7")
        e(f"v_xor_b32 v1, s59, {v(vS+16+4)}"); e("v_lshl_add_u32 v1, v1, 5, v2")
        if k < 2: e(f"v_add_u32 {v(vWR+k)}, 20480, v1")
        e(f"v_add_u32 {v(vVR+k)}, s{sSLOT}, v1")
    e(f"s_lshl_b32 s58, s{sB}, 3"); e(f"s_add_u32 s58, s58, s{sHKV}"); e("s_lshl_b32 s58, s58, 18")
    e(f"s_lshl_b32 s59, s{sW}, 16"); e("s_add_u32 s58, s58, s59")
    emit(mk_srd(SRD_K, 6, 58, 65536)); emit(mk_srd(SRD_V, 8, 58, 65536))
    point_setup()
    if "mirror" in X:
        e(f"s_bitcmp1_b32 s{sI}, 0"); e(f"s_cselect_b32 s{sMIR}, 0xe000, 0"); e(f"s_cselect_b32 s{sSTEP}, -1, 1"); e(f"s_lshl_b32 s{sSTEP}, s{sSTEP}, 13")
    early0 = [x.strip() for x in L]; L[:] = keepE
    keepL = list(L); del L[:]
    if "pfc" in X:
        e("s_getpc_b64 s[58:59]"); lab("L_pc")
        e(f"s_sub_u32 s58, s58, L_pc-{KN}"); e("s_subb_u32 s59, s59, 0")
        e(f"s_lshr_b32 s{sT3}, s2, 3"); e(f"s_lshl_b32 s{sT3}, s{sT3}, 2"); e(f"s_add_u32 s{sT3}, s{sT3}, s{sW}"); e(f"s_lshl_b32 s{sT3}, s{sT3}, 8")
        e(f"v_add_u32 v2, s{sT3}, v3"); e(f"v_min_u32 v2, L_end-{KN}-4, v2")
        e("s_mov_b64 exec, 3")
        e(f"global_load_dword {v(vJUNK)}, v2, s[58:59] @pfc")
        e("s_mov_b64 exec, -1")
    e("s_and_b32 s58, s2, 63"); e("s_mul_i32 s58, s58, 20480"); emit(mk_srd(SRD_O, 18, 58, 3*HEADSTRIDE + 20480))
    e(f"s_mul_i32 s{sOOWN}, s{sI}, {HEADSTRIDE}"); e(f"s_add_u32 s{sOOWN}, s{sOOWN}, s{sW5K}")
    e(f"s_lshl_b32 s{sFOWN}, s2, 2"); e(f"s_add_u32 s{sFOWN}, s{sFOWN}, s{sW}"); e(f"s_lshl_b32 s{sFOWN}, s{sFOWN}, 6"); e(f"s_add_u32 s{sFOWN}, s{sFOWN}, {WS_FLG}")
    t0, t1, t2 = vNM + 4, vNM + 5, vNM + 6
    e(f"v_mul_u32_u24 {v(t2)}, 43, v0"); e(f"v_lshrrev_b32 {v(t2)}, 7, {v(t2)}")
    e(f"v_mul_u32_u24 {v(t1)}, 3, {v(t2)}"); e(f"v_sub_u32 {v(t1)}, v0, {v(t1)}")
    e(f"v_cmp_le_u32 vcc, s{sI}, {v(t2)}"); e("s_nop 1"); e(f"v_addc_co_u32 {v(t2)}, vcc, 0, {v(t2)}, vcc"); e(f"v_and_b32 {v(t2)}, 3, {v(t2)}")
    e(f"s_mov_b32 s{sT3}, {HEADSTRIDE}"); e(f"v_mul_lo_u32 {v(t0)}, {v(t2)}, s{sT3}")
    e(f"s_add_u32 s58, s58, s{sW5K}"); e(f"s_add_u32 s58, s58, {3*1024 + 1008}")
    e(f"v_lshl_add_u32 {v(t0)}, {v(t1)}, 10, {v(t0)}"); e(f"v_add_u32 {v(t0)}, s58, {v(t0)}")
    e("s_and_b32 s58, s2, 63"); e("s_lshl_b32 s58, s58, 2"); e(f"s_add_u32 s58, s58, s{sW}"); e("s_lshl_b32 s58, s58, 6"); e(f"s_add_u32 s58, s58, {WS_FLG}")
    e(f"v_lshl_add_u32 {v(t2)}, {v(t2)}, 14, s58")
    e(f"v_cmp_eq_u32 vcc, 2, {v(t1)}"); e("s_and_b32 s58, s2, 0xf8"); e("s_lshl_b32 s58, s58, 8")
    e(f"v_cndmask_b32 {v(t0)}, {v(t0)}, {v(t2)}, vcc")
    e(f"s_lshr_b32 s59, s{sHKV}, 1"); e("s_lshl_b32 s59, s59, 6"); e("s_add_u32 s58, s58, s59"); e(f"s_add_u32 s58, s58, {WS_FLG}")
    e(f"v_and_b32 {v(t1)}, 7, v0"); e(f"v_lshl_add_u32 {v(t1)}, {v(t1)}, 8, s58")
    e("v_cmp_gt_u32 vcc, 16, v0"); e("s_nop 1")
    e(f"v_cndmask_b32 {v(t0)}, {v(t1)}, {v(t0)}, vcc")
    e(f"v_accvgpr_write_b32 {a(aPRB)}, {v(t0)}")
    e("s_and_b32 s58, s2, 0xf8"); e(f"s_lshl_b32 s59, s{sW}, 1"); e("s_add_u32 s58, s58, s59"); e("s_mul_i32 s58, s58, 24576")
    e(f"s_mul_i32 s59, s{sHKV}, 3072"); e("s_add_u32 s58, s58, s59"); e(f"s_add_u32 s58, s58, {WS_PART}")
    emit(mk_srd(SRD_PI, 18, 58, 24576 + 3072))
    e(f"s_lshl_b32 s58, s{sHKV}, 19"); e(f"s_lshl_b32 s59, s{sI}, 8"); e("s_add_u32 s58, s58, s59"); e("s_sub_u32 s59, 524288, s59")
    emit(mk_srd(SRD_WO, 12, 58, "s59"))
    e(f"s_mov_b32 s{sRANGE}, {RANGE}")
    e(f"v_lshlrev_b32 {v(vLIN)}, 4, v0")
    e("v_xor_b32 v1, v4, v5"); e("v_lshlrev_b32 v2, 4, v1")
    e(f"v_lshl_add_u32 {v(vOK)}, v5, 8, v2")
    for vv in range(1, 4): e(f"v_xor_b32 {v(vOK+vv)}, {vv*64}, {v(vOK)}")
    e(f"v_lshrrev_b32 {v(t0)}, 2, v4"); e(f"v_lshlrev_b32 {v(t0)}, 3, {v(t0)}"); e("v_and_b32 v1, 3, v4"); e(f"v_add_u32 {v(t0)}, {v(t0)}, v1")
    e(f"v_lshl_add_u32 v2, {v(t0)}, 8, v2"); e(f"v_add_u32 v2, s{sSLOT}, v2"); e(f"v_add_u32 {v(vKR)}, {R_A}, v2")
    for ds in range(1, 4): e(f"v_xor_b32 {v(vKR+ds)}, {ds*64}, {v(vKR)}")
    e("v_lshlrev_b32 v1, 2, v5"); e("v_sub_u32 v1, v4, v1"); e("v_and_b32 v2, 1, v1"); e("v_lshlrev_b32 v2, 4, v2")
    e(f"v_mov_b32 {v(t0)}, 0x3f80"); e(f"v_lshlrev_b32 v2, v2, {v(t0)}"); e("v_lshrrev_b32 v1, 1, v1")
    e("v_cmp_eq_u32 vcc, 0, v1"); e(f"v_accvgpr_write_b32 {a(aE)}, 0"); e(f"v_accvgpr_write_b32 {a(aE+1)}, 0"); e(f"v_cndmask_b32 {v(t0)}, 0, v2, vcc")
    e("v_cmp_eq_u32 vcc, 1, v1"); e(f"v_accvgpr_write_b32 {a(aE+4)}, 0"); e(f"v_accvgpr_write_b32 {a(aE+5)}, 0"); e(f"v_cndmask_b32 {v(t1)}, 0, v2, vcc")
    e(f"v_accvgpr_write_b32 {a(aE+2)}, {v(t0)}"); e(f"v_accvgpr_write_b32 {a(aE+3)}, {v(t1)}")
    for mrel in (1, 2, 3, 0):
        e(f"s_add_u32 s59, s{sW}, {mrel}"); e("s_and_b32 s59, s59, 3"); e("s_mul_i32 s58, s59, 3072")
        if mrel > 1: e(f"s_add_u32 s58, s58, {(mrel-1)*1024}")
        e(f"v_add_u32 v1, s58, {v(vLIN)}")
        e(f"v_accvgpr_write_b32 {a(aADR + (mrel - 1) % 4)}, v1")
    e(f"s_lshl_b32 s58, s{sW}, 2"); e(f"s_add_u32 s58, s58, {R_SP}"); e("v_lshl_add_u32 v1, v4, 4, s58"); e(f"v_accvgpr_write_b32 {a(aADR+4)}, v1")
    e("v_lshlrev_b32 v1, 4, v4"); e(f"v_add_u32 v1, {R_SP}, v1"); e(f"v_accvgpr_write_b32 {a(aADR+5)}, v1")
    e("v_and_b32 v1, 1, v5"); e("v_lshlrev_b32 v1, 1, v1"); e("v_xor_b32 v1, v4, v1"); e("v_lshlrev_b32 v1, 4, v1"); e("v_lshl_add_u32 v1, v5, 12, v1")
    for q in range(4):
        e(f"v_xor_b32 v2, {q*64}, v1"); e(f"v_accvgpr_write_b32 {a(aADR+6+q)}, v2")
    e("v_lshl_add_u32 v2, v6, 2, v5"); e("v_lshlrev_b32 v2, 8, v2"); e("v_lshl_add_u32 v2, v7, 3, v2")
    e(f"v_and_b32 {v(t0)}, 1, v5"); e(f"v_lshl_add_u32 {v(t0)}, v6, 1, {v(t0)}")
    e(f"s_lshl_b32 s58, s{sW}, 1")
    for k in range(2):
        e(f"s_add_u32 s59, s58, {k}")
        e(f"v_xor_b32 v1, s59, {v(t0)}"); e("v_lshl_add_u32 v1, v1, 5, v2"); e(f"v_add_u32 v1, {R_A}, v1"); e(f"v_accvgpr_write_b32 {a(aADR+10+k)}, v1")
    for h in range(4):
        if h == 0: e(f"s_mov_b32 s58, s{sI}")
        else:
            e(f"s_cmp_le_u32 s{sI}, {h-1}"); e(f"s_cselect_b32 s58, {h}, {h-1}")
            e(f"s_mul_i32 s59, s58, {HEADSTRIDE}"); e(f"s_add_u32 s{sSIB+h}, s59, s{sW5K}")
        e("s_lshl_b32 s58, s58, 2"); e(f"s_add_u32 s58, s58, s{sW}"); e(f"s_lshl_b32 s{sWOB+h}, s58, 15")
    for r in range(160): e(f"v_mov_b32 {v(vO+r)}, 0")
    for r in range(20): e(f"v_accvgpr_write_b32 {a(aL+r)}, 0")
    e("v_mov_b32 v1, 0x3f803f80")
    for r in range(4): e(f"v_accvgpr_write_b32 {a(aONE+r)}, v1")
    fill = [x.strip() for x in L]; L[:] = keepL
    nearly = int(OPT.get("nearly", 150))
    zero = [x for x in fill if x.startswith("v_mov_b32 v") and x.endswith(", 0") and int(x.split()[1][1:-1]) >= vO]
    fill = [x for x in fill if x not in zero]
    early = zero[:nearly]; fill = fill + zero[nearly:]
    if "allearly" in X:
        early = fill + early; fill = []
    early = early0 + early
    if "weave0" in X:
        groups = list(c01[:n0])
        for _ in range(4): emit(groups.pop(0))
        per = max(1, len(early) // (len(groups) + 1))
        k = 0
        while early:
            x = early.pop(0); L.append("    " + x); k += 1
            nxt = early[0].split()[0] if early else ""
            if k >= per and groups and nxt not in ("s_addc_u32", "s_cselect_b32", "s_subb_u32"):
                emit(groups.pop(0)); k = 0
        emit(flat(groups))
    else:
        emit(flat(c01[:n0]))
        for x in early: L.append(x if x.endswith(":") else "    " + x)
    stamp("setup")
    flag_reset = ["s_mov_b64 exec, 1", "v_mov_b32 v1, -1", f"v_mov_b32 v2, s{sFOWN}", f"global_store_dword v2, v1, s[18:19] {SC} @frst", "s_mov_b64 exec, -1"]
    import re
    def ren(x):
        x = re.sub(r"\bs58\b", "s98", x); x = re.sub(r"\bs59\b", "s99", x); x = re.sub(rf"\bs{sT3}\b", "s100", x)
        x = x.replace("s[58:59]", "s[98:99]")
        x = re.sub(r"\bv1\b", f"v{vNM+7}", x); x = re.sub(r"\bv2\b", f"v{vNM+8}", x)
        return x
    fill = [ren(x) for x in fill]
    fg = []
    for x in fill:
        op = x.split()[0]
        glue = fg and (op in ("s_addc_u32", "s_subb_u32", "s_cselect_b32") or x.endswith(":") or fg[-1][-1].endswith(":") or fg[-1][-1].startswith("s_getpc")
                       or any(y.startswith("s_mov_b64 exec, 3") for y in fg[-1]) and not fg[-1][-1].startswith("s_mov_b64 exec, -1"))
        if x.endswith(":"): x = "LABEL " + x[:-1]
        elif x.startswith("global_load"): x = x + " @pfc"
        if glue: fg[-1].append(x)
        else: fg.append([x])
    if "pfc" in X and "allearly" not in X: VM.ops.remove("pfc")
    c2 = p1_dma(2); c3 = p1_dma(3); k0 = [set_T(True, 0)] + kv_dma(True, R_A, "K0")
    n1 = int(OPT.get("n1", 3))
    pfx2 = []
    if "pfx2" in X:
        pfx2 = [[f"s_lshl_b32 s58, s{sB}, 2", f"s_add_u32 s58, s58, s{sW}", "s_add_u32 s58, s58, 32", "s_lshl_b32 s58, s58, 16",
                 "v_lshrrev_b32 v1, 1, v0", "v_lshlrev_b32 v1, 13, v1", "v_and_b32 v2, 1, v0", "v_lshl_add_u32 v1, v2, 7, v1",
                 "s_mov_b64 exec, 0xffff", f"buffer_load_dword {v(vJUNK)}, v1, {srd(SRD_WQ)}, s58 offen @pfx", "s_mov_b64 exec, -1"],
                [f"s_lshl_b32 s58, s{sI}, 2", f"s_add_u32 s58, s58, s{sW}", "s_mul_i32 s58, s58, 5120", "s_add_u32 s58, s58, 512",
                 "v_lshrrev_b32 v1, 2, v0", "v_lshlrev_b32 v1, 10, v1", "v_lshl_add_u32 v1, v7, 7, v1",
                 "s_mov_b64 exec, 0xfffff", f"buffer_load_dword {v(vJUNK)}, v1, {srd(SRD_X)}, s58 offen @pfx", "s_mov_b64 exec, -1"]]
    plan = {0: pfs("a") + c01[n0:] + pfx2 + c2[:n1] + pfs("A"), 1: pfs("b") + c2[n1:] + c3[:n1] + pfs("B"),
            2: pfs("c") + c3[n1:] + k0[:n1+1] + [flag_reset] + pfs("C")}
    acc = vP
    aX = aV; aWf = aV + 40
    for cc in range(3):
        e(f"WAITVM c{cc}")
        e("s_barrier")
        stamp(f"c{cc}")
        emit(point())
        def reads(ks):
            buf = ks & 1
            r = [f"ds_read_b64_tr_b16 {a(aWf + buf*8 + dd*4 + jh*2, 2)}, {v(vWR+dd)} offset:{ks*8192 + jh*1024}" for dd in range(2) for jh in range(2)]
            r += [f"ds_read_b128 {a(aX + buf*20 + j*4, 4)}, {v(vXR+ks)} offset:{j*4096}" for j in range(5)]
            return r
        emit(reads(0))
        dm = list(plan[cc])
        for _ in range(2): emit(dm.pop(0))
        for ks in range(4):
            e("s_waitcnt lgkmcnt(0)")
            buf = ks & 1
            m = []
            for j in range(5):
                for dd in range(2):
                    d = v(acc + (j*2+dd)*4, 4)
                    c = "0" if (cc == 0 and ks == 0) else d
                    m.append(f"{MF} {d}, {a(aWf + buf*8 + dd*4, 4)}, {a(aX + buf*20 + j*4, 4)}, {c}")
            gaps = {}
            if ks < 3:
                r = reads(ks + 1)
                for gi in range(5): gaps[gi] = r[2*gi:2*gi+2]
            else:
                e(f"s_mov_b32 s58, {[53248, 53248, -106496][cc]}")
                adj = [f"v_add_u32 {v(vXR+q)}, s58, {v(vXR+q)}" for q in range(4)] + [f"v_add_u32 {v(vWR+q)}, s58, {v(vWR+q)}" for q in range(2)]
                for gi in range(3): gaps[gi] = adj[2*gi:2*gi+2]
            for gi in (1, 4, 7) if len(dm) <= 3*(4-ks) else (0, 2, 4, 6, 8):
                if dm: gaps.setdefault(gi, []).extend(dm.pop(0))
            for gi in range(10):
                for _ in range(3 if gi >= 5 else 2):
                    if fg: gaps.setdefault(gi, []).extend(fg.pop(0))
            interleave(m, gaps)
        emit(flat(dm))
    emit(flat(fg))
    aX3 = aQ; aW3 = aK + 32
    e("WAITVM c3")
    e("s_barrier")
    stamp("c3")
    emit(point())
    def wrd(ks): return [f"ds_read_b64_tr_b16 {a(aW3 + (ks*2+dd)*4 + jh*2, 2)}, {v(vWR+dd)} offset:{ks*8192 + jh*1024} @w{ks}" for dd in range(2) for jh in range(2)]
    def xrd(j, ks): return f"ds_read_b128 {a(aX3 + (j*4+ks)*4, 4)}, {v(vXR+ks)} offset:{j*4096} @x{j}{ks}"
    for ks in range(3): emit(wrd(ks)); e(xrd(0, ks))
    e(f"s_mov_b32 s{sT0}, {f2u(QSCALE)}")
    e(f"s_lshl_b32 s58, s{sW}, 2")
    e("v_lshrrev_b32 v1, 1, v5"); e("v_add_u32 v1, s58, v1"); e("v_xor_b32 v1, v1, v4"); e("v_lshlrev_b32 v1, 4, v1")
    e("v_lshl_add_u32 v1, v4, 8, v1"); e("v_and_b32 v2, 1, v5"); e("v_lshl_add_u32 v1, v2, 3, v1")
    e(f"v_add_u32 v1, {R_QX}, v1"); e("v_xor_b32 v2, 32, v1")
    dm = k0[n1+1:] + [set_T(True, 1)] + kv_dma(True, R_B, "K1")
    post = []
    rq = [xrd(0, 3)] + [xrd(j, ks) for j in range(1, 5) for ks in range(4)]
    for j in range(5):
        for ks in range(4):
            e(f"WAITLG x{j}{ks}")
            if j == 0 and ks == 3: e("s_barrier")
            for dd in range(2):
                d = v(acc + (j*2+dd)*4, 4)
                e(f"{MF} {d}, {a(aW3 + (ks*2+dd)*4, 4)}, {a(aX3 + (j*4+ks)*4, 4)}, {d}")
                if j == 0 and ks == 0 and dd == 0: emit(wrd(3))
                elif dd == 1 and rq: e(rq.pop(0))
                if dd == 0 and ks != 3 and dm and not (j == 0 and ks == 0): emit(dm.pop(0))
                if j > 0 and ks > 0:
                    for _ in range(3):
                        if post: e(post.pop(0))
        emit(post); post = []
        for dd in range(2):
            r = acc + (j*2+dd)*4
            post += [f"v_mul_f32 {v(r+q)}, s{sT0}, {v(r+q)}" for q in range(4)]
            post += [f"v_cvt_pk_bf16_f32 {v(r)}, {v(r)}, {v(r+1)}", f"v_cvt_pk_bf16_f32 {v(r+1)}, {v(r+2)}, {v(r+3)}",
                     f"ds_write_b64 {'v1' if dd == 0 else 'v2'}, {v(r, 2)} offset:{j*4096} @qw"]
        if j < 4: post = ["s_nop 1"] + post
    emit(flat(dm))
    for ks in range(4): e(f"v_add_u32 {v(vXR+ks)}, {R_QX}, {v(vXR+ks)}")
    e(f"s_mov_b32 s{SRD_D}, s16"); e(f"s_mov_b32 s{SRD_D+1}, s17"); e(f"s_mov_b32 s{SRD_D+2}, 256"); e(f"s_mov_b32 s{SRD_D+3}, 0x20000")
    emit(post)
    if "v0early" in X: emit(set_T(False, 0) + flat(kv_dma(False, R_C, "V0")))
    e("WAITVM frst")
    e("WAITLG qw")
    e("s_barrier")
    stamp("Bq")
    emit(point())
    def qrd(j): return [f"ds_read_b128 {a(aQ + (j*4+ds)*4, 4)}, {v(vXR+ds)} offset:{j*4096} @q{j}" for ds in range(4)]
    emit(qrd(0))
    e("WAITVM K0")
    emit(kreads(0, "k0"))
    e(f"s_lshl_b32 s{sT1}, s{sB}, 5")
    e(f"s_cmp_lg_u32 s{sW}, 0"); e("s_cbranch_scc1 L_noat")
    e("s_mov_b64 exec, 1"); e("v_mov_b32 v1, 1"); e("v_mov_b32 v2, 0")
    L.append(f"    buffer_atomic_add v1, v2, {srd(SRD_D)}, s{sT1} offen sc1")
    e("s_mov_b64 exec, -1")
    lab("L_noat")
    for r in range(20): e(f"v_mov_b32 {v(vNM+r)}, 0")
    e("WAITLG q0")
    emit(qrd(1))
    e("WAITLG k0")
    emit(qrd(2) + qrd(3))
    dm = ([] if "v0early" in X else [set_T(False, 0)] + kv_dma(False, R_C, "V0")) + [set_T(True, 2)] + kv_dma(True, R_A, "K2") + [set_T(False, 1)] + kv_dma(False, R_D, "V1")
    dm = pfs("p") + dm + pfs("P")
    rdk = kreads(1, "k1"); rdv = vreads(0, "v0")
    for j in range(5):
        sb = (5 + j) & 1
        m = qk(j, 0, sb)
        gaps = {g: [] for g in range(-1, 8)}
        if j > 0:
            gaps[-1].append(f"WAITLG q{j}")
            gaps[-1] += point()
            ex = exps(sb ^ 1); cv = cvts(sb ^ 1, j - 1)
            for n in range(8): gaps[n].append(ex[n])
            gaps[2].append(cv[0]); gaps[4].append(cv[1]); gaps[6].append(cv[2]); gaps[7] += ["s_nop 0", cv[3]]
        if j == 1: gaps[-1] += [f"v_add_u32 {v(vVRC+k)}, {R_C}, {v(vVR+k)}" for k in range(8)]
        if j == 0:
            for n in range(8):
                if dm: gaps[n] += dm.pop(0)
            gaps[3] += ["WAITLG q1"] + qrd(4)
        else:
            for n in (0, 1, 3, 5, 7):
                if dm: gaps[n] += dm.pop(0)
            if j == 2:
                gaps[1].append("WAITVM K1")
                for n in (1, 3, 5, 7): gaps[n] += [rdk.pop(0), rdk.pop(0)]
            if j == 3: gaps[1].append("WAITVM V0")
            if j >= 3:
                for n in (1, 3, 5, 7): gaps[n] += [rdv.pop(0), rdv.pop(0)]
        interleave(m, gaps)
    emit(flat(dm))
    assert not rdk and not rdv
    e(f"s_mov_b32 s{sCNT}, 0")
    emit(set_T(True, 3) + set_T(False, 2))
    e(f"s_mov_b32 s{sOI}, s{sOOWN}")
    for q in range(4): e(f"v_mov_b32 {v(vSENT+q)}, -1")
    if "noinit" not in X and "lateinit" not in X: e(P_INIT0)
    e("s_waitcnt lgkmcnt(0)")
    stamp("pro")
    def base_iter(par):
        G = {g: [] for g in range(-1, 85)}
        M = []
        for j in range(5):
            sb = (5*par + j) & 1
            M += qk(j, par ^ 1, sb) + pv(j, par)
            put_exp(G, 17*j, sb ^ 1, (j - 1) % 5)
        return M, G
    def half(par):
        S = SCHED
        dma = flat(kv_dma(True, KSLOT[par ^ 1], "lk", nop=False) + kv_dma(False, VSLOT[par], "lv", nop=False))
        kr = kreads(par); vr = vreads(par ^ 1)
        M, G = base_iter(par)
        for p, s in zip(S["mpos"], [s for s in dma if "m0" in s]): G[p].append(s)
        for p, s in zip(S["dpos"], [s for s in dma if "m0" not in s]): G[p].append(s)
        ip = 81
        if "noinit" not in X and "lateinit" not in X:
            G[ip].append(f"buffer_store_dwordx4 {v(vSENT, 4)}, {v(vLIN)}, {srd(SRD_O)}, s{sOI} offen {SC}")
            G[18].append(f"s_add_u32 s{sOI}, s{sOI}, 1024") if False else None
        ni = 0 if ("noinit" in X or "lateinit" in X) else 1
        G[S["kw"]].append(f"s_waitcnt vmcnt({8 + ni + sum(1 for p in S['dpos'] if p <= S['kw'])})")
        for p, s in zip(S["kpos"], kr): G[p].append(s)
        G[S["vw"]].append(f"s_waitcnt vmcnt({ni + sum(1 for p in S['dpos'] if p <= S['vw'])})")
        G[83].append(f"s_add_u32 s{sOI}, s{sOI}, 1024")
        for p, s in zip(S["vpos"], vr): G[p].append(s)
        for p, r in zip(S["tpos"], (sTK, sTK2, sTV, sTV2)): G[p].append(f"s_add_u32 s{r}, s{r}, " + (f"s{sSTEP}" if "mirror" in X else "8192"))
        if par == 0: G[81].append(f"s_add_u32 s{sCNT}, s{sCNT}, 1"); G[84].append(f"s_cmp_eq_u32 s{sCNT}, 3")
        G[84].insert(0, "s_waitcnt lgkmcnt(15)")
        G[7].append("s_waitcnt lgkmcnt(0)")
        for g in (3, 22, 37, 54, 71): G[g] = point() + G[g]
        if "sfirst" in X:
            G = {g: [s for s in l if not s.startswith("v_")] + [s for s in l if s.startswith("v_")] for g, l in G.items()}
        for k in ("nodma", "noexp", "nods", "novm", "hot"):
            if k in X:
                pats = {"nodma": ("buffer_load", "m0"), "noexp": ("v_exp", "v_cvt"), "nods": ("ds_read",), "novm": ("vmcnt",), "hot": ("8192",)}[k]
                G = {g: [s for s in l if not any(p in s for p in pats)] for g, l in G.items()}
        interleave(M, G)
    L.append(".p2align 6")
    lab("L_loop")
    half(0)
    e("s_cbranch_scc1 L_exit")
    hooks = [n for n in (1, 2) if pfs(f"h{n}")]
    npf[0] -= 0
    for n in hooks:
        e(f"s_cmp_eq_u32 s{sCNT}, {n}"); e(f"s_cbranch_scc1 L_hook{n}"); lab(f"L_back{n}")
    half(1)
    e("s_branch L_loop")
    for n in hooks:
        lab(f"L_hook{n}"); emit(flat(pfs(f"h{n}"))); e(f"s_branch L_back{n}")
    lab("L_exit")
    stamp("exit")
    VM.ops = ["K6"]*8 + ["V5"]*8 + ["io"] + ["K7"]*8 + ["V6"]*8 + ["io"]; LG.ops = ["kr"]*8 + ["vr"]*16
    vXW = vKR; vXRD = vKR + 3; vWOO = vOK; vLW = vOV; vLR = vOV + 1
    WREG = [R_A, R_B, R_C, R_A]
    def wo_dma(h):
        g = [f"s_add_u32 m0, s{sSLOT}, {WREG[h]}", f"s_add_u32 s{sT3}, s{sWOB+h}, 16384"]
        for pp in range(8):
            if pp == 4: g += [f"s_add_u32 m0, s{sSLOT}, {WREG[h] + 4096}", "NEXTGAP"]
            g.append(f"buffer_load_dwordx4 {v(vWOO + (pp & 3))}, {srd(SRD_WO)}, s{sWOB+h if pp < 4 else sT3} offen offset:{(pp & 3)*1024} lds @wo{h}")
        return g
    def unpark(dst, k): return f"v_accvgpr_read_b32 {v(dst)}, {a(aADR + k)}"
    def ostore(j, data, tag):
        SC = "sc1" if tag != "ost" else OPT.get("osf", "sc1").replace("_", " ").replace("pl", "")
        if j < 4: return f"buffer_store_dwordx4 {v(data, 4)}, {v(vLIN)}, {srd(SRD_O)}, s{sOOWN} offen offset:{j*1024} {SC} @{tag}"
        return f"buffer_store_dwordx4 {v(data, 4)}, {v(vLIN)}, {srd(SRD_O)}, s{sTK} offen {SC} @{tag}"
    def pstore(j, data, tag):
        if j < 3: return f"buffer_store_dwordx4 {v(data, 4)}, {v(vLIN)}, {srd(SRD_PI)}, 0 offen offset:{j*1024} {SC} @{tag}"
        return f"buffer_store_dwordx4 {v(data, 4)}, {v(vLIN)}, {srd(SRD_PI)}, s{sTK2} offen offset:{(j-3)*1024} {SC} @{tag}"
    inits = [pstore(j, vSENT, "ip") for j in range(1, 5)]
    if "lateinit" in X:
        inits = [ostore(j, vSENT, "io") for j in range(5)] + [pstore(j, vSENT, "ip") for j in range(5)]
        VM.ops = [x for x in VM.ops if x != "io"]
    if "noinit" in X: inits = [f"buffer_load_dword {v(vJUNK)}, {v(vLIN)}, {srd(SRD_K)}, 0 offen @ip" for j in range(5)]
    isp = int(OPT.get("isp", 16)); ist = int(OPT.get("ist", 26))
    ipos = [ist + isp*n for n in range(len(inits))]
    M, G = base_iter(1)
    G[7].append("s_waitcnt lgkmcnt(0)")
    S = SCHED
    G[S["kw"]].append("WAITVM K7")
    for p, s in zip(S["kpos"], kreads(1, "k7")): G[p].append(s)
    G[S["vw"]].append("WAITVM V6")
    for p, s in zip(S["vpos"], vreads(0, "v6")): G[p].append(s)
    G[83].append("WAITLG k7")
    vm = [(5 if "m0" in x and n == 0 else 8 + 2*n, x.replace("s_nop 0", "NEXTGAP")) for n, g in enumerate(kv_dma(False, VSLOT[1], "V7")) for x in g]
    G[1] += [f"s_add_u32 s{sTK}, s{sOOWN}, 4096", f"s_mov_b32 s{sTK2}, 24576"]
    vm += [(20, unpark(vWOO + q, 6 + q)) for q in range(4)]
    vm += [(24 + 4*n, g) for n, g in enumerate(wo_dma(0))]
    st = [(p, x) for p, x in zip(ipos, inits) if p < 85]
    rest = sched(M, G, [st, vm])
    for r in rest:
        for _, it in r: emit(it if isinstance(it, list) else [it])
    st = [(p - 85, x) for p, x in zip(ipos, inits) if p >= 85]
    stamp("t5")
    FO = [2, 3, 4, 5, 6, 7, 0, 1]
    M = []; G = {7: ["s_waitcnt lgkmcnt(0)"]}
    blk = {}
    for j in range(5):
        blk[j] = len(M)
        sb = j & 1
        put_exp(G, len(M), sb ^ 1, (j - 1) % 5)
        M += qk(j, 1, sb) + pv(j, 0)
        if j >= 3: blk[f"p{j-3}"] = len(M); M += pv(j - 3, 1, FO)
    put_exp(G, len(M), 0, 4)
    for j in (2, 3, 4): blk[f"p{j}"] = len(M); M += pv(j, 1, FO)
    mem = [(0, ["v_mov_b32 v1, 0", f"buffer_load_dword {v(vJUNK)}, v1, {srd(SRD_D)}, s{sT1} offen sc1 @hs"])]
    mem += [(1 + 3*n, s) for n, s in enumerate(wo_dma(1))]
    mem += [(40, "WAITVM V7")] + [(40, s) for s in vreads(1, "v7")] + [(40, "MARK v7")]
    mem += [(60 + 3*n, s) for n, s in enumerate(wo_dma(2))]
    adr = [(0, unpark(vXW + q, q)) for q in range(4)] + [(0, unpark(vLW, 4)), (0, unpark(vLR, 5)), (0, "MARK adr")]
    nx = [0]
    def xw(j):
        r = []; p = blk[f"p{j}"]
        for mrel in (1, 2, 3):
            t = vTMP + (nx[0] & 1)*4; nx[0] += 1
            k0 = 2*mrel
            ins = pack4(t, vO + (k0*5+j)*4, vO + ((k0+1)*5+j)*4) + [f"ds_write_b128 {v(vXW + mrel - 1)}, {v(t, 4)} offset:{XSLOT[j]} @x{j}"]
            r += [(p + 2*mrel - 1 + 8, s) for s in ins]
        r.append((p + 8 + 8, f"ds_write_b32 {v(vLW)}, {a(aL + j*4)} offset:{j*256} @x{j}"))
        r.append((0, f"MARK x{j}"))
        return r
    def xr(j):
        return [f"ds_read_b128 {v(vNM + j*4, 4)}, {v(vLR)} offset:{j*256} @l{j}"] + \
               [f"ds_read_b128 {a(aK + (j*3+s)*4, 4)}, {v(vXRD)} offset:{XSLOT[j] + s*1024} @r{j}" for s in range(3)]
    def lsum(j):
        r = vNM + j*4
        return [f"WAITLG l{j}", f"v_add_f32 {v(r)}, {v(r)}, {v(r+1)}", f"v_add_f32 {v(r+2)}, {v(r+2)}, {v(r+3)}", f"v_add_f32 {v(r)}, {v(r)}, {v(r+2)}",
                f"v_subrev_u32 {v(r+1)}, {LO_BITS}, {v(r)}", f"v_cmp_lt_u32 vcc, s{sRANGE}, {v(r+1)}", f"v_rcp_f32 {v(r)}, {v(r)}", "s_nop 0", "s_cbranch_vccnz L_fallback"]
    def msum(j):
        m = []
        for s in range(3):
            for k in range(2):
                d = v(vO + (k*5+j)*4, 4)
                m.append(f"{MF} {d}, {a(aE + (2 if k == 0 else 0), 4)}, {a(aK + (j*3+s)*4, 4)}, {d}")
        return m
    def norm(j):
        r0 = vO + j*4; r1 = vO + (5+j)*4; t = vO + 40 + j*4
        return [f"v_mul_f32 {v(r0+q)}, {v(vNM+j*4)}, {v(r0+q)}" for q in range(4)] + [f"v_mul_f32 {v(r1+q)}, {v(vNM+j*4)}, {v(r1+q)}" for q in range(4)] + \
               pack4(t, r0, r1) + sanit(t) + (["WAITVM io"] if j == 0 else []) + [ostore(j, t, "ost"), f"ds_write_b128 v1, {v(t, 4)} offset:{R_QX + j*1024} @ew"]
    p0, p1, p2, p3, p4 = (blk[f"p{j}"] for j in range(5))
    G.setdefault(p0 - 1, []).extend(["STAMP bD0", "WAITLG v7", "s_barrier", "STAMP bD"])
    xs = xw(0) + [(0, ["STAMP ba0", "WAITLG x0", "s_barrier", "STAMP ba"])] + [(0, s) for s in xr(0)] + [(0, "MARK r0")] + xw(1) + xw(2) + \
         [(0, ["STAMP bb0", "WAITLG x2", "s_barrier", "STAMP bb"])] + [(0, s) for s in xr(1) + xr(2)] + [(0, "MARK r2")] + xw(3) + xw(4)
    n1 = len(M)
    M += msum(0) + msum(1) + msum(2)
    need = {p0 - 1: ["v7"], p0 + 8: ["adr"], n1: ["r0"], n1 + 6: ["r2"]}
    G.setdefault(n1 - 1, []).append("WAITLG r0")
    G.setdefault(n1 + 5, []).append("MARK dummy")
    Mx = list(M)
    rest = None
    def run():
        nonlocal rest
        rest = sched(Mx[:n1], G, [st, xs, mem, adr], need={k: x for k, x in need.items() if k < n1})
    G[n1 - 1].remove("WAITLG r0"); G[n1 + 5].remove("MARK dummy")
    run()
    st2, xs2, mem2, adr2 = rest
    assert not mem2 and not adr2 and not st2, (mem2, adr2)
    xs2 = [it for _, it in xs2]
    def take(mark):
        out = []
        while True:
            it = xs2.pop(0); out.append(it)
            if it == f"MARK {mark}": return out
    def em(items):
        for it in items: emit(it if isinstance(it, list) else [it])
    def weave(mf, items, per=2):
        items = [s for it in items for s in (it if isinstance(it, list) else [it])]
        for m in mf:
            e(m)
            k = 0
            while items and k < per:
                s = items.pop(0); e(s); k += cost(s)
        emit(items)
    if any(it == "MARK r0" for it in xs2): em(take("r0"))
    e(f"v_add_u32 v1, s{sW5K}, {v(vLIN)}")
    e("WAITLG r0")
    weave(msum(0), take("r2") if any(it == "MARK r2" for it in xs2) else [], per=3)
    em(take("x3") if any(it == "MARK x3" for it in xs2) else [])
    e("WAITLG r1")
    x4 = take("x4")
    weave(msum(1), x4, per=3)
    stamp("bc0")
    e("WAITLG x4"); e("s_barrier")
    emit(xr(3) + xr(4))
    stamp("B1")
    vWR2 = vVR; vB2 = vVR + 2; vB3 = vVR + 3; vCHK = vVR + 4
    vPRB = vKR; vPRD = vKR + 1
    e(f"s_mov_b32 s{sSPIN}, 0")
    e("WAITVM hs")
    e(f"v_readfirstlane_b32 s58, {v(vJUNK)}")
    e(f"v_accvgpr_read_b32 {v(vPRB)}, {a(aPRB)}")
    emit([f"s_mov_b32 s{SRD_WS}, s18", f"s_mov_b32 s{SRD_WS+1}, s19", f"s_mov_b32 s{SRD_WS+2}, {WS_FLG + 65536}", f"s_mov_b32 s{SRD_WS+3}, 0x20000"])
    e("s_cmp_ge_u32 s58, 32"); e("s_cbranch_scc0 L_hs")
    lab("L_hsok")
    emit(lsum(0))
    e("WAITLG r2")
    weave(msum(2), norm(0), per=2)
    emit(lsum(1))
    e("WAITLG r3")
    weave(msum(3), norm(1), per=2)
    emit(lsum(2))
    e("WAITLG r4")
    weave(msum(4), norm(2), per=2)
    def probe(mask, tag=""): return [f"s_mov_b64 exec, {mask}", f"buffer_load_dword {v(vPRD)}, {v(vPRB)}, {srd(SRD_WS)}, 0 offen sc1" + tag, "s_mov_b64 exec, -1"]
    M12, M3, MP = 0x3F, 0x1C0, 0xFF0000
    SLP = int(OPT.get("slp", 2))
    emit(lsum(3)); emit(norm(3)); emit(lsum(4))
    emit(probe(M12, " @prb"))
    emit(norm(4))
    stamp("ost")
    e("WAITVM ip")
    emit(["s_mov_b64 exec, 1", "v_mov_b32 v2, 0", f"v_mov_b32 v3, s{sFOWN}", f"global_store_dword v3, v2, s[18:19] {SC} @fset", "s_mov_b64 exec, -1"])
    e(unpark(vWR2, 10)); e(unpark(vWR2 + 1, 11))
    e(f"v_add_u32 {v(vB3)}, {R_SP + 2048 - 12*1024}, {v(vLIN)}")
    e("WAITVM wo2")
    e("s_waitcnt lgkmcnt(0)")
    e("s_barrier")
    stamp("B2")
    pown = vO + 100; pacc = vO + 60; pB = vO + 0
    aW = aK
    def baddr(h, n):
        if h in (0, 3): return vLIN, R_QX + n*1024
        if h == 1: return vLIN, R_D + n*1024
        return (vLIN, 20480 + n*1024) if n < 12 else (vB3, n*1024)
    def p4reads(h, ks):
        buf = ks & 1
        r = [f"ds_read_b64_tr_b16 {a(aW + buf*8 + nn*4 + jh*2, 2)}, {v(vWR2+nn)} offset:{ks*8192 + jh*4096}" for nn in range(2) for jh in range(2)]
        for j in range(5):
            b, o = baddr(h, ks*5 + j)
            r.append(f"ds_read_b128 {v(pB + buf*20 + j*4, 4)}, {v(b)} offset:{o}")
        return r
    aW3 = aV
    def b3reg(j, ks): return (vP + (j*4+ks)*4) if j < 4 else (vO + 140 + ks*4)
    def w3rd(ks): return [f"ds_read_b64_tr_b16 {a(aW3 + (ks*2+nn)*4 + jh*2, 2)}, {v(vWR2+nn)} offset:{ks*8192 + jh*4096} @w{ks}" for nn in range(2) for jh in range(2)]
    def x3rd(j, ks):
        b, o = baddr(3, ks*5 + j)
        return f"ds_read_b128 {v(b3reg(j, ks), 4)}, {v(b)} offset:{o} @y{j}{ks}"
    def sib_dma(h):
        r = []
        for j in range(5):
            if h != 2:
                if j in (0, 4):
                    r += [f"s_add_u32 m0, s{sW5K}, {(R_D if h == 1 else R_QX) + j*1024}", f"s_add_u32 s{sT3}, s{sSIB+h}, {j*1024}"]
                r.append(f"buffer_load_dwordx4 {v(vLIN)}, {srd(SRD_O)}, s{sT3} offen offset:{(j & 3)*1024} sc1 lds @sib{h}")
            else:
                r += [f"s_add_u32 s58, s{sW5K}, {j*1024}", "s_cmp_lt_u32 s58, 12288", f"s_cselect_b32 s59, 0, {R_SP + 2048 - 12288 - 20480}",
                      "s_add_u32 s58, s58, s59", "s_add_u32 m0, s58, 20480", f"s_add_u32 s{sT3}, s{sSIB+h}, {j*1024}",
                      f"buffer_load_dwordx4 {v(vLIN)}, {srd(SRD_O)}, s{sT3} offen sc1 lds @sib{h}"]
        return r
    def p4_chunk(h, dm, last_gaps, mid=None):
        dm = list(dm)
        for ks in range(4):
            e("s_waitcnt lgkmcnt(0)")
            buf = ks & 1
            m = []
            for j in range(5):
                for nn in range(2):
                    d = v((pown if h == 0 else pacc) + (j*2+nn)*4, 4)
                    c = d
                    if ks == 0 and h == 0: c = "0"
                    if ks == 0 and h == 1: c = v(pown + (j*2+nn)*4, 4)
                    m.append(f"{MF} {d}, {a(aW + buf*8 + nn*4, 4)}, {v(pB + buf*20 + j*4, 4)}, {c}")
            gaps = {}
            if ks < 3:
                r = p4reads(h, ks + 1)
                for gi in range(5): gaps[gi] = r[2*gi:2*gi+2]
            else:
                e(f"s_mov_b32 s58, {WREG[h+1] - WREG[h]}")
                gaps = {g: list(x) for g, x in last_gaps.items()}
                gaps[0] = [f"v_add_u32 {v(vWR2+q)}, s58, {v(vWR2+q)}" for q in range(2)] + gaps.get(0, [])
            if h > 0:
                r = pB + buf*20
                chk = [f"v_max3_u32 {v(vCHK)}, {v(vCHK)}, {v(r)}, {v(r+4)}", f"v_max3_u32 {v(vCHK)}, {v(vCHK)}, {v(r+8)}, {v(r+12)}", f"v_max_u32 {v(vCHK)}, {v(vCHK)}, {v(r+16)}"]
                for q in range(3): gaps.setdefault(7 + q, []).append(chk[q])
            for gi in (5, 6, 7, 8, 9):
                for _ in range(2 if ks == 0 else 1):
                    if dm:
                        it = dm.pop(0); gaps.setdefault(gi, []).insert(len([x for x in gaps[gi] if not x.startswith("v_")]), it)
            if mid and ks == 2: gaps.setdefault(6, []).extend(mid)
            interleave(m, gaps)
        assert not dm
    def test(mask): return [f"v_cmp_eq_u32 vcc, -1, {v(vPRD)}", "s_nop 0", f"s_and_b32 s58, vcc_lo, {mask}"]
    emit(p4reads(0, 0))
    e(f"s_mov_b32 s{sIS12}, 0"); e(f"s_mov_b32 s{sIS3}, 0")
    e(f"v_mov_b32 {v(vCHK)}, 0")
    e("WAITVM prb")
    e(f"s_call_b64 s[{sRET}:{sRET+1}], L_try12")
    p4_chunk(0, [], {})
    e(f"s_cmp_eq_u32 s{sIS12}, 0"); e("s_cbranch_scc1 L_wait12")
    lab("L_got12")
    stamp("probed")
    e("s_waitcnt vmcnt(6)")
    e("s_barrier")
    stamp("B3")
    emit(p4reads(1, 0))
    lab("L_ch1")
    nextr = p4reads(2, 0)
    w3 = [x for x in wo_dma(3)]
    w3 = [x.replace("NEXTGAP", "s_nop 0") for x in w3]
    p4_chunk(1, w3, {1: ["s_barrier"], 2: nextr[0:2], 3: nextr[2:4], 4: nextr[4:6], 5: nextr[6:8], 6: nextr[8:9]},
             mid=[f"s_cmp_eq_u32 s{sIS3}, 0", "s_cbranch_scc1 L_try3a", "LABEL L_ch1b"])
    e(f"s_cmp_eq_u32 s{sIS3}, 0"); e("s_cbranch_scc1 L_try3b")
    lab("L_ch2")
    nextr = w3rd(0) + [x3rd(0, 0)] + w3rd(1) + [x3rd(0, 1)]
    p4_chunk(2, [], {1: [f"s_cmp_eq_u32 s{sIS3}, 0", "s_cbranch_scc1 L_wait3", "LABEL L_ch2b", "s_waitcnt vmcnt(0)", "s_barrier"],
                     2: nextr[0:2], 3: nextr[2:4], 4: nextr[4:6], 5: nextr[6:8], 6: nextr[8:10]})
    stamp("p4b")
    rq = w3rd(2) + [x3rd(0, 2)] + w3rd(3) + [x3rd(0, 3)] + [x3rd(j, ks) for j in range(1, 5) for ks in range(4)]
    post = []
    for j in range(5):
        for ks in range(4):
            e(f"WAITLG y{j}{ks}")
            for nn in range(2):
                d = v(pacc + (j*2+nn)*4, 4)
                e(f"{MF} {d}, {a(aW3 + (ks*2+nn)*4, 4)}, {v(b3reg(j, ks), 4)}, {d}")
                if j == 0 and ks == 0:
                    for _ in range(5): e(rq.pop(0))
                elif nn == 0 and rq: e(rq.pop(0))
                if nn == 0 and ks in (1, 3): e(f"v_max3_u32 {v(vCHK)}, {v(vCHK)}, {v(b3reg(j, ks-1))}, {v(b3reg(j, ks))}")
                elif j > 0 and (ks > 0 or nn == 1):
                    for _ in range(2):
                        if post: e(post.pop(0))
        emit(post)
        r0 = pacc + j*8
        post = [f"v_cmp_eq_u32 vcc, -1, {v(vCHK)}", "s_nop 1", "s_cbranch_vccnz L_retry"] + pack4(r0, r0, r0 + 4) + sanit(r0) + [pstore(j, r0, "pst")]
    e(post.pop(0))
    e("s_mul_i32 s58, s2, 24576"); e(f"s_lshl_b32 s59, s{sW}, 10"); e("s_add_u32 s58, s58, s59"); e(f"s_add_u32 s{sT3}, s58, {WS_PART}")
    e(f"s_and_b32 s{sT0}, s{sHKV}, 1"); e(f"s_sub_u32 s{sT2}, 3, s{sT0}")
    emit(post[1:])
    lab("L_p4ok")
    stamp("pst")
    e(f"s_cmp_ge_u32 s{sW}, s{sT2}")
    e("s_cbranch_scc1 L_fin")
    e(f"s_mul_i32 s{sT0}, s{sT0}, 3"); e(f"s_add_u32 s{sT0}, s{sT0}, s{sW}"); e(f"s_lshl_b32 s{sT0}, s{sT0}, 4")
    e(f"s_mul_i32 s{sT1}, s{sB}, 80"); e(f"s_add_u32 s{sT0}, s{sT0}, s{sT1}"); e(f"s_lshl_b32 s{sT0}, s{sT0}, 10")
    e(f"s_lshl_b32 s{sT1}, s{sI}, 8"); e(f"s_add_u32 s{sT0}, s{sT0}, s{sT1}")
    e(f"s_lshr_b32 s{sT1}, s{sHKV}, 1"); e(f"s_lshl_b32 s{sT1}, s{sT1}, 6"); e(f"s_add_u32 s{sT0}, s{sT0}, s{sT1}")
    emit(test(MP)); e("s_cbranch_scc1 L_waitp")
    lab("L_pok")
    e("v_lshlrev_b32 v9, 10, v4"); e("v_lshl_add_u32 v9, v5, 3, v9")
    e(f"s_mov_b32 s{SRD_K}, s14"); e(f"s_mov_b32 s{SRD_K+1}, s15"); e(f"s_mov_b32 s{SRD_K+2}, 655360"); e(f"s_mov_b32 s{SRD_K+3}, 0x20000")
    fB = vO
    lab("L_red")
    e(f"s_mov_b32 s{sT1}, s{sT3}")
    for p in range(8):
        e(f"buffer_load_dwordx4 {v(fB + p*4, 4)}, {v(vLIN)}, {srd(SRD_WS)}, s{sT1} offen sc1")
        e(f"s_add_u32 s{sT1}, s{sT1}, 3072")
    e(f"v_mov_b32 {v(vCHK)}, 0")
    for p in range(8):
        e(f"s_waitcnt vmcnt({7-p})")
        for k in range(2):
            d = v(vS + k*4, 4)
            e(f"{MF} {d}, {a(aE + (2 if k == 0 else 0), 4)}, {v(fB + p*4, 4)}, {'0' if p == 0 else d}")
            if k == 0: e(f"v_max_u32 {v(vCHK)}, {v(vCHK)}, {v(fB + p*4)}")
    e(f"v_cmp_eq_u32 vcc, -1, {v(vCHK)}")
    e(f"s_add_u32 s{sSPIN}, s{sSPIN}, 1")
    e("s_nop 4")
    e("s_cbranch_vccz L_redok")
    e(f"s_cmp_lt_u32 s{sSPIN}, {SPIN_MAX}"); e("s_cbranch_scc1 L_red")
    lab("L_redok")
    e("s_nop 1")
    e(f"v_cvt_pk_bf16_f32 {v(vS)}, {v(vS)}, {v(vS+1)}"); e(f"v_cvt_pk_bf16_f32 {v(vS+1)}, {v(vS+2)}, {v(vS+3)}")
    e(f"v_cvt_pk_bf16_f32 {v(vS+4)}, {v(vS+4)}, {v(vS+5)}"); e(f"v_cvt_pk_bf16_f32 {v(vS+5)}, {v(vS+6)}, {v(vS+7)}")
    e(f"buffer_store_dwordx2 {v(vS, 2)}, v9, {srd(SRD_K)}, s{sT0} offen")
    e(f"buffer_store_dwordx2 {v(vS+4, 2)}, v9, {srd(SRD_K)}, s{sT0} offen offset:32")
    lab("L_fin")
    stamp("fin")
    write_stamps()
    lab("L_done")
    e("s_endpgm")
    def spin(lbl_fail): return [f"s_add_u32 s{sSPIN}, s{sSPIN}, 1", f"s_cmp_ge_u32 s{sSPIN}, {SPIN_MAX}", f"s_cbranch_scc1 {lbl_fail}"]
    lab("L_hs")
    e("v_mov_b32 v2, 0"); e("s_sleep 4")
    e(f"buffer_load_dword {v(vJUNK)}, v2, {srd(SRD_D)}, s{sT1} offen sc1")
    e("s_waitcnt vmcnt(0)")
    emit(spin("L_hsok"))
    e(f"v_readfirstlane_b32 s58, {v(vJUNK)}"); e("s_nop 0"); e("s_cmp_ge_u32 s58, 32"); e("s_cbranch_scc0 L_hs")
    e("s_branch L_hsok")
    lab("L_try12")
    emit(test(M12))
    e("s_cbranch_scc1 L_try12no")
    emit(sib_dma(1)); emit(sib_dma(2)); emit(probe(M3 | MP))
    e(f"s_mov_b32 s{sIS12}, 1")
    e(f"s_setpc_b64 s[{sRET}:{sRET+1}]")
    lab("L_try12no")
    emit(probe(M12))
    e(f"s_setpc_b64 s[{sRET}:{sRET+1}]")
    lab("L_wait12")
    e("s_waitcnt vmcnt(0)")
    e(f"s_call_b64 s[{sRET}:{sRET+1}], L_try12")
    emit(spin("L_got12"))
    e(f"s_cmp_eq_u32 s{sIS12}, 0"); e("s_cbranch_scc1 L_wait12")
    e("s_branch L_got12")
    lab("L_try3a")
    e("s_waitcnt vmcnt(8)")
    e(f"s_call_b64 s[{sRET}:{sRET+1}], L_try3")
    e("s_branch L_ch1b")
    lab("L_try3")
    emit(test(M3))
    e("s_cbranch_scc1 L_try3no")
    emit(sib_dma(3))
    e(f"s_mov_b32 s{sIS3}, 1")
    e(f"s_setpc_b64 s[{sRET}:{sRET+1}]")
    lab("L_try3no")
    emit(probe(M3))
    e(f"s_setpc_b64 s[{sRET}:{sRET+1}]")
    lab("L_try3b")
    e("s_waitcnt vmcnt(0)")
    e(f"s_call_b64 s[{sRET}:{sRET+1}], L_try3")
    e("s_branch L_ch2")
    lab("L_wait3")
    e("s_waitcnt vmcnt(0)")
    e(f"s_call_b64 s[{sRET}:{sRET+1}], L_try3")
    emit(spin("L_ch2b"))
    e(f"s_cmp_eq_u32 s{sIS3}, 0"); e("s_cbranch_scc1 L_wait3")
    e("s_branch L_ch2b")
    lab("L_waitp")
    e(f"s_sleep {SLP}"); emit(probe(MP)); e("s_waitcnt vmcnt(0)")
    emit(spin("L_pok"))
    emit(test(MP)); e("s_cbranch_scc1 L_waitp")
    e("s_branch L_pok")
    lab("L_retry")
    emit(spin("L_done"))
    e("s_waitcnt lgkmcnt(0)")
    e("s_barrier")
    emit(sib_dma(1) + sib_dma(2) + sib_dma(3))
    e(f"s_mov_b32 s58, {R_B - R_A}")
    for q in range(2): e(f"v_add_u32 {v(vWR2+q)}, s58, {v(vWR2+q)}")
    e(f"v_mov_b32 {v(vCHK)}, 0")
    e("s_waitcnt vmcnt(0)")
    e("s_barrier")
    emit(p4reads(1, 0))
    e("s_branch L_ch1")
    point_stubs()
    lab("L_fallback")
    fallback()
    lab("L_end")

def fallback():
    e("s_waitcnt vmcnt(0) lgkmcnt(0)")
    e("s_barrier")
    e("v_xor_b32 v1, v4, v5"); e("v_lshlrev_b32 v2, 4, v1"); e(f"v_lshl_add_u32 {v(vOK)}, v5, 8, v2")
    for vv in range(1, 4): e(f"v_xor_b32 {v(vOK+vv)}, {vv*64}, {v(vOK)}")
    e("v_lshrrev_b32 v3, 2, v4"); e("v_lshlrev_b32 v3, 3, v3"); e("v_and_b32 v1, 3, v4"); e("v_add_u32 v3, v3, v1")
    e("v_lshl_add_u32 v2, v3, 8, v2"); e(f"v_add_u32 v2, s{sSLOT}, v2"); e(f"v_add_u32 {v(vKR)}, {R_A}, v2")
    for ds in range(1, 4): e(f"v_xor_b32 {v(vKR+ds)}, {ds*64}, {v(vKR)}")
    e("v_lshlrev_b32 v2, 1, v5"); e("v_xor_b32 v2, v4, v2"); e("v_lshlrev_b32 v2, 4, v2")
    e(f"v_lshl_add_u32 {v(vOV)}, v5, 8, v2"); e(f"v_xor_b32 {v(vOV+1)}, 128, {v(vOV)}")
    for k in range(8): e(f"v_add_u32 {v(vVRC+k)}, {R_C}, {v(vVR+k)}")
    e("v_lshlrev_b32 v3, 7, v0")
    vM = vP
    for j in range(5): e(f"v_mov_b32 {v(vM+j)}, 0xff800000")
    emit(set_T(True, 0))
    lab("L_fbmax")
    emit(flat(kv_dma(True, R_A, "f")))
    e("s_waitcnt vmcnt(0)")
    emit(kreads(0))
    e("s_waitcnt lgkmcnt(0)")
    for j in range(5):
        emit(qk(j, 0, 0, cinit="0"))
        e("s_nop 7")
        for n in range(4): e(f"v_max3_f32 {v(vM+j)}, {v(vM+j)}, {v(vS+2*n)}, {v(vS+2*n+1)}")
    st = f"s{sSTEP}" if "mirror" in X else "8192"
    e(f"s_add_u32 s{sTK}, s{sTK}, {st}"); e(f"s_add_u32 s{sTK2}, s{sTK2}, {st}")
    e(f"s_cmp_lt_u32 s{sTK}, 65536"); e("s_cbranch_scc1 L_fbmax")
    for j in range(5):
        for op in ("v_permlane32_swap_b32", "v_permlane16_swap_b32"):
            e(f"v_mov_b32 v1, {v(vM+j)}"); e("s_nop 1"); e(f"{op} {v(vM+j)}, v1"); e("s_nop 1"); e(f"v_max_f32 {v(vM+j)}, {v(vM+j)}, v1")
    e(f"s_lshl_b32 s58, s{sW}, 2"); e(f"s_add_u32 s58, s58, {R_SP}"); e("v_lshl_add_u32 v1, v4, 4, s58")
    e("v_lshlrev_b32 v2, 4, v4"); e(f"v_add_u32 v2, {R_SP}, v2")
    for j in range(5): e(f"ds_write_b32 v1, {v(vM+j)} offset:{j*256}")
    e("s_waitcnt lgkmcnt(0)"); e("s_barrier")
    for j in range(5): e(f"ds_read_b128 {v(vNM+j*4, 4)}, v2 offset:{j*256}")
    emit(set_T(True, 0) + flat(kv_dma(True, R_A, "f")) + set_T(True, 1) + flat(kv_dma(True, R_B, "f")) + set_T(False, 0) + flat(kv_dma(False, R_C, "f")))
    e("s_waitcnt lgkmcnt(0)")
    for j in range(5):
        r = vNM + j*4
        e(f"v_max3_f32 {v(r)}, {v(r)}, {v(r+1)}, {v(r+2)}"); e(f"v_max_f32 {v(r)}, {v(r)}, {v(r+3)}"); e(f"v_sub_f32 {v(r)}, 0, {v(r)}")
        for q in (1, 2, 3): e(f"v_mov_b32 {v(r+q)}, {v(r)}")
    for r in range(160): e(f"v_mov_b32 {v(vO+r)}, 0")
    for r in range(20): e(f"v_accvgpr_write_b32 {a(aL+r)}, 0")
    e("s_waitcnt vmcnt(0)")
    emit(kreads(0)); e("s_waitcnt lgkmcnt(0)"); emit(kreads(1)); e("s_waitcnt lgkmcnt(0)")
    vr = vreads(0); emit(vr[:8]); e("s_waitcnt lgkmcnt(0)"); emit(vr[8:]); e("s_waitcnt lgkmcnt(0)")
    emit(set_T(True, 2) + flat(kv_dma(True, R_A, "f")) + set_T(False, 1) + flat(kv_dma(False, R_D, "f")))
    for j in range(5):
        sb = (5 + j) & 1
        emit(qk(j, 0, sb))
        if j < 4:
            e("s_nop 7"); emit(exps(sb)); e("s_nop 0"); emit(cvts(sb, j))
    e(f"s_mov_b32 s{sCNT}, 0")
    emit(set_T(True, 3) + set_T(False, 2))
    e(f"s_mov_b32 s{sRANGE}, -1")
    e(f"s_mov_b32 s{sOI}, s{sOOWN}")
    e(P_INIT0)
    e("s_nop 7")
    e("s_branch L_loop")

hdr = open("standalone__gqa_block_cached__near_ridge.s.ref").read().split("\n")
for ln in hdr:
    if ln.startswith("; @launch"): continue
    if not ln.startswith(";"): break
    L.append(ln)
L.append("; @launch grid=(256,1,1) block=(256,1,1) lds=163840")
L.append('.amdgcn_target "amdgcn-amd-amdhsa--gfx950"')
L.append(".text")
kernel()
L.append('.section .rodata,"a"')
L.append(".p2align 6"); L.append(f".amdhsa_kernel {KN}")
for s in ["next_free_vgpr 512", "next_free_sgpr 102", "accum_offset 256", "group_segment_fixed_size 0", "kernarg_size 64", "user_sgpr_count 2", "user_sgpr_kernarg_segment_ptr 1", "system_sgpr_workgroup_id_x 1"]:
    L.append("  .amdhsa_" + s)
L.append(".end_amdhsa_kernel")
print("\n".join(L))
```

```python
import re, sys
def regs(tok):
    tok = tok.strip()
    m = re.fullmatch(r"([vas])\[(\d+):(\d+)\]", tok)
    if m: return {(m.group(1), i) for i in range(int(m.group(2)), int(m.group(3)) + 1)}
    m = re.fullmatch(r"([vas])(\d+)", tok)
    if m: return {(m.group(1), int(m.group(2)))}
    if tok in ("vcc", "vcc_lo", "vcc_hi"): return {("s", "vcc")}
    if tok == "m0": return {("s", "m0")}
    if tok in ("exec", "exec_lo", "exec_hi"): return {("s", "exec")}
    return set()
def parse(lines):
    ins = []
    for n, ln in enumerate(lines, 1):
        ln = ln.split(";")[0].strip()
        if not ln or ln.endswith(":") or ln.startswith("."): continue
        op, _, rest = ln.partition(" ")
        ops = [t.strip() for t in rest.split(",")] if rest else []
        if ops: ops[-1] = ops[-1].split()[0] if ops[-1].split() else ""
        ops = [t.split()[0] if t.split() else "" for t in ops]
        d = dict(n=n, op=op, ops=ops, txt=ln)
        R = set(); W = set()
        if op.startswith("v_mfma"):
            W = regs(ops[0]); d["A"] = regs(ops[1]); d["B"] = regs(ops[2]); d["C"] = regs(ops[3]); R = d["A"] | d["B"] | d["C"]; d["k"] = "mfma"
        elif op.startswith("v_cmp"):
            W = regs(ops[0]); R = set().union(*[regs(t) for t in ops[1:]]); d["k"] = "valu"
        elif op.startswith(("v_addc_co", "v_add_co")):
            W = regs(ops[0]) | regs(ops[1]); R = set().union(*[regs(t) for t in ops[2:]]); d["k"] = "valu"
        elif op.startswith("v_permlane"):
            W = regs(ops[0]) | regs(ops[1]); R = W; d["k"] = "valu"
        elif op.startswith("v_"):
            W = regs(ops[0]); R = set().union(*[regs(t) for t in ops[1:]]) if len(ops) > 1 else set(); d["k"] = "valu"
        elif op.startswith("ds_read"):
            W = regs(ops[0]); R = regs(ops[1]); d["k"] = "ds"
        elif op.startswith("ds_write"):
            R = regs(ops[0]) | regs(ops[1]); d["k"] = "ds"
        elif op.startswith(("buffer_load", "global_load")):
            if ln.endswith("lds") or " lds" in ln: R = set().union(*[regs(t) for t in ops]) | {("s", "m0")}; d["lds"] = True
            else: W = regs(ops[0]); R = set().union(*[regs(t) for t in ops[1:]])
            d["k"] = "vmem"
        elif op.startswith(("buffer_store", "buffer_atomic")):
            R = set().union(*[regs(t) for t in ops]); d["k"] = "vmem"; d["data"] = regs(ops[0]) if "x4" in op else set()
        elif op.startswith("global_store"):
            R = set().union(*[regs(t) for t in ops]); d["k"] = "vmem"; d["data"] = regs(ops[1]) if "x4" in op else set()
        elif op.startswith("s_"):
            d["k"] = "salu"
            if not op.startswith(("s_cmp", "s_cbranch", "s_branch", "s_waitcnt", "s_nop", "s_barrier", "s_bitcmp", "s_sleep", "s_endpgm", "s_setpc")) and ops:
                W = regs(ops[0]); R = set().union(*[regs(t) for t in ops[1:]]) if len(ops) > 1 else set()
            else: R = set().union(*[regs(t) for t in ops]) if ops else set()
        else: d["k"] = "?"
        d["R"] = R; d["W"] = W
        d["ws"] = int(ops[0]) + 1 if op == "s_nop" else 1
        ins.append(d)
    return ins
TRANS = ("v_exp", "v_rcp", "v_log", "v_rsq", "v_sqrt")
def find(lines):
    ins = parse(lines); out = []
    def rep(a, b, need, dist, why): out.append((a, b, need, dist, why))
    for i, p in enumerate(ins):
        dist = 0
        for q in ins[i+1:i+14]:
            if p["op"] in ("s_branch", "s_setpc_b64", "s_endpgm"): break
            if p["k"] == "mfma":
                if q["k"] == "mfma":
                    if (q["A"] | q["B"]) & p["W"] and dist < 8: rep(p, q, 8, dist, "mfma D -> mfma A/B")
                    if q["C"] & p["W"] and q["C"] != p["W"] and dist < 6: rep(p, q, 6, dist, "mfma D -> mfma C overlap")
                    if q["W"] & p["W"] and q["C"] != p["W"] and dist < 6: rep(p, q, 6, dist, "mfma D -> mfma D (WAW, C differs)")
                elif q["k"] in ("valu", "ds", "vmem") and (q["R"] | q["W"]) & p["W"] and dist < 8: rep(p, q, 8, dist, "mfma D -> use")
                if q["k"] == "valu" and q["W"] & p["C"] and not (q["W"] & p["W"]) and dist < 3: rep(p, q, 3, dist, "mfma C read -> valu write")
            if p["k"] == "valu":
                vw = {r for r in p["W"] if r[0] in "va"}; sw = {r for r in p["W"] if r[0] == "s"}
                if q["k"] == "mfma" and q["R"] & vw and dist < 2: rep(p, q, 2, dist, "valu -> mfma operand")
                if p["op"].startswith(TRANS) and q["k"] == "valu" and not q["op"].startswith(TRANS) and q["R"] & vw and dist < 1: rep(p, q, 1, dist, "trans -> valu")
                if q["k"] == "valu" and q["R"] & sw and dist < 2: rep(p, q, 2, dist, "valu sgpr/vcc -> valu")
                if q["k"] == "vmem" and q["R"] & sw and dist < 5: rep(p, q, 5, dist, "valu sgpr -> vmem")
                if q["op"].startswith(("v_readfirstlane", "v_readlane")) and q["R"] & vw and dist < 1: rep(p, q, 1, dist, "valu -> readlane")
                if q["op"].startswith("v_permlane") and q["R"] & vw and dist < 2: rep(p, q, 2, dist, "valu -> permlane")
            if p["k"] == "salu" and ("s", "m0") in p["W"] and q.get("lds") and dist < 1: rep(p, q, 1, dist, "m0 -> lds dma")
            if p["k"] == "vmem" and p.get("data") and q["W"] & p["data"] and dist < (2 if q["k"] == "valu" else 1): rep(p, q, 2, dist, "store data WAR")
            dist += q["ws"]
            if q["op"] in ("s_branch", "s_setpc_b64", "s_endpgm"): break
            if dist >= 12: break
    return out

def fix(lines):
    lines = list(lines); n = 0
    while True:
        h = find(lines)
        if not h: break
        a, b, need, dist, why = min(h, key=lambda x: x[1]["n"])
        k = max(x[2] - x[3] for x in h if x[1]["n"] == b["n"])
        lines.insert(b["n"] - 1, f"    s_nop {k - 1}"); n += 1
        sys.stderr.write(f"pad {k}: {why}: {a['txt']} -> {b['txt']}\n")
    return lines
if __name__ == "__main__":
    h = find(open(sys.argv[1]).read().split("\n"))
    for a, b, need, dist, why in h: print(f"HAZARD {why}: line {a['n']} -> line {b['n']} {dist} < {need}")
    print(f"{sys.argv[1]}: {len(h)} hazards")
```

```python
import sys, math, struct, re, os
sys.path.insert(0, os.path.dirname(os.path.abspath(__file__)))

X = set(a[2:] for a in sys.argv[1:] if a.startswith("--") and "=" not in a)
OPT = dict(a[2:].split("=") for a in sys.argv[1:] if a.startswith("--") and "=" in a)
def opt(k, d): return int(OPT.get(k, d))
STAMPS = "stamps" in X
KN = "standalone__gqa_block_cached__near_ridge_kernel"
L = []

class Tr:
    def __init__(s): s.ops = []
    def add(s, tag): s.ops.append(tag)
    def need(s, tag):
        idx = max(i for i, t in enumerate(s.ops) if t == tag)
        return len(s.ops) - 1 - idx
VM = Tr(); LG = Tr()

def lab(s): L.append(s + ":")
def e(s):
    if s.startswith("LABEL "): lab(s[6:]); return
    if s.startswith("MARK "): return
    if s.startswith("STAMP "): stamp(s[6:]); return
    if s == "NEXTGAP": s = "s_nop 0"
    tag = None
    if " @" in s: s, tag = s.split(" @")
    op = s.split()[0]
    if op == "WAITVM":
        n = VM.need(s.split()[1]); s = f"s_waitcnt vmcnt({min(n, 63)})"
    elif op == "WAITLG":
        n = LG.need(s.split()[1]); s = f"s_waitcnt lgkmcnt({min(n, 15)})"
    elif op.startswith("buffer_") or op.startswith("global_"): VM.add(tag)
    elif op.startswith("ds_"): LG.add(tag)
    L.append("    " + s)
def aslist(it): return it if isinstance(it, list) else [it]
def emit(lst):
    for it in lst:
        for s in aslist(it): e(s)
def flat(groups): return [s for g in groups for s in aslist(g)]
def capture(fn):
    keep = list(L); del L[:]
    fn()
    out = [x.strip() for x in L]; L[:] = keep
    return out

QSCALE = 1.4426950408889634 / math.sqrt(128.0)
def f2u(x): return struct.unpack("<I", struct.pack("<f", x))[0]

S_ST = [0, 53248, 106496, 0]
R_D, R_QX, R_A, R_B, R_C, R_SP = 0, 32768, 53248, 86016, 118784, 151552
KSLOT = [R_A, R_B]; VSLOT = [R_C, R_D]
XSLOT = [0, 12288, 24576, 0, 12288]
OWNB = [36864, 40960, 45056, 49152, 36864]
OBOFF = [0, 16384, 32768, 49152, 0]
WREG = [R_A, R_B, R_C, R_A]
WS_PART = 8 << 20
WS_FLG = 16 << 20
WS_STAMP = 128 << 20
HEADSTRIDE = 64 * 20480
LO_BITS = 0x21800000
RANGE = 0x3C000000
sW, sHKV, sB, sI, sRANGE = 3, 20, 21, 22, 23
sWOB, sSIB, sOI = 4, 8, 12
SRD_X, SRD_WQ, SRD_K, SRD_V, SRD_O, SRD_WO, SRD_PI = 24, 28, 32, 36, 40, 44, 64
SRD_WS, SRD_D = 24, 28
sTK, sTK2, sTV, sTV2, sSLOT, sCNT = 48, 49, 50, 51, 52, 53
sT0, sT1, sT2, sT3 = 54, 55, 56, 57
sOOWN, sW5K, sSPIN, sFOWN = 60, 61, 62, 63
sSTAMP = 68
sMODE, sXCC, sWB, sXB, sSTEP, sMIR, sW1K, sQS = 89, 90, 91, 92, 93, 94, 95, 96
vKR = 8; vVR = 12; vOK = 20; vOV = 24; vLIN = 26; vJUNK = 27
vP = 28; vS = 48; vNM = 64; vTMP = 84; vO = 96
vVRC = vTMP; vSENT = vTMP + 8; vQW = 73
aQ = 0; aK = 80; aV = 144; aL = 208; aE = 228; aPRB = 234; aADR = 235; aONE = 248

def srd(r): return f"s[{r}:{r+3}]"
def v(r, n=1): return f"v{r}" if n == 1 else f"v[{r}:{r+n-1}]"
def a(r, n=1): return f"a{r}" if n == 1 else f"a[{r}:{r+n-1}]"
MF = "v_mfma_f32_16x16x32_bf16"
SPIN_MAX = opt("spin", 400000)

nstamp = [0]
def stamp(name=""):
    if not STAMPS: return
    sel = OPT.get("st")
    if sel and name not in sel.split(","): return
    i = nstamp[0]; nstamp[0] += 1
    assert sSTAMP + 2*i + 1 < 89
    sys.stderr.write(f"{i}:{name} ")
    L.append(f"    {'s_memtime' if 'cyc' in X else 's_memrealtime'} s[{sSTAMP+2*i}:{sSTAMP+2*i+1}]")
    L.append("    s_waitcnt lgkmcnt(0)")
def write_stamps():
    if not STAMPS: return
    if "amp" in X:
        e("s_cmp_ge_u32 s2, 8"); e("s_cbranch_scc1 L_done")
        e(f"s_cmp_lg_u32 s{sW}, 0"); e("s_cbranch_scc1 L_done")
        e("s_memrealtime s[80:81]"); e("s_waitcnt lgkmcnt(0)")
        e(f"s_sub_u32 s82, s{sSTAMP+2}, s{sSTAMP}"); e("s_min_u32 s82, s82, 5000"); e("s_mul_i32 s82, s82, 10"); e("s_add_u32 s82, s82, s80")
        lab("L_amp")
        e("s_memrealtime s[84:85]"); e("s_waitcnt lgkmcnt(0)"); e("s_sub_u32 s86, s84, s82"); e("s_cmp_lt_i32 s86, 0"); e("s_cbranch_scc1 L_amp")
        return
    n = nstamp[0]
    e("s_lshl_b32 s58, s2, 2"); e(f"s_add_u32 s58, s58, s{sW}"); e(f"s_mul_i32 s58, s58, {n*8}"); e(f"s_add_u32 s58, s58, {WS_STAMP}")
    e("s_add_u32 s58, s18, s58"); e("s_addc_u32 s59, s19, 0")
    e("s_mov_b64 exec, 1"); e("v_mov_b32 v1, 0")
    for i in range(n):
        e(f"v_mov_b32 v2, s{sSTAMP+2*i}"); e(f"v_mov_b32 v3, s{sSTAMP+2*i+1}")
        e(f"global_store_dwordx2 v1, v[2:3], s[58:59] offset:{i*8}"); e("s_nop 1")
    sys.stderr.write(f"\nstamps: {n}\n")

def mk_srd(r, pbase, off_sgpr, size):
    return [f"s_add_u32 s{r}, s{pbase}, s{off_sgpr}", f"s_addc_u32 s{r+1}, s{pbase+1}, 0", f"s_mov_b32 s{r+2}, {size}", f"s_mov_b32 s{r+3}, 0x20000"]

PSEUDO = ("MARK", "LABEL", "STAMP")
WIDE = ("ds_write_b128", "buffer_store_dwordx4")
def isv(s): return s.startswith("v_")
def gaptime(ins):
    ins = [s for s in ins if not s.startswith(PSEUDO)]
    nv = [s for s in ins if not isv(s)]
    t = 4
    if nv: t += 20 if nv[0].startswith(WIDE) else 4
    first = True
    for s in ins:
        if not isv(s):
            if first: first = False; continue
            t += 24 if s.startswith(WIDE) else 4
        else:
            t = max(t, 8) + (8 if s.startswith(("v_exp", "v_rcp")) else 4)
    return t
def order_gap(items):
    def indep(k):
        x = items[k]
        if isinstance(x, list) or x.startswith(("v_",) + PSEUDO + WIDE + ("ds_write",)): return False
        return all(isinstance(y, str) and isv(y) and not y.startswith(("v_accvgpr_read", "v_mov", "v_cmp", "v_readf", "v_add_u32", "v_subrev")) for y in items[:k])
    for k in range(1, len(items)):
        if indep(k): items.insert(0, items.pop(k)); break
    return items
def interleave(mfmas, gaps):
    emit(gaps.get(-1, []))
    for i, m in enumerate(mfmas):
        e(m); emit(gaps.get(i, []))
def sched(mfmas, fixed, streams, need=None, limit=16, limits=None):
    need = need or {}
    streams = [list(s) for s in streams]
    done = {}
    cur = [0]
    def put(it):
        for s in aslist(it):
            if s.startswith("MARK "): done[s[5:]] = cur[0]
            e(s)
    def flush(mark):
        if mark in done: return
        for st in streams:
            if any(f"MARK {mark}" in aslist(it) for _, it in st):
                while mark not in done:
                    it = st.pop(0)[1]
                    if isinstance(it, str) and it.startswith("AFTER "): flush(it.split()[1]); continue
                    put(it)
                return
        raise Exception("mark " + mark)
    cur[0] = -1
    for it in fixed.get(-1, []): put(it)
    for i, m in enumerate(mfmas):
        cur[0] = i - 1
        for mk in need.get(i, []):
            if mk.startswith("!"): put(mk[1:])
            else: flush(mk)
        e(m)
        cur[0] = i
        items = list(fixed.get(i, []))
        closed = any(s.startswith("v_exp") for s in flat(items))
        blocked = set(); prog = True; seen = dict(done)
        for s in flat(items):
            if s.startswith("MARK "): seen[s[5:]] = i
        while prog:
            prog = False
            for k, st in enumerate(streams):
                if k in blocked or not st: continue
                rdy, it = st[0]
                if it == "NEXTGAP": st.pop(0); blocked.add(k); continue
                if isinstance(it, str) and it.startswith("AFTER "):
                    _, mk, d = it.split()
                    if mk in seen and seen[mk] + int(d) <= i: st.pop(0); prog = True; break
                    continue
                if rdy > i: continue
                real = [s for s in aslist(it) if not s.startswith(PSEUDO)]
                empty = not [s for s in flat(items) if not s.startswith(PSEUDO)]
                if not real or (not closed and (empty or gaptime(flat(items) + real) <= (limits or {}).get(k, limit))):
                    st.pop(0); items.append(it); prog = True
                    for s in aslist(it):
                        if s.startswith("MARK "): seen[s[5:]] = i
                    break
        for it in order_gap(items): put(it)
    cur[0] = len(mfmas)
    def drain(k):
        st = streams[k]
        while st:
            it = st.pop(0)[1]
            if isinstance(it, str) and it.startswith("AFTER "): flush(it.split()[1]); continue
            put(it)
    return drain

def kv_dma(isK, slot_base, tag, nop=True):
    g = []
    for p in range(8):
        grp = []
        if p % 4 == 0:
            grp.append(f"s_add_u32 m0, s{sSLOT}, {slot_base + (p // 4) * 4096}")
            if nop: grp.append("s_nop 0")
        vo = vOK + (p >> 1) if isK else vOV + ((p >> 1) & 1)
        so = (sTK if isK else sTV) + (0 if p < 4 else 1)
        grp.append(f"buffer_load_dwordx4 {v(vo)}, {srd(SRD_K if isK else SRD_V)}, s{so} offen offset:{(p % 4)*1024} lds @{tag}")
        g.append(grp)
    return g
def set_T(isK, t):
    r = sTK if isK else sTV
    return [f"s_xor_b32 s{r}, s{sMIR}, {t*8192}", f"s_xor_b32 s{r+1}, s{sMIR}, {t*8192+4096}"]
def kreads(slot, tag="kr", base=vKR, buf=None):
    buf = slot if buf is None else buf
    return [f"ds_read_b128 {a(aK + buf*32 + (kt*4+ds)*4, 4)}, {v(base+ds)} offset:{(KSLOT[slot]-R_A) + kt*1024} @{tag}" for kt in range(2) for ds in range(4)]
def vreads(slot, tag="vr"):
    base = vVRC if slot == 0 else vVR
    return [f"ds_read_b64_tr_b16 {a(aV + slot*32 + k*4 + jh*2, 2)}, {v(base+k)} offset:{jh*1024} @{tag}" for k in range(8) for jh in range(2)]
def qk(j, kbuf, sbuf, cinit=None):
    m = []
    for kt in range(2):
        for ds in range(4):
            d = v(vS + sbuf*8 + kt*4, 4)
            c = (cinit or v(vNM + j*4, 4)) if ds == 0 else d
            m.append(f"{MF} {d}, {a(aK + kbuf*32 + (kt*4+ds)*4, 4)}, {a(aQ + (j*4+ds)*4, 4)}, {c}")
    return m
def oreg(k, j): return vO + (k*5+j)*4
def pv(j, vbuf, ks=range(8)):
    m = [f"{MF} {v(oreg(k, j), 4)}, {a(aV + vbuf*32 + k*4, 4)}, {v(vP + j*4, 4)}, {v(oreg(k, j), 4)}" for k in ks]
    m.append(f"{MF} {a(aL + j*4, 4)}, {a(aONE, 4)}, {v(vP + j*4, 4)}, {a(aL + j*4, 4)}")
    return m
def exps(sbuf): return [f"v_exp_f32 {v(vS + sbuf*8 + n)}, {v(vS + sbuf*8 + n)}" for n in range(8)]
def cvts(sbuf, j): return [f"v_cvt_pk_bf16_f32 {v(vP + j*4 + n)}, {v(vS + sbuf*8 + 2*n)}, {v(vS + sbuf*8 + 2*n+1)}" for n in range(4)]
def put_exp(G, base, sbuf, j):
    ex = exps(sbuf); cv = cvts(sbuf, j)
    for n in range(8): G.setdefault(base + 2*n, []).append(ex[n])
    for n in range(4): G.setdefault(base + 4*n + 3, []).append(cv[n])
def pack4(t, r0, r1):
    return [f"v_cvt_pk_bf16_f32 {v(t)}, {v(r0)}, {v(r0+1)}", f"v_cvt_pk_bf16_f32 {v(t+1)}, {v(r0+2)}, {v(r0+3)}",
            f"v_cvt_pk_bf16_f32 {v(t+2)}, {v(r1)}, {v(r1+1)}", f"v_cvt_pk_bf16_f32 {v(t+3)}, {v(r1+2)}, {v(r1+3)}"]
def sanit(t): return [f"v_min_u32 {v(t)}, -2, {v(t)}"]
def spin(lbl): return [f"s_add_u32 s{sSPIN}, s{sSPIN}, 1", f"s_cmp_ge_u32 s{sSPIN}, {SPIN_MAX}", f"s_cbranch_scc1 {lbl}"]
if "loopinit" not in X and "earlyinit" not in X: X.add("lateinit")
EARLYINIT = "earlyinit" in X
LATEINIT = "lateinit" in X or EARLYINIT
P_INIT0 = f"buffer_store_dwordx4 {v(vSENT, 4)}, {v(vLIN)}, {srd(SRD_PI)}, 0 offen sc1"
TOUCH = ["s_mov_b64 exec, 0xff", f"buffer_load_dword {v(vJUNK)}, v3, {srd(SRD_O)}, s{sOI} offen"] + \
        ([f"buffer_load_dword {v(vJUNK)}, v2, {srd(SRD_WO)}, s{sOI} offen"] if "wsp" in X else []) + ["s_mov_b64 exec, -1"]
S = dict(dpos=[1, 5, 9, 13, 20, 24, 28, 32, 37, 43, 49, 54, 60, 66, 71, 77], mpos=[-1, 16, 35, 58],
         kw=33, kpos=[33, 35, 39, 39, 41, 43, 45, 47],
         vw=50, vpos=[50, 52, 52, 56, 56, 60, 62, 64, 64, 67, 67, 69, 69, 73, 73, 75], tpos=[18, 47, 77, 79])
GLUE = ("s_addc_u32", "s_cselect_b32", "s_subb_u32")

def kernel():
    L.append(f".globl {KN}"); L.append(".p2align 8"); L.append(f".type {KN},@function"); lab(KN)
    e("s_cmp_ge_u32 s2, 256"); e("s_cbranch_scc1 L_done")
    e("v_lshrrev_b32 v1, 6, v0")
    e("v_and_b32 v0, 63, v0")
    e(f"v_readfirstlane_b32 s{sW}, v1")
    e(f"s_mov_b32 s{sRANGE}, {RANGE}")
    lab("L_restart")
    e("s_load_dwordx16 s[4:19], s[0:1], 0")
    e(f"s_and_b32 s{sHKV}, s2, 7"); e(f"s_lshr_b32 s{sB}, s2, 3"); e(f"s_and_b32 s{sB}, s{sB}, 7"); e(f"s_lshr_b32 s{sI}, s2, 6")
    stamp("start")
    e("s_getpc_b64 s[58:59]"); lab("L_pc0")
    e(f"s_sub_u32 s58, s58, L_pc0-{KN}"); e("s_subb_u32 s59, s59, 0")
    e(f"s_lshr_b32 s{sT3}, s2, 3"); e(f"s_lshl_b32 s{sT3}, s{sT3}, 2"); e(f"s_add_u32 s{sT3}, s{sT3}, s{sW}"); e(f"s_lshl_b32 s{sT3}, s{sT3}, 8")
    e("v_lshlrev_b32 v3, 7, v0"); e(f"v_add_u32 v2, s{sT3}, v3"); e(f"v_min_u32 v2, L_end-{KN}-4, v2")
    e("s_mov_b64 exec, 3"); e(f"global_load_dword {v(vJUNK)}, v2, s[58:59] @pfc"); e("s_mov_b64 exec, -1")
    e("v_and_b32 v4, 15, v0"); e("v_lshrrev_b32 v5, 4, v0"); e("v_bfe_u32 v6, v0, 2, 2"); e("v_and_b32 v7, 3, v0")
    vXO = vTMP; vWO = vTMP + 4; vXR = vTMP + 6; vWR = vTMP + 10
    e("v_xor_b32 v1, v4, v5")
    for pp in range(4):
        e(f"s_add_u32 s{sT0}, s{sW}, {pp}"); e(f"s_and_b32 s{sT0}, s{sT0}, 3"); e(f"s_lshl_b32 s{sT0}, s{sT0}, 2")
        e(f"v_xor_b32 v2, s{sT0}, v1"); e("v_lshlrev_b32 v2, 4, v2"); e(f"v_lshl_add_u32 {v(vXO+pp)}, v5, 10, v2")
    e("v_lshlrev_b32 v2, 1, v5"); e("v_xor_b32 v2, v4, v2"); e("v_lshlrev_b32 v2, 4, v2")
    e(f"v_lshl_add_u32 {v(vWO)}, v5, 13, v2"); e(f"v_xor_b32 {v(vWO+1)}, 128, {v(vWO)}")
    e(f"v_lshl_add_u32 {v(vOV)}, v5, 8, v2"); e(f"v_xor_b32 {v(vOV+1)}, 128, {v(vOV)}")
    e(f"s_mul_i32 s58, s{sB}, 81920")
    e(f"s_lshl_b32 s59, s{sHKV}, 2"); e(f"s_add_u32 s59, s59, s{sI}"); e("s_lshl_b32 s59, s59, 8")
    e(f"s_sub_u32 s{sT3}, 4194304, s59")
    e(f"s_mul_i32 s{sT0}, s{sW}, 20480"); e(f"s_mul_i32 s{sW5K}, s{sW}, 5120")
    e(f"s_lshl_b32 s{sT2}, s{sW}, 18"); e(f"s_lshl_b32 s{sSLOT}, s{sW}, 13")
    XB = [sTK, sTK2, sXB, sT0]; WB = [sTV, sTV2, sWB, sT2]
    e(f"s_add_u32 s{sCNT}, s{sB}, s{sI}")
    for cc in range(4):
        e(f"s_add_u32 s{sSPIN}, s{sCNT}, {cc}"); e(f"s_and_b32 s{sSPIN}, s{sSPIN}, 3")
        e(f"s_lshl_b32 s{sOOWN}, s{sSPIN}, 8"); e(f"s_add_u32 s{XB[cc]}, s{sT0}, s{sOOWN}")
        e(f"s_lshl_b32 s{sOOWN}, s{sSPIN}, 20"); e(f"s_add_u32 s{WB[cc]}, s{sT2}, s{sOOWN}")
    e(f"v_lshlrev_b32 {v(vLIN)}, 4, v0")
    e("s_mul_i32 s98, s2, 20480"); e(f"s_add_u32 s98, s98, s{sW5K}"); e(f"s_add_u32 s98, s98, {WS_PART}"); e("s_mov_b32 s101, 4096")
    for q in range(4): e(f"v_mov_b32 v{76+q}, -1")
    e("s_waitcnt lgkmcnt(0)")
    emit(mk_srd(SRD_X, 4, 58, 81920)); emit(mk_srd(SRD_WQ, 10, 59, f"s{sT3}"))
    def p1_dma(cc):
        g = []
        for pp in range(5):
            g.append([f"s_add_u32 m0, s{sW5K}, {S_ST[cc] + pp*1024}", f"s_add_u32 s{sT3}, s{XB[cc]}, {pp*4096}",
                      f"buffer_load_dwordx4 {v(vXO + (pp & 3))}, {srd(SRD_X)}, s{sT3} offen lds @c{cc}"])
        for pp in range(8):
            g.append([f"s_add_u32 m0, s{sSLOT}, {S_ST[cc] + 20480 + pp*1024}", f"s_add_u32 s{sT3}, s{WB[cc]}, {4*pp*8192}",
                      f"buffer_load_dwordx4 {v(vWO + ((pp >> 1) & 1))}, {srd(SRD_WQ)}, s{sT3} offen lds @c{cc}"])
        return g
    c01 = p1_dma(0) + p1_dma(1)
    n0 = opt("n0", 16)
    t0, t1, t2, u1, u2 = 68, 69, 70, 71, 72
    def setup():
        U1, U2, T0, T1, T2 = v(u1), v(u2), v(t0), v(t1), v(t2)
        e(f"v_lshlrev_b32 {U2}, 4, v1"); e(f"v_lshl_add_u32 {v(vXR)}, v4, 8, {U2}")
        for ks in range(1, 4): e(f"v_xor_b32 {v(vXR+ks)}, {ks*64}, {v(vXR)}")
        e(f"v_lshl_add_u32 {v(vOK)}, v5, 8, {U2}")
        for q in range(1, 4): e(f"v_xor_b32 {v(vOK+q)}, {q*64}, {v(vOK)}")
        e(f"v_lshrrev_b32 {T0}, 2, v4"); e(f"v_lshlrev_b32 {T0}, 3, {T0}"); e(f"v_and_b32 {U1}, 3, v4"); e(f"v_add_u32 {T0}, {T0}, {U1}")
        e(f"v_lshl_add_u32 {U2}, {T0}, 8, {U2}"); e(f"v_add_u32 {U2}, s{sSLOT}, {U2}"); e(f"v_add_u32 {v(vKR)}, {R_A}, {U2}")
        for ds in range(1, 4): e(f"v_xor_b32 {v(vKR+ds)}, {ds*64}, {v(vKR)}")
        e(f"v_lshl_add_u32 {U2}, v5, 3, v6"); e(f"v_lshlrev_b32 {U2}, 8, {U2}"); e(f"v_lshl_add_u32 {U2}, v7, 3, {U2}")
        e(f"v_and_b32 {T0}, 1, v5"); e(f"v_lshl_add_u32 {T0}, {T0}, 2, v6")
        e(f"s_lshl_b32 s98, s{sW}, 1")
        for k in range(8):
            e(f"s_add_u32 s99, s98, {k}"); e("s_and_b32 s99, s99, 7")
            e(f"v_xor_b32 {U1}, s99, {T0}"); e(f"v_lshl_add_u32 {U1}, {U1}, 5, {U2}")
            if k < 2: e(f"v_add_u32 {v(vWR+k)}, 20480, {U1}")
            e(f"v_add_u32 {v(vVR+k)}, s{sSLOT}, {U1}")
        for r in range(160): e(f"v_mov_b32 {v(vO+r)}, 0")
        e(f"s_lshl_b32 s98, s{sB}, 3"); e(f"s_add_u32 s98, s98, s{sHKV}"); e("s_lshl_b32 s98, s98, 18")
        e(f"s_lshl_b32 s99, s{sW}, 16"); e("s_add_u32 s98, s98, s99")
        emit(mk_srd(SRD_K, 6, 98, 65536)); emit(mk_srd(SRD_V, 8, 98, 65536))
        e(f"s_bitcmp1_b32 s{sI}, 0"); e(f"s_cselect_b32 s{sMIR}, 0xe000, 0"); e(f"s_cselect_b32 s{sSTEP}, -1, 1"); e(f"s_lshl_b32 s{sSTEP}, s{sSTEP}, 13")
        e("s_and_b32 s98, s2, 63"); e("s_mul_i32 s98, s98, 20480"); emit(mk_srd(SRD_O, 18, 98, 3*HEADSTRIDE + 20480))
        e(f"s_mul_i32 s{sOOWN}, s{sI}, {HEADSTRIDE}"); e(f"s_add_u32 s{sOOWN}, s{sOOWN}, s{sW5K}")
        e(f"s_lshl_b32 s{sFOWN}, s2, 2"); e(f"s_add_u32 s{sFOWN}, s{sFOWN}, s{sW}"); e(f"s_lshl_b32 s{sFOWN}, s{sFOWN}, 6"); e(f"s_add_u32 s{sFOWN}, s{sFOWN}, {WS_FLG}")
        e(f"s_getreg_b32 s{sXCC}, hwreg(HW_REG_XCC_ID)")
        e("s_and_b32 s98, s2, 63"); e("s_lshl_b32 s98, s98, 2"); e(f"s_add_u32 s98, s98, s{sW}"); e("s_lshl_b32 s98, s98, 6"); e(f"s_add_u32 s98, s98, {WS_FLG}")
        e(f"v_and_b32 {T0}, 3, v0"); e(f"v_lshl_add_u32 {T0}, {T0}, 14, s98")
        e("s_and_b32 s98, s2, 0xf8"); e("s_lshl_b32 s98, s98, 8"); e(f"s_lshr_b32 s99, s{sHKV}, 1"); e("s_lshl_b32 s99, s99, 6")
        e("v_cmp_gt_u32 vcc, 16, v0"); e("s_add_u32 s98, s98, s99"); e(f"s_add_u32 s98, s98, {WS_FLG}")
        e(f"v_and_b32 {T1}, 7, v0"); e(f"v_lshl_add_u32 {T1}, {T1}, 8, s98"); e(f"v_cndmask_b32 {T0}, {T1}, {T0}, vcc")
        e(f"v_accvgpr_write_b32 {a(aPRB)}, {T0}")
        e(f"s_lshl_b32 s98, s{sHKV}, 19"); e(f"s_lshl_b32 s99, s{sI}, 8"); e("s_add_u32 s98, s98, s99"); e("s_sub_u32 s99, 524288, s99")
        emit(mk_srd(SRD_WO, 12, 98, "s99"))
        e(f"v_lshlrev_b32 {U1}, 2, v5"); e(f"v_sub_u32 {U1}, v4, {U1}"); e(f"v_and_b32 {U2}, 1, {U1}"); e(f"v_lshlrev_b32 {U2}, 4, {U2}")
        e(f"v_mov_b32 {T0}, 0x3f80"); e(f"v_lshlrev_b32 {U2}, {U2}, {T0}"); e(f"v_lshrrev_b32 {U1}, 1, {U1}")
        e(f"v_cmp_eq_u32 vcc, 0, {U1}"); e(f"v_accvgpr_write_b32 {a(aE)}, 0"); e(f"v_accvgpr_write_b32 {a(aE+1)}, 0"); e(f"v_cndmask_b32 {T0}, 0, {U2}, vcc")
        e(f"v_cmp_eq_u32 vcc, 1, {U1}"); e(f"v_accvgpr_write_b32 {a(aE+4)}, 0"); e(f"v_accvgpr_write_b32 {a(aE+5)}, 0"); e(f"v_cndmask_b32 {T1}, 0, {U2}, vcc")
        e(f"v_accvgpr_write_b32 {a(aE+2)}, {T0}"); e(f"v_accvgpr_write_b32 {a(aE+3)}, {T1}")
        for mrel in (1, 2, 3, 0):
            e(f"s_add_u32 s99, s{sW}, {mrel}"); e("s_and_b32 s99, s99, 3"); e("s_mul_i32 s98, s99, 3072")
            if mrel > 1: e(f"s_add_u32 s98, s98, {(mrel-1)*1024}")
            e(f"v_add_u32 {U1}, s98, {v(vLIN)}"); e(f"v_accvgpr_write_b32 {a(aADR + (mrel - 1) % 4)}, {U1}")
        e(f"s_lshl_b32 s98, s{sW}, 2"); e(f"s_add_u32 s98, s98, {R_SP}"); e(f"v_lshl_add_u32 {U1}, v4, 4, s98"); e(f"v_accvgpr_write_b32 {a(aADR+4)}, {U1}")
        e(f"v_lshlrev_b32 {U1}, 4, v4"); e(f"v_add_u32 {U1}, {R_SP}, {U1}"); e(f"v_accvgpr_write_b32 {a(aADR+5)}, {U1}")
        e(f"v_and_b32 {U1}, 1, v5"); e(f"v_lshlrev_b32 {U1}, 1, {U1}"); e(f"v_xor_b32 {U1}, v4, {U1}"); e(f"v_lshlrev_b32 {U1}, 4, {U1}"); e(f"v_lshl_add_u32 {U1}, v5, 12, {U1}")
        for q in range(4): e(f"v_xor_b32 {U2}, {q*64}, {U1}"); e(f"v_accvgpr_write_b32 {a(aADR+6+q)}, {U2}")
        e(f"v_lshl_add_u32 {U2}, v6, 2, v5"); e(f"v_lshlrev_b32 {U2}, 8, {U2}"); e(f"v_lshl_add_u32 {U2}, v7, 3, {U2}")
        e(f"v_and_b32 {T0}, 1, v5"); e(f"v_lshl_add_u32 {T0}, v6, 1, {T0}")
        e(f"s_lshl_b32 s98, s{sW}, 1")
        for k in range(2):
            e(f"s_add_u32 s99, s98, {k}")
            e(f"v_xor_b32 {U1}, s99, {T0}"); e(f"v_lshl_add_u32 {U1}, {U1}, 5, {U2}"); e(f"v_add_u32 {U1}, {R_A}, {U1}"); e(f"v_accvgpr_write_b32 {a(aADR+10+k)}, {U1}")
        for h in range(4):
            e(f"s_add_u32 s98, s{sI}, {h}"); e("s_and_b32 s98, s98, 3")
            e(f"s_mul_i32 s99, s98, {HEADSTRIDE}"); e(f"s_add_u32 s{sSIB+h}, s99, s{sW5K}")
            e("s_lshl_b32 s98, s98, 2"); e(f"s_add_u32 s98, s98, s{sW}"); e(f"s_lshl_b32 s{sWOB+h}, s98, 15")
        e(f"s_lshl_b32 s{sW1K}, s{sW}, 10")
        for r in range(20): e(f"v_accvgpr_write_b32 {a(aL+r)}, 0")
        e(f"v_mov_b32 {U1}, 0x3f803f80")
        for r in range(4): e(f"v_accvgpr_write_b32 {a(aONE+r)}, {U1}")
        e(f"s_mov_b32 s{sQS}, {f2u(QSCALE)}"); e(f"s_lshl_b32 s98, s{sW}, 2")
        Q = v(vQW); Q1 = v(vQW + 1)
        e(f"v_lshrrev_b32 {Q}, 1, v5"); e(f"v_add_u32 {Q}, s98, {Q}"); e(f"v_xor_b32 {Q}, {Q}, v4"); e(f"v_lshlrev_b32 {Q}, 4, {Q}")
        e(f"v_lshl_add_u32 {Q}, v4, 8, {Q}"); e(f"v_and_b32 {Q1}, 1, v5"); e(f"v_lshl_add_u32 {Q}, {Q1}, 3, {Q}"); e(f"v_add_u32 {Q}, {R_QX}, {Q}"); e(f"v_xor_b32 {Q1}, 32, {Q}")
    fill = capture(setup)
    ne = min(opt("ne", 420), len(fill))
    while ne < len(fill) and fill[ne].split()[0] in GLUE: ne += 1
    early, fill = fill[:ne], fill[ne:]
    groups = list(c01[:n0])
    pin = [[f"buffer_store_dwordx4 v[76:79], {v(vLIN)}, {srd(SRD_PI)}, " + (f"0 offen offset:{j*1024}" if j < 4 else "s101 offen") + " sc1 @ip"] for j in range(5)] if EARLYINIT else []
    ipos = opt("ipos", 99)
    if ipos < 90: groups = groups[:ipos] + pin + groups[ipos:]; pin = []
    for _ in range(4): emit(groups.pop(0))
    emit(mk_srd(SRD_PI, 18, 98, 5120))
    per = max(1, min(len(early), 260) // (len(groups) + 1)); k = 0
    while early:
        L.append("    " + early.pop(0)); k += 1
        if k >= per and groups and (not early or early[0].split()[0] not in GLUE): emit(groups.pop(0)); k = 0
    emit(flat(groups))
    fg = []
    for x in fill:
        if fg and x.split()[0] in GLUE: fg[-1].append(x)
        else: fg.append([x])
    flag_reset = ["s_mov_b64 exec, 1", f"v_mov_b32 v77, s{sXCC}", f"v_mov_b32 v2, s{sFOWN}",
                  "global_store_dwordx2 v2, v[76:77], s[18:19] sc1 @frst", "s_mov_b64 exec, -1"]
    acc = vP; aX = aV; aWf = aV + 40; aX3 = aQ; aW3 = aK + 32
    def reads(cc, ks):
        buf = ks & 1
        r = [f"ds_read_b64_tr_b16 {a(aWf + buf*8 + dd*4 + jh*2, 2)}, {v(vWR+dd)} offset:{ks*8192 + jh*1024}" for dd in range(2) for jh in range(2)]
        return r + [f"ds_read_b128 {a(aX + buf*20 + j*4, 4)}, {v(vXR+ks)} offset:{j*4096} @p{cc}{ks}{j}" for j in range(5)]
    def wrd(ks): return [f"ds_read_b64_tr_b16 {a(aW3 + (ks*2+dd)*4 + jh*2, 2)}, {v(vWR+dd)} offset:{ks*8192 + jh*1024} @w{ks}" for dd in range(2) for jh in range(2)]
    def xrd(j, ks): return f"ds_read_b128 {a(aX3 + (j*4+ks)*4, 4)}, {v(vXR+ks)} offset:{j*4096} @x{j}{ks}"
    e("WAITVM c0"); e("s_barrier"); stamp("c0")
    emit(reads(0, 0))
    M = []; G = {g: [] for g in range(-1, 160)}
    for cc in range(3):
        for ks in range(4):
            g0 = len(M); buf = ks & 1
            for j in range(5):
                for dd in range(2):
                    d = v(acc + (j*2+dd)*4, 4)
                    M.append(f"{MF} {d}, {a(aWf + buf*8 + dd*4, 4)}, {a(aX + buf*20 + j*4, 4)}, {'0' if (cc == 0 and ks == 0) else d}")
            G[g0 - 1].append(f"WAITLG p{cc}{ks}1"); G[g0 + 3].append(f"WAITLG p{cc}{ks}4")
            if ks < 3:
                r = reads(cc, ks + 1)
                G[g0] += r[0:3]; G[g0 + 1] += r[3:6]; G[g0 + 2] += r[6:9]
            else:
                dl = [53248, 53248, -106496][cc]
                adj = [f"v_add_u32 {v(vXR+q)}, {dl}, {v(vXR+q)}" for q in range(4)] + [f"v_add_u32 {v(vWR+q)}, {dl}, {v(vWR+q)}" for q in range(2)]
                for gi in range(3): G[g0 + gi] += adj[2*gi:2*gi+2]
                G[g0 + 3] += [f"WAITVM c{cc+1}", "s_barrier", f"STAMP c{cc+1}"]
                r = reads(cc + 1, 0) if cc < 2 else (wrd(0) + [xrd(0, 0)] + wrd(1) + [xrd(0, 1)] + wrd(2) + [xrd(0, 2)])
                for gi in range(5): G[g0 + 4 + gi] += r[3*gi:3*gi+3]
    posts = []
    for j in range(5):
        g0 = len(M)
        for ks in range(4):
            for dd in range(2):
                d = v(acc + (j*2+dd)*4, 4)
                M.append(f"{MF} {d}, {a(aW3 + (ks*2+dd)*4, 4)}, {a(aX3 + (j*4+ks)*4, 4)}, {d}")
        if j == 0:
            G[g0 - 1].append("WAITLG x00"); G[g0] += wrd(3)[:3]; G[g0 + 1] += [wrd(3)[3], xrd(0, 3), "WAITLG x01"]
            G[g0 + 2] += [xrd(1, 0), xrd(1, 1)]; G[g0 + 3] += ["WAITLG x02", xrd(1, 2), xrd(1, 3)]
            G[g0 + 5] += ["WAITLG x03", "s_barrier"]
        else:
            G[g0 - 1].append(f"WAITLG x{j}3")
            if j < 4:
                for ks in range(4): G[g0 + ks].append(xrd(j + 1, ks))
        for dd in range(2):
            r = acc + (j*2+dd)*4
            p = [f"v_mul_f32 {v(r+q)}, s{sQS}, {v(r+q)}" for q in range(4)]
            p += [f"v_cvt_pk_bf16_f32 {v(r)}, {v(r)}, {v(r+1)}", f"v_cvt_pk_bf16_f32 {v(r+1)}, {v(r+2)}, {v(r+3)}",
                  f"ds_write_b64 {v(vQW + dd)}, {v(r, 2)} offset:{j*4096} @qw"]
            posts += [(g0 + 8 + 2, x) for x in p]
    c2 = p1_dma(2); c3 = p1_dma(3); k0d = kv_dma(True, R_A, "K0"); k0d[0] = set_T(True, 0) + k0d[0]
    ka, kb, late, nv0, sp3 = opt("ka", 3), opt("kb", 8), opt("late", 22), opt("nv0", 4), opt("dsp3", 4)
    v0g = kv_dma(False, R_C, "V0"); v0g[0] = set_T(False, 0) + v0g[0]
    k1g = kv_dma(True, R_B, "K1"); k1g[0] = set_T(True, 1) + k1g[0]
    dq = [(0, g) for g in c01[n0:] + c2[:ka]] + [(late, g) for g in c2[ka:kb]] + [(34, g) for g in c2[kb:] + c3[:ka]] + \
         [(40 + late, g) for g in c3[ka:kb]] + [(74, g) for g in c3[kb:] + (pin if ipos == 99 else []) + k0d[:ka]] + [(80 + late, g) for g in k0d[ka:kb] + [flag_reset]] + \
         [(114, g) for g in k0d[kb:] + (pin if ipos == 98 else []) + k1g + v0g[:nv0]]
    left = []; t = 0
    for rdy, g in dq:
        t = max(t, rdy)
        while t < 160 and (sum(1 for x in G[t] if x.startswith("ds_read")) > (1 if t >= 120 else 0) or "s_barrier" in G[t]): t += 1
        if t < 160: G[t] = G[t] + list(g)
        else: left.append(g)
        t += 1 if t < 114 else sp3
    drain = sched(M, G, [posts, [(0, g) for g in fg] + [(0, "MARK fill")]], need={33: ["fill"]}, limit=20)
    for ks in range(4): e(f"v_add_u32 {v(vXR+ks)}, {R_QX}, {v(vXR+ks)}")
    e(f"s_mov_b32 s{SRD_D}, s16"); e(f"s_mov_b32 s{SRD_D+1}, s17"); e(f"s_mov_b32 s{SRD_D+2}, 256"); e(f"s_mov_b32 s{SRD_D+3}, 0x20000")
    drain(0); emit(left)
    e("WAITVM frst"); e("WAITLG qw"); e("s_barrier")
    stamp("Bq")
    def qrd(j): return [f"ds_read_b128 {a(aQ + (j*4+ds)*4, 4)}, {v(vXR+ds)} offset:{j*4096} @q{j}" for ds in range(4)]
    emit(qrd(0))
    e("WAITVM K0")
    emit(kreads(0, "k0"))
    for r in range(20): e(f"v_mov_b32 {v(vNM+r)}, 0")
    e(f"s_lshl_b32 s{sT1}, s{sB}, 5")
    e(f"s_cmp_eq_u32 s{sRANGE}, -1"); e("s_cbranch_scc1 L_rowmax")
    e(f"s_cmp_lg_u32 s{sW}, 0"); e("s_cbranch_scc1 L_noat")
    e("s_mov_b64 exec, 1"); e("v_mov_b32 v1, 1"); e("v_mov_b32 v2, 0")
    L.append(f"    buffer_atomic_add v1, v2, {srd(SRD_D)}, s{sT1} offen sc1")
    e("s_mov_b64 exec, -1")
    lab("L_noat")
    e("WAITLG q0"); emit(qrd(1)); e("WAITLG k0"); emit(qrd(2) + qrd(3))
    k2g = kv_dma(True, R_A, "K2"); k2g[0] = set_T(True, 2) + k2g[0]
    v1g = kv_dma(False, R_D, "V1"); v1g[0] = set_T(False, 1) + v1g[0]
    dm = (pin if ipos == 97 else []) + v0g[nv0:] + k2g + v1g + (pin if ipos == 96 else [])
    rdk = kreads(1, "k1"); rdv = vreads(0, "v0")
    for j in range(5):
        sb = (5 + j) & 1
        gaps = {g: [] for g in range(-1, 8)}
        if j > 0:
            gaps[-1].append(f"WAITLG q{j}")
            ex = exps(sb ^ 1); cv = cvts(sb ^ 1, j - 1)
            for n in range(8): gaps[n].append(ex[n])
            gaps[2].append(cv[0]); gaps[4].append(cv[1]); gaps[6].append(cv[2]); gaps[7] += ["s_nop 0", cv[3]]
        if j == 1: gaps[-1] += [f"v_add_u32 {v(vVRC+k)}, {R_C}, {v(vVR+k)}" for k in range(8)]
        if j == 0:
            for n in range(8):
                if dm: gaps[n] += dm.pop(0)
            gaps[3] += ["WAITLG q1"] + qrd(4)
        else:
            for n in (0, 2, 4, 6):
                if dm: gaps[n] = dm.pop(0) + gaps[n]
            if j == 2:
                gaps[1].insert(0, "WAITVM K1")
                for n in (1, 3, 5, 7): gaps[n] += [rdk.pop(0), rdk.pop(0)]
            if j == 3: gaps[1].insert(0, "WAITVM V0")
            if j >= 3:
                for n in (1, 3, 5, 7): gaps[n] += [rdv.pop(0), rdv.pop(0)]
        interleave(qk(j, 0, sb), gaps)
    emit(flat(dm))
    e(f"s_mov_b32 s{sCNT}, 0")
    emit(set_T(True, 3) + set_T(False, 2))
    e(f"s_mov_b32 s{sOI}, 1024")
    if opt("tch", 0) == 3:
        e(f"s_mov_b32 s{sOI}, s{sOOWN}")
        if "wsp" in X:
            emit([f"s_lshl_b32 s58, s{sB}, 2", f"s_add_u32 s58, s58, s{sI}", "s_lshl_b32 s58, s58, 2", f"s_add_u32 s58, s58, s{sW}",
                  "s_lshl_b32 s58, s58, 12", f"s_lshl_b32 s59, s{sI}, 8", "s_sub_u32 s58, s58, s59", f"s_sub_u32 s58, s58, s{sOOWN}", "v_add_u32 v2, s58, v3"])
        emit(TOUCH); e(f"s_add_u32 s{sOI}, s{sOI}, 1024")
    for q in range(4): e(f"v_mov_b32 {v(vSENT+q)}, -1")
    if not LATEINIT: e(P_INIT0)
    e("s_waitcnt lgkmcnt(0)")
    stamp("pro")
    def base_iter(par):
        G = {g: [] for g in range(-1, 85)}; M = []
        for j in range(5):
            sb = (5*par + j) & 1
            M += qk(j, par ^ 1, sb) + pv(j, par)
            put_exp(G, 17*j, sb ^ 1, (j - 1) % 5)
        return M, G
    def half(par):
        dma = flat(kv_dma(True, KSLOT[par ^ 1], "lk", nop=False) + kv_dma(False, VSLOT[par], "lv", nop=False))
        M, G = base_iter(par)
        for p, s in zip(S["mpos"], [s for s in dma if "m0" in s]): G[p].append(s)
        for p, s in zip(S["dpos"], [s for s in dma if "m0" not in s]): G[p].append(s)
        ni = 0
        if opt("tch", 0) == 3:
            G[81] += TOUCH; G[83].append(f"s_add_u32 s{sOI}, s{sOI}, 1024"); ni = 2 if "wsp" in X else 1
        if not LATEINIT:
            G[81].append(f"buffer_store_dwordx4 {v(vSENT, 4)}, {v(vLIN)}, {srd(SRD_PI)}, s{sOI} offen sc1")
            G[83].append(f"s_add_u32 s{sOI}, s{sOI}, 1024"); ni = 1
        G[S["kw"]].append(f"s_waitcnt vmcnt({8 + ni + sum(1 for p in S['dpos'] if p <= S['kw'])})")
        for p, s in zip(S["kpos"], kreads(par)): G[p].append(s)
        G[S["vw"]].append(f"s_waitcnt vmcnt({ni + sum(1 for p in S['dpos'] if p <= S['vw'])})")
        for p, s in zip(S["vpos"], vreads(par ^ 1)): G[p].append(s)
        for p, r in zip(S["tpos"], (sTK, sTK2, sTV, sTV2)): G[p].append(f"s_add_u32 s{r}, s{r}, s{sSTEP}")
        if par == 0: G[79].append(f"s_add_u32 s{sCNT}, s{sCNT}, 1"); G[84].append(f"s_cmp_eq_u32 s{sCNT}, 3")
        G[84].insert(0, "s_waitcnt lgkmcnt(15)")
        G[7].append("s_waitcnt lgkmcnt(0)")
        G = {g: [s for s in l if not isv(s)] + [s for s in l if isv(s)] for g, l in G.items()}
        interleave(M, G)
    L.append(".p2align 6")
    lab("L_loop")
    half(0)
    e("s_cbranch_scc1 L_exit")
    if "wsp" not in X: e(f"s_cmp_eq_u32 s{sCNT}, 2"); e("s_cbranch_scc1 L_hook")
    lab("L_back")
    half(1)
    e("s_branch L_loop")
    lab("L_hook")
    emit([f"s_lshl_b32 s58, s{sB}, 2", f"s_add_u32 s58, s58, s{sI}", "s_lshl_b32 s58, s58, 2", f"s_add_u32 s58, s58, s{sW}",
          "s_lshl_b32 s58, s58, 12", f"s_lshl_b32 s59, s{sI}, 8", "s_sub_u32 s58, s58, s59", "v_add_u32 v2, s58, v3", "s_mov_b32 exec_hi, 0",
          f"buffer_load_dword {v(vJUNK)}, v2, {srd(SRD_WO)}, 0 offen"] +
         (["s_mov_b32 exec_hi, 0xff", f"buffer_load_dword {v(vJUNK)}, v3, {srd(SRD_O)}, s{sOOWN} offen"] if opt("tch", 0) == 0 else []) +
         ["s_mov_b32 exec_hi, -1", "s_branch L_back"])
    lab("L_exit")
    stamp("exit")
    ip = ([] if LATEINIT else ["ip"]) + (["tc"] * (2 if "wsp" in X else 1) if opt("tch", 0) == 3 else [])
    VM.ops = ["K6"]*8 + ["V5"]*8 + ip + ["K7"]*8 + ["V6"]*8 + ip; LG.ops = ["kr"]*8 + ["vr"]*16
    vXW = vKR; vXRD = vKR + 3; vWOO = vOK; vLW = vOV; vLR = vOV + 1
    def wo_dma(h):
        g = [f"s_add_u32 m0, s{sSLOT}, {WREG[h]}", f"s_add_u32 s{sT3}, s{sWOB+h}, 16384"]
        for pp in range(8):
            if pp == 4: g += [f"s_add_u32 m0, s{sSLOT}, {WREG[h] + 4096}", "NEXTGAP"]
            g.append(f"buffer_load_dwordx4 {v(vWOO + (pp & 3))}, {srd(SRD_WO)}, s{sWOB+h if pp < 4 else sT3} offen offset:{(pp & 3)*1024} lds @wo{h}")
        return g
    def paced(items, t, step):
        r = []
        for x in items:
            r.append((t, x))
            if any(y.startswith("buffer") for y in aslist(x)): t += step
        return r
    def unpark(dst, k): return f"v_accvgpr_read_b32 {v(dst)}, {a(aADR + k)}"
    def pstore(j, data, tag):
        if j < 4: return f"buffer_store_dwordx4 {v(data, 4)}, {v(vLIN)}, {srd(SRD_PI)}, 0 offen offset:{j*1024} sc1 @{tag}"
        return f"buffer_store_dwordx4 {v(data, 4)}, {v(vLIN)}, {srd(SRD_PI)}, s{sTK2} offen sc1 @{tag}"
    mstubs = []
    def mstore(j, data, tag, vccmode):
        k = len(mstubs)
        x = f"buffer_store_dwordx4 {v(data, 4)}, {v(vLIN)}, {srd(SRD_O)}, " + (f"s{sOOWN} offen offset:{j*1024}" if j < 4 else f"s{sTK} offen")
        mstubs.append(x + " sc1")
        br = [f"s_cbranch_vccnz L_ms{k}"] if vccmode else [f"s_cmp_lg_u32 s{sMODE}, 0", f"s_cbranch_scc1 L_ms{k}"]
        return br + [x + " @" + tag, f"LABEL L_mr{k}"]
    M, G = base_iter(1)
    G[-1] += ["v_mov_b32 v1, 0", f"buffer_load_dword {v(vJUNK)}, v1, {srd(SRD_D)}, s{sT1} offen sc1 @hs"]
    if opt("tch", 0) == 1: G[1] += ["s_mov_b32 exec_hi, 0xff", f"buffer_load_dword v2, v3, {srd(SRD_O)}, s{sOOWN} offen", "s_mov_b32 exec_hi, -1"]
    G[7].append("s_waitcnt lgkmcnt(0)")
    G[S["kw"]].append("WAITVM K7")
    for p, s in zip(S["kpos"], kreads(1, "k7")): G[p].append(s)
    G[S["vw"]].append("WAITVM V6")
    for p, s in zip(S["vpos"], vreads(0, "v6")): G[p].append(s)
    G[83].append("WAITLG k7")
    vm = [(5, x) if "m0" in x else (8, x) for x in flat(kv_dma(False, VSLOT[1], "V7"))]
    vm = [(5, vm[0][1])] + paced([x.replace("s_nop 0", "NEXTGAP") for _, x in vm[2:]], 8, 2)
    vm += [(20, unpark(vWOO + q, 6 + q)) for q in range(4)] + paced(wo_dma(0), 24, opt("w0s", 4))
    hsq = [f"s_add_u32 s{sTK}, s{sOOWN}, 4096", f"s_mov_b32 s{sTK2}, 4096",
           f"s_mov_b32 s{SRD_WS}, s18", f"s_mov_b32 s{SRD_WS+1}, s19", f"s_mov_b32 s{SRD_WS+2}, {WS_FLG + 65536}", f"s_mov_b32 s{SRD_WS+3}, 0x20000", f"s_mov_b32 s{sSPIN}, 0"]
    hsq = [(1, x) for x in hsq] + [(51, "WAITVM hs"), (51, f"v_readfirstlane_b32 s58, {v(vJUNK)}"), (51, f"v_accvgpr_read_b32 {v(vKR)}, {a(aPRB)}"),
           (51, ["s_cmp_ge_u32 s58, 32", "s_cbranch_scc0 L_hs", "LABEL L_hsok"]),
           (51, ["s_mov_b64 exec, 15", f"buffer_load_dword {v(vJUNK)}, {v(vKR)}, {srd(SRD_WS)}, 0 offen offset:4 sc1 @ids", "s_mov_b64 exec, -1"])]
    st = [(opt("ist", 26) + opt("isp", 14)*j, pstore(j, vSENT, "ip")) for j in range(5)] if "lateinit" in X else []
    drain = sched(M, G, [hsq, [x for x in st if x[0] < 85], vm])
    drain(0); drain(1); drain(2)
    st = [(p - 85, x) for p, x in st if p >= 85]
    stamp("t5")
    FO = [2, 3, 4, 5, 6, 7, 0, 1]
    HZ = opt("hz", 4)
    M = []; G = {7: ["s_waitcnt lgkmcnt(0)"]}; ix = {}
    for j in range(5):
        put_exp(G, len(M), (j & 1) ^ 1, (j - 1) % 5)
        M += qk(j, 1, j & 1) + pv(j, 0)
        if j >= 3: ix[f"p{j-3}"] = len(M); M += pv(j - 3, 1, FO)
    aW = [aK, aQ, aQ + 32, aV]
    aR = [aK + 32, aK + 44, aQ + 64]
    def msum(j):
        return [f"{MF} {v(oreg(k, j), 4)}, {a(aE + (2 if k == 0 else 0), 4)}, {a(aR[j % 3] + s*4, 4)}, {v(oreg(k, j), 4)}" for s in range(3) for k in range(2)]
    put_exp(G, len(M), 0, 4)
    BQ = [vS, vS + 4, vS + 8, vS + 12, vP, vP + 4, vP + 8, vP + 12]
    vWR2 = vVR; vOB = vVR + 2; vVER = vVR + 3; vCHK = vVR + 4; vPRB = vVR + 5; vPRD = vVR + 6; vOWN = vVR + 7; vT = vP + 16
    def bread(j, h, st):
        if h == 0: return [f"ds_read_b128 {v(BQ[st*4 + ks], 4)}, {v(vLIN)} offset:{OWNB[j] + ks*1024} @b{j}{h}" for ks in range(4)]
        return [f"ds_read_b128 {v(BQ[st*4 + ks], 4)}, {v(vOB)} offset:{OBOFF[j] + h*4096 + ks*1024} @b{j}{h}" for ks in range(4)]
    def proj(j, h, st):
        return [f"{MF} {v(oreg(2 + nn, j), 4)}, {a(aW[h] + (ks*2+nn)*4, 4)}, {v(BQ[st*4 + ks], 4)}, {'0' if h == 0 and ks == 0 else v(oreg(2 + nn, j), 4)}"
                for ks in range(4) for nn in range(2)]
    for nm, mm in (("s0", msum(0)), ("p2", pv(2, 1, FO)), ("p3", pv(3, 1, FO)), ("p4", pv(4, 1, FO))):
        ix[nm] = len(M); M += mm
    need = {}; NE = opt("ne4", 2)
    sibrd = {}
    def group(j, h, st_, first, inbeat):
        g = len(M)
        if first: ix[f"q{j}"] = g
        M.extend(proj(j, h, st_)); ix[f"e{j}"] = len(M) - 1
        need.setdefault(g, []).append(f"!WAITLG b{j}{h}")
        r = bread(j, h, st_)
        if first and inbeat: sibrd[j] = r
        elif first:
            need.setdefault(g - 7, []).extend([f"v{j}"] + (["v4"] if j == opt("pd", 3) else []) + (["n4", "!WAITLG w4"] if j == 4 else []) + ["!s_barrier", f"!STAMP d{j}", f"!MARK d{j}"])
            for k in range(4): G.setdefault(g - 7 + k, []).append(r[k])
        else:
            for k in range(4): G.setdefault(g - 8 + k, []).append(r[k])
    for b in (1, 2, 3, 4):
        ix[f"s{b}"] = len(M); M += msum(b)
        ix[f"o{b-1}"] = len(M); M += proj(b - 1, 0, 0)
        j = b - 5 + NE
        if j >= 0:
            for h in (1, 2, 3): group(j, h, h & 1, h == 1, True)
    st_ = 0 if NE else 1
    for j in range(NE, 5):
        for h in ((1, 2, 3) if j < 4 else (0, 1, 2, 3)):
            group(j, h, st_, h == (1 if j < 4 else 0), False); st_ ^= 1
    def wfr(h, base):
        return [f"ds_read_b64_tr_b16 {a(aW[h] + (ks*2+nn)*4 + jh*2, 2)}, {v(base+nn)} offset:{WREG[h] - R_A + ks*8192 + jh*4096} @f{h}" if h != 2 else
                f"ds_read_b64_tr_b16 {a(aW[h] + (ks*2+nn)*4 + jh*2, 2)}, {v(base+nn)} offset:{ks*8192 + jh*4096} @f{h}"
                for ks in range(4) for nn in range(2) for jh in range(2)]
    nx = [0]
    def xw(j):
        r = []; p = ix[f"p{j}"]
        for mrel in (1, 2, 3):
            t = vTMP + (nx[0] & 1)*4; nx[0] += 1
            ins = pack4(t, oreg(2*mrel, j), oreg(2*mrel + 1, j)) + [f"ds_write_b128 {v(vXW + mrel - 1)}, {v(t, 4)} offset:{XSLOT[j]} @x{j}"]
            r += [(p + 2*mrel - 1 + HZ, s) for s in ins]
            if mrel == 1: r.append((0, f"MARK xa{j}"))
        return r + [(p + 8 + HZ, f"ds_write_b32 {v(vLW)}, {a(aL + j*4)} offset:{j*256} @x{j}"), (0, f"MARK x{j}")]
    def xr(j):
        return [f"ds_read_b128 {v(vNM + j*4, 4)}, {v(vLR)} offset:{j*256} @l{j}"] + \
               [f"ds_read_b128 {a(aR[j % 3] + s*4, 4)}, {v(vXRD)} offset:{XSLOT[j] + s*1024} @r{j}" for s in range(3)] + [f"MARK r{j}"]
    def lsum(j):
        r = vNM + j*4
        return [(0, x) for x in [f"AFTER r{j} 2", f"WAITLG l{j}", f"v_add_f32 {v(r)}, {v(r)}, {v(r+1)}", f"v_add_f32 {v(r+2)}, {v(r+2)}, {v(r+3)}", f"v_add_f32 {v(r)}, {v(r)}, {v(r+2)}",
                f"v_subrev_u32 {v(r+1)}, {LO_BITS}, {v(r)}", [f"v_cmp_lt_u32 vcc, s{sRANGE}, {v(r+1)}", f"v_rcp_f32 {v(r)}, {v(r)}", "s_cbranch_vccnz L_fallback"]]]
    def norm(j):
        r0 = oreg(0, j); r1 = oreg(1, j); t = oreg(4, j)
        ins = [f"v_mul_f32 {v(r+q)}, {v(vNM+j*4)}, {v(r+q)}" for r in (r0, r1) for q in range(4)] + pack4(t, r0, r1) + sanit(t)
        ms = mstore(j, t, f"o{j}", False)
        return [(ix[f"s{j}"] + 5 + HZ, x) for x in ins + [f"STAMP n{j}", ms, f"ds_write_b128 {v(vOWN)}, {v(t, 4)} offset:{OWNB[j]} @w{j}", f"MARK n{j}"]]
    def fetch(j):
        r = []
        for h in (1, 2, 3):
            dst = R_B + OBOFF[j] + h*4096
            if j < 4: r.append([f"s_add_u32 m0, s{sW1K}, {dst - j*1024}", "s_nop 0", f"buffer_load_dwordx4 {v(vLIN)}, {srd(SRD_O)}, s{sSIB+h} offen offset:{j*1024} sc1 lds @g{j}"])
            else: r.append([f"s_add_u32 m0, s{sW1K}, {dst}", f"s_add_u32 s{sT3}, s{sSIB+h}, 4096", f"buffer_load_dwordx4 {v(vLIN)}, {srd(SRD_O)}, s{sT3} offen sc1 lds @g{j}"])
        return r
    def vread(j): return [f"ds_read_b32 {v(vT + h)}, {v(vVER)} offset:{OBOFF[j] + h*4096} @t{j}" for h in (1, 2, 3)]
    def vtest(): return [f"v_max3_u32 {v(vT)}, {v(vT+1)}, {v(vT+2)}, {v(vT+3)}", f"v_cmp_eq_u32 vcc, -1, {v(vT)}"]
    def verify(j):
        return [[f"STAMP u{j}", f"WAITVM g{j}", f"STAMP w{j}"]] + vread(j) + [f"MARK t{j}", f"AFTER t{j} 3", f"WAITLG t{j}", vtest()[0], [vtest()[1], "s_nop 0", f"s_cbranch_vccnz L_refetch{j}", f"LABEL L_got{j}"], f"MARK v{j}"]
    def post(j):
        r0 = oreg(2, j)
        return [(ix[f"e{j}"] + HZ, x) for x in pack4(r0, r0, oreg(3, j)) + sanit(r0) + [pstore(j, r0, "pst")]]
    p0 = ix["p0"]
    hs = st + [(4, "WAITVM ids"), (4, ["s_mov_b64 exec, 15", f"v_cmp_ne_u32 vcc, s{sXCC}, {v(vJUNK)}", "s_mov_b64 exec, -1"]), (4, "NEXTGAP"), (4, f"s_mov_b32 s{sMODE}, vcc_lo")]
    hs += [(9 + opt("osp", 8)*j, mstore(j, vSENT, "io", True)) for j in range(5)]
    hs += [(60, "WAITVM io"), (60, "v_mov_b32 v2, 0"), (60, f"v_mov_b32 v3, s{sFOWN}"),
           (60, ["s_mov_b64 exec, 1", "global_store_dword v3, v2, s[18:19] sc1 @fset", "s_mov_b64 exec, -1"]), (60, "MARK fset")]
    def bar(name, afters, waits): return [(0, f"AFTER {x} 0") for x in afters] + [(0, waits + ["s_barrier", f"STAMP {name}", f"MARK {name}"])]
    vs = [(70, unpark(vXW + q, q)) for q in range(4)] + [(70, unpark(vLW, 4)), (70, unpark(vLR, 5))]
    vs += xw(0) + bar("a", [], ["WAITLG x0"]) + lsum(0) + norm(0) + xw(1) + bar("b1", ["f2"], ["WAITVM wo3", "WAITLG x1", "WAITLG f2"])
    for j in (1, 2, 3):
        jj = j + 1 - 5 + NE
        vs += xw(j + 1) + lsum(j) + norm(j) + bar(f"b{j+1}", ([f"v{jj}"] if jj >= 0 else []) + (["f3"] if jj == 0 else []), [f"WAITLG w{j}"])
    vs += lsum(4) + norm(4)
    ps = []
    for j in range(5):
        p = post(j)
        ps += p[:-1] + ([(0, f"AFTER d{opt('pd', 3)} 0")] if j == 0 else []) + p[-1:]
    rs = [(9, "v_mov_b32 v1, 0")][:0] + [(8, unpark(1, 10)), (8, unpark(2, 11))][:0]
    vWA = vTMP + 0
    rs += [(8, unpark(vWA, 10)), (8, unpark(vWA + 1, 11)), (opt("w0b", 12), ["WAITVM wo0", "s_barrier"])] + [(0, x) for x in wfr(0, vWA)]
    rs += [(40, "WAITVM V7")] + [(40, x) for x in vreads(1, "v7")] + [(0, "MARK v7")]
    rs += [(68, unpark(vWR2, 10)), (68, unpark(vWR2 + 1, 11)), (68, f"v_add_u32 {v(vOB)}, {R_B}, {v(vLIN)}"), (68, f"v_add_u32 {v(vVER)}, s{sW1K}, {v(vOB)}"),
           (68, f"v_accvgpr_read_b32 {v(vPRB)}, {a(aPRB)}"), (68, f"v_add_u32 {v(vOWN)}, s{sW1K}, {v(vLIN)}"), (0, "MARK adr")]
    rs += [(85, x) for x in wfr(1, vWR2)[:8]] + [(0, "AFTER a 0")] + [(0, x) for x in xr(0)] + [(0, x) for x in wfr(1, vWR2)[8:]]
    rs += [(0, f"v_add_u32 {v(vWR2+q)}, {R_C - R_A}, {v(vWR2+q)}") for q in range(2)] + [(0, x) for x in wfr(2, vWR2)] + [(0, "MARK f2")]
    rs += [(0, f"v_subrev_u32 {v(vWR2+q)}, {R_C - R_A}, {v(vWR2+q)}") for q in range(2)]
    w3 = wfr(3, vWR2)
    for j in (1, 2, 3, 4):
        rs += [(0, f"AFTER b{j} 0")] + [(ix[f"s{j-3}"] + 6 if j >= 3 else 0, x) for x in xr(j)]
        rs += [(ix[f"s{j}"] - 1, x) for x in bread(j - 1, 0, 0) + sibrd.get(j - 5 + NE, [])] + [(0, f"MARK bo{j-1}")]
        if j < 3: rs += [(0, x) for x in w3[8*(j-1):8*j]]
        if j == 2: rs += [(0, "MARK f3")]
    MF4, MP = 0xF, 0xFF0000
    def probe(mask, tag=""): return [f"s_mov_b64 exec, {mask}", f"buffer_load_dword {v(vPRD)}, {v(vPRB)}, {srd(SRD_WS)}, 0 offen sc1" + tag, "s_mov_b64 exec, -1"]
    def test(mask): return [f"v_cmp_eq_u32 vcc, -1, {v(vPRD)}", "s_nop 0", f"s_and_b32 s58, vcc_lo, {mask}"]
    FD = opt("fd", 24)
    ds = paced(wo_dma(1), 1, opt("w1s", 3)) + paced(wo_dma(2), 28, opt("w1s", 3)) + [(0, "MARK w2")] + paced(wo_dma(3), p0, 2) + [(0, "MARK w3")]
    ds += [(0, "AFTER adr 0"), (opt("pb", 96), probe(MF4 | MP, " @prb")), (0, "AFTER b1 0"), (0, "WAITVM prb"), (0, test(MF4) + ["s_cbranch_scc1 L_waitf", "LABEL L_fok"])]
    FA = OPT.get("fa", "xa2,xa3,xa4,r4,n4").split(","); FDL = [int(x) for x in OPT.get("fdl", "2,6,6,6,24").split(",")]
    for j in range(5):
        if j == 4: ds += [(0, f"AFTER {'b4' if NE >= 2 else 'd1'} 0")]
        ds += [(0, f"AFTER {FA[j]} {FDL[j]}")] + [(0, f"STAMP f{j}")] + [(0, g) for g in fetch(j)] + [(0, f"MARK g{j}")]
    vf = []
    VDL = [int(x) for x in OPT.get("vdl", "10,10,12,16,20").split(",")]
    for j in range(5): vf += [(0, f"AFTER g{j} {VDL[j]}")] + [(0, x) for x in verify(j)]
    G.setdefault(p0 - 1, []).extend(["WAITLG v7", "WAITVM wo2", "s_barrier", "STAMP bD"])
    need.setdefault(p0 - 1, []).extend(["v7", "w2"])
    need.setdefault(p0 + 17, []).append("w3")
    for j in range(5): need.setdefault(ix[f"s{j}"], []).extend([f"r{j}"] + ([f"bo{j-1}"] if j else []) + ([f"xa{j+1}"] if j in (1, 2, 3) else []) + [f"!WAITLG r{j}"])
    for j in range(4): need.setdefault(ix[f"o{j}"], []).append(f"!WAITLG b{j}0")
    if NE == 0: need.setdefault(ix["q0"] - 7, []).insert(0, "f3")
    drain = sched(M, G, [hs, ds, vf, vs, rs, ps], need=need, limit=opt("lim", 16), limits={1: 28, 2: 24})
    e(f"s_and_b32 s{sT0}, s{sHKV}, 1"); e(f"s_sub_u32 s{sT2}, 3, s{sT0}")
    e(f"s_mul_i32 s{sT0}, s{sT0}, 3"); e(f"s_add_u32 s{sT0}, s{sT0}, s{sW}")
    for k in range(6): drain(k)
    stamp("pst")
    if "cnt" in X: e(f"s_mov_b32 s{sCNT}, s{sSPIN}")
    e(f"s_cmp_ge_u32 s{sW}, s{sT2}"); e("s_cbranch_scc1 L_fin")
    e("s_and_b32 s58, s2, 0xf8"); e("s_mul_i32 s58, s58, 20480"); e(f"s_lshr_b32 s59, s{sHKV}, 1"); e("s_mul_i32 s59, s59, 5120"); e("s_add_u32 s58, s58, s59")
    e(f"s_lshl_b32 s59, s{sT0}, 10"); e("s_add_u32 s58, s58, s59"); e(f"s_add_u32 s{sT3}, s58, {WS_PART}")
    emit(test(MP)); e("s_cbranch_scc1 L_waitp")
    lab("L_pok")
    fB = vO + 100
    def redloads():
        e(f"s_mov_b32 s{sT1}, s{sT3}")
        for p in range(8):
            e(f"buffer_load_dwordx4 {v(fB + p*4, 4)}, {v(vLIN)}, {srd(SRD_WS)}, s{sT1} offen sc1")
            if p < 7: e(f"s_add_u32 s{sT1}, s{sT1}, 20480")
    redloads()
    e(f"s_lshl_b32 s{sT0}, s{sT0}, 4")
    e(f"s_mul_i32 s58, s{sB}, 80"); e(f"s_add_u32 s{sT0}, s{sT0}, s58"); e(f"s_lshl_b32 s{sT0}, s{sT0}, 10")
    e(f"s_lshl_b32 s58, s{sI}, 8"); e(f"s_add_u32 s{sT0}, s{sT0}, s58")
    e(f"s_lshr_b32 s58, s{sHKV}, 1"); e("s_lshl_b32 s58, s58, 6"); e(f"s_add_u32 s{sT0}, s{sT0}, s58")
    e("v_lshlrev_b32 v9, 10, v4"); e("v_lshl_add_u32 v9, v5, 3, v9")
    e(f"s_mov_b32 s{SRD_K}, s14"); e(f"s_mov_b32 s{SRD_K+1}, s15"); e(f"s_mov_b32 s{SRD_K+2}, 655360"); e(f"s_mov_b32 s{SRD_K+3}, 0x20000")
    lab("L_red")
    e(f"v_mov_b32 {v(vCHK)}, 0")
    for p in range(8):
        e(f"s_waitcnt vmcnt({7-p})")
        for k in range(2):
            d = v(vS + k*4, 4)
            e(f"{MF} {d}, {a(aE + (2 if k == 0 else 0), 4)}, {v(fB + p*4, 4)}, {'0' if p == 0 else d}")
            if k == 0: e(f"v_max_u32 {v(vCHK)}, {v(vCHK)}, {v(fB + p*4)}")
    e(f"v_cmp_eq_u32 vcc, -1, {v(vCHK)}")
    e("s_nop 4")
    e("s_cbranch_vccnz L_redo")
    lab("L_redok")
    e("s_nop 0")
    e(f"v_cvt_pk_bf16_f32 {v(vS)}, {v(vS)}, {v(vS+1)}"); e(f"v_cvt_pk_bf16_f32 {v(vS+1)}, {v(vS+2)}, {v(vS+3)}")
    e(f"v_cvt_pk_bf16_f32 {v(vS+4)}, {v(vS+4)}, {v(vS+5)}"); e(f"v_cvt_pk_bf16_f32 {v(vS+5)}, {v(vS+6)}, {v(vS+7)}")
    OF = OPT.get("outf", "").replace("_", " ")
    e(f"buffer_store_dwordx2 {v(vS, 2)}, v9, {srd(SRD_K)}, s{sT0} offen {OF}")
    e(f"buffer_store_dwordx2 {v(vS+4, 2)}, v9, {srd(SRD_K)}, s{sT0} offen offset:32 {OF}")
    lab("L_fin")
    stamp("fin")
    if STAMPS and "cnt" in X:
        i = nstamp[0]; nstamp[0] += 1
        e(f"s_add_u32 s{sSTAMP+2*i}, s{sSTAMP+2*i-2}, s{sCNT}"); e(f"s_addc_u32 s{sSTAMP+2*i+1}, s{sSTAMP+2*i-1}, 0")
    write_stamps()
    lab("L_done")
    e("s_endpgm")
    lab("L_redo")
    emit(spin("L_redok")); redloads(); e("s_branch L_red")
    lab("L_hs")
    e("v_mov_b32 v2, 0"); e("s_sleep 4")
    e(f"buffer_load_dword {v(vJUNK)}, v2, {srd(SRD_D)}, s{sT1} offen sc1"); e("s_waitcnt vmcnt(0)")
    emit(spin("L_hsok"))
    e(f"v_readfirstlane_b32 s58, {v(vJUNK)}"); e("s_nop 0"); e("s_cmp_ge_u32 s58, 32"); e("s_cbranch_scc0 L_hs"); e("s_branch L_hsok")
    for nm, mask, ok in (("L_waitf", MF4, "L_fok"), ("L_waitp", MP, "L_pok")):
        lab(nm)
        e("s_sleep 2"); emit(probe(mask)); e("s_waitcnt vmcnt(0)")
        emit(spin(ok)); emit(test(mask)); e(f"s_cbranch_scc1 {nm}"); e(f"s_branch {ok}")
    for j in range(5):
        lab(f"L_refetch{j}")
        emit(spin(f"L_got{j}")); emit(fetch(j)); e("s_waitcnt vmcnt(0)")
        emit(vread(j)); e("s_waitcnt lgkmcnt(0)"); emit(vtest()); e("s_nop 1")
        e(f"s_cbranch_vccnz L_refetch{j}"); e(f"s_branch L_got{j}")
    for k, x in enumerate(mstubs):
        lab(f"L_ms{k}"); L.append("    " + x); e(f"s_branch L_mr{k}")
    lab("L_fallback")
    e("s_waitcnt vmcnt(0) lgkmcnt(0)")
    e("s_barrier")
    e(f"s_mov_b32 s{sRANGE}, -1")
    e("s_branch L_restart")
    lab("L_rowmax")
    e("s_waitcnt vmcnt(0) lgkmcnt(0)")
    emit(qrd(1) + qrd(2)); e("s_waitcnt lgkmcnt(0)"); emit(qrd(3) + qrd(4))
    vA = vP; vM = vP + 4
    for ds in range(4): e(f"v_subrev_u32 {v(vA+ds)}, {R_A - R_D}, {v(vKR+ds)}")
    for j in range(5): e(f"v_mov_b32 {v(vM+j)}, 0xff800000")
    e(f"s_mov_b32 s{sTK}, 0"); e(f"s_mov_b32 s{sTK2}, 4096")
    lab("L_fbmax")
    emit(flat(kv_dma(True, R_D, "f")))
    e("s_waitcnt vmcnt(0)")
    emit(kreads(0, base=vA, buf=1))
    e("s_waitcnt lgkmcnt(0)")
    for j in range(5):
        emit(qk(j, 1, 0, cinit="0")); e("s_nop 7")
        for n in range(4): e(f"v_max3_f32 {v(vM+j)}, {v(vM+j)}, {v(vS+2*n)}, {v(vS+2*n+1)}")
    e(f"s_add_u32 s{sTK}, s{sTK}, 8192"); e(f"s_add_u32 s{sTK2}, s{sTK2}, 8192")
    e(f"s_cmp_lt_u32 s{sTK}, 65536"); e("s_cbranch_scc1 L_fbmax")
    for j in range(5):
        for op in ("v_permlane32_swap_b32", "v_permlane16_swap_b32"):
            e(f"v_mov_b32 v1, {v(vM+j)}"); e("s_nop 1"); e(f"{op} {v(vM+j)}, v1"); e("s_nop 1"); e(f"v_max_f32 {v(vM+j)}, {v(vM+j)}, v1")
    e(unpark(1, 4)); e(unpark(2, 5))
    for j in range(5): e(f"ds_write_b32 v1, {v(vM+j)} offset:{j*256}")
    e("s_waitcnt lgkmcnt(0)"); e("s_barrier")
    for j in range(5): e(f"ds_read_b128 {v(vNM+j*4, 4)}, v2 offset:{j*256}")
    e("s_waitcnt lgkmcnt(0)")
    for j in range(5):
        r = vNM + j*4
        e(f"v_max3_f32 {v(r)}, {v(r)}, {v(r+1)}, {v(r+2)}"); e(f"v_max_f32 {v(r)}, {v(r)}, {v(r+3)}"); e(f"v_sub_f32 {v(r)}, 0, {v(r)}")
        for q in (1, 2, 3): e(f"v_mov_b32 {v(r+q)}, {v(r)}")
    e("s_branch L_noat")
    lab("L_end")

hdr = open("standalone__gqa_block_cached__near_ridge.s.ref").read().split("\n")
for ln in hdr:
    if ln.startswith("; @launch"): continue
    if not ln.startswith(";"): break
    L.append(ln)
L.append("; @launch grid=(256,1,1) block=(256,1,1) lds=163840")
L.append('.amdgcn_target "amdgcn-amd-amdhsa--gfx950"')
L.append(".text")
kernel()
L.append('.section .rodata,"a"')
L.append(".p2align 6"); L.append(f".amdhsa_kernel {KN}")
for s in ["next_free_vgpr 512", "next_free_sgpr 102", "accum_offset 256", "group_segment_fixed_size 0", "kernarg_size 64", "user_sgpr_count 2", "user_sgpr_kernarg_segment_ptr 1", "system_sgpr_workgroup_id_x 1"]:
    L.append("  .amdhsa_" + s)
L.append(".end_amdhsa_kernel")
import hazard
L = hazard.fix(L)
print("\n".join(L))
```

```python
import sys, math, struct, re, os
sys.path.insert(0, os.path.dirname(os.path.abspath(__file__)))

X = set(a[2:] for a in sys.argv[1:] if a.startswith("--") and "=" not in a)
OPT = dict(a[2:].split("=") for a in sys.argv[1:] if a.startswith("--") and "=" in a)
def opt(k, d): return int(OPT.get(k, d))
STAMPS = "stamps" in X
KN = "standalone__gqa_block_cached__near_ridge_kernel"
L = []

class Tr:
    def __init__(s): s.ops = []
    def add(s, tag): s.ops.append(tag)
    def need(s, tag):
        idx = max(i for i, t in enumerate(s.ops) if t == tag)
        return len(s.ops) - 1 - idx
VM = Tr(); LG = Tr()

def lab(s): L.append(s + ":")
def e(s):
    if s.startswith("LABEL "): lab(s[6:]); return
    if s.startswith("MARK "): return
    if s.startswith("STAMP "): stamp(s[6:]); return
    if s == "NEXTGAP": s = "s_nop 0"
    tag = None
    if " @" in s: s, tag = s.split(" @")
    op = s.split()[0]
    if op == "WAITVM":
        n = VM.need(s.split()[1]); s = f"s_waitcnt vmcnt({min(n, 63)})"
    elif op == "WAITLG":
        n = LG.need(s.split()[1]); s = f"s_waitcnt lgkmcnt({min(n, 15)})"
    elif op.startswith("buffer_") or op.startswith("global_"): VM.add(tag)
    elif op.startswith("ds_"): LG.add(tag)
    L.append("    " + s)
def aslist(it): return it if isinstance(it, list) else [it]
def emit(lst):
    for it in lst:
        for s in aslist(it): e(s)
def flat(groups): return [s for g in groups for s in aslist(g)]
def capture(fn):
    keep = list(L); del L[:]
    fn()
    out = [x.strip() for x in L]; L[:] = keep
    return out

QSCALE = 1.4426950408889634 / math.sqrt(128.0)
def f2u(x): return struct.unpack("<I", struct.pack("<f", x))[0]

S_ST = [0, 53248, 106496, 0]
R_D, R_QX, R_A, R_B, R_C, R_SP = 0, 32768, 53248, 86016, 118784, 151552
KSLOT = [R_A, R_B]; VSLOT = [R_C, R_D]
XSLOT = [0, 12288, 24576, 0, 12288]
OWNB = [36864, 40960, 45056, 49152, 36864]
OBOFF = [0, 16384, 32768, 49152, 0]
WREG = [R_A, R_B, R_C, R_A]
WS_PART = 8 << 20
WS_FLG = 16 << 20
WS_STAMP = 128 << 20
WGS = 40960; WVS = 10240
HEADSTRIDE = 64 * WGS
LO_BITS = 0x21800000
RANGE = 0x3C000000
sW, sHKV, sB, sI, sRANGE = 3, 20, 21, 22, 23
sWOB, sSIB, sOI = 4, 8, 12
SRD_X, SRD_WQ, SRD_K, SRD_V, SRD_O, SRD_WO, SRD_PI = 24, 28, 32, 36, 40, 44, 64
SRD_WS, SRD_D = 24, 28
sTK, sTK2, sTV, sTV2, sSLOT, sCNT = 48, 49, 50, 51, 52, 53
sT0, sT1, sT2, sT3 = 54, 55, 56, 57
sOOWN, sW5K, sSPIN, sFOWN = 60, 61, 62, 63
sSTAMP = 68
sMODE, sXCC, sWB, sXB, sSTEP, sMIR, sW1K, sQS = 89, 90, 91, 92, 93, 94, 95, 96
vKR = 8; vVR = 12; vOK = 20; vOV = 24; vLIN = 26; vJUNK = 27
vP = 28; vS = 48; vNM = 64; vTMP = 84; vO = 96
vVRC = vTMP; vSENT = vTMP + 8; vQW = 73
aQ = 0; aK = 80; aV = 144; aL = 208; aE = 228; aPRB = 234; aADR = 235; aONE = 248

def srd(r): return f"s[{r}:{r+3}]"
def v(r, n=1): return f"v{r}" if n == 1 else f"v[{r}:{r+n-1}]"
def a(r, n=1): return f"a{r}" if n == 1 else f"a[{r}:{r+n-1}]"
MF = "v_mfma_f32_16x16x32_bf16"
SPIN_MAX = opt("spin", 400000)

nstamp = [0]
def stamp(name=""):
    if not STAMPS: return
    sel = OPT.get("st")
    if sel and name not in sel.split(","): return
    i = nstamp[0]; nstamp[0] += 1
    assert sSTAMP + 2*i + 1 < 89
    sys.stderr.write(f"{i}:{name} ")
    L.append(f"    {'s_memtime' if 'cyc' in X else 's_memrealtime'} s[{sSTAMP+2*i}:{sSTAMP+2*i+1}]")
    L.append("    s_waitcnt lgkmcnt(0)")
def write_stamps():
    if not STAMPS: return
    if "amp" in X:
        e("s_cmp_ge_u32 s2, 8"); e("s_cbranch_scc1 L_done")
        e(f"s_cmp_lg_u32 s{sW}, 0"); e("s_cbranch_scc1 L_done")
        e("s_memrealtime s[80:81]"); e("s_waitcnt lgkmcnt(0)")
        e(f"s_sub_u32 s82, s{sSTAMP+2}, s{sSTAMP}"); e("s_min_u32 s82, s82, 5000"); e("s_mul_i32 s82, s82, 10"); e("s_add_u32 s82, s82, s80")
        lab("L_amp")
        e("s_memrealtime s[84:85]"); e("s_waitcnt lgkmcnt(0)"); e("s_sub_u32 s86, s84, s82"); e("s_cmp_lt_i32 s86, 0"); e("s_cbranch_scc1 L_amp")
        return
    n = nstamp[0]
    e("s_lshl_b32 s58, s2, 2"); e(f"s_add_u32 s58, s58, s{sW}"); e(f"s_mul_i32 s58, s58, {n*8}"); e(f"s_add_u32 s58, s58, {WS_STAMP}")
    e("s_add_u32 s58, s18, s58"); e("s_addc_u32 s59, s19, 0")
    e("s_mov_b64 exec, 1"); e("v_mov_b32 v1, 0")
    for i in range(n):
        e(f"v_mov_b32 v2, s{sSTAMP+2*i}"); e(f"v_mov_b32 v3, s{sSTAMP+2*i+1}")
        e(f"global_store_dwordx2 v1, v[2:3], s[58:59] offset:{i*8}"); e("s_nop 1")
    sys.stderr.write(f"\nstamps: {n}\n")

def mk_srd(r, pbase, off_sgpr, size):
    return [f"s_add_u32 s{r}, s{pbase}, s{off_sgpr}", f"s_addc_u32 s{r+1}, s{pbase+1}, 0", f"s_mov_b32 s{r+2}, {size}", f"s_mov_b32 s{r+3}, 0x20000"]

PSEUDO = ("MARK", "LABEL", "STAMP")
WIDE = ("ds_write_b128", "buffer_store_dwordx4")
def isv(s): return s.startswith("v_")
def gaptime(ins):
    ins = [s for s in ins if not s.startswith(PSEUDO)]
    nv = [s for s in ins if not isv(s)]
    t = 4
    if nv: t += 20 if nv[0].startswith(WIDE) else 4
    first = True
    for s in ins:
        if not isv(s):
            if first: first = False; continue
            t += 24 if s.startswith(WIDE) else 4
        else:
            t = max(t, 8) + (8 if s.startswith(("v_exp", "v_rcp")) else 4)
    return t
def order_gap(items):
    def indep(k):
        x = items[k]
        if isinstance(x, list) or x.startswith(("v_",) + PSEUDO + WIDE + ("ds_write",)): return False
        return all(isinstance(y, str) and isv(y) and not y.startswith(("v_accvgpr_read", "v_mov", "v_cmp", "v_readf", "v_add_u32", "v_subrev")) for y in items[:k])
    for k in range(1, len(items)):
        if indep(k): items.insert(0, items.pop(k)); break
    return items
def interleave(mfmas, gaps):
    emit(gaps.get(-1, []))
    for i, m in enumerate(mfmas):
        e(m); emit(gaps.get(i, []))
def sched(mfmas, fixed, streams, need=None, limit=16, limits=None):
    need = need or {}
    streams = [list(s) for s in streams]
    done = {}
    cur = [0]
    def put(it):
        for s in aslist(it):
            if s.startswith("MARK "): done[s[5:]] = cur[0]
            e(s)
    def flush(mark):
        if mark in done: return
        for st in streams:
            if any(f"MARK {mark}" in aslist(it) for _, it in st):
                while mark not in done:
                    it = st.pop(0)[1]
                    if isinstance(it, str) and it.startswith("AFTER "): flush(it.split()[1]); continue
                    put(it)
                return
        raise Exception("mark " + mark)
    cur[0] = -1
    for it in fixed.get(-1, []): put(it)
    for i, m in enumerate(mfmas):
        cur[0] = i - 1
        for mk in need.get(i, []):
            if mk.startswith("!"): put(mk[1:])
            else: flush(mk)
        e(m)
        cur[0] = i
        items = list(fixed.get(i, []))
        closed = any(s.startswith("v_exp") for s in flat(items))
        blocked = set(); prog = True; seen = dict(done)
        for s in flat(items):
            if s.startswith("MARK "): seen[s[5:]] = i
        while prog:
            prog = False
            for k, st in enumerate(streams):
                if k in blocked or not st: continue
                rdy, it = st[0]
                if it == "NEXTGAP": st.pop(0); blocked.add(k); continue
                if isinstance(it, str) and it.startswith("AFTER "):
                    _, mk, d = it.split()
                    if mk in seen and seen[mk] + int(d) <= i: st.pop(0); prog = True; break
                    continue
                if rdy > i: continue
                real = [s for s in aslist(it) if not s.startswith(PSEUDO)]
                empty = not [s for s in flat(items) if not s.startswith(PSEUDO)]
                if not real or (not closed and (empty or gaptime(flat(items) + real) <= (limits or {}).get(k, limit))):
                    st.pop(0); items.append(it); prog = True
                    for s in aslist(it):
                        if s.startswith("MARK "): seen[s[5:]] = i
                    break
        for it in order_gap(items): put(it)
    cur[0] = len(mfmas)
    def drain(k):
        st = streams[k]
        while st:
            it = st.pop(0)[1]
            if isinstance(it, str) and it.startswith("AFTER "): flush(it.split()[1]); continue
            put(it)
    return drain

def kv_dma(isK, slot_base, tag, nop=True):
    g = []
    for p in range(8):
        grp = []
        if p % 4 == 0:
            grp.append(f"s_add_u32 m0, s{sSLOT}, {slot_base + (p // 4) * 4096}")
            if nop: grp.append("s_nop 0")
        vo = vOK + (p >> 1) if isK else vOV + ((p >> 1) & 1)
        so = (sTK if isK else sTV) + (0 if p < 4 else 1)
        grp.append(f"buffer_load_dwordx4 {v(vo)}, {srd(SRD_K if isK else SRD_V)}, s{so} offen offset:{(p % 4)*1024} lds @{tag}")
        g.append(grp)
    return g
def set_T(isK, t):
    r = sTK if isK else sTV
    return [f"s_xor_b32 s{r}, s{sMIR}, {t*8192}", f"s_xor_b32 s{r+1}, s{sMIR}, {t*8192+4096}"]
def kreads(slot, tag="kr", base=vKR, buf=None):
    buf = slot if buf is None else buf
    return [f"ds_read_b128 {a(aK + buf*32 + (kt*4+ds)*4, 4)}, {v(base+ds)} offset:{(KSLOT[slot]-R_A) + kt*1024} @{tag}" for kt in range(2) for ds in range(4)]
def vreads(slot, tag="vr"):
    base = vVRC if slot == 0 else vVR
    return [f"ds_read_b64_tr_b16 {a(aV + slot*32 + k*4 + jh*2, 2)}, {v(base+k)} offset:{jh*1024} @{tag}" for k in range(8) for jh in range(2)]
def qk(j, kbuf, sbuf, cinit=None):
    m = []
    for kt in range(2):
        for ds in range(4):
            d = v(vS + sbuf*8 + kt*4, 4)
            c = (cinit or v(vNM + j*4, 4)) if ds == 0 else d
            m.append(f"{MF} {d}, {a(aK + kbuf*32 + (kt*4+ds)*4, 4)}, {a(aQ + (j*4+ds)*4, 4)}, {c}")
    return m
def oreg(k, j): return vO + (k*5+j)*4
def pv(j, vbuf, ks=range(8)):
    m = [f"{MF} {v(oreg(k, j), 4)}, {a(aV + vbuf*32 + k*4, 4)}, {v(vP + j*4, 4)}, {v(oreg(k, j), 4)}" for k in ks]
    m.append(f"{MF} {a(aL + j*4, 4)}, {a(aONE, 4)}, {v(vP + j*4, 4)}, {a(aL + j*4, 4)}")
    return m
def exps(sbuf): return [f"v_exp_f32 {v(vS + sbuf*8 + n)}, {v(vS + sbuf*8 + n)}" for n in range(8)]
def cvts(sbuf, j): return [f"v_cvt_pk_bf16_f32 {v(vP + j*4 + n)}, {v(vS + sbuf*8 + 2*n)}, {v(vS + sbuf*8 + 2*n+1)}" for n in range(4)]
def put_exp(G, base, sbuf, j):
    ex = exps(sbuf); cv = cvts(sbuf, j)
    for n in range(8): G.setdefault(base + 2*n, []).append(ex[n])
    for n in range(4): G.setdefault(base + 4*n + 3, []).append(cv[n])
def pack4(t, r0, r1):
    return [f"v_cvt_pk_bf16_f32 {v(t)}, {v(r0)}, {v(r0+1)}", f"v_cvt_pk_bf16_f32 {v(t+1)}, {v(r0+2)}, {v(r0+3)}",
            f"v_cvt_pk_bf16_f32 {v(t+2)}, {v(r1)}, {v(r1+1)}", f"v_cvt_pk_bf16_f32 {v(t+3)}, {v(r1+2)}, {v(r1+3)}"]
def sanit(t): return [f"v_min_u32 {v(t)}, -2, {v(t)}"]
def spin(lbl): return [f"s_add_u32 s{sSPIN}, s{sSPIN}, 1", f"s_cmp_ge_u32 s{sSPIN}, {SPIN_MAX}", f"s_cbranch_scc1 {lbl}"]
if "loopinit" not in X and "earlyinit" not in X: X.add("lateinit")
EARLYINIT = "earlyinit" in X
LINIT = opt("linit", 0)
if LINIT: X.discard("lateinit"); X.add("wt")
LATEINIT = "lateinit" in X or EARLYINIT or LINIT
P_INIT0 = f"buffer_store_dwordx4 {v(vSENT, 4)}, {v(vLIN)}, {srd(SRD_PI)}, 0 offen sc1"
TOUCH = ["s_mov_b64 exec, 0xff", f"buffer_load_dword {v(vJUNK)}, v3, {srd(SRD_O)}, s{sOI} offen"] + \
        ([f"buffer_load_dword {v(vJUNK)}, v2, {srd(SRD_WO)}, s{sOI} offen"] if "wsp" in X else []) + ["s_mov_b64 exec, -1"]
S = dict(dpos=[1, 5, 9, 13, 20, 24, 28, 32, 37, 43, 49, 54, 60, 66, 71, 77], mpos=[-1, 16, 35, 58],
         kw=33, kpos=[33, 35, 39, 39, 41, 43, 45, 47],
         vw=50, vpos=[50, 52, 52, 56, 56, 60, 62, 64, 64, 67, 67, 69, 69, 73, 73, 75], tpos=[18, 47, 77, 79])
GLUE = ("s_addc_u32", "s_cselect_b32", "s_subb_u32")

def kernel():
    L.append(f".globl {KN}"); L.append(".p2align 8"); L.append(f".type {KN},@function"); lab(KN)
    e("s_cmp_ge_u32 s2, 256"); e("s_cbranch_scc1 L_done")
    e("v_lshrrev_b32 v1, 6, v0")
    e("v_and_b32 v0, 63, v0")
    e(f"v_readfirstlane_b32 s{sW}, v1")
    e(f"s_mov_b32 s{sRANGE}, {RANGE}")
    lab("L_restart")
    e("s_load_dwordx16 s[4:19], s[0:1], 0")
    e(f"s_and_b32 s{sHKV}, s2, 7"); e(f"s_lshr_b32 s{sB}, s2, 3"); e(f"s_and_b32 s{sB}, s{sB}, 7"); e(f"s_lshr_b32 s{sI}, s2, 6")
    stamp("start")
    e("s_getpc_b64 s[58:59]"); lab("L_pc0")
    e(f"s_sub_u32 s58, s58, L_pc0-{KN}"); e("s_subb_u32 s59, s59, 0")
    e(f"s_lshr_b32 s{sT3}, s2, 3"); e(f"s_lshl_b32 s{sT3}, s{sT3}, 2"); e(f"s_add_u32 s{sT3}, s{sT3}, s{sW}"); e(f"s_lshl_b32 s{sT3}, s{sT3}, 8")
    e("v_lshlrev_b32 v3, 7, v0"); e(f"v_add_u32 v2, s{sT3}, v3"); e(f"v_min_u32 v2, L_end-{KN}-4, v2")
    e("s_mov_b64 exec, 3"); e(f"global_load_dword {v(vJUNK)}, v2, s[58:59] @pfc"); e("s_mov_b64 exec, -1")
    e("v_and_b32 v4, 15, v0"); e("v_lshrrev_b32 v5, 4, v0"); e("v_bfe_u32 v6, v0, 2, 2"); e("v_and_b32 v7, 3, v0")
    vXO = vTMP; vWO = vTMP + 4; vXR = vTMP + 6; vWR = vTMP + 10
    e("v_xor_b32 v1, v4, v5")
    for pp in range(4):
        e(f"s_add_u32 s{sT0}, s{sW}, {pp}"); e(f"s_and_b32 s{sT0}, s{sT0}, 3"); e(f"s_lshl_b32 s{sT0}, s{sT0}, 2")
        e(f"v_xor_b32 v2, s{sT0}, v1"); e("v_lshlrev_b32 v2, 4, v2"); e(f"v_lshl_add_u32 {v(vXO+pp)}, v5, 10, v2")
    e("v_lshlrev_b32 v2, 1, v5"); e("v_xor_b32 v2, v4, v2"); e("v_lshlrev_b32 v2, 4, v2")
    e(f"v_lshl_add_u32 {v(vWO)}, v5, 13, v2"); e(f"v_xor_b32 {v(vWO+1)}, 128, {v(vWO)}")
    e(f"v_lshl_add_u32 {v(vOV)}, v5, 8, v2"); e(f"v_xor_b32 {v(vOV+1)}, 128, {v(vOV)}")
    e(f"s_mul_i32 s58, s{sB}, 81920")
    e(f"s_lshl_b32 s59, s{sHKV}, 2"); e(f"s_add_u32 s59, s59, s{sI}"); e("s_lshl_b32 s59, s59, 8")
    e(f"s_sub_u32 s{sT3}, 4194304, s59")
    e(f"s_mul_i32 s{sT0}, s{sW}, 20480"); e(f"s_mul_i32 s{sW5K}, s{sW}, 5120")
    e(f"s_lshl_b32 s{sT2}, s{sW}, 18"); e(f"s_lshl_b32 s{sSLOT}, s{sW}, 13")
    XB = [sTK, sTK2, sXB, sT0]; WB = [sTV, sTV2, sWB, sT2]
    e(f"s_add_u32 s{sCNT}, s{sB}, s{sI}")
    for cc in range(4):
        e(f"s_add_u32 s{sSPIN}, s{sCNT}, {cc}"); e(f"s_and_b32 s{sSPIN}, s{sSPIN}, 3")
        e(f"s_lshl_b32 s{sOOWN}, s{sSPIN}, 8"); e(f"s_add_u32 s{XB[cc]}, s{sT0}, s{sOOWN}")
        e(f"s_lshl_b32 s{sOOWN}, s{sSPIN}, 20"); e(f"s_add_u32 s{WB[cc]}, s{sT2}, s{sOOWN}")
    e(f"v_lshlrev_b32 {v(vLIN)}, 4, v0")
    e(f"s_mul_i32 s98, s2, {WGS}"); e(f"s_lshl_b32 s99, s{sW5K}, 1"); e("s_add_u32 s98, s98, s99"); e("s_mov_b32 s101, 9216")
    for q in range(4): e(f"v_mov_b32 v{76+q}, -1")
    e("s_waitcnt lgkmcnt(0)")
    emit(mk_srd(SRD_X, 4, 58, 81920)); emit(mk_srd(SRD_WQ, 10, 59, f"s{sT3}"))
    def p1_dma(cc):
        g = []
        for pp in range(5):
            g.append([f"s_add_u32 m0, s{sW5K}, {S_ST[cc] + pp*1024}", f"s_add_u32 s{sT3}, s{XB[cc]}, {pp*4096}",
                      f"buffer_load_dwordx4 {v(vXO + (pp & 3))}, {srd(SRD_X)}, s{sT3} offen lds @c{cc}"])
        for pp in range(8):
            g.append([f"s_add_u32 m0, s{sSLOT}, {S_ST[cc] + 20480 + pp*1024}", f"s_add_u32 s{sT3}, s{WB[cc]}, {4*pp*8192}",
                      f"buffer_load_dwordx4 {v(vWO + ((pp >> 1) & 1))}, {srd(SRD_WQ)}, s{sT3} offen lds @c{cc}"])
        return g
    c01 = p1_dma(0) + p1_dma(1)
    n0 = opt("n0", 16)
    t0, t1, t2, u1, u2 = 68, 69, 70, 71, 72
    def setup():
        U1, U2, T0, T1, T2 = v(u1), v(u2), v(t0), v(t1), v(t2)
        e(f"v_lshlrev_b32 {U2}, 4, v1"); e(f"v_lshl_add_u32 {v(vXR)}, v4, 8, {U2}")
        for ks in range(1, 4): e(f"v_xor_b32 {v(vXR+ks)}, {ks*64}, {v(vXR)}")
        e(f"v_lshl_add_u32 {v(vOK)}, v5, 8, {U2}")
        for q in range(1, 4): e(f"v_xor_b32 {v(vOK+q)}, {q*64}, {v(vOK)}")
        e(f"v_lshrrev_b32 {T0}, 2, v4"); e(f"v_lshlrev_b32 {T0}, 3, {T0}"); e(f"v_and_b32 {U1}, 3, v4"); e(f"v_add_u32 {T0}, {T0}, {U1}")
        e(f"v_lshl_add_u32 {U2}, {T0}, 8, {U2}"); e(f"v_add_u32 {U2}, s{sSLOT}, {U2}"); e(f"v_add_u32 {v(vKR)}, {R_A}, {U2}")
        for ds in range(1, 4): e(f"v_xor_b32 {v(vKR+ds)}, {ds*64}, {v(vKR)}")
        e(f"v_lshl_add_u32 {U2}, v5, 3, v6"); e(f"v_lshlrev_b32 {U2}, 8, {U2}"); e(f"v_lshl_add_u32 {U2}, v7, 3, {U2}")
        e(f"v_and_b32 {T0}, 1, v5"); e(f"v_lshl_add_u32 {T0}, {T0}, 2, v6")
        e(f"s_lshl_b32 s98, s{sW}, 1")
        for k in range(8):
            e(f"s_add_u32 s99, s98, {k}"); e("s_and_b32 s99, s99, 7")
            e(f"v_xor_b32 {U1}, s99, {T0}"); e(f"v_lshl_add_u32 {U1}, {U1}, 5, {U2}")
            if k < 2: e(f"v_add_u32 {v(vWR+k)}, 20480, {U1}")
            e(f"v_add_u32 {v(vVR+k)}, s{sSLOT}, {U1}")
        for r in range(160): e(f"v_mov_b32 {v(vO+r)}, 0")
        e(f"s_lshl_b32 s98, s{sB}, 3"); e(f"s_add_u32 s98, s98, s{sHKV}"); e("s_lshl_b32 s98, s98, 18")
        e(f"s_lshl_b32 s99, s{sW}, 16"); e("s_add_u32 s98, s98, s99")
        emit(mk_srd(SRD_K, 6, 98, 65536)); emit(mk_srd(SRD_V, 8, 98, 65536))
        e(f"s_bitcmp1_b32 s{sI}, 0"); e(f"s_cselect_b32 s{sMIR}, 0xe000, 0"); e(f"s_cselect_b32 s{sSTEP}, -1, 1"); e(f"s_lshl_b32 s{sSTEP}, s{sSTEP}, 13")
        e("s_and_b32 s98, s2, 63"); e(f"s_mul_i32 s98, s98, {WGS}"); emit(mk_srd(SRD_O, 18, 98, 3*HEADSTRIDE + WGS))
        e(f"s_mul_i32 s{sOOWN}, s{sI}, {HEADSTRIDE}"); e(f"s_lshl_b32 s100, s{sW5K}, 1"); e(f"s_add_u32 s{sOOWN}, s{sOOWN}, s100")
        e(f"s_lshl_b32 s{sFOWN}, s2, 2"); e(f"s_add_u32 s{sFOWN}, s{sFOWN}, s{sW}"); e(f"s_lshl_b32 s{sFOWN}, s{sFOWN}, 6"); e(f"s_add_u32 s{sFOWN}, s{sFOWN}, {WS_FLG}")
        e("s_and_b32 s98, s2, 63"); e("s_lshl_b32 s98, s98, 2"); e(f"s_add_u32 s98, s98, s{sW}"); e("s_lshl_b32 s98, s98, 6"); e(f"s_add_u32 s98, s98, {WS_FLG}")
        e(f"v_and_b32 {T0}, 3, v0"); e(f"v_lshl_add_u32 {T0}, {T0}, 14, s98")
        e("s_and_b32 s98, s2, 0xf8"); e("s_lshl_b32 s98, s98, 8"); e(f"s_lshr_b32 s99, s{sHKV}, 1"); e("s_lshl_b32 s99, s99, 6")
        e("v_cmp_gt_u32 vcc, 16, v0"); e("s_add_u32 s98, s98, s99"); e(f"s_add_u32 s98, s98, {WS_FLG + 4}")
        e(f"v_and_b32 {T1}, 7, v0"); e(f"v_lshl_add_u32 {T1}, {T1}, 8, s98"); e(f"v_cndmask_b32 {T0}, {T1}, {T0}, vcc")
        e(f"v_accvgpr_write_b32 {a(aPRB)}, {T0}")
        e(f"s_lshl_b32 s98, s{sHKV}, 19"); e(f"s_lshl_b32 s99, s{sI}, 8"); e("s_add_u32 s98, s98, s99"); e("s_sub_u32 s99, 524288, s99")
        emit(mk_srd(SRD_WO, 12, 98, "s99"))
        e(f"v_lshlrev_b32 {U1}, 2, v5"); e(f"v_sub_u32 {U1}, v4, {U1}"); e(f"v_and_b32 {U2}, 1, {U1}"); e(f"v_lshlrev_b32 {U2}, 4, {U2}")
        e(f"v_mov_b32 {T0}, 0x3f80"); e(f"v_lshlrev_b32 {U2}, {U2}, {T0}"); e(f"v_lshrrev_b32 {U1}, 1, {U1}")
        e(f"v_cmp_eq_u32 vcc, 0, {U1}"); e(f"v_accvgpr_write_b32 {a(aE)}, 0"); e(f"v_accvgpr_write_b32 {a(aE+1)}, 0"); e(f"v_cndmask_b32 {T0}, 0, {U2}, vcc")
        e(f"v_cmp_eq_u32 vcc, 1, {U1}"); e(f"v_accvgpr_write_b32 {a(aE+4)}, 0"); e(f"v_accvgpr_write_b32 {a(aE+5)}, 0"); e(f"v_cndmask_b32 {T1}, 0, {U2}, vcc")
        e(f"v_accvgpr_write_b32 {a(aE+2)}, {T0}"); e(f"v_accvgpr_write_b32 {a(aE+3)}, {T1}")
        for mrel in (1, 2, 3, 0):
            e(f"s_add_u32 s99, s{sW}, {mrel}"); e("s_and_b32 s99, s99, 3"); e("s_mul_i32 s98, s99, 3072")
            if mrel > 1: e(f"s_add_u32 s98, s98, {(mrel-1)*1024}")
            e(f"v_add_u32 {U1}, s98, {v(vLIN)}"); e(f"v_accvgpr_write_b32 {a(aADR + (mrel - 1) % 4)}, {U1}")
        e(f"s_lshl_b32 s98, s{sW}, 2"); e(f"s_add_u32 s98, s98, {R_SP}"); e(f"v_lshl_add_u32 {U1}, v4, 4, s98"); e(f"v_accvgpr_write_b32 {a(aADR+4)}, {U1}")
        e(f"v_lshlrev_b32 {U1}, 4, v4"); e(f"v_add_u32 {U1}, {R_SP}, {U1}"); e(f"v_accvgpr_write_b32 {a(aADR+5)}, {U1}")
        e(f"v_and_b32 {U1}, 1, v5"); e(f"v_lshlrev_b32 {U1}, 1, {U1}"); e(f"v_xor_b32 {U1}, v4, {U1}"); e(f"v_lshlrev_b32 {U1}, 4, {U1}"); e(f"v_lshl_add_u32 {U1}, v5, 12, {U1}")
        for q in range(4): e(f"v_xor_b32 {U2}, {q*64}, {U1}"); e(f"v_accvgpr_write_b32 {a(aADR+6+q)}, {U2}")
        e(f"v_lshl_add_u32 {U2}, v6, 2, v5"); e(f"v_lshlrev_b32 {U2}, 8, {U2}"); e(f"v_lshl_add_u32 {U2}, v7, 3, {U2}")
        e(f"v_and_b32 {T0}, 1, v5"); e(f"v_lshl_add_u32 {T0}, v6, 1, {T0}")
        e(f"s_lshl_b32 s98, s{sW}, 1")
        for k in range(2):
            e(f"s_add_u32 s99, s98, {k}")
            e(f"v_xor_b32 {U1}, s99, {T0}"); e(f"v_lshl_add_u32 {U1}, {U1}, 5, {U2}"); e(f"v_add_u32 {U1}, {R_A}, {U1}"); e(f"v_accvgpr_write_b32 {a(aADR+10+k)}, {U1}")
        for h in range(4):
            e(f"s_add_u32 s98, s{sI}, {h}"); e("s_and_b32 s98, s98, 3")
            e(f"s_mul_i32 s99, s98, {HEADSTRIDE}"); e(f"s_add_u32 s{sSIB+h}, s99, s100")
            e("s_lshl_b32 s98, s98, 2"); e(f"s_add_u32 s98, s98, s{sW}"); e(f"s_lshl_b32 s{sWOB+h}, s98, 15")
        e(f"s_lshl_b32 s{sW1K}, s{sW}, 10")
        for r in range(20): e(f"v_accvgpr_write_b32 {a(aL+r)}, 0")
        e(f"v_mov_b32 {U1}, 0x3f803f80")
        for r in range(4): e(f"v_accvgpr_write_b32 {a(aONE+r)}, {U1}")
        e(f"s_mov_b32 s{sQS}, {f2u(QSCALE)}"); e(f"s_lshl_b32 s98, s{sW}, 2")
        Q = v(vQW); Q1 = v(vQW + 1)
        e(f"v_lshrrev_b32 {Q}, 1, v5"); e(f"v_add_u32 {Q}, s98, {Q}"); e(f"v_xor_b32 {Q}, {Q}, v4"); e(f"v_lshlrev_b32 {Q}, 4, {Q}")
        e(f"v_lshl_add_u32 {Q}, v4, 8, {Q}"); e(f"v_and_b32 {Q1}, 1, v5"); e(f"v_lshl_add_u32 {Q}, {Q1}, 3, {Q}"); e(f"v_add_u32 {Q}, {R_QX}, {Q}"); e(f"v_xor_b32 {Q1}, 32, {Q}")
    fill = capture(setup)
    ne = min(opt("ne", 420), len(fill))
    while ne < len(fill) and fill[ne].split()[0] in GLUE: ne += 1
    early, fill = fill[:ne], fill[ne:]
    groups = list(c01[:n0])
    pin = [[f"buffer_store_dwordx4 v[76:79], {v(vLIN)}, {srd(SRD_PI)}, " + (f"0 offen offset:{j*1024}" if j < 4 else "s101 offen") + " sc1 @ip"] for j in range(5)] if EARLYINIT else []
    ipos = opt("ipos", 99)
    if ipos < 90: groups = groups[:ipos] + pin + groups[ipos:]; pin = []
    for _ in range(4): emit(groups.pop(0))
    emit(mk_srd(SRD_PI, 18, 98, WVS))
    per = max(1, min(len(early), 260) // (len(groups) + 1)); k = 0
    while early:
        L.append("    " + early.pop(0)); k += 1
        if k >= per and groups and (not early or early[0].split()[0] not in GLUE): emit(groups.pop(0)); k = 0
    emit(flat(groups))
    fg = []
    for x in fill:
        if fg and x.split()[0] in GLUE: fg[-1].append(x)
        else: fg.append([x])
    flag_reset = ["s_mov_b64 exec, 1", f"v_mov_b32 v2, s{sFOWN}",
                  "global_store_dwordx2 v2, v[76:77], s[18:19] sc1 @frst", "s_mov_b64 exec, -1"]
    acc = vP; aX = aV; aWf = aV + 40; aX3 = aQ; aW3 = aK + 32
    def reads(cc, ks):
        buf = ks & 1
        r = [f"ds_read_b64_tr_b16 {a(aWf + buf*8 + dd*4 + jh*2, 2)}, {v(vWR+dd)} offset:{ks*8192 + jh*1024}" for dd in range(2) for jh in range(2)]
        return r + [f"ds_read_b128 {a(aX + buf*20 + j*4, 4)}, {v(vXR+ks)} offset:{j*4096} @p{cc}{ks}{j}" for j in range(5)]
    def wrd(ks): return [f"ds_read_b64_tr_b16 {a(aW3 + (ks*2+dd)*4 + jh*2, 2)}, {v(vWR+dd)} offset:{ks*8192 + jh*1024} @w{ks}" for dd in range(2) for jh in range(2)]
    def xrd(j, ks): return f"ds_read_b128 {a(aX3 + (j*4+ks)*4, 4)}, {v(vXR+ks)} offset:{j*4096} @x{j}{ks}"
    e("WAITVM c0"); e("s_barrier"); stamp("c0")
    emit(reads(0, 0))
    M = []; G = {g: [] for g in range(-1, 160)}
    for cc in range(3):
        for ks in range(4):
            g0 = len(M); buf = ks & 1
            for j in range(5):
                for dd in range(2):
                    d = v(acc + (j*2+dd)*4, 4)
                    M.append(f"{MF} {d}, {a(aWf + buf*8 + dd*4, 4)}, {a(aX + buf*20 + j*4, 4)}, {'0' if (cc == 0 and ks == 0) else d}")
            G[g0 - 1].append(f"WAITLG p{cc}{ks}1"); G[g0 + 3].append(f"WAITLG p{cc}{ks}4")
            if ks < 3:
                r = reads(cc, ks + 1)
                G[g0] += r[0:3]; G[g0 + 1] += r[3:6]; G[g0 + 2] += r[6:9]
            else:
                dl = [53248, 53248, -106496][cc]
                adj = [f"v_add_u32 {v(vXR+q)}, {dl}, {v(vXR+q)}" for q in range(4)] + [f"v_add_u32 {v(vWR+q)}, {dl}, {v(vWR+q)}" for q in range(2)]
                for gi in range(3): G[g0 + gi] += adj[2*gi:2*gi+2]
                G[g0 + 3] += [f"WAITVM c{cc+1}", "s_barrier", f"STAMP c{cc+1}"]
                r = reads(cc + 1, 0) if cc < 2 else (wrd(0) + [xrd(0, 0)] + wrd(1) + [xrd(0, 1)] + wrd(2) + [xrd(0, 2)])
                for gi in range(5): G[g0 + 4 + gi] += r[3*gi:3*gi+3]
    posts = []
    for j in range(5):
        g0 = len(M)
        for ks in range(4):
            for dd in range(2):
                d = v(acc + (j*2+dd)*4, 4)
                M.append(f"{MF} {d}, {a(aW3 + (ks*2+dd)*4, 4)}, {a(aX3 + (j*4+ks)*4, 4)}, {d}")
        if j == 0:
            G[g0 - 1].append("WAITLG x00"); G[g0] += wrd(3)[:3]; G[g0 + 1] += [wrd(3)[3], xrd(0, 3), "WAITLG x01"]
            G[g0 + 2] += [xrd(1, 0), xrd(1, 1)]; G[g0 + 3] += ["WAITLG x02", xrd(1, 2), xrd(1, 3)]
            G[g0 + 5] += ["WAITLG x03", "s_barrier"]
        else:
            G[g0 - 1].append(f"WAITLG x{j}3")
            if j < 4:
                for ks in range(4): G[g0 + ks].append(xrd(j + 1, ks))
        for dd in range(2):
            r = acc + (j*2+dd)*4
            p = [f"v_mul_f32 {v(r+q)}, s{sQS}, {v(r+q)}" for q in range(4)]
            p += [f"v_cvt_pk_bf16_f32 {v(r)}, {v(r)}, {v(r+1)}", f"v_cvt_pk_bf16_f32 {v(r+1)}, {v(r+2)}, {v(r+3)}",
                  f"ds_write_b64 {v(vQW + dd)}, {v(r, 2)} offset:{j*4096} @qw"]
            posts += [(g0 + 8 + 2, x) for x in p]
    c2 = p1_dma(2); c3 = p1_dma(3); k0d = kv_dma(True, R_A, "K0"); k0d[0] = set_T(True, 0) + k0d[0]
    ka, kb, late, nv0, sp3 = opt("ka", 3), opt("kb", 8), opt("late", 22), opt("nv0", 4), opt("dsp3", 4)
    v0g = kv_dma(False, R_C, "V0"); v0g[0] = set_T(False, 0) + v0g[0]
    k1g = kv_dma(True, R_B, "K1"); k1g[0] = set_T(True, 1) + k1g[0]
    dq = [(0, g) for g in c01[n0:] + c2[:ka]] + [(late, g) for g in c2[ka:kb]] + [(34, g) for g in c2[kb:] + c3[:ka]] + \
         [(40 + late, g) for g in c3[ka:kb]] + [(74, g) for g in c3[kb:] + (pin if ipos == 99 else []) + k0d[:ka]] + [(80 + late, g) for g in k0d[ka:kb] + [flag_reset]] + \
         [(114, g) for g in k0d[kb:] + (pin if ipos == 98 else []) + k1g + v0g[:nv0]]
    left = []; t = 0
    for rdy, g in dq:
        t = max(t, rdy)
        while t < 160 and (sum(1 for x in G[t] if x.startswith("ds_read")) > (1 if t >= 120 else 0) or "s_barrier" in G[t]): t += 1
        if t < 160: G[t] = G[t] + list(g)
        else: left.append(g)
        t += 1 if t < 114 else sp3
    drain = sched(M, G, [posts, [(0, g) for g in fg] + [(0, "MARK fill")]], need={33: ["fill"]}, limit=20)
    for ks in range(4): e(f"v_add_u32 {v(vXR+ks)}, {R_QX}, {v(vXR+ks)}")
    e(f"s_mov_b32 s{SRD_D}, s16"); e(f"s_mov_b32 s{SRD_D+1}, s17"); e(f"s_mov_b32 s{SRD_D+2}, 256"); e(f"s_mov_b32 s{SRD_D+3}, 0x20000")
    drain(0); emit(left)
    e("WAITVM frst"); e("WAITLG qw"); e("s_barrier")
    stamp("Bq")
    def qrd(j): return [f"ds_read_b128 {a(aQ + (j*4+ds)*4, 4)}, {v(vXR+ds)} offset:{j*4096} @q{j}" for ds in range(4)]
    emit(qrd(0))
    e("WAITVM K0")
    emit(kreads(0, "k0"))
    for r in range(20): e(f"v_mov_b32 {v(vNM+r)}, 0")
    e(f"s_lshl_b32 s{sT1}, s{sB}, 5")
    e(f"s_cmp_eq_u32 s{sRANGE}, -1"); e("s_cbranch_scc1 L_rowmax")
    e(f"s_cmp_lg_u32 s{sW}, 0"); e("s_cbranch_scc1 L_noat")
    e("s_mov_b64 exec, 1"); e("v_mov_b32 v1, 1"); e("v_mov_b32 v2, 0")
    L.append(f"    buffer_atomic_add v1, v2, {srd(SRD_D)}, s{sT1} offen sc1")
    e("s_mov_b64 exec, -1")
    lab("L_noat")
    e("WAITLG q0"); emit(qrd(1)); e("WAITLG k0"); emit(qrd(2) + qrd(3))
    k2g = kv_dma(True, R_A, "K2"); k2g[0] = set_T(True, 2) + k2g[0]
    v1g = kv_dma(False, R_D, "V1"); v1g[0] = set_T(False, 1) + v1g[0]
    dm = (pin if ipos == 97 else []) + v0g[nv0:] + k2g + v1g + (pin if ipos == 96 else [])
    if LINIT:
        pos = [int(x) for x in OPT.get("lpos", "26,56,81").split(",")][:LINIT]
        nmid = sum(1 for p in pos if S["dpos"][7] < p <= S["dpos"][15]); nend = sum(1 for p in pos if p > S["dpos"][15])
        pst = [[f"buffer_store_dwordx4 {v(vSENT, 4)}, {v(vLIN)}, {srd(SRD_PI)}, 0 offen offset:{k*1024} sc1"] for k in range(nmid + nend)]
        dm = v0g[nv0:] + k2g + pst[:nmid] + v1g + pst[nmid:]
        NPRO = nmid + nend
    rdk = kreads(1, "k1"); rdv = vreads(0, "v0")
    for j in range(5):
        sb = (5 + j) & 1
        gaps = {g: [] for g in range(-1, 8)}
        if j > 0:
            gaps[-1].append(f"WAITLG q{j}")
            ex = exps(sb ^ 1); cv = cvts(sb ^ 1, j - 1)
            for n in range(8): gaps[n].append(ex[n])
            gaps[2].append(cv[0]); gaps[4].append(cv[1]); gaps[6].append(cv[2]); gaps[7] += ["s_nop 0", cv[3]]
        if j == 1: gaps[-1] += [f"v_add_u32 {v(vVRC+k)}, {R_C}, {v(vVR+k)}" for k in range(8)] + [f"v_mov_b32 {v(vSENT+q)}, -1" for q in range(4)]
        if j == 0:
            for n in range(8):
                if dm: gaps[n] += dm.pop(0)
            gaps[3] += ["WAITLG q1"] + qrd(4)
        else:
            for n in (0, 2, 4, 6):
                if dm: gaps[n] = dm.pop(0) + gaps[n]
            if j == 2:
                gaps[1].insert(0, "WAITVM K1")
                for n in (1, 3, 5, 7): gaps[n] += [rdk.pop(0), rdk.pop(0)]
            if j == 3: gaps[1].insert(0, "WAITVM V0")
            if j >= 3:
                for n in (1, 3, 5, 7): gaps[n] += [rdv.pop(0), rdv.pop(0)]
        interleave(qk(j, 0, sb), gaps)
    emit(flat(dm))
    e(f"s_mov_b32 s{sCNT}, 0")
    emit(set_T(True, 3) + set_T(False, 2))
    e(f"s_mov_b32 s{sOI}, {1024*NPRO if LINIT else 1024}")
    if opt("tch", 2) == 3:
        e(f"s_mov_b32 s{sOI}, s{sOOWN}")
        if "wsp" in X:
            emit([f"s_lshl_b32 s58, s{sB}, 2", f"s_add_u32 s58, s58, s{sI}", "s_lshl_b32 s58, s58, 2", f"s_add_u32 s58, s58, s{sW}",
                  "s_lshl_b32 s58, s58, 12", f"s_lshl_b32 s59, s{sI}, 8", "s_sub_u32 s58, s58, s59", f"s_sub_u32 s58, s58, s{sOOWN}", "v_add_u32 v2, s58, v3"])
        emit(TOUCH); e(f"s_add_u32 s{sOI}, s{sOI}, 1024")
    if not LATEINIT: e(P_INIT0)
    e("s_waitcnt lgkmcnt(0)")
    stamp("pro")
    def base_iter(par):
        G = {g: [] for g in range(-1, 85)}; M = []
        for j in range(5):
            sb = (5*par + j) & 1
            M += qk(j, par ^ 1, sb) + pv(j, par)
            put_exp(G, 17*j, sb ^ 1, (j - 1) % 5)
        return M, G
    def half(par):
        dma = flat(kv_dma(True, KSLOT[par ^ 1], "lk", nop=False) + kv_dma(False, VSLOT[par], "lv", nop=False))
        M, G = base_iter(par)
        for p, s in zip(S["mpos"], [s for s in dma if "m0" in s]): G[p].append(s)
        for p, s in zip(S["dpos"], [s for s in dma if "m0" not in s]): G[p].append(s)
        ni = 0
        if LINIT:
            pos = [int(x) for x in OPT.get("lpos", "26,56,81").split(",")][:LINIT]
            for k, p in enumerate(pos): G[p].append(f"buffer_store_dwordx4 {v(vSENT, 4)}, {v(vLIN)}, {srd(SRD_PI)}, s{sOI} offen offset:{k*1024} sc1")
            G[83].append(f"s_add_u32 s{sOI}, s{sOI}, {1024*LINIT}")
        if opt("tch", 2) == 3:
            G[81] += TOUCH; G[83].append(f"s_add_u32 s{sOI}, s{sOI}, 1024"); ni = 2 if "wsp" in X else 1
        if not LATEINIT:
            G[81].append(f"buffer_store_dwordx4 {v(vSENT, 4)}, {v(vLIN)}, {srd(SRD_PI)}, s{sOI} offen sc1")
            G[83].append(f"s_add_u32 s{sOI}, s{sOI}, 1024"); ni = 1
        if LINIT:
            lastK = S["dpos"][7]; lastV = S["dpos"][15]
            nk = sum(1 for p in pos if p > lastK) + sum(1 for p in pos if p <= S["kw"]); nv = sum(1 for p in pos if p > lastV) + sum(1 for p in pos if p <= S["vw"])
        else: nk = nv = ni
        G[S["kw"]].append(f"s_waitcnt vmcnt({8 + nk + sum(1 for p in S['dpos'] if p <= S['kw'])})")
        for p, s in zip(S["kpos"], kreads(par)): G[p].append(s)
        G[S["vw"]].append(f"s_waitcnt vmcnt({nv + sum(1 for p in S['dpos'] if p <= S['vw'])})")
        for p, s in zip(S["vpos"], vreads(par ^ 1)): G[p].append(s)
        for p, r in zip(S["tpos"], (sTK, sTK2, sTV, sTV2)): G[p].append(f"s_add_u32 s{r}, s{r}, s{sSTEP}")
        if par == 0: G[79].append(f"s_add_u32 s{sCNT}, s{sCNT}, 1"); G[84].append(f"s_cmp_eq_u32 s{sCNT}, 3")
        G[84].insert(0, "s_waitcnt lgkmcnt(15)")
        G[7].append("s_waitcnt lgkmcnt(0)")
        G = {g: [s for s in l if not isv(s)] + [s for s in l if isv(s)] for g, l in G.items()}
        interleave(M, G)
    L.append(".p2align 6")
    lab("L_loop")
    half(0)
    e("s_cbranch_scc1 L_exit")
    if "wsp" not in X: e(f"s_cmp_eq_u32 s{sCNT}, 2"); e("s_cbranch_scc1 L_hook")
    lab("L_back")
    half(1)
    e("s_branch L_loop")
    lab("L_hook")
    emit([f"s_lshl_b32 s58, s{sB}, 2", f"s_add_u32 s58, s58, s{sI}", "s_lshl_b32 s58, s58, 2", f"s_add_u32 s58, s58, s{sW}",
          "s_lshl_b32 s58, s58, 12", f"s_lshl_b32 s59, s{sI}, 8", "s_sub_u32 s58, s58, s59", "v_add_u32 v2, s58, v3", "s_mov_b32 exec_hi, 0",
          f"buffer_load_dword {v(vJUNK)}, v2, {srd(SRD_WO)}, 0 offen"] +
         (["s_mov_b32 exec_hi, 0xff", f"buffer_load_dword {v(vJUNK)}, v3, {srd(SRD_O)}, s{sOOWN} offen"] if opt("tch", 2) == 0 else []) +
         ["s_mov_b32 exec_hi, -1", "s_branch L_back"])
    lab("L_exit")
    stamp("exit")
    if "cnt" in X: e(f"s_mov_b32 s{sOI}, 0")
    ip = ([] if LATEINIT else ["ip"]) + (["tc"] * (2 if "wsp" in X else 1) if opt("tch", 2) == 3 else [])
    VM.ops = ["K6"]*8 + ["V5"]*8 + ip + ["K7"]*8 + ["V6"]*8 + ip
    if LINIT:
        VM.ops = ["io"]
        for kk, vv in (("K6", "V5"), ("K7", "V6")):
            ev = sorted([(p, kk if n < 8 else vv) for n, p in enumerate(S["dpos"])] + [(p + 0.5, "x") for p in pos])
            VM.ops += [t for _, t in ev]
    VM.ops = VM.ops; LG.ops = ["kr"]*8 + ["vr"]*16
    vXW = vKR; vXRD = vKR + 3; vWOO = vOK; vLW = vOV; vLR = vOV + 1
    def wo_dma(h):
        g = [f"s_add_u32 m0, s{sSLOT}, {WREG[h]}", f"s_add_u32 s{sT3}, s{sWOB+h}, 16384"]
        for pp in range(8):
            if pp == 4: g += [f"s_add_u32 m0, s{sSLOT}, {WREG[h] + 4096}", "NEXTGAP"]
            g.append(f"buffer_load_dwordx4 {v(vWOO + (pp & 3))}, {srd(SRD_WO)}, s{sWOB+h if pp < 4 else sT3} offen offset:{(pp & 3)*1024} lds @wo{h}")
        return g
    def paced(items, t, step):
        r = []
        for x in items:
            r.append((t, x))
            if any(y.startswith("buffer") for y in aslist(x)): t += step
        return r
    def unpark(dst, k): return f"v_accvgpr_read_b32 {v(dst)}, {a(aADR + k)}"
    def pstore(j, data, tag):
        return f"buffer_store_dwordx4 {v(data, 4)}, {v(vLIN)}, {srd(SRD_PI)}, s{sTK2 if j < 4 else sTV2} offen offset:{(j & 3)*1024} sc1 @{tag}"
    def ostore(j, data, tag):
        return f"buffer_store_dwordx4 {v(data, 4)}, {v(vLIN)}, {srd(SRD_O)}, " + (f"s{sOOWN} offen offset:{j*1024}" if j < 4 else f"s{sTK} offen") + " sc1 @" + tag
    def setflag(k, tag): return ["v_mov_b32 v2, 0", f"v_mov_b32 v3, s{sFOWN}", ["s_mov_b64 exec, 1", f"global_store_dword v3, v2, s[18:19] offset:{4*k} sc1 @{tag}", "s_mov_b64 exec, -1"]]
    M, G = base_iter(1)
    G[-1] += ["v_mov_b32 v1, 0", f"buffer_load_dword {v(vJUNK)}, v1, {srd(SRD_D)}, s{sT1} offen sc1 @hs"]
    if opt("tch", 2) == 1: G[1] += ["s_mov_b32 exec_hi, 0xff", f"buffer_load_dword v2, v3, {srd(SRD_O)}, s{sOOWN} offen", "s_mov_b32 exec_hi, -1"]
    G[7].append("s_waitcnt lgkmcnt(0)")
    G[S["kw"]].append("WAITVM K7")
    for p, s in zip(S["kpos"], kreads(1, "k7")): G[p].append(s)
    G[S["vw"]].append("WAITVM V6")
    for p, s in zip(S["vpos"], vreads(0, "v6")): G[p].append(s)
    G[83].append("WAITLG k7")
    v7 = [x.replace("s_nop 0", "NEXTGAP") for x in flat(kv_dma(False, VSLOT[1], "V7"))]
    vm = [(5, v7[0])] + paced(v7[2:], 8, 2)
    vm += paced([ostore(j, vSENT, "io") for j in range(5)], opt("ist", 24), opt("isp", 2))
    vm += [(20, unpark(vWOO + q, 6 + q)) for q in range(4)] + paced(wo_dma(0), opt("w0t", 40), opt("w0s", 4))
    hsq = [f"s_add_u32 s{sTK}, s{sOOWN}, 4096", f"s_mov_b32 s{sTK2}, 5120",
           f"s_mov_b32 s{SRD_WS}, s18", f"s_mov_b32 s{SRD_WS+1}, s19", f"s_mov_b32 s{SRD_WS+2}, {WS_FLG + 65536}", f"s_mov_b32 s{SRD_WS+3}, 0x20000", f"s_mov_b32 s{sSPIN}, 0"]
    hsq = [(1, x) for x in hsq] + [(30, f"s_mov_b32 s{sTV2}, 9216"), (51, "WAITVM hs"), (51, f"v_readfirstlane_b32 s58, {v(vJUNK)}"), (51, "NEXTGAP"),
           (51, ["s_cmp_ge_u32 s58, 32", "s_cbranch_scc0 L_hs", "LABEL L_hsok"])]
    drain = sched(M, G, [hsq, vm], limits={1: opt('l5', 36)})
    drain(0); drain(1)
    stamp("t5")
    FO = [2, 3, 4, 5, 6, 7, 0, 1]
    HZ = opt("hz", 4)
    M = []; G = {7: ["s_waitcnt lgkmcnt(0)"]}; ix = {}
    for j in range(5):
        put_exp(G, len(M), (j & 1) ^ 1, (j - 1) % 5)
        M += qk(j, 1, j & 1) + pv(j, 0)
        if j >= 3: ix[f"p{j-3}"] = len(M); M += pv(j - 3, 1, FO)
    aW = [aK, aQ, aQ + 32, aV]
    aR = [aK + 32, aK + 44, aQ + 64]
    def msum(j):
        return [f"{MF} {v(oreg(k, j), 4)}, {a(aE + (2 if k == 0 else 0), 4)}, {a(aR[j % 3] + s*4, 4)}, {v(oreg(k, j), 4)}" for s in range(3) for k in range(2)]
    put_exp(G, len(M), 0, 4)
    BQ = [vS, vS + 4, vS + 8, vS + 12, vP, vP + 4, vP + 8, vP + 12]
    vWR2 = vVR; vOB = vVR + 2; vVER = vVR + 3; vCHK = vVR + 4; vPRB = vVR + 5; vPRD = vVR + 6; vOWN = vVR + 7; vT = vP + 16
    def bread(j, h, st):
        if h == 0: return [f"ds_read_b128 {v(BQ[st*4 + ks], 4)}, {v(vLIN)} offset:{OWNB[j] + ks*1024} @b{j}{h}" for ks in range(4)]
        return [f"ds_read_b128 {v(BQ[st*4 + ks], 4)}, {v(vOB)} offset:{OBOFF[j] + h*4096 + ks*1024} @b{j}{h}" for ks in range(4)]
    def proj(j, h, st):
        return [f"{MF} {v(oreg(2 + nn, j), 4)}, {a(aW[h] + (ks*2+nn)*4, 4)}, {v(BQ[st*4 + ks], 4)}, {'0' if h == 0 and ks == 0 else v(oreg(2 + nn, j), 4)}"
                for ks in range(4) for nn in range(2)]
    for nm, mm in (("s0", msum(0)), ("p2", pv(2, 1, FO)), ("p3", pv(3, 1, FO)), ("p4", pv(4, 1, FO))):
        ix[nm] = len(M); M += mm
    need = {}; NE = opt("ne4", 0)
    sibrd = {}
    def group(j, h, st_, first, inbeat):
        g = len(M)
        if first: ix[f"q{j}"] = g
        M.extend(proj(j, h, st_)); ix[f"e{j}"] = len(M) - 1
        need.setdefault(g, []).append(f"!WAITLG b{j}{h}")
        r = bread(j, h, st_)
        if first and inbeat: sibrd[j] = r
        elif first:
            need.setdefault(g - 7, []).extend([f"v{j}"] + (["v4"] if j == opt("pd", 4) else []) + (["n4", "!WAITLG w4"] if j == 4 else []) + ["!s_barrier", f"!STAMP d{j}", f"!MARK d{j}"])
            for k in range(4): G.setdefault(g - 7 + k, []).append(r[k])
        else:
            for k in range(4): G.setdefault(g - 8 + k, []).append(r[k])
    for b in (1, 2, 3, 4):
        ix[f"s{b}"] = len(M); M += msum(b)
        ix[f"o{b-1}"] = len(M); M += proj(b - 1, 0, 0)
        j = b - 5 + NE
        if j >= 0:
            for h in (1, 2, 3): group(j, h, h & 1, h == 1, True)
    st_ = 0 if NE else 1
    for j in range(NE, 5):
        for h in ((1, 2, 3) if j < 4 else (0, 1, 2, 3)):
            group(j, h, st_, h == (1 if j < 4 else 0), False); st_ ^= 1
    def wfr(h, base):
        return [f"ds_read_b64_tr_b16 {a(aW[h] + (ks*2+nn)*4 + jh*2, 2)}, {v(base+nn)} offset:{WREG[h] - R_A + ks*8192 + jh*4096} @f{h}" if h != 2 else
                f"ds_read_b64_tr_b16 {a(aW[h] + (ks*2+nn)*4 + jh*2, 2)}, {v(base+nn)} offset:{ks*8192 + jh*4096} @f{h}"
                for ks in range(4) for nn in range(2) for jh in range(2)]
    nx = [0]
    def xw(j):
        r = []; p = ix[f"p{j}"]
        for mrel in (1, 2, 3):
            t = vTMP + (nx[0] & 1)*4; nx[0] += 1
            ins = pack4(t, oreg(2*mrel, j), oreg(2*mrel + 1, j)) + [f"ds_write_b128 {v(vXW + mrel - 1)}, {v(t, 4)} offset:{XSLOT[j]} @x{j}"]
            r += [(p + 2*mrel - 1 + HZ, s) for s in ins]
            if mrel == 1: r.append((0, f"MARK xa{j}"))
        return r + [(p + 8 + HZ, f"ds_write_b32 {v(vLW)}, {a(aL + j*4)} offset:{j*256} @x{j}"), (0, f"MARK x{j}")]
    def xr(j):
        return [f"ds_read_b128 {v(vNM + j*4, 4)}, {v(vLR)} offset:{j*256} @l{j}"] + \
               [f"ds_read_b128 {a(aR[j % 3] + s*4, 4)}, {v(vXRD)} offset:{XSLOT[j] + s*1024} @r{j}" for s in range(3)] + [f"MARK r{j}"]
    def lsum(j):
        r = vNM + j*4
        return [(0, x) for x in [f"AFTER r{j} 2", f"WAITLG l{j}", f"v_add_f32 {v(r)}, {v(r)}, {v(r+1)}", f"v_add_f32 {v(r+2)}, {v(r+2)}, {v(r+3)}", f"v_add_f32 {v(r)}, {v(r)}, {v(r+2)}",
                f"v_subrev_u32 {v(r+1)}, {LO_BITS}, {v(r)}", [f"v_cmp_lt_u32 vcc, s{sRANGE}, {v(r+1)}", f"v_rcp_f32 {v(r)}, {v(r)}", "s_cbranch_vccnz L_fallback"]]]
    def norm(j):
        r0 = oreg(0, j); r1 = oreg(1, j); t = oreg(4, j)
        ins = [f"v_mul_f32 {v(r+q)}, {v(vNM+j*4)}, {v(r+q)}" for r in (r0, r1) for q in range(4)] + pack4(t, r0, r1) + sanit(t)
        ms = ostore(j, t, f"o{j}")
        PI = [int(x) for x in OPT.get("pi", "2,2,1,0,0").split(",")]
        pin_ = [pstore(k, vSENT, "ip") for k in range(sum(PI[:j]), sum(PI[:j+1]))]
        return [(ix[f"s{j}"] + 5 + HZ, x) for x in ins + [f"STAMP n{j}", ms, f"ds_write_b128 {v(vOWN)}, {v(t, 4)} offset:{OWNB[j]} @w{j}"] + pin_ + [f"MARK n{j}"]]
    def fetch(j):
        r = []
        for h in (1, 2, 3):
            dst = R_B + OBOFF[j] + h*4096
            if j < 4: r.append([f"s_add_u32 m0, s{sW1K}, {dst - j*1024}", "s_nop 0", f"buffer_load_dwordx4 {v(vLIN)}, {srd(SRD_O)}, s{sSIB+h} offen offset:{j*1024} sc1 lds @g{j}"])
            else: r.append([f"s_add_u32 m0, s{sW1K}, {dst}", f"s_add_u32 s{sT3}, s{sSIB+h}, 4096", f"buffer_load_dwordx4 {v(vLIN)}, {srd(SRD_O)}, s{sT3} offen sc1 lds @g{j}"])
        return r
    def vread(j): return [f"ds_read_b32 {v(vT + h)}, {v(vVER)} offset:{OBOFF[j] + h*4096} @t{j}" for h in (1, 2, 3)]
    def vtest(): return [f"v_max3_u32 {v(vT)}, {v(vT+1)}, {v(vT+2)}, {v(vT+3)}", f"v_cmp_eq_u32 vcc, -1, {v(vT)}"]
    def verify(j):
        return [[f"STAMP u{j}", f"WAITVM g{j}", f"STAMP w{j}"]] + vread(j) + [f"MARK t{j}", f"AFTER t{j} 3", f"WAITLG t{j}", vtest()[0], [vtest()[1], "s_nop 0", f"s_cbranch_vccnz L_refetch{j}", f"LABEL L_got{j}"], f"MARK v{j}"]
    def post(j):
        r0 = oreg(2, j)
        return [(ix[f"e{j}"] + HZ, x) for x in pack4(r0, r0, oreg(3, j)) + sanit(r0) + [pstore(j, r0, "pst")]]
    p0 = ix["p0"]
    hs = [(opt("fs", 62), x) for x in ["WAITVM io"] + setflag(0, "fs0")]
    hs += [(0, f"AFTER {OPT.get('fp', 'n4')} 0")] + [(0, x) for x in ["WAITVM ip"] + setflag(1, "fs1")] + [(0, "MARK fs1")]
    def bar(name, afters, waits): return [(0, f"AFTER {x} 0") for x in afters] + [(0, waits + ["s_barrier", f"STAMP {name}", f"MARK {name}"])]
    vs = [(70, unpark(vXW + q, q)) for q in range(4)] + [(70, unpark(vLW, 4)), (70, unpark(vLR, 5))]
    vs += xw(0) + bar("a", [], ["WAITLG x0"]) + lsum(0) + norm(0) + xw(1) + bar("b1", ["f0", "w2"], ["WAITVM wo2", "WAITLG x1", "WAITLG f0"])
    for j in (1, 2, 3):
        vs += xw(j + 1) + lsum(j) + norm(j) + bar(f"b{j+1}", {1: ["f1"], 2: ["w3"], 3: ["f2"]}[j], {1: ["WAITLG f1"], 2: ["WAITVM wo3"], 3: ["WAITLG f2"]}[j] + [f"WAITLG w{j}"])
    vs += lsum(4) + norm(4)
    ps = []
    for j in range(5):
        p = post(j)
        ps += p[:-1] + ([(0, f"AFTER d{opt('pd', 4)} 0")] if j == 0 else []) + p[-1:]
    rs = [(opt("v7r", 36), "WAITVM V7")] + [(0, x) for x in vreads(1, "v7")] + [(0, "MARK v7")]
    rs += [(68, unpark(vWR2, 10)), (68, unpark(vWR2 + 1, 11)), (68, f"v_add_u32 {v(vOB)}, {R_B}, {v(vLIN)}"), (68, f"v_add_u32 {v(vVER)}, s{sW1K}, {v(vOB)}"),
           (68, f"v_accvgpr_read_b32 {v(vPRB)}, {a(aPRB)}"), (68, f"v_add_u32 {v(vOWN)}, s{sW1K}, {v(vLIN)}"), (0, "MARK adr")]
    rs += [(0, "AFTER a 0")] + [(0, x) for x in xr(0)] + [(0, "AFTER w1 0"), (opt("aw", 108), ["WAITVM wo1", "s_barrier", "STAMP aw"])]
    rs += [(0, x) for x in wfr(0, vWR2)] + [(0, "MARK f0")]
    up = [f"v_add_u32 {v(vWR2+q)}, {R_C - R_A}, {v(vWR2+q)}" for q in range(2)]; dn = [f"v_subrev_u32 {v(vWR2+q)}, {R_C - R_A}, {v(vWR2+q)}" for q in range(2)]
    w1 = wfr(1, vWR2); w2 = wfr(2, vWR2)
    extra = {0: w1[:6], 1: w1[6:] + ["MARK f1"] + up + w2[:4], 2: w2[4:] + ["MARK f2"] + dn, 3: wfr(3, vWR2)[:8], 4: wfr(3, vWR2)[8:] + ["MARK f3"]}
    rs += [(0, x) for x in extra[0]]
    for j in (1, 2, 3, 4):
        rs += [(0, f"AFTER b{j} 0")] + [(ix[f"s{j-3}"] + 6 if j >= 3 else 0, x) for x in xr(j)]
        rs += [(ix[f"s{j}"] - 1, x) for x in bread(j - 1, 0, 0)] + [(0, f"MARK bo{j-1}")] + [(0, x) for x in extra[j]]
    MF4, MP = 0xF, 0xFF0000
    def probe(mask, tag=""): return [f"s_mov_b64 exec, {mask}", f"buffer_load_dword {v(vPRD)}, {v(vPRB)}, {srd(SRD_WS)}, 0 offen sc1" + tag, "s_mov_b64 exec, -1"]
    def test(mask): return [f"v_cmp_eq_u32 vcc, -1, {v(vPRD)}", "s_nop 0", f"s_and_b32 s58, vcc_lo, {mask}"]
    ds = paced(wo_dma(1), opt("w1t", 1), opt("w1s", 3)) + [(0, "MARK w1")] + paced(wo_dma(2), opt("w2t", 70), opt("w2s", 3)) + [(0, "MARK w2")]
    ds += [(0, "AFTER adr 0"), (opt("pb", 119), probe(MF4, " @prb")), (0, "AFTER b1 0")] + paced(wo_dma(3), ix["s1"], opt("w3s", 2)) + [(0, "MARK w3")]
    ds += [(0, "WAITVM prb"), (0, test(MF4) + ["s_cbranch_scc1 L_waitf", "LABEL L_fok"])]
    FA = OPT.get("fa", "n2,n3,n4,n4,n4").split(","); FDL = [int(x) for x in OPT.get("fdl", "0,0,0,24,56").split(",")]
    for j in range(5):
        if j == 4: ds += [(0, f"AFTER {'b4' if NE >= 2 else 'd1'} 0")]
        ds += [(0, f"AFTER {FA[j]} {FDL[j]}")] + [(0, f"STAMP f{j}")] + [(0, g) for g in fetch(j)] + [(0, f"MARK g{j}")]
    ds += [(0, "AFTER fs1 0"), (ix["q4"] - opt("pp", 12), probe(MP)), (0, "MARK pp")]
    vf = []
    VDL = [int(x) for x in OPT.get("vdl", "20,30,40,40,40").split(",")]
    for j in range(5): vf += [(0, f"AFTER g{j} {VDL[j]}")] + [(0, x) for x in verify(j)]
    G.setdefault(p0 - 1, []).extend(["WAITLG v7", "s_barrier", "STAMP bD"])
    need.setdefault(p0 - 1, []).extend(["v7"])
    need.setdefault(ix["q4"] - 7, []).insert(0, "pp")
    need.setdefault(ix["q0"] + 16, []).extend(["f3", "!WAITLG f3"])
    for j in range(5): need.setdefault(ix[f"s{j}"], []).extend([f"r{j}"] + ([f"bo{j-1}"] if j else []) + ([f"xa{j+1}"] if j in (1, 2, 3) else []) + [f"!WAITLG r{j}"])
    for j in range(4): need.setdefault(ix[f"o{j}"], []).append(f"!WAITLG b{j}0")
    drain = sched(M, G, [hs, ds, vf, vs, rs, ps], need=need, limit=opt("lim", 16), limits={1: 28, 2: 24})
    e(f"s_and_b32 s{sT0}, s{sHKV}, 1"); e(f"s_sub_u32 s{sT2}, 3, s{sT0}")
    e(f"s_mul_i32 s{sT0}, s{sT0}, 3"); e(f"s_add_u32 s{sT0}, s{sT0}, s{sW}")
    for k in range(6): drain(k)
    stamp("pst")
    if "cnt" in X: e(f"s_mov_b32 s{sCNT}, s{sOI}")
    e(f"s_cmp_ge_u32 s{sW}, s{sT2}"); e("s_cbranch_scc1 L_fin")
    e("s_and_b32 s58, s2, 0xf8"); e(f"s_mul_i32 s58, s58, {WGS}"); e(f"s_lshr_b32 s59, s{sHKV}, 1"); e(f"s_mul_i32 s59, s59, {WVS}"); e("s_add_u32 s58, s58, s59")
    e(f"s_lshl_b32 s59, s{sT0}, 10"); e("s_add_u32 s58, s58, s59"); e(f"s_add_u32 s{sT3}, s58, 5120")
    e("s_waitcnt vmcnt(5)")
    emit(test(MP)); e("s_cbranch_scc1 L_waitp")
    lab("L_pok")
    fB = vO + 100
    def redloads():
        e(f"s_mov_b32 s{sT1}, s{sT3}")
        for p in range(8):
            e(f"buffer_load_dwordx4 {v(fB + p*4, 4)}, {v(vLIN)}, {srd(SRD_WS)}, s{sT1} offen sc1")
            if p < 7: e(f"s_add_u32 s{sT1}, s{sT1}, {WGS}")
    redloads()
    e(f"s_lshl_b32 s{sT0}, s{sT0}, 4")
    e(f"s_mul_i32 s58, s{sB}, 80"); e(f"s_add_u32 s{sT0}, s{sT0}, s58"); e(f"s_lshl_b32 s{sT0}, s{sT0}, 10")
    e(f"s_lshl_b32 s58, s{sI}, 8"); e(f"s_add_u32 s{sT0}, s{sT0}, s58")
    e(f"s_lshr_b32 s58, s{sHKV}, 1"); e("s_lshl_b32 s58, s58, 6"); e(f"s_add_u32 s{sT0}, s{sT0}, s58")
    e("v_lshlrev_b32 v9, 10, v4"); e("v_lshl_add_u32 v9, v5, 3, v9")
    e(f"s_mov_b32 s{SRD_K}, s14"); e(f"s_mov_b32 s{SRD_K+1}, s15"); e(f"s_mov_b32 s{SRD_K+2}, 655360"); e(f"s_mov_b32 s{SRD_K+3}, 0x20000")
    lab("L_red")
    e(f"v_mov_b32 {v(vCHK)}, 0")
    for p in range(8):
        e(f"s_waitcnt vmcnt({7-p})")
        for k in range(2):
            d = v(vS + k*4, 4)
            e(f"{MF} {d}, {a(aE + (2 if k == 0 else 0), 4)}, {v(fB + p*4, 4)}, {'0' if p == 0 else d}")
            if k == 0: e(f"v_max_u32 {v(vCHK)}, {v(vCHK)}, {v(fB + p*4)}")
    e(f"v_cmp_eq_u32 vcc, -1, {v(vCHK)}")
    e("s_nop 4")
    e("s_cbranch_vccnz L_redo")
    lab("L_redok")
    e("s_nop 0")
    e(f"v_cvt_pk_bf16_f32 {v(vS)}, {v(vS)}, {v(vS+1)}"); e(f"v_cvt_pk_bf16_f32 {v(vS+1)}, {v(vS+2)}, {v(vS+3)}")
    e(f"v_cvt_pk_bf16_f32 {v(vS+4)}, {v(vS+4)}, {v(vS+5)}"); e(f"v_cvt_pk_bf16_f32 {v(vS+5)}, {v(vS+6)}, {v(vS+7)}")
    OF = OPT.get("outf", "").replace("_", " ")
    e(f"buffer_store_dwordx2 {v(vS, 2)}, v9, {srd(SRD_K)}, s{sT0} offen {OF}")
    e(f"buffer_store_dwordx2 {v(vS+4, 2)}, v9, {srd(SRD_K)}, s{sT0} offen offset:32 {OF}")
    lab("L_fin")
    stamp("fin")
    if STAMPS and "cnt" in X:
        i = nstamp[0]; nstamp[0] += 1
        e(f"s_add_u32 s{sSTAMP+2*i}, s{sSTAMP+2*i-2}, s{sCNT}"); e(f"s_addc_u32 s{sSTAMP+2*i+1}, s{sSTAMP+2*i-1}, 0")
    write_stamps()
    lab("L_done")
    e("s_endpgm")
    lab("L_redo")
    emit(spin("L_redok")); redloads(); e("s_branch L_red")
    lab("L_hs")
    e("v_mov_b32 v2, 0"); e("s_sleep 4")
    e(f"buffer_load_dword {v(vJUNK)}, v2, {srd(SRD_D)}, s{sT1} offen sc1"); e("s_waitcnt vmcnt(0)")
    emit(spin("L_hsok"))
    e(f"v_readfirstlane_b32 s58, {v(vJUNK)}"); e("s_nop 0"); e("s_cmp_ge_u32 s58, 32"); e("s_cbranch_scc0 L_hs"); e("s_branch L_hsok")
    for nm, mask, ok in (("L_waitf", MF4, "L_fok"), ("L_waitp", MP, "L_pok")):
        lab(nm)
        if "cnt" in X and nm == "L_waitf": e(f"s_add_u32 s{sOI}, s{sOI}, {1 << 15}")
        e("s_sleep 2"); emit(probe(mask)); e("s_waitcnt vmcnt(0)")
        emit(spin(ok)); emit(test(mask)); e(f"s_cbranch_scc1 {nm}"); e(f"s_branch {ok}")
    for j in range(5):
        lab(f"L_refetch{j}")
        if "cnt" in X: e(f"s_add_u32 s{sOI}, s{sOI}, {1 << (3*j)}")
        emit(spin(f"L_got{j}")); emit(fetch(j)); e("s_waitcnt vmcnt(0)")
        emit(vread(j)); e("s_waitcnt lgkmcnt(0)"); emit(vtest()); e("s_nop 1")
        e(f"s_cbranch_vccnz L_refetch{j}"); e(f"s_branch L_got{j}")
    lab("L_fallback")
    e("s_waitcnt vmcnt(0) lgkmcnt(0)")
    e("s_barrier")
    e(f"s_mov_b32 s{sRANGE}, -1")
    e("s_branch L_restart")
    lab("L_rowmax")
    e("s_waitcnt vmcnt(0) lgkmcnt(0)")
    emit(qrd(1) + qrd(2)); e("s_waitcnt lgkmcnt(0)"); emit(qrd(3) + qrd(4))
    vA = vP; vM = vP + 4
    for ds in range(4): e(f"v_subrev_u32 {v(vA+ds)}, {R_A - R_D}, {v(vKR+ds)}")
    for j in range(5): e(f"v_mov_b32 {v(vM+j)}, 0xff800000")
    e(f"s_mov_b32 s{sTK}, 0"); e(f"s_mov_b32 s{sTK2}, 4096")
    lab("L_fbmax")
    emit(flat(kv_dma(True, R_D, "f")))
    e("s_waitcnt vmcnt(0)")
    emit(kreads(0, base=vA, buf=1))
    e("s_waitcnt lgkmcnt(0)")
    for j in range(5):
        emit(qk(j, 1, 0, cinit="0")); e("s_nop 7")
        for n in range(4): e(f"v_max3_f32 {v(vM+j)}, {v(vM+j)}, {v(vS+2*n)}, {v(vS+2*n+1)}")
    e(f"s_add_u32 s{sTK}, s{sTK}, 8192"); e(f"s_add_u32 s{sTK2}, s{sTK2}, 8192")
    e(f"s_cmp_lt_u32 s{sTK}, 65536"); e("s_cbranch_scc1 L_fbmax")
    for j in range(5):
        for op in ("v_permlane32_swap_b32", "v_permlane16_swap_b32"):
            e(f"v_mov_b32 v1, {v(vM+j)}"); e("s_nop 1"); e(f"{op} {v(vM+j)}, v1"); e("s_nop 1"); e(f"v_max_f32 {v(vM+j)}, {v(vM+j)}, v1")
    e(unpark(1, 4)); e(unpark(2, 5))
    for j in range(5): e(f"ds_write_b32 v1, {v(vM+j)} offset:{j*256}")
    e("s_waitcnt lgkmcnt(0)"); e("s_barrier")
    for j in range(5): e(f"ds_read_b128 {v(vNM+j*4, 4)}, v2 offset:{j*256}")
    e("s_waitcnt lgkmcnt(0)")
    for j in range(5):
        r = vNM + j*4
        e(f"v_max3_f32 {v(r)}, {v(r)}, {v(r+1)}, {v(r+2)}"); e(f"v_max_f32 {v(r)}, {v(r)}, {v(r+3)}"); e(f"v_sub_f32 {v(r)}, 0, {v(r)}")
        for q in (1, 2, 3): e(f"v_mov_b32 {v(r+q)}, {v(r)}")
    e("s_branch L_noat")
    lab("L_end")

hdr = open("standalone__gqa_block_cached__near_ridge.s.ref").read().split("\n")
for ln in hdr:
    if ln.startswith("; @launch"): continue
    if not ln.startswith(";"): break
    L.append(ln)
L.append("; @launch grid=(256,1,1) block=(256,1,1) lds=163840")
L.append('.amdgcn_target "amdgcn-amd-amdhsa--gfx950"')
L.append(".text")
kernel()
L.append('.section .rodata,"a"')
L.append(".p2align 6"); L.append(f".amdhsa_kernel {KN}")
for s in ["next_free_vgpr 512", "next_free_sgpr 102", "accum_offset 256", "group_segment_fixed_size 0", "kernarg_size 64", "user_sgpr_count 2", "user_sgpr_kernarg_segment_ptr 1", "system_sgpr_workgroup_id_x 1"]:
    L.append("  .amdhsa_" + s)
L.append(".end_amdhsa_kernel")
import hazard
L = hazard.fix(L)
print("\n".join(L))
```

```python
import sys, math, struct, re, os
sys.path.insert(0, os.path.dirname(os.path.abspath(__file__)))

X = set(a[2:] for a in sys.argv[1:] if a.startswith("--") and "=" not in a)
OPT = dict(a[2:].split("=") for a in sys.argv[1:] if a.startswith("--") and "=" in a)
def opt(k, d): return int(OPT.get(k, d))
STAMPS = "stamps" in X
KN = "standalone__gqa_block_cached__near_ridge_kernel"
L = []

class Tr:
    def __init__(s): s.ops = []
    def add(s, tag): s.ops.append(tag)
    def need(s, tag):
        idx = max(i for i, t in enumerate(s.ops) if t == tag)
        return len(s.ops) - 1 - idx
VM = Tr(); LG = Tr()

def lab(s): L.append(s + ":")
def e(s):
    if s.startswith("LABEL "): lab(s[6:]); return
    if s.startswith("MARK "): return
    if s.startswith("STAMP "): stamp(s[6:]); return
    if s == "NEXTGAP": s = "s_nop 0"
    tag = None
    if " @" in s: s, tag = s.split(" @")
    op = s.split()[0]
    if op == "WAITVM":
        n = VM.need(s.split()[1]); s = f"s_waitcnt vmcnt({min(n, 63)})"
    elif op == "WAITLG":
        n = LG.need(s.split()[1]); s = f"s_waitcnt lgkmcnt({min(n, 15)})"
    elif op.startswith("buffer_") or op.startswith("global_"): VM.add(tag)
    elif op.startswith("ds_"): LG.add(tag)
    L.append("    " + s)
def aslist(it): return it if isinstance(it, list) else [it]
def emit(lst):
    for it in lst:
        for s in aslist(it): e(s)
def flat(groups): return [s for g in groups for s in aslist(g)]
def capture(fn):
    keep = list(L); del L[:]
    fn()
    out = [x.strip() for x in L]; L[:] = keep
    return out

QSCALE = 1.4426950408889634 / math.sqrt(128.0)
def f2u(x): return struct.unpack("<I", struct.pack("<f", x))[0]

S_ST = [0, 53248, 106496, 0]
R_D, R_QX, R_A, R_B, R_C, R_SP = 0, 32768, 53248, 86016, 118784, 151552
KSLOT = [R_A, R_B]; VSLOT = [R_C, R_D]
XSLOT = [0, 12288, 24576, 0, 12288]
OWNB = [36864, 40960, 45056, 49152, 36864]
OBOFF = [0, 16384, 32768, 49152, 0]
WREG = [R_A, R_B, R_C, R_A]
WS_PART = 8 << 20
WS_FLG = 16 << 20
WS_STAMP = 128 << 20
WGS = 40960; WVS = 10240
HEADSTRIDE = 64 * WGS
LO_BITS = 0x21800000
RANGE = 0x3C000000
sW, sHKV, sB, sI, sRANGE = 3, 20, 21, 22, 23
sWOB, sSIB, sOI = 4, 8, 12
SRD_X, SRD_WQ, SRD_K, SRD_V, SRD_O, SRD_WO, SRD_PI = 24, 28, 32, 36, 40, 44, 64
SRD_WS, SRD_D = 24, 28
sTK, sTK2, sTV, sTV2, sSLOT, sCNT = 48, 49, 50, 51, 52, 53
sT0, sT1, sT2, sT3 = 54, 55, 56, 57
sOOWN, sW5K, sSPIN, sFOWN = 60, 61, 62, 63
sSTAMP = 68
sMODE, sXCC, sWB, sXB, sSTEP, sMIR, sW1K, sQS = 89, 90, 91, 92, 93, 94, 95, 96
vKR = 8; vVR = 12; vOK = 20; vOV = 24; vLIN = 26; vJUNK = 27
vP = 28; vS = 48; vNM = 64; vTMP = 84; vO = 96
vVRC = vTMP; vSENT = vTMP + 8; vQW = 73
aQ = 0; aK = 80; aV = 144; aL = 208; aE = 228; aPRB = 234; aADR = 235; aONE = 248

def srd(r): return f"s[{r}:{r+3}]"
def v(r, n=1): return f"v{r}" if n == 1 else f"v[{r}:{r+n-1}]"
def a(r, n=1): return f"a{r}" if n == 1 else f"a[{r}:{r+n-1}]"
MF = "v_mfma_f32_16x16x32_bf16"
SPIN_MAX = opt("spin", 400000)

nstamp = [0]
def stamp(name=""):
    if not STAMPS: return
    sel = OPT.get("st")
    if sel and name not in sel.split(","): return
    i = nstamp[0]; nstamp[0] += 1
    assert sSTAMP + 2*i + 1 < 89
    sys.stderr.write(f"{i}:{name} ")
    L.append(f"    {'s_memtime' if 'cyc' in X else 's_memrealtime'} s[{sSTAMP+2*i}:{sSTAMP+2*i+1}]")
    L.append("    s_waitcnt lgkmcnt(0)")
def write_stamps():
    if not STAMPS: return
    if "amp" in X:
        e("s_cmp_ge_u32 s2, 8"); e("s_cbranch_scc1 L_done")
        e(f"s_cmp_lg_u32 s{sW}, 0"); e("s_cbranch_scc1 L_done")
        e("s_memrealtime s[80:81]"); e("s_waitcnt lgkmcnt(0)")
        e(f"s_sub_u32 s82, s{sSTAMP+2}, s{sSTAMP}"); e("s_min_u32 s82, s82, 5000"); e("s_mul_i32 s82, s82, 10"); e("s_add_u32 s82, s82, s80")
        lab("L_amp")
        e("s_memrealtime s[84:85]"); e("s_waitcnt lgkmcnt(0)"); e("s_sub_u32 s86, s84, s82"); e("s_cmp_lt_i32 s86, 0"); e("s_cbranch_scc1 L_amp")
        return
    n = nstamp[0]
    e("s_lshl_b32 s58, s2, 2"); e(f"s_add_u32 s58, s58, s{sW}"); e(f"s_mul_i32 s58, s58, {n*8}"); e(f"s_add_u32 s58, s58, {WS_STAMP}")
    e("s_add_u32 s58, s18, s58"); e("s_addc_u32 s59, s19, 0")
    e("s_mov_b64 exec, 1"); e("v_mov_b32 v1, 0")
    for i in range(n):
        e(f"v_mov_b32 v2, s{sSTAMP+2*i}"); e(f"v_mov_b32 v3, s{sSTAMP+2*i+1}")
        e(f"global_store_dwordx2 v1, v[2:3], s[58:59] offset:{i*8}"); e("s_nop 1")
    sys.stderr.write(f"\nstamps: {n}\n")

def mk_srd(r, pbase, off_sgpr, size):
    return [f"s_add_u32 s{r}, s{pbase}, s{off_sgpr}", f"s_addc_u32 s{r+1}, s{pbase+1}, 0", f"s_mov_b32 s{r+2}, {size}", f"s_mov_b32 s{r+3}, 0x20000"]

PSEUDO = ("MARK", "LABEL", "STAMP")
WIDE = ("ds_write_b128", "buffer_store_dwordx4")
def isv(s): return s.startswith("v_")
def gaptime(ins):
    ins = [s for s in ins if not s.startswith(PSEUDO)]
    nv = [s for s in ins if not isv(s)]
    t = 4
    if nv: t += 20 if nv[0].startswith(WIDE) else 4
    first = True
    for s in ins:
        if not isv(s):
            if first: first = False; continue
            t += 24 if s.startswith(WIDE) else 4
        else:
            t = max(t, 8) + (8 if s.startswith(("v_exp", "v_rcp")) else 4)
    return t
def order_gap(items):
    def indep(k):
        x = items[k]
        if isinstance(x, list) or x.startswith(("v_",) + PSEUDO + WIDE + ("ds_write",)): return False
        return all(isinstance(y, str) and isv(y) and not y.startswith(("v_accvgpr_read", "v_mov", "v_cmp", "v_readf", "v_add_u32", "v_subrev")) for y in items[:k])
    for k in range(1, len(items)):
        if indep(k): items.insert(0, items.pop(k)); break
    return items
def interleave(mfmas, gaps):
    emit(gaps.get(-1, []))
    for i, m in enumerate(mfmas):
        e(m); emit(gaps.get(i, []))
def sched(mfmas, fixed, streams, need=None, limit=16, limits=None):
    need = need or {}
    streams = [list(s) for s in streams]
    done = {}
    cur = [0]
    def put(it):
        for s in aslist(it):
            if s.startswith("MARK "): done[s[5:]] = cur[0]
            e(s)
    def flush(mark):
        if mark in done: return
        for st in streams:
            if any(f"MARK {mark}" in aslist(it) for _, it in st):
                while mark not in done:
                    it = st.pop(0)[1]
                    if isinstance(it, str) and it.startswith("AFTER "): flush(it.split()[1]); continue
                    put(it)
                return
        raise Exception("mark " + mark)
    cur[0] = -1
    for it in fixed.get(-1, []): put(it)
    for i, m in enumerate(mfmas):
        cur[0] = i - 1
        for mk in need.get(i, []):
            if mk.startswith("!"): put(mk[1:])
            else: flush(mk)
        e(m)
        cur[0] = i
        items = list(fixed.get(i, []))
        closed = any(s.startswith("v_exp") for s in flat(items))
        blocked = set(); prog = True; seen = dict(done)
        for s in flat(items):
            if s.startswith("MARK "): seen[s[5:]] = i
        while prog:
            prog = False
            for k, st in enumerate(streams):
                if k in blocked or not st: continue
                rdy, it = st[0]
                if it == "NEXTGAP": st.pop(0); blocked.add(k); continue
                if isinstance(it, str) and it.startswith("AFTER "):
                    _, mk, d = it.split()
                    if mk in seen and seen[mk] + int(d) <= i: st.pop(0); prog = True; break
                    continue
                if rdy > i: continue
                real = [s for s in aslist(it) if not s.startswith(PSEUDO)]
                empty = not [s for s in flat(items) if not s.startswith(PSEUDO)]
                if not real or (not closed and (empty or gaptime(flat(items) + real) <= (limits or {}).get(k, limit))):
                    st.pop(0); items.append(it); prog = True
                    for s in aslist(it):
                        if s.startswith("MARK "): seen[s[5:]] = i
                    break
        for it in order_gap(items): put(it)
    cur[0] = len(mfmas)
    def drain(k):
        st = streams[k]
        while st:
            it = st.pop(0)[1]
            if isinstance(it, str) and it.startswith("AFTER "): flush(it.split()[1]); continue
            put(it)
    return drain

def kv_dma(isK, slot_base, tag, nop=True):
    g = []
    for p in range(8):
        grp = []
        if p % 4 == 0:
            grp.append(f"s_add_u32 m0, s{sSLOT}, {slot_base + (p // 4) * 4096}")
            if nop: grp.append("s_nop 0")
        vo = vOK + (p >> 1) if isK else vOV + ((p >> 1) & 1)
        so = (sTK if isK else sTV) + (0 if p < 4 else 1)
        grp.append(f"buffer_load_dwordx4 {v(vo)}, {srd(SRD_K if isK else SRD_V)}, s{so} offen offset:{(p % 4)*1024} lds @{tag}")
        g.append(grp)
    return g
NSH = opt("nsh", 0)
def set_T(isK, t):
    r = sTK if isK else sTV
    if t < NSH: return [f"s_mov_b32 s{r}, {t*8192}", f"s_mov_b32 s{r+1}, {t*8192+4096}"]
    return [f"s_mul_i32 s{r}, s{sSTEP}, {t}", f"s_add_u32 s{r}, s{r}, s{sMIR}", f"s_add_u32 s{r+1}, s{r}, 4096"]
def kreads(slot, tag="kr", base=vKR, buf=None):
    buf = slot if buf is None else buf
    return [f"ds_read_b128 {a(aK + buf*32 + (kt*4+ds)*4, 4)}, {v(base+ds)} offset:{(KSLOT[slot]-R_A) + kt*1024} @{tag}" for kt in range(2) for ds in range(4)]
def vreads(slot, tag="vr"):
    base = vVRC if slot == 0 else vVR
    return [f"ds_read_b64_tr_b16 {a(aV + slot*32 + k*4 + jh*2, 2)}, {v(base+k)} offset:{jh*1024} @{tag}" for k in range(8) for jh in range(2)]
def qk(j, kbuf, sbuf, cinit=None):
    m = []
    for kt in range(2):
        for ds in range(4):
            d = v(vS + sbuf*8 + kt*4, 4)
            c = (cinit or v(vNM + j*4, 4)) if ds == 0 else d
            m.append(f"{MF} {d}, {a(aK + kbuf*32 + (kt*4+ds)*4, 4)}, {a(aQ + (j*4+ds)*4, 4)}, {c}")
    return m
def oreg(k, j): return vO + (k*5+j)*4
def pv(j, vbuf, ks=range(8)):
    m = [f"{MF} {v(oreg(k, j), 4)}, {a(aV + vbuf*32 + k*4, 4)}, {v(vP + j*4, 4)}, {v(oreg(k, j), 4)}" for k in ks]
    m.append(f"{MF} {a(aL + j*4, 4)}, {a(aONE, 4)}, {v(vP + j*4, 4)}, {a(aL + j*4, 4)}")
    return m
def exps(sbuf): return [f"v_exp_f32 {v(vS + sbuf*8 + n)}, {v(vS + sbuf*8 + n)}" for n in range(8)]
def cvts(sbuf, j): return [f"v_cvt_pk_bf16_f32 {v(vP + j*4 + n)}, {v(vS + sbuf*8 + 2*n)}, {v(vS + sbuf*8 + 2*n+1)}" for n in range(4)]
def put_exp(G, base, sbuf, j):
    ex = exps(sbuf); cv = cvts(sbuf, j)
    for n in range(8): G.setdefault(base + 2*n, []).append(ex[n])
    for n in range(4): G.setdefault(base + 4*n + 3, []).append(cv[n])
def pack4(t, r0, r1):
    return [f"v_cvt_pk_bf16_f32 {v(t)}, {v(r0)}, {v(r0+1)}", f"v_cvt_pk_bf16_f32 {v(t+1)}, {v(r0+2)}, {v(r0+3)}",
            f"v_cvt_pk_bf16_f32 {v(t+2)}, {v(r1)}, {v(r1+1)}", f"v_cvt_pk_bf16_f32 {v(t+3)}, {v(r1+2)}, {v(r1+3)}"]
def sanit(t): return [f"v_min_u32 {v(t)}, -2, {v(t)}"]
def spin(lbl): return [f"s_add_u32 s{sSPIN}, s{sSPIN}, 1", f"s_cmp_ge_u32 s{sSPIN}, {SPIN_MAX}", f"s_cbranch_scc1 {lbl}"]
if "loopinit" not in X and "earlyinit" not in X: X.add("lateinit")
EARLYINIT = "earlyinit" in X
LINIT = opt("linit", 0)
if LINIT: X.discard("lateinit"); X.add("wt")
LATEINIT = "lateinit" in X or EARLYINIT or LINIT
P_INIT0 = f"buffer_store_dwordx4 {v(vSENT, 4)}, {v(vLIN)}, {srd(SRD_PI)}, 0 offen sc1"
TOUCH = ["s_mov_b64 exec, 0xff", f"buffer_load_dword {v(vJUNK)}, v3, {srd(SRD_O)}, s{sOI} offen"] + \
        ([f"buffer_load_dword {v(vJUNK)}, v2, {srd(SRD_WO)}, s{sOI} offen"] if "wsp" in X else []) + ["s_mov_b64 exec, -1"]
S = dict(dpos=[1, 5, 9, 13, 20, 24, 28, 32, 37, 43, 49, 54, 60, 66, 71, 77], mpos=[-1, 16, 35, 58],
         kw=33, kpos=[33, 35, 39, 39, 41, 43, 45, 47],
         vw=50, vpos=[50, 52, 52, 56, 56, 60, 62, 64, 64, 67, 67, 69, 69, 73, 73, 75], tpos=[18, 47, 77, 79])
VF = "kfirst" not in X
if VF:
    S = dict(dpos=[9, 13, 18, 22, 26, 30, 35, 39, 45, 49, 54, 58, 64, 69, 73, 77], mpos=[5, 24, 41, 60],
             vw=28, vpos=[28, 30, 32, 33, 33, 35, 37, 39, 43, 43, 47, 47, 50, 50, 52, 52],
             kw=56, kpos=[56, 60, 62, 64, 66, 67, 67, 69], tpos=[71, 81, 33 + 8, 43 + 2])
if VF and OPT.get("sched") == "b":
    S = dict(dpos=[1, 5, 11, 16, 22, 26, 32, 37, 43, 47, 52, 58, 64, 69, 73, 77], mpos=[-1, 18, 39, 60],
             vw=28, vpos=[28, 30, 30, 33, 33, 35, 35, 39, 41, 43, 45, 47, 49, 50, 50, 52],
             kw=60, kpos=[62, 64, 66, 67, 67, 69, 71, 73], tpos=[75, 81, 24, 41])
if VF and OPT.get("sched") == "c":
    S = dict(dpos=[1, 5, 9, 13, 18, 22, 26, 30, 35, 39, 45, 49, 54, 58, 62, 66], mpos=[-1, 16, 33, 52],
             vw=37, vpos=[39, 41, 43, 43, 45, 47, 47, 49, 50, 50, 52, 54, 56, 56, 58, 60],
             kw=64, kpos=[64, 67, 67, 69, 69, 71, 73, 73], tpos=[60, 75, 20, 32])
GLUE = ("s_addc_u32", "s_cselect_b32", "s_subb_u32")

def kernel():
    L.append(f".globl {KN}"); L.append(".p2align 8"); L.append(f".type {KN},@function"); lab(KN)
    e("s_cmp_ge_u32 s2, 256"); e("s_cbranch_scc1 L_done")
    e("v_lshrrev_b32 v1, 6, v0")
    e("v_and_b32 v0, 63, v0")
    e(f"v_readfirstlane_b32 s{sW}, v1")
    e(f"s_mov_b32 s{sRANGE}, {RANGE}")
    lab("L_restart")
    e("s_load_dwordx16 s[4:19], s[0:1], 0")
    e(f"s_and_b32 s{sHKV}, s2, 7"); e(f"s_lshr_b32 s{sB}, s2, 3"); e(f"s_and_b32 s{sB}, s{sB}, 7"); e(f"s_lshr_b32 s{sI}, s2, 6")
    stamp("start")
    e("s_getpc_b64 s[58:59]"); lab("L_pc0")
    e(f"s_sub_u32 s58, s58, L_pc0-{KN}"); e("s_subb_u32 s59, s59, 0")
    e(f"s_lshr_b32 s{sT3}, s2, 3"); e(f"s_lshl_b32 s{sT3}, s{sT3}, 2"); e(f"s_add_u32 s{sT3}, s{sT3}, s{sW}"); e(f"s_lshl_b32 s{sT3}, s{sT3}, 8")
    e("v_lshlrev_b32 v3, 7, v0"); e(f"v_add_u32 v2, s{sT3}, v3"); e(f"v_min_u32 v2, L_end-{KN}-4, v2")
    e("s_mov_b64 exec, 3"); e(f"global_load_dword {v(vJUNK)}, v2, s[58:59] @pfc"); e("s_mov_b64 exec, -1")
    e("v_and_b32 v4, 15, v0"); e("v_lshrrev_b32 v5, 4, v0"); e("v_bfe_u32 v6, v0, 2, 2"); e("v_and_b32 v7, 3, v0")
    vXO = vTMP; vWO = vTMP + 4; vXR = vTMP + 6; vWR = vTMP + 10
    e("v_xor_b32 v1, v4, v5")
    for pp in range(4):
        e(f"s_add_u32 s{sT0}, s{sW}, {pp}"); e(f"s_and_b32 s{sT0}, s{sT0}, 3"); e(f"s_lshl_b32 s{sT0}, s{sT0}, 2")
        e(f"v_xor_b32 v2, s{sT0}, v1"); e("v_lshlrev_b32 v2, 4, v2"); e(f"v_lshl_add_u32 {v(vXO+pp)}, v5, 10, v2")
    e("v_lshlrev_b32 v2, 1, v5"); e("v_xor_b32 v2, v4, v2"); e("v_lshlrev_b32 v2, 4, v2")
    e(f"v_lshl_add_u32 {v(vWO)}, v5, 13, v2"); e(f"v_xor_b32 {v(vWO+1)}, 128, {v(vWO)}")
    e(f"v_lshl_add_u32 {v(vOV)}, v5, 8, v2"); e(f"v_xor_b32 {v(vOV+1)}, 128, {v(vOV)}")
    e(f"s_mul_i32 s58, s{sB}, 81920")
    e(f"s_lshl_b32 s59, s{sHKV}, 2"); e(f"s_add_u32 s59, s59, s{sI}"); e("s_lshl_b32 s59, s59, 8")
    e(f"s_sub_u32 s{sT3}, 4194304, s59")
    e(f"s_mul_i32 s{sT0}, s{sW}, 20480"); e(f"s_mul_i32 s{sW5K}, s{sW}, 5120")
    e(f"s_lshl_b32 s{sT2}, s{sW}, 18"); e(f"s_lshl_b32 s{sSLOT}, s{sW}, 13")
    XB = [sTK, sTK2, sXB, sT0]; WB = [sTV, sTV2, sWB, sT2]
    e(f"s_add_u32 s{sCNT}, s{sB}, s{sI}")
    for cc in range(4):
        e(f"s_add_u32 s{sSPIN}, s{sCNT}, {cc}"); e(f"s_and_b32 s{sSPIN}, s{sSPIN}, 3")
        e(f"s_lshl_b32 s{sOOWN}, s{sSPIN}, 8"); e(f"s_add_u32 s{XB[cc]}, s{sT0}, s{sOOWN}")
        e(f"s_lshl_b32 s{sOOWN}, s{sSPIN}, 20"); e(f"s_add_u32 s{WB[cc]}, s{sT2}, s{sOOWN}")
    e(f"v_lshlrev_b32 {v(vLIN)}, 4, v0")
    e(f"s_mul_i32 s98, s2, {WGS}"); e(f"s_lshl_b32 s99, s{sW5K}, 1"); e("s_add_u32 s98, s98, s99"); e("s_mov_b32 s101, 9216")
    for q in range(4): e(f"v_mov_b32 v{76+q}, -1")
    e("s_waitcnt lgkmcnt(0)")
    emit(mk_srd(SRD_X, 4, 58, 81920)); emit(mk_srd(SRD_WQ, 10, 59, f"s{sT3}"))
    def p1_dma(cc):
        g = []
        for pp in range(5):
            g.append([f"s_add_u32 m0, s{sW5K}, {S_ST[cc] + pp*1024}", f"s_add_u32 s{sT3}, s{XB[cc]}, {pp*4096}",
                      f"buffer_load_dwordx4 {v(vXO + (pp & 3))}, {srd(SRD_X)}, s{sT3} offen lds @c{cc}"])
        for pp in range(8):
            g.append([f"s_add_u32 m0, s{sSLOT}, {S_ST[cc] + 20480 + pp*1024}", f"s_add_u32 s{sT3}, s{WB[cc]}, {4*pp*8192}",
                      f"buffer_load_dwordx4 {v(vWO + ((pp >> 1) & 1))}, {srd(SRD_WQ)}, s{sT3} offen lds @c{cc}"])
        return g
    c01 = p1_dma(0) + p1_dma(1)
    n0 = opt("n0", 16)
    t0, t1, t2, u1, u2 = 68, 69, 70, 71, 72
    def setup():
        U1, U2, T0, T1, T2 = v(u1), v(u2), v(t0), v(t1), v(t2)
        e(f"s_lshl_b32 s98, s{sB}, 3"); e(f"s_add_u32 s98, s98, s{sHKV}"); e("s_lshl_b32 s98, s98, 18")
        e(f"s_lshl_b32 s99, s{sW}, 16"); e("s_add_u32 s98, s98, s99")
        emit(mk_srd(SRD_K, 6, 98, 65536)); emit(mk_srd(SRD_V, 8, 98, 65536))
        e(f"s_bitcmp1_b32 s{sI}, 0"); e(f"s_cselect_b32 s{sMIR}, {(7 + NSH)*8192}, 0"); e(f"s_cselect_b32 s{sSTEP}, -1, 1"); e(f"s_lshl_b32 s{sSTEP}, s{sSTEP}, 13")
        e(f"v_lshlrev_b32 {U2}, 4, v1"); e(f"v_lshl_add_u32 {v(vXR)}, v4, 8, {U2}")
        for ks in range(1, 4): e(f"v_xor_b32 {v(vXR+ks)}, {ks*64}, {v(vXR)}")
        e(f"v_lshl_add_u32 {v(vOK)}, v5, 8, {U2}")
        for q in range(1, 4): e(f"v_xor_b32 {v(vOK+q)}, {q*64}, {v(vOK)}")
        e(f"v_lshrrev_b32 {T0}, 2, v4"); e(f"v_lshlrev_b32 {T0}, 3, {T0}"); e(f"v_and_b32 {U1}, 3, v4"); e(f"v_add_u32 {T0}, {T0}, {U1}")
        e(f"v_lshl_add_u32 {U2}, {T0}, 8, {U2}"); e(f"v_add_u32 {U2}, s{sSLOT}, {U2}"); e(f"v_add_u32 {v(vKR)}, {R_A}, {U2}")
        for ds in range(1, 4): e(f"v_xor_b32 {v(vKR+ds)}, {ds*64}, {v(vKR)}")
        e(f"v_lshl_add_u32 {U2}, v5, 3, v6"); e(f"v_lshlrev_b32 {U2}, 8, {U2}"); e(f"v_lshl_add_u32 {U2}, v7, 3, {U2}")
        e(f"v_and_b32 {T0}, 1, v5"); e(f"v_lshl_add_u32 {T0}, {T0}, 2, v6")
        e(f"s_lshl_b32 s98, s{sW}, 1")
        for k in range(8):
            e(f"s_add_u32 s99, s98, {k}"); e("s_and_b32 s99, s99, 7")
            e(f"v_xor_b32 {U1}, s99, {T0}"); e(f"v_lshl_add_u32 {U1}, {U1}, 5, {U2}")
            if k < 2: e(f"v_add_u32 {v(vWR+k)}, 20480, {U1}")
            e(f"v_add_u32 {v(vVR+k)}, s{sSLOT}, {U1}")
        for r in range(160): e(f"v_mov_b32 {v(vO+r)}, 0")
        e("s_and_b32 s98, s2, 63"); e(f"s_mul_i32 s98, s98, {WGS}"); emit(mk_srd(SRD_O, 18, 98, 3*HEADSTRIDE + WGS))
        e(f"s_mul_i32 s{sOOWN}, s{sI}, {HEADSTRIDE}"); e(f"s_lshl_b32 s100, s{sW5K}, 1"); e(f"s_add_u32 s{sOOWN}, s{sOOWN}, s100")
        e(f"s_lshl_b32 s{sFOWN}, s2, 2"); e(f"s_add_u32 s{sFOWN}, s{sFOWN}, s{sW}"); e(f"s_lshl_b32 s{sFOWN}, s{sFOWN}, 6"); e(f"s_add_u32 s{sFOWN}, s{sFOWN}, {WS_FLG}")
        e("s_and_b32 s98, s2, 63"); e("s_lshl_b32 s98, s98, 2"); e(f"s_add_u32 s98, s98, s{sW}"); e("s_lshl_b32 s98, s98, 6"); e(f"s_add_u32 s98, s98, {WS_FLG}")
        e(f"v_and_b32 {T0}, 3, v0"); e(f"v_lshl_add_u32 {T0}, {T0}, 14, s98")
        e("s_and_b32 s98, s2, 0xf8"); e("s_lshl_b32 s98, s98, 8"); e(f"s_lshr_b32 s99, s{sHKV}, 1"); e("s_lshl_b32 s99, s99, 6")
        e("v_cmp_gt_u32 vcc, 16, v0"); e("s_add_u32 s98, s98, s99"); e(f"s_add_u32 s98, s98, {WS_FLG + 4}")
        e(f"v_and_b32 {T1}, 7, v0"); e(f"v_lshl_add_u32 {T1}, {T1}, 8, s98"); e(f"v_cndmask_b32 {T0}, {T1}, {T0}, vcc")
        e(f"v_accvgpr_write_b32 {a(aPRB)}, {T0}")
        e(f"s_lshl_b32 s98, s{sHKV}, 19"); e(f"s_lshl_b32 s99, s{sI}, 8"); e("s_add_u32 s98, s98, s99"); e("s_sub_u32 s99, 524288, s99")
        emit(mk_srd(SRD_WO, 12, 98, "s99"))
        e(f"v_lshlrev_b32 {U1}, 2, v5"); e(f"v_sub_u32 {U1}, v4, {U1}"); e(f"v_and_b32 {U2}, 1, {U1}"); e(f"v_lshlrev_b32 {U2}, 4, {U2}")
        e(f"v_mov_b32 {T0}, 0x3f80"); e(f"v_lshlrev_b32 {U2}, {U2}, {T0}"); e(f"v_lshrrev_b32 {U1}, 1, {U1}")
        e(f"v_cmp_eq_u32 vcc, 0, {U1}"); e(f"v_accvgpr_write_b32 {a(aE)}, 0"); e(f"v_accvgpr_write_b32 {a(aE+1)}, 0"); e(f"v_cndmask_b32 {T0}, 0, {U2}, vcc")
        e(f"v_cmp_eq_u32 vcc, 1, {U1}"); e(f"v_accvgpr_write_b32 {a(aE+4)}, 0"); e(f"v_accvgpr_write_b32 {a(aE+5)}, 0"); e(f"v_cndmask_b32 {T1}, 0, {U2}, vcc")
        e(f"v_accvgpr_write_b32 {a(aE+2)}, {T0}"); e(f"v_accvgpr_write_b32 {a(aE+3)}, {T1}")
        for mrel in (1, 2, 3, 0):
            e(f"s_add_u32 s99, s{sW}, {mrel}"); e("s_and_b32 s99, s99, 3"); e("s_mul_i32 s98, s99, 3072")
            if mrel > 1: e(f"s_add_u32 s98, s98, {(mrel-1)*1024}")
            e(f"v_add_u32 {U1}, s98, {v(vLIN)}"); e(f"v_accvgpr_write_b32 {a(aADR + (mrel - 1) % 4)}, {U1}")
        e(f"s_lshl_b32 s98, s{sW}, 2"); e(f"s_add_u32 s98, s98, {R_SP}"); e(f"v_lshl_add_u32 {U1}, v4, 4, s98"); e(f"v_accvgpr_write_b32 {a(aADR+4)}, {U1}")
        e(f"v_lshlrev_b32 {U1}, 4, v4"); e(f"v_add_u32 {U1}, {R_SP}, {U1}"); e(f"v_accvgpr_write_b32 {a(aADR+5)}, {U1}")
        e(f"v_and_b32 {U1}, 1, v5"); e(f"v_lshlrev_b32 {U1}, 1, {U1}"); e(f"v_xor_b32 {U1}, v4, {U1}"); e(f"v_lshlrev_b32 {U1}, 4, {U1}"); e(f"v_lshl_add_u32 {U1}, v5, 12, {U1}")
        for q in range(4): e(f"v_xor_b32 {U2}, {q*64}, {U1}"); e(f"v_accvgpr_write_b32 {a(aADR+6+q)}, {U2}")
        e(f"v_lshl_add_u32 {U2}, v6, 2, v5"); e(f"v_lshlrev_b32 {U2}, 8, {U2}"); e(f"v_lshl_add_u32 {U2}, v7, 3, {U2}")
        e(f"v_and_b32 {T0}, 1, v5"); e(f"v_lshl_add_u32 {T0}, v6, 1, {T0}")
        e(f"s_lshl_b32 s98, s{sW}, 1")
        for k in range(2):
            e(f"s_add_u32 s99, s98, {k}")
            e(f"v_xor_b32 {U1}, s99, {T0}"); e(f"v_lshl_add_u32 {U1}, {U1}, 5, {U2}"); e(f"v_add_u32 {U1}, {R_A}, {U1}"); e(f"v_accvgpr_write_b32 {a(aADR+10+k)}, {U1}")
        for h in range(4):
            e(f"s_add_u32 s98, s{sI}, {h}"); e("s_and_b32 s98, s98, 3")
            e(f"s_mul_i32 s99, s98, {HEADSTRIDE}"); e(f"s_add_u32 s{sSIB+h}, s99, s100")
            e("s_lshl_b32 s98, s98, 2"); e(f"s_add_u32 s98, s98, s{sW}"); e(f"s_lshl_b32 s{sWOB+h}, s98, 15")
        e(f"s_lshl_b32 s{sW1K}, s{sW}, 10")
        for r in range(20): e(f"v_accvgpr_write_b32 {a(aL+r)}, 0")
        e(f"v_mov_b32 {U1}, 0x3f803f80")
        for r in range(4): e(f"v_accvgpr_write_b32 {a(aONE+r)}, {U1}")
        e(f"s_mov_b32 s{sQS}, {f2u(QSCALE)}"); e(f"s_lshl_b32 s98, s{sW}, 2")
        Q = v(vQW); Q1 = v(vQW + 1)
        e(f"v_lshrrev_b32 {Q}, 1, v5"); e(f"v_add_u32 {Q}, s98, {Q}"); e(f"v_xor_b32 {Q}, {Q}, v4"); e(f"v_lshlrev_b32 {Q}, 4, {Q}")
        e(f"v_lshl_add_u32 {Q}, v4, 8, {Q}"); e(f"v_and_b32 {Q1}, 1, v5"); e(f"v_lshl_add_u32 {Q}, {Q1}, 3, {Q}"); e(f"v_add_u32 {Q}, {R_QX}, {Q}"); e(f"v_xor_b32 {Q1}, 32, {Q}")
    fill = capture(setup)
    ne = min(opt("ne", 420), len(fill))
    while ne < len(fill) and fill[ne].split()[0] in GLUE: ne += 1
    early, fill = fill[:ne], fill[ne:]
    groups = list(c01[:n0])
    pin = [[f"buffer_store_dwordx4 v[76:79], {v(vLIN)}, {srd(SRD_PI)}, " + (f"0 offen offset:{j*1024}" if j < 4 else "s101 offen") + " sc1 @ip"] for j in range(5)] if EARLYINIT else []
    tch = []
    for nm, isK, t in (("tk0", True, 0), ("tv0", False, 0), ("tk1", True, 1)):
        n = opt(nm, 0)
        if n: tch.append([f"s_mul_i32 s58, s{sSTEP}, {t}", f"s_add_u32 s58, s58, s{sMIR}", f"s_lshr_b32 s59, s{sI}, 1", "s_lshl_b32 s59, s59, 12", "s_add_u32 s58, s58, s59",
                          f"s_mov_b64 exec, {(1 << n) - 1}" if n < 32 else "s_mov_b32 exec_hi, 0", f"buffer_load_dword {v(vJUNK)}, v3, {srd(SRD_K if isK else SRD_V)}, s58 offen @tch", "s_mov_b64 exec, -1"])
    tp = opt("tp", 13)
    if tp < 90: groups = groups[:tp] + tch + groups[tp:]; tch = []
    ipos = opt("ipos", 99)
    if ipos < 90: groups = groups[:ipos] + pin + groups[ipos:]; pin = []
    for _ in range(4): emit(groups.pop(0))
    emit(mk_srd(SRD_PI, 18, 98, WVS))
    per = max(1, min(len(early), 260) // (len(groups) + 1)); k = 0
    while early:
        L.append("    " + early.pop(0)); k += 1
        if k >= per and groups and (not early or early[0].split()[0] not in GLUE): emit(groups.pop(0)); k = 0
    emit(flat(groups))
    fg = []
    for x in fill:
        if fg and x.split()[0] in GLUE: fg[-1].append(x)
        else: fg.append([x])
    flag_reset = ["s_mov_b64 exec, 1", f"v_mov_b32 v2, s{sFOWN}",
                  "global_store_dwordx2 v2, v[76:77], s[18:19] sc1 @frst", "s_mov_b64 exec, -1"]
    acc = vP; aX = aV; aWf = aV + 40; aX3 = aQ; aW3 = aK + 32
    def reads(cc, ks):
        buf = ks & 1
        r = [f"ds_read_b64_tr_b16 {a(aWf + buf*8 + dd*4 + jh*2, 2)}, {v(vWR+dd)} offset:{ks*8192 + jh*1024}" for dd in range(2) for jh in range(2)]
        return r + [f"ds_read_b128 {a(aX + buf*20 + j*4, 4)}, {v(vXR+ks)} offset:{j*4096} @p{cc}{ks}{j}" for j in range(5)]
    def wrd(ks): return [f"ds_read_b64_tr_b16 {a(aW3 + (ks*2+dd)*4 + jh*2, 2)}, {v(vWR+dd)} offset:{ks*8192 + jh*1024} @w{ks}" for dd in range(2) for jh in range(2)]
    def xrd(j, ks): return f"ds_read_b128 {a(aX3 + (j*4+ks)*4, 4)}, {v(vXR+ks)} offset:{j*4096} @x{j}{ks}"
    e("WAITVM c0"); e("s_barrier"); stamp("c0")
    emit(reads(0, 0))
    TB = [x for x in OPT.get("tb", "K0").split(",") if x and x != "no"]
    if TB:
        if opt("tm", 2) == 3: e(f"s_and_b32 s58, s{sB}, 3"); e(f"s_cmp_eq_u32 s58, s{sI}")
        else: e(f"s_and_b32 s58, s{sB}, 1"); e(f"s_lshr_b32 s59, s{sI}, 1"); e("s_cmp_eq_u32 s58, s59")
        e("s_cbranch_scc1 L_touch"); lab("L_touched")
    M = []; G = {g: [] for g in range(-1, 160)}
    for cc in range(3):
        for ks in range(4):
            g0 = len(M); buf = ks & 1
            for j in range(5):
                for dd in range(2):
                    d = v(acc + (j*2+dd)*4, 4)
                    M.append(f"{MF} {d}, {a(aWf + buf*8 + dd*4, 4)}, {a(aX + buf*20 + j*4, 4)}, {'0' if (cc == 0 and ks == 0) else d}")
            G[g0 - 1].append(f"WAITLG p{cc}{ks}1"); G[g0 + 3].append(f"WAITLG p{cc}{ks}4")
            if ks < 3:
                r = reads(cc, ks + 1)
                G[g0] += r[0:3]; G[g0 + 1] += r[3:6]; G[g0 + 2] += r[6:9]
            else:
                dl = [53248, 53248, -106496][cc]
                adj = [f"v_add_u32 {v(vXR+q)}, {dl}, {v(vXR+q)}" for q in range(4)] + [f"v_add_u32 {v(vWR+q)}, {dl}, {v(vWR+q)}" for q in range(2)]
                for gi in range(3): G[g0 + gi] += adj[2*gi:2*gi+2]
                G[g0 + 3] += [f"WAITVM c{cc+1}", "s_barrier", f"STAMP c{cc+1}"]
                r = reads(cc + 1, 0) if cc < 2 else (wrd(0) + [xrd(0, 0)] + wrd(1) + [xrd(0, 1)] + wrd(2) + [xrd(0, 2)])
                for gi in range(5): G[g0 + 4 + gi] += r[3*gi:3*gi+3]
    posts = []
    for j in range(5):
        g0 = len(M)
        for ks in range(4):
            for dd in range(2):
                d = v(acc + (j*2+dd)*4, 4)
                M.append(f"{MF} {d}, {a(aW3 + (ks*2+dd)*4, 4)}, {a(aX3 + (j*4+ks)*4, 4)}, {d}")
        if j == 0:
            G[g0 - 1].append("WAITLG x00"); G[g0] += wrd(3)[:3]; G[g0 + 1] += [wrd(3)[3], xrd(0, 3), "WAITLG x01"]
            G[g0 + 2] += [xrd(1, 0), xrd(1, 1)]; G[g0 + 3] += ["WAITLG x02", xrd(1, 2), xrd(1, 3)]
            G[g0 + 5] += ["WAITLG x03", "s_barrier"]
        else:
            G[g0 - 1].append(f"WAITLG x{j}3")
            if j < 4:
                for ks in range(4): G[g0 + ks].append(xrd(j + 1, ks))
        for dd in range(2):
            r = acc + (j*2+dd)*4
            p = [f"v_mul_f32 {v(r+q)}, s{sQS}, {v(r+q)}" for q in range(4)]
            p += [f"v_cvt_pk_bf16_f32 {v(r)}, {v(r)}, {v(r+1)}", f"v_cvt_pk_bf16_f32 {v(r+1)}, {v(r+2)}, {v(r+3)}",
                  f"ds_write_b64 {v(vQW + dd)}, {v(r, 2)} offset:{j*4096} @qw"]
            posts += [(g0 + 8 + 2, x) for x in p]
    c2 = p1_dma(2); c3 = p1_dma(3); k0d = kv_dma(True, R_A, "K0"); k0d[0] = set_T(True, 0) + k0d[0]
    ka, kb, late, nv0, sp3 = opt("ka", 3), opt("kb", 8), opt("late", 22), opt("nv0", 4), opt("dsp3", 4)
    v0g = kv_dma(False, R_C, "V0"); v0g[0] = set_T(False, 0) + v0g[0]
    k1g = kv_dma(True, R_B, "K1"); k1g[0] = set_T(True, 1) + k1g[0]
    dq = [(0, g) for g in c01[n0:] + tch + c2[:ka]] + [(late, g) for g in c2[ka:kb]] + [(34, g) for g in c2[kb:] + c3[:ka]] + \
         [(40 + late, g) for g in c3[ka:kb]] + [(74, g) for g in c3[kb:] + (pin if ipos == 99 else []) + k0d[:ka]] + [(80 + opt("latek", late), g) for g in k0d[ka:kb] + [flag_reset]] + \
         [(114, g) for g in k0d[kb:] + (pin if ipos == 98 else []) + k1g + v0g[:nv0]]
    left = []; t = 0
    for rdy, g in dq:
        t = max(t, rdy)
        while t < 160 and (sum(1 for x in G[t] if x.startswith("ds_read")) > (1 if t >= 120 else 0) or "s_barrier" in G[t]): t += 1
        if t < 160: G[t] = G[t] + list(g)
        else: left.append(g)
        t += 1 if t < 114 else sp3
    drain = sched(M, G, [posts, [(0, g) for g in fg] + [(0, "MARK fill")]], need={33: ["fill"]}, limit=20)
    for ks in range(4): e(f"v_add_u32 {v(vXR+ks)}, {R_QX}, {v(vXR+ks)}")
    e(f"s_mov_b32 s{SRD_D}, s16"); e(f"s_mov_b32 s{SRD_D+1}, s17"); e(f"s_mov_b32 s{SRD_D+2}, 256"); e(f"s_mov_b32 s{SRD_D+3}, 0x20000")
    drain(0); emit(left)
    e("WAITVM frst"); e("WAITLG qw"); e("s_barrier")
    stamp("Bq")
    def qrd(j): return [f"ds_read_b128 {a(aQ + (j*4+ds)*4, 4)}, {v(vXR+ds)} offset:{j*4096} @q{j}" for ds in range(4)]
    emit(qrd(0))
    e("WAITVM K0")
    emit(kreads(0, "k0"))
    for r in range(20): e(f"v_mov_b32 {v(vNM+r)}, 0")
    e(f"s_lshl_b32 s{sT1}, s{sB}, 5")
    e(f"s_cmp_eq_u32 s{sRANGE}, -1"); e("s_cbranch_scc1 L_rowmax")
    e(f"s_cmp_lg_u32 s{sW}, 0"); e("s_cbranch_scc1 L_noat")
    e("s_mov_b64 exec, 1"); e("v_mov_b32 v1, 1"); e("v_mov_b32 v2, 0")
    L.append(f"    buffer_atomic_add v1, v2, {srd(SRD_D)}, s{sT1} offen sc1")
    e("s_mov_b64 exec, -1")
    lab("L_noat")
    e("WAITLG q0"); emit(qrd(1)); e("WAITLG k0"); emit(qrd(2) + qrd(3))
    k2g = kv_dma(True, R_A, "K2"); k2g[0] = set_T(True, 2) + k2g[0]
    v1g = kv_dma(False, R_D, "V1"); v1g[0] = set_T(False, 1) + v1g[0]
    dm = v0g[nv0:] + (v1g + k2g if VF else k2g + v1g)
    rdk = kreads(1, "k1"); rdv = vreads(0, "v0")
    for j in range(5):
        sb = (5 + j) & 1
        gaps = {g: [] for g in range(-1, 8)}
        if j > 0:
            gaps[-1].append(f"WAITLG q{j}")
            ex = exps(sb ^ 1); cv = cvts(sb ^ 1, j - 1)
            for n in range(8): gaps[n].append(ex[n])
            gaps[2].append(cv[0]); gaps[4].append(cv[1]); gaps[6].append(cv[2]); gaps[7] += ["s_nop 0", cv[3]]
        if j == 1: gaps[-1] += [f"v_add_u32 {v(vVRC+k)}, {R_C}, {v(vVR+k)}" for k in range(8)] + [f"v_mov_b32 {v(vSENT+q)}, -1" for q in range(4)]
        if j == 0:
            for n in range(8):
                if dm: gaps[n] += dm.pop(0)
            gaps[3] += ["WAITLG q1"] + qrd(4)
        else:
            for n in (0, 2, 4, 6):
                if dm: gaps[n] = dm.pop(0) + gaps[n]
            if j == 2:
                gaps[1].insert(0, "WAITVM K1")
                for n in (1, 3, 5, 7): gaps[n] += [rdk.pop(0), rdk.pop(0)]
            if j == 3: gaps[1].insert(0, "WAITVM V0")
            if j >= 3:
                for n in (1, 3, 5, 7): gaps[n] += [rdv.pop(0), rdv.pop(0)]
        interleave(qk(j, 0, sb), gaps)
    emit(flat(dm))
    e(f"s_mov_b32 s{sCNT}, 0")
    emit(set_T(True, 3) + set_T(False, 2))
    e("s_waitcnt lgkmcnt(0)")
    stamp("pro")
    def base_iter(par):
        G = {g: [] for g in range(-1, 85)}; M = []
        for j in range(5):
            sb = (5*par + j) & 1
            M += qk(j, par ^ 1, sb) + pv(j, par)
            put_exp(G, 17*j, sb ^ 1, (j - 1) % 5)
        return M, G
    def half_va(par):
        kd = flat(kv_dma(True, KSLOT[par ^ 1], "lk", nop=False)); vd = flat(kv_dma(False, VSLOT[par], "lv", nop=False))
        G = {g: [] for g in range(-1, 80)}; M = []
        LR = [92, 93, 94, 95, 1]
        for j in range(5):
            sb = (5*par + j) & 1; b = 16*j; jp = (j - 1) % 5; r = vS + (sb ^ 1)*8
            M += qk(j, par ^ 1, sb) + pv(j, par)[:-1]
            ex = exps(sb ^ 1); cv = cvts(sb ^ 1, jp)
            for n in range(8):
                G[b + 2*n].append(ex[n])
                G[b + 2*n + 1].append(f"v_add_f32 {v(LR[jp])}, {v(LR[jp])}, {v(r + n)}")
                if n & 1: G[b + 2*n + 1].append(cv[n >> 1])
        dpos = [1, 5, 11, 15, 21, 25, 31, 35, 41, 45, 51, 55, 61, 65, 71, 75]; mpos = [-1, 17, 37, 57]
        ev = "vaexp" in X
        if ev:
            vpos = [27, 28, 29, 30, 32, 33, 34, 36, 38, 39, 40, 42, 43, 44, 46, 47]; kpos = [59, 60, 62, 63, 64, 66, 67, 68]; vw, kw = 26, 58; tpos = [69, 77, 23, 39]
        else:
            vpos = [27, 29, 29, 33, 33, 37, 39, 41, 43, 45, 47, 49, 49, 53, 53, 57]; kpos = [61, 63, 65, 67, 69, 69, 73, 73]; vw, kw = 25, 59; tpos = [77, 77, 19, 43]
        dma = vd + kd
        for p, s in zip(mpos, [s for s in dma if "m0" in s]): G[p].append(s)
        for p, s in zip(dpos, [s for s in dma if "m0" not in s]): G[p].append(s)
        G[kw].append(f"s_waitcnt vmcnt({sum(1 for p in dpos if p <= kw)})")
        for p, s in zip(kpos, kreads(par)): G[p].append(s)
        G[vw].append(f"s_waitcnt vmcnt({8 + sum(1 for p in dpos if p <= vw)})")
        for p, s in zip(vpos, vreads(par ^ 1)): G[p].append(s)
        for p, r in zip(tpos, (sTK, sTK2, sTV, sTV2)): G[p].append(f"s_add_u32 s{r}, s{r}, s{sSTEP}")
        if par == 0: G[13].append(f"s_add_u32 s{sCNT}, s{sCNT}, 1"); G[79].append(f"s_cmp_eq_u32 s{sCNT}, 3")
        G[79].insert(0, "s_waitcnt lgkmcnt(0)")
        G = {g: [s for s in l if not isv(s)] + [s for s in l if isv(s)] for g, l in G.items()}
        interleave(M, G)
    def half(par):
        if "va" in X or "vaexp" in X: return half_va(par)
        kd = flat(kv_dma(True, KSLOT[par ^ 1], "lk", nop=False)); vd = flat(kv_dma(False, VSLOT[par], "lv", nop=False))
        dma = vd + kd if VF else kd + vd
        M, G = base_iter(par)
        for p, s in zip(S["mpos"], [s for s in dma if "m0" in s]): G[p].append(s)
        for p, s in zip(S["dpos"], [s for s in dma if "m0" not in s]): G[p].append(s)
        G[S["kw"]].append(f"s_waitcnt vmcnt({(0 if VF else 8) + sum(1 for p in S['dpos'] if p <= S['kw'])})")
        for p, s in zip(S["kpos"], kreads(par)): G[p].append(s)
        G[S["vw"]].append(f"s_waitcnt vmcnt({(8 if VF else 0) + sum(1 for p in S['dpos'] if p <= S['vw'])})")
        for p, s in zip(S["vpos"], vreads(par ^ 1)): G[p].append(s)
        for p, r in zip(S["tpos"], (sTK, sTK2, sTV, sTV2)): G[p].append(f"s_add_u32 s{r}, s{r}, s{sSTEP}")
        if par == 0: G[79].append(f"s_add_u32 s{sCNT}, s{sCNT}, 1"); G[84].append(f"s_cmp_eq_u32 s{sCNT}, 3")
        if VF: G[83].append("s_waitcnt lgkmcnt(0)")
        else: G[84].insert(0, "s_waitcnt lgkmcnt(15)"); G[7].append("s_waitcnt lgkmcnt(0)")
        G = {g: [s for s in l if not isv(s)] + [s for s in l if isv(s)] for g, l in G.items()}
        interleave(M, G)
    L.append(".p2align 6")
    lab("L_loop")
    if "unroll" in X:
        half(0); stamp("i0"); half(1); stamp("i1"); half(0); stamp("i2")
        if "nohook" not in X: e("s_branch L_hook")
        lab("L_back")
        half(1); stamp("i3"); half(0); e("s_branch L_exit")
    else:
        half(0)
        e("s_cbranch_scc1 L_exit")
        if "nohook" not in X: e(f"s_cmp_eq_u32 s{sCNT}, {opt('hk', 2)}"); e("s_cbranch_scc1 L_hook")
        lab("L_back")
        half(1)
        e("s_branch L_loop")
    lab("L_hook")
    emit([f"s_lshl_b32 s58, s{sB}, 2", f"s_add_u32 s58, s58, s{sI}", "s_lshl_b32 s58, s58, 2", f"s_add_u32 s58, s58, s{sW}",
          "s_lshl_b32 s58, s58, 12", f"s_lshl_b32 s59, s{sI}, 8", "s_sub_u32 s58, s58, s59", "v_add_u32 v2, s58, v3", "s_mov_b32 exec_hi, 0",
          f"buffer_load_dword {v(vJUNK)}, v2, {srd(SRD_WO)}, 0 offen"] +
         (["s_mov_b32 exec_hi, 0xff", f"buffer_load_dword {v(vJUNK)}, v3, {srd(SRD_O)}, s{sOOWN} offen"] if opt("tch", 2) == 0 else []) +
         ["s_mov_b32 exec_hi, -1", "s_branch L_back"])
    lab("L_exit")
    stamp("exit")
    if "cnt" in X: e(f"s_mov_b32 s{sOI}, 0")
    VM.ops = (["V5"]*8 + ["K6"]*8 + ["V6"]*8 + ["K7"]*8) if VF else (["K6"]*8 + ["V5"]*8 + ["K7"]*8 + ["V6"]*8); LG.ops = ["kr"]*8 + ["vr"]*16
    vXW = vKR; vXRD = vKR + 3; vWOO = vOK; vLW = vOV; vLR = vOV + 1
    def wo_dma(h):
        g = [f"s_add_u32 m0, s{sSLOT}, {WREG[h]}", f"s_add_u32 s{sT3}, s{sWOB+h}, 16384"]
        for pp in range(8):
            if pp == 4: g += [f"s_add_u32 m0, s{sSLOT}, {WREG[h] + 4096}", "NEXTGAP"]
            g.append(f"buffer_load_dwordx4 {v(vWOO + (pp & 3))}, {srd(SRD_WO)}, s{sWOB+h if pp < 4 else sT3} offen offset:{(pp & 3)*1024} lds @wo{h}")
        return g
    def paced(items, t, step):
        r = []
        for x in items:
            r.append((t, x))
            if any(y.startswith("buffer") for y in aslist(x)): t += step
        return r
    def unpark(dst, k): return f"v_accvgpr_read_b32 {v(dst)}, {a(aADR + k)}"
    def pstore(j, data, tag):
        return f"buffer_store_dwordx4 {v(data, 4)}, {v(vLIN)}, {srd(SRD_PI)}, s{sTK2 if j < 4 else sTV2} offen offset:{(j & 3)*1024} sc1 @{tag}"
    def ostore(j, data, tag):
        return f"buffer_store_dwordx4 {v(data, 4)}, {v(vLIN)}, {srd(SRD_O)}, " + (f"s{sOOWN} offen offset:{j*1024}" if j < 4 else f"s{sTK} offen") + " sc1 @" + tag
    def setflag(k, tag): return ["v_mov_b32 v2, 0", f"v_mov_b32 v3, s{sFOWN}", ["s_mov_b64 exec, 1", f"global_store_dword v3, v2, s[18:19] offset:{4*k} sc1 @{tag}", "s_mov_b64 exec, -1"]]
    M, G = base_iter(1)
    G[-1] += ["v_mov_b32 v1, 0", f"buffer_load_dword {v(vJUNK)}, v1, {srd(SRD_D)}, s{sT1} offen sc1 @hs"]
    if opt("tch", 2) == 1: G[1] += ["s_mov_b32 exec_hi, 0xff", f"buffer_load_dword v2, v3, {srd(SRD_O)}, s{sOOWN} offen", "s_mov_b32 exec_hi, -1"]
    G[7].append("s_waitcnt lgkmcnt(0)")
    G[S["kw"]].append("WAITVM K7")
    for p, s in zip(S["kpos"], kreads(1, "k7")): G[p].append(s)
    G[S["vw"]].append("WAITVM V6")
    for p, s in zip(S["vpos"], vreads(0, "v6")): G[p].append(s)
    G[83].append("WAITLG k7")
    hw = max(S["kw"], S["vw"]) + 1
    v7 = [x.replace("s_nop 0", "NEXTGAP") for x in flat(kv_dma(False, VSLOT[1], "V7"))]
    vm = [(0, v7[0])] + paced(v7[2:], 1 if VF else 8, 2)
    vm += paced([ostore(j, vSENT, "io") for j in range(5)], opt("ist", 24), opt("isp", 8))
    W0L = opt("w0t", 95) >= 85
    vm += [(20, unpark(vWOO + q, 6 + q)) for q in range(4)] + ([] if W0L else paced(wo_dma(0), opt("w0t", 95), opt("w0s", 3)))
    hsq = [f"s_add_u32 s{sTK}, s{sOOWN}, 4096", f"s_mov_b32 s{sTK2}, 5120",
           f"s_mov_b32 s{SRD_WS}, s18", f"s_mov_b32 s{SRD_WS+1}, s19", f"s_mov_b32 s{SRD_WS+2}, {WS_FLG + 65536}", f"s_mov_b32 s{SRD_WS+3}, 0x20000", f"s_mov_b32 s{sSPIN}, 0"]
    hsq = [(1, x) for x in hsq] + [(30, f"s_mov_b32 s{sTV2}, 9216"), (hw, "WAITVM hs"), (hw, f"v_readfirstlane_b32 s58, {v(vJUNK)}"), (hw, "NEXTGAP"),
           (hw, ["s_cmp_ge_u32 s58, 32", "s_cbranch_scc0 L_hs", "LABEL L_hsok"])]
    drain = sched(M, G, [hsq, vm], limits={1: opt('l5', 36)})
    drain(0); drain(1)
    stamp("t5")
    FO = [2, 3, 4, 5, 6, 7, 0, 1]
    HZ = opt("hz", 4)
    M = []; G = {7: ["s_waitcnt lgkmcnt(0)"]}; ix = {}
    for j in range(5):
        put_exp(G, len(M), (j & 1) ^ 1, (j - 1) % 5)
        M += qk(j, 1, j & 1) + pv(j, 0)
        if j >= 3: ix[f"p{j-3}"] = len(M); M += pv(j - 3, 1, FO)
    aW = [aK, aQ, aQ + 32, aV]
    aR = [aK + 32, aK + 44, aQ + 64]
    def msum(j):
        return [f"{MF} {v(oreg(k, j), 4)}, {a(aE + (2 if k == 0 else 0), 4)}, {a(aR[j % 3] + s*4, 4)}, {v(oreg(k, j), 4)}" for s in range(3) for k in range(2)]
    put_exp(G, len(M), 0, 4)
    BQ = [vS, vS + 4, vS + 8, vS + 12, vP, vP + 4, vP + 8, vP + 12]
    vWR2 = vVR; vOB = vVR + 2; vVER = vVR + 3; vCHK = vVR + 4; vPRB = vVR + 5; vPRD = vVR + 6; vOWN = vVR + 7; vT = vP + 16
    def bread(j, h, st):
        if h == 0: return [f"ds_read_b128 {v(BQ[st*4 + ks], 4)}, {v(vLIN)} offset:{OWNB[j] + ks*1024} @b{j}{h}" for ks in range(4)]
        return [f"ds_read_b128 {v(BQ[st*4 + ks], 4)}, {v(vOB)} offset:{OBOFF[j] + h*4096 + ks*1024} @b{j}{h}" for ks in range(4)]
    def proj(j, h, st):
        return [f"{MF} {v(oreg(2 + nn, j), 4)}, {a(aW[h] + (ks*2+nn)*4, 4)}, {v(BQ[st*4 + ks], 4)}, {'0' if h == 0 and ks == 0 else v(oreg(2 + nn, j), 4)}"
                for ks in range(4) for nn in range(2)]
    for nm, mm in (("s0", msum(0)), ("p2", pv(2, 1, FO)), ("p3", pv(3, 1, FO)), ("p4", pv(4, 1, FO))):
        ix[nm] = len(M); M += mm
    need = {}; NE = opt("ne4", 0)
    sibrd = {}; BO = opt('bo', 8)
    def group(j, h, st_, first, inbeat):
        g = len(M)
        if first: ix[f"q{j}"] = g
        M.extend(proj(j, h, st_)); ix[f"e{j}"] = len(M) - 1
        need.setdefault(g, []).append(f"!WAITLG b{j}{h}")
        r = bread(j, h, st_)
        if first and inbeat: sibrd[j] = r; return
        if first:
            need.setdefault(g - (BO if j else 7), []).extend([f"v{j}"] + ([OPT.get("pdm", "pp")] if j == opt("pd", 3) else []) + (["n4", "!WAITLG w4"] if j == opt("o4", 4) else []) + ["!s_barrier", f"!STAMP d{j}", f"!MARK d{j}"])
        g1 = g - 8 if (j or not first) else g - 7
        for k in range(4): G.setdefault(g1 + k // 2, []).append(r[k])
    for b in (1, 2, 3, 4):
        ix[f"s{b}"] = len(M); M += msum(b)
        ix[f"o{b-1}"] = len(M); M += proj(b - 1, 0, 0)
        j = b - 5 + NE
        if j >= 0:
            for h in (1, 2, 3): group(j, h, h & 1, h == 1, True)
    st_ = 0 if NE else 1
    O4 = opt("o4", 4)
    for j in range(NE, 5):
        for h in (1, 2, 3):
            if (j == O4 and h == (1 if j == 4 else 3)):
                if j == 4: group(4, 0, st_, True, False)
                else:
                    g = len(M); M.extend(proj(4, 0, st_)); need.setdefault(g, []).append("!WAITLG b40")
                    for k, x in enumerate(bread(4, 0, st_)): G.setdefault(g - 8 + k // 2, []).append(x)
                st_ ^= 1
            group(j, h, st_, h == 1 and not (j == 4 and O4 == 4), False); st_ ^= 1
    def wfr(h, base):
        return [f"ds_read_b64_tr_b16 {a(aW[h] + (ks*2+nn)*4 + jh*2, 2)}, {v(base+nn)} offset:{WREG[h] - R_A + ks*8192 + jh*4096} @f{h}" if h != 2 else
                f"ds_read_b64_tr_b16 {a(aW[h] + (ks*2+nn)*4 + jh*2, 2)}, {v(base+nn)} offset:{ks*8192 + jh*4096} @f{h}"
                for ks in range(4) for nn in range(2) for jh in range(2)]
    nx = [0]
    def xw(j):
        r = []; p = ix[f"p{j}"]
        for mrel in (1, 2, 3):
            t = vTMP + (nx[0] & 1)*4; nx[0] += 1
            ins = pack4(t, oreg(2*mrel, j), oreg(2*mrel + 1, j)) + [f"ds_write_b128 {v(vXW + mrel - 1)}, {v(t, 4)} offset:{XSLOT[j]} @x{j}"]
            r += [(p + 2*mrel - 1 + HZ, s) for s in ins]
            if mrel == 1: r.append((0, f"MARK xa{j}"))
        return r + [(p + 8 + HZ, f"ds_write_b32 {v(vLW)}, {a(aL + j*4)} offset:{j*256} @x{j}"), (0, f"MARK x{j}")]
    def xr(j):
        return [f"ds_read_b128 {v(vNM + j*4, 4)}, {v(vLR)} offset:{j*256} @l{j}"] + \
               [f"ds_read_b128 {a(aR[j % 3] + s*4, 4)}, {v(vXRD)} offset:{XSLOT[j] + s*1024} @r{j}" for s in range(3)] + [f"MARK r{j}"]
    def lsum(j):
        r = vNM + j*4
        return [(0, x) for x in [f"AFTER r{j} 2", f"WAITLG l{j}", f"v_add_f32 {v(r)}, {v(r)}, {v(r+1)}", f"v_add_f32 {v(r+2)}, {v(r+2)}, {v(r+3)}", f"v_add_f32 {v(r)}, {v(r)}, {v(r+2)}",
                f"v_subrev_u32 {v(r+1)}, {LO_BITS}, {v(r)}", [f"v_cmp_lt_u32 vcc, s{sRANGE}, {v(r+1)}", f"v_rcp_f32 {v(r)}, {v(r)}", "s_cbranch_vccnz L_fallback"]]]
    def norm(j):
        r0 = oreg(0, j); r1 = oreg(1, j); t = oreg(4, j)
        ins = [f"v_mul_f32 {v(r+q)}, {v(vNM+j*4)}, {v(r+q)}" for r in (r0, r1) for q in range(4)] + pack4(t, r0, r1) + sanit(t)
        ms = ostore(j, t, f"o{j}")
        PI = [int(x) for x in OPT.get("pi", "3,2,0,0,0").split(",")]
        pin_ = [pstore(k, vSENT, "ip") for k in range(sum(PI[:j]), sum(PI[:j+1]))]
        return [(ix[f"s{j}"] + 5 + HZ, x) for x in ins + [f"STAMP n{j}", ms, f"ds_write_b128 {v(vOWN)}, {v(t, 4)} offset:{OWNB[j]} @w{j}"] + pin_ + [f"MARK n{j}"]]
    def fetch(j):
        r = []
        for h in (1, 2, 3):
            dst = R_B + OBOFF[j] + h*4096
            if j < 4: r.append([f"s_add_u32 m0, s{sW1K}, {dst - j*1024}", "s_nop 0", f"buffer_load_dwordx4 {v(vLIN)}, {srd(SRD_O)}, s{sSIB+h} offen offset:{j*1024} sc1 lds @g{j}"])
            else: r.append([f"s_add_u32 m0, s{sW1K}, {dst}", f"s_add_u32 s{sT3}, s{sSIB+h}, 4096", f"buffer_load_dwordx4 {v(vLIN)}, {srd(SRD_O)}, s{sT3} offen sc1 lds @g{j}"])
        return r
    def vread(j): return [f"ds_read_b32 {v(vT + h)}, {v(vVER)} offset:{OBOFF[j] + h*4096} @t{j}" for h in (1, 2, 3)]
    def vtest(): return [f"v_max3_u32 {v(vT)}, {v(vT+1)}, {v(vT+2)}, {v(vT+3)}", f"v_cmp_eq_u32 vcc, -1, {v(vT)}"]
    def verify(j):
        return [[f"STAMP u{j}", f"WAITVM g{j}", f"STAMP w{j}"]] + vread(j) + [f"MARK t{j}", f"AFTER t{j} 3", f"WAITLG t{j}", vtest()[0], [vtest()[1], "s_nop 0", f"s_cbranch_vccnz L_refetch{j}", f"LABEL L_got{j}"], f"MARK v{j}"]
    def post(j):
        r0 = oreg(2, j)
        return [(ix[f"e{j}"] + HZ, x) for x in pack4(r0, r0, oreg(3, j)) + sanit(r0) + [pstore(j, r0, "pst")]]
    p0 = ix["p0"]
    hs = [(opt("fs", 62), x) for x in ["WAITVM io"] + setflag(0, "fs0")]
    hs += [(0, f"AFTER {OPT.get('fp', 'n3')} 0")] + [(0, x) for x in ["WAITVM ip"] + setflag(1, "fs1")] + [(0, "MARK fs1")]
    def bar(name, afters, waits): return [(0, f"AFTER {x} 0") for x in afters] + [(0, waits + ["s_barrier", f"STAMP {name}", f"MARK {name}"])]
    vs = [(70, unpark(vXW + q, q)) for q in range(4)] + [(70, unpark(vLW, 4)), (70, unpark(vLR, 5))]
    vs += xw(0) + bar("a", [], ["WAITLG x0"]) + lsum(0) + norm(0) + xw(1) + bar("b1", ["f0", "w2"], ["WAITVM wo2", "WAITLG x1", "WAITLG f0"])
    for j in (1, 2, 3):
        vs += xw(j + 1) + lsum(j) + norm(j) + bar(f"b{j+1}", {1: ["f1"], 2: ["w3"], 3: ["f2"]}[j], {1: ["WAITLG f1"], 2: ["WAITVM wo3"], 3: ["WAITLG f2"]}[j] + [f"WAITLG w{j}"])
    vs += lsum(4) + norm(4)
    ps = []
    for j in range(5):
        p = post(j)
        ps += p[:-1] + ([(0, f"AFTER d{opt('pd', 3)} 0")] if j == 0 else []) + p[-1:]
    rs = [(opt("v7r", 36), "WAITVM V7")] + [(0, x) for x in vreads(1, "v7")] + [(0, "MARK v7")]
    rs += [(68, unpark(vWR2, 10)), (68, unpark(vWR2 + 1, 11)), (68, f"v_add_u32 {v(vOB)}, {R_B}, {v(vLIN)}"), (68, f"v_add_u32 {v(vVER)}, s{sW1K}, {v(vOB)}"),
           (68, f"v_accvgpr_read_b32 {v(vPRB)}, {a(aPRB)}"), (68, f"v_add_u32 {v(vOWN)}, s{sW1K}, {v(vLIN)}"), (0, "MARK adr")]
    rs += [(0, "AFTER a 0")] + [(0, x) for x in xr(0)] + [(0, "AFTER w1 0"), (opt("aw", 108), ["WAITVM wo1", "s_barrier", "STAMP aw"])]
    rs += [(0, x) for x in wfr(0, vWR2)] + [(0, "MARK f0")]
    up = [f"v_add_u32 {v(vWR2+q)}, {R_C - R_A}, {v(vWR2+q)}" for q in range(2)]; dn = [f"v_subrev_u32 {v(vWR2+q)}, {R_C - R_A}, {v(vWR2+q)}" for q in range(2)]
    w1 = wfr(1, vWR2); w2 = wfr(2, vWR2)
    extra = {0: w1[:6], 1: w1[6:] + ["MARK f1"] + up + w2[:4], 2: w2[4:] + ["MARK f2"] + dn, 3: wfr(3, vWR2)[:8], 4: wfr(3, vWR2)[8:] + ["MARK f3"]}
    rs += [(0, x) for x in extra[0]]
    for j in (1, 2, 3, 4):
        rs += [(0, f"AFTER b{j} 0")] + [(ix[f"s{j-3}"] + 6 if j >= 3 else 0, x) for x in xr(j)]
        rs += [(ix[f"s{j}"] - 1, x) for x in bread(j - 1, 0, 0)] + [(0, f"MARK bo{j-1}")] + [(0, x) for x in extra[j]]
    MF4, MP = 0xF, 0xFF0000
    def probe(mask, tag=""): return [f"s_mov_b64 exec, {mask}", f"buffer_load_dword {v(vPRD)}, {v(vPRB)}, {srd(SRD_WS)}, 0 offen sc1" + tag, "s_mov_b64 exec, -1"]
    def test(mask): return [f"v_cmp_eq_u32 vcc, -1, {v(vPRD)}", "s_nop 0", f"s_and_b32 s58, vcc_lo, {mask}"]
    ds = (paced(wo_dma(0), opt("w0t", 95) - 85, opt("w0s", 3)) if W0L else []) + paced(wo_dma(1), opt("w1t", 36), opt("w1s", 3)) + [(0, "MARK w1")] + paced(wo_dma(2), opt("w2t", 62), opt("w2s", 3)) + [(0, "MARK w2")]
    ds += [(0, "AFTER adr 0"), (opt("pb", 119), probe(MF4, " @prb")), (0, "AFTER b1 0")] + paced(wo_dma(3), ix["s1"], opt("w3s", 2)) + [(0, "MARK w3")]
    ds += [(0, "WAITVM prb"), (0, test(MF4) + ["s_cbranch_scc1 L_waitf", "LABEL L_fok"])]
    FA = OPT.get("fa", "n2,n3,n4,n4,n4").split(","); FDL = [int(x) for x in OPT.get("fdl", "0,0,0,24,56").split(",")]
    for j in range(5):
        if j == 4: ds += [(0, f"AFTER {'b4' if NE >= 2 else 'd1'} 0")]
        ds += [(0, f"AFTER {FA[j]} {FDL[j]}")] + [(0, f"STAMP f{j}")] + [(0, g) for g in fetch(j)] + [(0, f"MARK g{j}")]
    ds += [(0, "AFTER fs1 0"), (0, probe(MP, " @prp")), (0, "MARK pp")]
    vf = []
    VDL = [int(x) for x in OPT.get("vdl", "20,30,40,40,40").split(",")]
    for j in range(5): vf += [(0, f"AFTER g{j} 1")] + [(ix[f"q{j}"] - (BO if j else 7) - opt("vb", 6), x) for x in verify(j)]
    G.setdefault(p0 - 1, []).extend(["WAITLG v7", "s_barrier", "STAMP bD"])
    need.setdefault(p0 - 1, []).extend(["v7"])
    need.setdefault(ix["q0"] + 16, []).extend(["f3", "!WAITLG f3"])
    for j in range(5): need.setdefault(ix[f"s{j}"], []).extend([f"r{j}"] + ([f"bo{j-1}"] if j else []) + ([f"xa{j+1}"] if j in (1, 2, 3) else []) + [f"!WAITLG r{j}"])
    for j in range(4): need.setdefault(ix[f"o{j}"], []).append(f"!WAITLG b{j}0")
    fin = [f"s_and_b32 s{sT0}, s{sHKV}, 1", f"s_sub_u32 s{sT2}, 3, s{sT0}", f"s_mul_i32 s{sT0}, s{sT0}, 3", f"s_add_u32 s{sT0}, s{sT0}, s{sW}",
           "s_and_b32 s98, s2, 0xf8", f"s_mul_i32 s98, s98, {WGS}", f"s_lshr_b32 s99, s{sHKV}, 1", f"s_mul_i32 s99, s99, {WVS}", "s_add_u32 s98, s98, s99",
           f"s_lshl_b32 s99, s{sT0}, 10", "s_add_u32 s98, s98, s99", f"s_add_u32 s{sMODE}, s98, 5120",
           f"s_lshl_b32 s{sT0}, s{sT0}, 4", f"s_mul_i32 s98, s{sB}, 80", f"s_add_u32 s{sT0}, s{sT0}, s98", f"s_lshl_b32 s{sT0}, s{sT0}, 10",
           f"s_lshl_b32 s98, s{sI}, 8", f"s_add_u32 s{sT0}, s{sT0}, s98", f"s_lshr_b32 s98, s{sHKV}, 1", "s_lshl_b32 s98, s98, 6", f"s_add_u32 s{sT0}, s{sT0}, s98",
           "v_lshlrev_b32 v9, 10, v4", "v_lshl_add_u32 v9, v5, 3, v9",
           f"s_mov_b32 s{SRD_K}, s14", f"s_mov_b32 s{SRD_K+1}, s15", f"s_mov_b32 s{SRD_K+2}, 655360", f"s_mov_b32 s{SRD_K+3}, 0x20000"]
    drain = sched(M, G, [hs, ds, vf, vs, rs, ps, [(ix["q1"], x) for x in fin]], need=need, limit=opt("lim", 16), limits={1: 28, 2: 24})
    for k in range(7): drain(k)
    stamp("pst")
    if "cnt" in X: e(f"s_mov_b32 s{sCNT}, s{sOI}")
    e(f"s_cmp_ge_u32 s{sW}, s{sT2}"); e("s_cbranch_scc1 L_fin")
    e("WAITVM prp")
    emit(test(MP)); e("s_cbranch_scc1 L_waitp")
    lab("L_pok")
    if opt("slp", 0):
        e(f"s_bitcmp1_b32 s{sHKV}, 0"); e("s_cbranch_scc0 L_nosl"); e(f"s_sleep {opt('slp', 0)}"); lab("L_nosl")
    fB = vO + 100
    def redloads():
        e(f"s_mov_b32 s{sT1}, s{sMODE}")
        for p in range(8):
            e(f"buffer_load_dwordx4 {v(fB + p*4, 4)}, {v(vLIN)}, {srd(SRD_WS)}, s{sT1} offen sc1")
            if p < 7: e(f"s_add_u32 s{sT1}, s{sT1}, {WGS}")
    redloads()
    lab("L_red")
    e(f"v_mov_b32 {v(vCHK)}, 0")
    for p in range(8):
        e(f"s_waitcnt vmcnt({7-p})")
        for k in range(2):
            d = v(vS + k*4, 4)
            e(f"{MF} {d}, {a(aE + (2 if k == 0 else 0), 4)}, {v(fB + p*4, 4)}, {'0' if p == 0 else d}")
            if k == 0: e(f"v_max_u32 {v(vCHK)}, {v(vCHK)}, {v(fB + p*4)}")
    e(f"v_cmp_eq_u32 vcc, -1, {v(vCHK)}")
    e("s_nop 4")
    e("s_cbranch_vccnz L_redo")
    lab("L_redok")
    e("s_nop 0")
    e(f"v_cvt_pk_bf16_f32 {v(vS)}, {v(vS)}, {v(vS+1)}"); e(f"v_cvt_pk_bf16_f32 {v(vS+1)}, {v(vS+2)}, {v(vS+3)}")
    e(f"v_cvt_pk_bf16_f32 {v(vS+4)}, {v(vS+4)}, {v(vS+5)}"); e(f"v_cvt_pk_bf16_f32 {v(vS+5)}, {v(vS+6)}, {v(vS+7)}")
    OF = OPT.get("outf", "").replace("_", " ")
    e(f"buffer_store_dwordx2 {v(vS, 2)}, v9, {srd(SRD_K)}, s{sT0} offen {OF}")
    e(f"buffer_store_dwordx2 {v(vS+4, 2)}, v9, {srd(SRD_K)}, s{sT0} offen offset:32 {OF}")
    lab("L_fin")
    stamp("fin")
    if STAMPS and "cnt" in X:
        i = nstamp[0]; nstamp[0] += 1
        e(f"s_add_u32 s{sSTAMP+2*i}, s{sSTAMP+2*i-2}, s{sCNT}"); e(f"s_addc_u32 s{sSTAMP+2*i+1}, s{sSTAMP+2*i-1}, 0")
    write_stamps()
    lab("L_done")
    e("s_endpgm")
    lab("L_redo")
    emit(spin("L_redok")); redloads(); e("s_branch L_red")
    lab("L_hs")
    e("v_mov_b32 v2, 0"); e("s_sleep 4")
    e(f"buffer_load_dword {v(vJUNK)}, v2, {srd(SRD_D)}, s{sT1} offen sc1"); e("s_waitcnt vmcnt(0)")
    emit(spin("L_hsok"))
    e(f"v_readfirstlane_b32 s58, {v(vJUNK)}"); e("s_nop 0"); e("s_cmp_ge_u32 s58, 32"); e("s_cbranch_scc0 L_hs"); e("s_branch L_hsok")
    for nm, mask, ok in (("L_waitf", MF4, "L_fok"), ("L_waitp", MP, "L_pok")):
        lab(nm)
        if "cnt" in X and nm == "L_waitf": e(f"s_add_u32 s{sOI}, s{sOI}, {1 << 15}")
        e("s_sleep 2"); emit(probe(mask)); e("s_waitcnt vmcnt(0)")
        emit(spin(ok)); emit(test(mask)); e(f"s_cbranch_scc1 {nm}"); e(f"s_branch {ok}")
    for j in range(5):
        lab(f"L_refetch{j}")
        if "cnt" in X: e(f"s_add_u32 s{sOI}, s{sOI}, {1 << (3*j)}")
        emit(spin(f"L_got{j}")); emit(fetch(j)); e("s_waitcnt vmcnt(0)")
        emit(vread(j)); e("s_waitcnt lgkmcnt(0)"); emit(vtest()); e("s_nop 1")
        e(f"s_cbranch_vccnz L_refetch{j}"); e(f"s_branch L_got{j}")
    if TB:
        lab("L_touch")
        for x in TB:
            e(f"s_mov_b32 s58, {int(x[1])*8192}")
            if opt("tm", 2) == 2: e(f"s_xor_b32 s58, s58, s{sMIR}")
            if len(x) > 2: e("s_mov_b32 exec_hi, 0") if x[2] == "a" else e("s_mov_b32 exec_lo, 0")
            L.append(f"    buffer_load_dword {v(vJUNK)}, v3, {srd(SRD_K if x[0] == 'K' else SRD_V)}, s58 offen")
        e("s_mov_b64 exec, -1"); e("s_branch L_touched")
    lab("L_fallback")
    e("s_waitcnt vmcnt(0) lgkmcnt(0)")
    e("s_barrier")
    e(f"s_mov_b32 s{sRANGE}, -1")
    e("s_branch L_restart")
    lab("L_rowmax")
    e("s_waitcnt vmcnt(0) lgkmcnt(0)")
    emit(qrd(1) + qrd(2)); e("s_waitcnt lgkmcnt(0)"); emit(qrd(3) + qrd(4))
    vA = vP; vM = vP + 4
    for ds in range(4): e(f"v_subrev_u32 {v(vA+ds)}, {R_A - R_D}, {v(vKR+ds)}")
    for j in range(5): e(f"v_mov_b32 {v(vM+j)}, 0xff800000")
    e(f"s_mov_b32 s{sTK}, 0"); e(f"s_mov_b32 s{sTK2}, 4096")
    lab("L_fbmax")
    emit(flat(kv_dma(True, R_D, "f")))
    e("s_waitcnt vmcnt(0)")
    emit(kreads(0, base=vA, buf=1))
    e("s_waitcnt lgkmcnt(0)")
    for j in range(5):
        emit(qk(j, 1, 0, cinit="0")); e("s_nop 7")
        for n in range(4): e(f"v_max3_f32 {v(vM+j)}, {v(vM+j)}, {v(vS+2*n)}, {v(vS+2*n+1)}")
    e(f"s_add_u32 s{sTK}, s{sTK}, 8192"); e(f"s_add_u32 s{sTK2}, s{sTK2}, 8192")
    e(f"s_cmp_lt_u32 s{sTK}, 65536"); e("s_cbranch_scc1 L_fbmax")
    for j in range(5):
        for op in ("v_permlane32_swap_b32", "v_permlane16_swap_b32"):
            e(f"v_mov_b32 v1, {v(vM+j)}"); e("s_nop 1"); e(f"{op} {v(vM+j)}, v1"); e("s_nop 1"); e(f"v_max_f32 {v(vM+j)}, {v(vM+j)}, v1")
    e(unpark(1, 4)); e(unpark(2, 5))
    for j in range(5): e(f"ds_write_b32 v1, {v(vM+j)} offset:{j*256}")
    e("s_waitcnt lgkmcnt(0)"); e("s_barrier")
    for j in range(5): e(f"ds_read_b128 {v(vNM+j*4, 4)}, v2 offset:{j*256}")
    e("s_waitcnt lgkmcnt(0)")
    for j in range(5):
        r = vNM + j*4
        e(f"v_max3_f32 {v(r)}, {v(r)}, {v(r+1)}, {v(r+2)}"); e(f"v_max_f32 {v(r)}, {v(r)}, {v(r+3)}"); e(f"v_sub_f32 {v(r)}, 0, {v(r)}")
        for q in (1, 2, 3): e(f"v_mov_b32 {v(r+q)}, {v(r)}")
    e("s_branch L_noat")
    lab("L_end")

hdr = open("standalone__gqa_block_cached__near_ridge.s.ref").read().split("\n")
for ln in hdr:
    if ln.startswith("; @launch"): continue
    if not ln.startswith(";"): break
    L.append(ln)
L.append("; @launch grid=(256,1,1) block=(256,1,1) lds=163840")
L.append('.amdgcn_target "amdgcn-amd-amdhsa--gfx950"')
L.append(".text")
kernel()
L.append('.section .rodata,"a"')
L.append(".p2align 6"); L.append(f".amdhsa_kernel {KN}")
for s in ["next_free_vgpr 512", "next_free_sgpr 102", "accum_offset 256", "group_segment_fixed_size 0", "kernarg_size 64", "user_sgpr_count 2", "user_sgpr_kernarg_segment_ptr 1", "system_sgpr_workgroup_id_x 1"]:
    L.append("  .amdhsa_" + s)
L.append(".end_amdhsa_kernel")
import hazard
L = hazard.fix(L)
print("\n".join(L))
```

```python
import sys, math, struct, re, os
sys.path.insert(0, os.path.dirname(os.path.abspath(__file__)))

X = set(a[2:] for a in sys.argv[1:] if a.startswith("--") and "=" not in a)
OPT = dict(a[2:].split("=") for a in sys.argv[1:] if a.startswith("--") and "=" in a)
def opt(k, d): return int(OPT.get(k, d))
STAMPS = "stamps" in X
KN = "standalone__gqa_block_cached__near_ridge_kernel"
L = []

class Tr:
    def __init__(s): s.ops = []
    def add(s, tag): s.ops.append(tag)
    def need(s, tag):
        idx = max(i for i, t in enumerate(s.ops) if t == tag)
        return len(s.ops) - 1 - idx
VM = Tr(); LG = Tr()

def lab(s): L.append(s + ":")
def e(s):
    if s.startswith("LABEL "): lab(s[6:]); return
    if s.startswith("MARK "): return
    if s.startswith("STAMP "): stamp(s[6:]); return
    if s == "NEXTGAP": s = "s_nop 0"
    tag = None
    if " @" in s: s, tag = s.split(" @")
    op = s.split()[0]
    if op == "WAITVM":
        n = VM.need(s.split()[1]); s = f"s_waitcnt vmcnt({min(n, 63)})"
    elif op == "WAITLG":
        n = LG.need(s.split()[1]); s = f"s_waitcnt lgkmcnt({min(n, 15)})"
    elif op.startswith("buffer_") or op.startswith("global_"): VM.add(tag)
    elif op.startswith("ds_"): LG.add(tag)
    L.append("    " + s)
def aslist(it): return it if isinstance(it, list) else [it]
def emit(lst):
    for it in lst:
        for s in aslist(it): e(s)
def flat(groups): return [s for g in groups for s in aslist(g)]
def capture(fn):
    keep = list(L); del L[:]
    fn()
    out = [x.strip() for x in L]; L[:] = keep
    return out

QSCALE = 1.4426950408889634 / math.sqrt(128.0)
def f2u(x): return struct.unpack("<I", struct.pack("<f", x))[0]

S_ST = [0, 53248, 106496, 0]
R_D, R_QX, R_A, R_B, R_C, R_SP = 0, 32768, 53248, 86016, 118784, 151552
KSLOT = [R_A, R_B]; VSLOT = [R_C, R_D]
XSLOT = [0, 12288, 24576, 0, 12288]
OWNB = [36864, 40960, 45056, 49152, 36864]
OBOFF = [0, 16384, 32768, 49152, 0]
WREG = [R_A, R_B, R_C, R_A]
WS_PART = 8 << 20
WS_FLG = 16 << 20
WS_STAMP = 128 << 20
WGS = 40960; WVS = 10240
HEADSTRIDE = 64 * WGS
LO_BITS = 0x21800000
RANGE = 0x3C000000
sW, sHKV, sB, sI, sRANGE = 3, 20, 21, 22, 23
sWOB, sSIB, sOI = 4, 8, 12
SRD_X, SRD_WQ, SRD_K, SRD_V, SRD_O, SRD_WO, SRD_PI = 24, 28, 32, 36, 40, 44, 64
SRD_WS, SRD_D = 24, 28
sTK, sTK2, sTV, sTV2, sSLOT, sCNT = 48, 49, 50, 51, 52, 53
sT0, sT1, sT2, sT3 = 54, 55, 56, 57
sOOWN, sW5K, sSPIN, sFOWN = 60, 61, 62, 63
sSTAMP = 68
sMODE, sXCC, sWB, sXB, sSTEP, sMIR, sW1K, sQS = 89, 90, 91, 92, 93, 94, 95, 96
vKR = 8; vVR = 12; vOK = 20; vOV = 24; vLIN = 26; vJUNK = 27
vP = 28; vS = 48; vNM = 64; vTMP = 84; vO = 96
vVRC = vTMP; vSENT = vTMP + 8; vQW = 73
aQ = 0; aK = 80; aV = 144; aL = 208; aE = 228; aPRB = 234; aADR = 235; aONE = 248

def srd(r): return f"s[{r}:{r+3}]"
def v(r, n=1): return f"v{r}" if n == 1 else f"v[{r}:{r+n-1}]"
def a(r, n=1): return f"a{r}" if n == 1 else f"a[{r}:{r+n-1}]"
MF = "v_mfma_f32_16x16x32_bf16"
SPIN_MAX = opt("spin", 400000)

nstamp = [0]
def stamp(name=""):
    if not STAMPS: return
    sel = OPT.get("st")
    if sel and name not in sel.split(","): return
    i = nstamp[0]; nstamp[0] += 1
    assert sSTAMP + 2*i + 1 < 89
    sys.stderr.write(f"{i}:{name} ")
    L.append(f"    {'s_memtime' if 'cyc' in X else 's_memrealtime'} s[{sSTAMP+2*i}:{sSTAMP+2*i+1}]")
    L.append("    s_waitcnt lgkmcnt(0)")
def write_stamps():
    if not STAMPS: return
    if "amp" in X:
        e("s_cmp_ge_u32 s2, 8"); e("s_cbranch_scc1 L_done")
        e(f"s_cmp_lg_u32 s{sW}, 0"); e("s_cbranch_scc1 L_done")
        e("s_memrealtime s[80:81]"); e("s_waitcnt lgkmcnt(0)")
        e(f"s_sub_u32 s82, s{sSTAMP+2}, s{sSTAMP}"); e("s_min_u32 s82, s82, 5000"); e("s_mul_i32 s82, s82, 10"); e("s_add_u32 s82, s82, s80")
        lab("L_amp")
        e("s_memrealtime s[84:85]"); e("s_waitcnt lgkmcnt(0)"); e("s_sub_u32 s86, s84, s82"); e("s_cmp_lt_i32 s86, 0"); e("s_cbranch_scc1 L_amp")
        return
    n = nstamp[0]
    e("s_lshl_b32 s58, s2, 2"); e(f"s_add_u32 s58, s58, s{sW}"); e(f"s_mul_i32 s58, s58, {n*8}"); e(f"s_add_u32 s58, s58, {WS_STAMP}")
    e("s_add_u32 s58, s18, s58"); e("s_addc_u32 s59, s19, 0")
    e("s_mov_b64 exec, 1"); e("v_mov_b32 v1, 0")
    for i in range(n):
        e(f"v_mov_b32 v2, s{sSTAMP+2*i}"); e(f"v_mov_b32 v3, s{sSTAMP+2*i+1}")
        e(f"global_store_dwordx2 v1, v[2:3], s[58:59] offset:{i*8}"); e("s_nop 1")
    sys.stderr.write(f"\nstamps: {n}\n")

def mk_srd(r, pbase, off_sgpr, size):
    return [f"s_add_u32 s{r}, s{pbase}, s{off_sgpr}", f"s_addc_u32 s{r+1}, s{pbase+1}, 0", f"s_mov_b32 s{r+2}, {size}", f"s_mov_b32 s{r+3}, 0x20000"]

PSEUDO = ("MARK", "LABEL", "STAMP")
WIDE = ("ds_write_b128", "buffer_store_dwordx4")
def isv(s): return s.startswith("v_")
def gaptime(ins):
    ins = [s for s in ins if not s.startswith(PSEUDO)]
    nv = [s for s in ins if not isv(s)]
    t = 4
    if nv: t += 20 if nv[0].startswith(WIDE) else 4
    first = True
    for s in ins:
        if not isv(s):
            if first: first = False; continue
            t += 24 if s.startswith(WIDE) else 4
        else:
            t = max(t, 8) + (8 if s.startswith(("v_exp", "v_rcp")) else 4)
    return t
def order_gap(items):
    def indep(k):
        x = items[k]
        if isinstance(x, list) or x.startswith(("v_",) + PSEUDO + WIDE + ("ds_write",)): return False
        return all(isinstance(y, str) and isv(y) and not y.startswith(("v_accvgpr_read", "v_mov", "v_cmp", "v_readf", "v_add_u32", "v_subrev")) for y in items[:k])
    for k in range(1, len(items)):
        if indep(k): items.insert(0, items.pop(k)); break
    return items
def interleave(mfmas, gaps):
    emit(gaps.get(-1, []))
    for i, m in enumerate(mfmas):
        e(m); emit(gaps.get(i, []))
def sched(mfmas, fixed, streams, need=None, limit=16, limits=None):
    need = need or {}
    streams = [list(s) for s in streams]
    done = {}
    cur = [0]
    def put(it):
        for s in aslist(it):
            if s.startswith("MARK "): done[s[5:]] = cur[0]
            e(s)
    def flush(mark):
        if mark in done: return
        for st in streams:
            if any(f"MARK {mark}" in aslist(it) for _, it in st):
                while mark not in done:
                    it = st.pop(0)[1]
                    if isinstance(it, str) and it.startswith("AFTER "): flush(it.split()[1]); continue
                    put(it)
                return
        raise Exception("mark " + mark)
    cur[0] = -1
    for it in fixed.get(-1, []): put(it)
    for i, m in enumerate(mfmas):
        cur[0] = i - 1
        for mk in need.get(i, []):
            if mk.startswith("!"): put(mk[1:])
            else: flush(mk)
        e(m)
        cur[0] = i
        items = list(fixed.get(i, []))
        closed = any(s.startswith("v_exp") for s in flat(items))
        blocked = set(); prog = True; seen = dict(done)
        for s in flat(items):
            if s.startswith("MARK "): seen[s[5:]] = i
        while prog:
            prog = False
            for k, st in enumerate(streams):
                if k in blocked or not st: continue
                rdy, it = st[0]
                if it == "NEXTGAP": st.pop(0); blocked.add(k); continue
                if isinstance(it, str) and it.startswith("AFTER "):
                    _, mk, d = it.split()
                    if mk in seen and seen[mk] + int(d) <= i: st.pop(0); prog = True; break
                    continue
                if rdy > i: continue
                real = [s for s in aslist(it) if not s.startswith(PSEUDO)]
                empty = not [s for s in flat(items) if not s.startswith(PSEUDO)]
                if not real or (not closed and (empty or gaptime(flat(items) + real) <= (limits or {}).get(k, limit))):
                    st.pop(0); items.append(it); prog = True
                    for s in aslist(it):
                        if s.startswith("MARK "): seen[s[5:]] = i
                    break
        for it in order_gap(items): put(it)
    cur[0] = len(mfmas)
    def drain(k):
        st = streams[k]
        while st:
            it = st.pop(0)[1]
            if isinstance(it, str) and it.startswith("AFTER "): flush(it.split()[1]); continue
            put(it)
    return drain

def kv_dma(isK, slot_base, tag, nop=True):
    g = []
    for p in range(8):
        grp = []
        if p % 4 == 0:
            grp.append(f"s_add_u32 m0, s{sSLOT}, {slot_base + (p // 4) * 4096}")
            if nop: grp.append("s_nop 0")
        vo = vOK + (p >> 1) if isK else vOV + ((p >> 1) & 1)
        so = (sTK if isK else sTV) + (0 if p < 4 else 1)
        grp.append(f"buffer_load_dwordx4 {v(vo)}, {srd(SRD_K if isK else SRD_V)}, s{so} offen offset:{(p % 4)*1024} lds @{tag}")
        g.append(grp)
    return g
NSH = opt("nsh", 0)
def set_T(isK, t):
    r = sTK if isK else sTV
    if t < NSH: return [f"s_mov_b32 s{r}, {t*8192}", f"s_mov_b32 s{r+1}, {t*8192+4096}"]
    return [f"s_mul_i32 s{r}, s{sSTEP}, {t}", f"s_add_u32 s{r}, s{r}, s{sMIR}", f"s_add_u32 s{r+1}, s{r}, 4096"]
def kreads(slot, tag="kr", base=vKR, buf=None):
    buf = slot if buf is None else buf
    return [f"ds_read_b128 {a(aK + buf*32 + (kt*4+ds)*4, 4)}, {v(base+ds)} offset:{(KSLOT[slot]-R_A) + kt*1024} @{tag}" for kt in range(2) for ds in range(4)]
def vreads(slot, tag="vr"):
    base = vVRC if slot == 0 else vVR
    return [f"ds_read_b64_tr_b16 {a(aV + slot*32 + k*4 + jh*2, 2)}, {v(base+k)} offset:{jh*1024} @{tag}" for k in range(8) for jh in range(2)]
def qk(j, kbuf, sbuf, cinit=None):
    m = []
    for kt in range(2):
        for ds in range(4):
            d = v(vS + sbuf*8 + kt*4, 4)
            c = (cinit or v(vNM + j*4, 4)) if ds == 0 else d
            m.append(f"{MF} {d}, {a(aK + kbuf*32 + (kt*4+ds)*4, 4)}, {a(aQ + (j*4+ds)*4, 4)}, {c}")
    return m
def oreg(k, j): return vO + (k*5+j)*4
def pv(j, vbuf, ks=range(8)):
    m = [f"{MF} {v(oreg(k, j), 4)}, {a(aV + vbuf*32 + k*4, 4)}, {v(vP + j*4, 4)}, {v(oreg(k, j), 4)}" for k in ks]
    m.append(f"{MF} {a(aL + j*4, 4)}, {a(aONE, 4)}, {v(vP + j*4, 4)}, {a(aL + j*4, 4)}")
    return m
def exps(sbuf): return [f"v_exp_f32 {v(vS + sbuf*8 + n)}, {v(vS + sbuf*8 + n)}" for n in range(8)]
def cvts(sbuf, j): return [f"v_cvt_pk_bf16_f32 {v(vP + j*4 + n)}, {v(vS + sbuf*8 + 2*n)}, {v(vS + sbuf*8 + 2*n+1)}" for n in range(4)]
def put_exp(G, base, sbuf, j):
    ex = exps(sbuf); cv = cvts(sbuf, j)
    for n in range(8): G.setdefault(base + 2*n, []).append(ex[n])
    for n in range(4): G.setdefault(base + 4*n + 3, []).append(cv[n])
def pack4(t, r0, r1):
    return [f"v_cvt_pk_bf16_f32 {v(t)}, {v(r0)}, {v(r0+1)}", f"v_cvt_pk_bf16_f32 {v(t+1)}, {v(r0+2)}, {v(r0+3)}",
            f"v_cvt_pk_bf16_f32 {v(t+2)}, {v(r1)}, {v(r1+1)}", f"v_cvt_pk_bf16_f32 {v(t+3)}, {v(r1+2)}, {v(r1+3)}"]
def sanit(t): return [f"v_min_u32 {v(t)}, -2, {v(t)}"]
def spin(lbl): return [f"s_add_u32 s{sSPIN}, s{sSPIN}, 1", f"s_cmp_ge_u32 s{sSPIN}, {SPIN_MAX}", f"s_cbranch_scc1 {lbl}"]
if "loopinit" not in X and "earlyinit" not in X: X.add("lateinit")
EARLYINIT = "earlyinit" in X
LINIT = opt("linit", 0)
if LINIT: X.discard("lateinit"); X.add("wt")
LATEINIT = "lateinit" in X or EARLYINIT or LINIT
P_INIT0 = f"buffer_store_dwordx4 {v(vSENT, 4)}, {v(vLIN)}, {srd(SRD_PI)}, 0 offen sc1"
TOUCH = ["s_mov_b64 exec, 0xff", f"buffer_load_dword {v(vJUNK)}, v3, {srd(SRD_O)}, s{sOI} offen"] + \
        ([f"buffer_load_dword {v(vJUNK)}, v2, {srd(SRD_WO)}, s{sOI} offen"] if "wsp" in X else []) + ["s_mov_b64 exec, -1"]
S = dict(dpos=[1, 5, 9, 13, 20, 24, 28, 32, 37, 43, 49, 54, 60, 66, 71, 77], mpos=[-1, 16, 35, 58],
         kw=33, kpos=[33, 35, 39, 39, 41, 43, 45, 47],
         vw=50, vpos=[50, 52, 52, 56, 56, 60, 62, 64, 64, 67, 67, 69, 69, 73, 73, 75], tpos=[18, 47, 77, 79])
VF = "kfirst" not in X
if VF:
    S = dict(dpos=[9, 13, 18, 22, 26, 30, 35, 39, 45, 49, 54, 58, 64, 69, 73, 77], mpos=[5, 24, 41, 60],
             vw=28, vpos=[28, 30, 32, 33, 33, 35, 37, 39, 43, 43, 47, 47, 50, 50, 52, 52],
             kw=56, kpos=[56, 60, 62, 64, 66, 67, 67, 69], tpos=[71, 81, 33 + 8, 43 + 2])
if VF and OPT.get("sched") == "b":
    S = dict(dpos=[1, 5, 11, 16, 22, 26, 32, 37, 43, 47, 52, 58, 64, 69, 73, 77], mpos=[-1, 18, 39, 60],
             vw=28, vpos=[28, 30, 30, 33, 33, 35, 35, 39, 41, 43, 45, 47, 49, 50, 50, 52],
             kw=60, kpos=[62, 64, 66, 67, 67, 69, 71, 73], tpos=[75, 81, 24, 41])
if VF and OPT.get("sched") == "c":
    S = dict(dpos=[1, 5, 9, 13, 18, 22, 26, 30, 35, 39, 45, 49, 54, 58, 62, 66], mpos=[-1, 16, 33, 52],
             vw=37, vpos=[39, 41, 43, 43, 45, 47, 47, 49, 50, 50, 52, 54, 56, 56, 58, 60],
             kw=64, kpos=[64, 67, 67, 69, 69, 71, 73, 73], tpos=[60, 75, 20, 32])
GLUE = ("s_addc_u32", "s_cselect_b32", "s_subb_u32")

def kernel():
    L.append(f".globl {KN}"); L.append(".p2align 8"); L.append(f".type {KN},@function"); lab(KN)
    e("s_cmp_ge_u32 s2, 256"); e("s_cbranch_scc1 L_done")
    e("v_lshrrev_b32 v1, 6, v0")
    e("v_and_b32 v0, 63, v0")
    e(f"v_readfirstlane_b32 s{sW}, v1")
    e(f"s_mov_b32 s{sRANGE}, {RANGE}")
    lab("L_restart")
    e("s_load_dwordx16 s[4:19], s[0:1], 0")
    e(f"s_and_b32 s{sHKV}, s2, 7"); e(f"s_lshr_b32 s{sB}, s2, 3"); e(f"s_and_b32 s{sB}, s{sB}, 7"); e(f"s_lshr_b32 s{sI}, s2, 6")
    stamp("start")
    e("s_getpc_b64 s[58:59]"); lab("L_pc0")
    e(f"s_sub_u32 s58, s58, L_pc0-{KN}"); e("s_subb_u32 s59, s59, 0")
    e(f"s_lshr_b32 s{sT3}, s2, 3"); e(f"s_lshl_b32 s{sT3}, s{sT3}, 2"); e(f"s_add_u32 s{sT3}, s{sT3}, s{sW}"); e(f"s_lshl_b32 s{sT3}, s{sT3}, 8")
    e("v_lshlrev_b32 v3, 7, v0"); e(f"v_add_u32 v2, s{sT3}, v3"); e(f"v_min_u32 v2, L_end-{KN}-4, v2")
    e("s_mov_b64 exec, 3"); e(f"global_load_dword {v(vJUNK)}, v2, s[58:59] @pfc"); e("s_mov_b64 exec, -1")
    e("v_and_b32 v4, 15, v0"); e("v_lshrrev_b32 v5, 4, v0"); e("v_bfe_u32 v6, v0, 2, 2"); e("v_and_b32 v7, 3, v0")
    vXO = vTMP; vWO = vTMP + 4; vXR = vTMP + 6; vWR = vTMP + 10
    e("v_xor_b32 v1, v4, v5")
    for pp in range(4):
        e(f"s_add_u32 s{sT0}, s{sW}, {pp}"); e(f"s_and_b32 s{sT0}, s{sT0}, 3"); e(f"s_lshl_b32 s{sT0}, s{sT0}, 2")
        e(f"v_xor_b32 v2, s{sT0}, v1"); e("v_lshlrev_b32 v2, 4, v2"); e(f"v_lshl_add_u32 {v(vXO+pp)}, v5, 10, v2")
    e("v_lshlrev_b32 v2, 1, v5"); e("v_xor_b32 v2, v4, v2"); e("v_lshlrev_b32 v2, 4, v2")
    e(f"v_lshl_add_u32 {v(vWO)}, v5, 13, v2"); e(f"v_xor_b32 {v(vWO+1)}, 128, {v(vWO)}")
    e(f"v_lshl_add_u32 {v(vOV)}, v5, 8, v2"); e(f"v_xor_b32 {v(vOV+1)}, 128, {v(vOV)}")
    e(f"s_mul_i32 s58, s{sB}, 81920")
    e(f"s_lshl_b32 s59, s{sHKV}, 2"); e(f"s_add_u32 s59, s59, s{sI}"); e("s_lshl_b32 s59, s59, 8")
    e(f"s_sub_u32 s{sT3}, 4194304, s59")
    e(f"s_mul_i32 s{sT0}, s{sW}, 20480"); e(f"s_mul_i32 s{sW5K}, s{sW}, 5120")
    e(f"s_lshl_b32 s{sT2}, s{sW}, 18"); e(f"s_lshl_b32 s{sSLOT}, s{sW}, 13")
    XB = [sTK, sTK2, sXB, sT0]; WB = [sTV, sTV2, sWB, sT2]
    e(f"s_add_u32 s{sCNT}, s{sB}, s{sI}")
    for cc in range(4):
        e(f"s_add_u32 s{sSPIN}, s{sCNT}, {cc}"); e(f"s_and_b32 s{sSPIN}, s{sSPIN}, 3")
        e(f"s_lshl_b32 s{sOOWN}, s{sSPIN}, 8"); e(f"s_add_u32 s{XB[cc]}, s{sT0}, s{sOOWN}")
        e(f"s_lshl_b32 s{sOOWN}, s{sSPIN}, 20"); e(f"s_add_u32 s{WB[cc]}, s{sT2}, s{sOOWN}")
    e(f"v_lshlrev_b32 {v(vLIN)}, 4, v0")
    e(f"s_mul_i32 s98, s2, {WGS}"); e(f"s_lshl_b32 s99, s{sW5K}, 1"); e("s_add_u32 s98, s98, s99"); e("s_mov_b32 s101, 9216")
    for q in range(4): e(f"v_mov_b32 v{76+q}, -1")
    e("s_waitcnt lgkmcnt(0)")
    emit(mk_srd(SRD_X, 4, 58, 81920)); emit(mk_srd(SRD_WQ, 10, 59, f"s{sT3}"))
    def p1_dma(cc):
        g = []
        for pp in range(5):
            g.append([f"s_add_u32 m0, s{sW5K}, {S_ST[cc] + pp*1024}", f"s_add_u32 s{sT3}, s{XB[cc]}, {pp*4096}",
                      f"buffer_load_dwordx4 {v(vXO + (pp & 3))}, {srd(SRD_X)}, s{sT3} offen lds @c{cc}"])
        for pp in range(8):
            g.append([f"s_add_u32 m0, s{sSLOT}, {S_ST[cc] + 20480 + pp*1024}", f"s_add_u32 s{sT3}, s{WB[cc]}, {4*pp*8192}",
                      f"buffer_load_dwordx4 {v(vWO + ((pp >> 1) & 1))}, {srd(SRD_WQ)}, s{sT3} offen lds @c{cc}"])
        return g
    c01 = p1_dma(0) + p1_dma(1)
    n0 = opt("n0", 16)
    t0, t1, t2, u1, u2 = 68, 69, 70, 71, 72
    def setup():
        U1, U2, T0, T1, T2 = v(u1), v(u2), v(t0), v(t1), v(t2)
        e(f"s_lshl_b32 s98, s{sB}, 3"); e(f"s_add_u32 s98, s98, s{sHKV}"); e("s_lshl_b32 s98, s98, 18")
        e(f"s_lshl_b32 s99, s{sW}, 16"); e("s_add_u32 s98, s98, s99")
        emit(mk_srd(SRD_K, 6, 98, 65536)); emit(mk_srd(SRD_V, 8, 98, 65536))
        e(f"s_bitcmp1_b32 s{sI}, 0"); e(f"s_cselect_b32 s{sMIR}, {(7 + NSH)*8192}, 0"); e(f"s_cselect_b32 s{sSTEP}, -1, 1"); e(f"s_lshl_b32 s{sSTEP}, s{sSTEP}, 13")
        e(f"v_lshlrev_b32 {U2}, 4, v1"); e(f"v_lshl_add_u32 {v(vXR)}, v4, 8, {U2}")
        for ks in range(1, 4): e(f"v_xor_b32 {v(vXR+ks)}, {ks*64}, {v(vXR)}")
        e(f"v_lshl_add_u32 {v(vOK)}, v5, 8, {U2}")
        for q in range(1, 4): e(f"v_xor_b32 {v(vOK+q)}, {q*64}, {v(vOK)}")
        e(f"v_lshrrev_b32 {T0}, 2, v4"); e(f"v_lshlrev_b32 {T0}, 3, {T0}"); e(f"v_and_b32 {U1}, 3, v4"); e(f"v_add_u32 {T0}, {T0}, {U1}")
        e(f"v_lshl_add_u32 {U2}, {T0}, 8, {U2}"); e(f"v_add_u32 {U2}, s{sSLOT}, {U2}"); e(f"v_add_u32 {v(vKR)}, {R_A}, {U2}")
        for ds in range(1, 4): e(f"v_xor_b32 {v(vKR+ds)}, {ds*64}, {v(vKR)}")
        e(f"v_lshl_add_u32 {U2}, v5, 3, v6"); e(f"v_lshlrev_b32 {U2}, 8, {U2}"); e(f"v_lshl_add_u32 {U2}, v7, 3, {U2}")
        e(f"v_and_b32 {T0}, 1, v5"); e(f"v_lshl_add_u32 {T0}, {T0}, 2, v6")
        e(f"s_lshl_b32 s98, s{sW}, 1")
        for k in range(8):
            e(f"s_add_u32 s99, s98, {k}"); e("s_and_b32 s99, s99, 7")
            e(f"v_xor_b32 {U1}, s99, {T0}"); e(f"v_lshl_add_u32 {U1}, {U1}, 5, {U2}")
            if k < 2: e(f"v_add_u32 {v(vWR+k)}, 20480, {U1}")
            e(f"v_add_u32 {v(vVR+k)}, s{sSLOT}, {U1}")
        for r in range(160): e(f"v_mov_b32 {v(vO+r)}, 0")
        e("s_and_b32 s98, s2, 63"); e(f"s_mul_i32 s98, s98, {WGS}"); emit(mk_srd(SRD_O, 18, 98, 3*HEADSTRIDE + WGS))
        e(f"s_mul_i32 s{sOOWN}, s{sI}, {HEADSTRIDE}"); e(f"s_lshl_b32 s100, s{sW5K}, 1"); e(f"s_add_u32 s{sOOWN}, s{sOOWN}, s100")
        e(f"s_lshl_b32 s{sFOWN}, s2, 2"); e(f"s_add_u32 s{sFOWN}, s{sFOWN}, s{sW}"); e(f"s_lshl_b32 s{sFOWN}, s{sFOWN}, 6"); e(f"s_add_u32 s{sFOWN}, s{sFOWN}, {WS_FLG}")
        e("s_and_b32 s98, s2, 63"); e("s_lshl_b32 s98, s98, 2"); e(f"s_add_u32 s98, s98, s{sW}"); e("s_lshl_b32 s98, s98, 6"); e(f"s_add_u32 s98, s98, {WS_FLG}")
        e(f"v_and_b32 {T0}, 3, v0"); e(f"v_lshl_add_u32 {T0}, {T0}, 14, s98")
        e("s_and_b32 s98, s2, 0xf8"); e("s_lshl_b32 s98, s98, 8"); e(f"s_lshr_b32 s99, s{sHKV}, 1"); e("s_lshl_b32 s99, s99, 6")
        e("v_cmp_gt_u32 vcc, 16, v0"); e("s_add_u32 s98, s98, s99"); e(f"s_add_u32 s98, s98, {WS_FLG + 4}")
        e(f"v_and_b32 {T1}, 7, v0"); e(f"v_lshl_add_u32 {T1}, {T1}, 8, s98"); e(f"v_cndmask_b32 {T0}, {T1}, {T0}, vcc")
        e(f"v_accvgpr_write_b32 {a(aPRB)}, {T0}")
        e(f"s_lshl_b32 s98, s{sHKV}, 19"); e(f"s_lshl_b32 s99, s{sI}, 8"); e("s_add_u32 s98, s98, s99"); e("s_sub_u32 s99, 524288, s99")
        emit(mk_srd(SRD_WO, 12, 98, "s99"))
        e(f"v_lshlrev_b32 {U1}, 2, v5"); e(f"v_sub_u32 {U1}, v4, {U1}"); e(f"v_and_b32 {U2}, 1, {U1}"); e(f"v_lshlrev_b32 {U2}, 4, {U2}")
        e(f"v_mov_b32 {T0}, 0x3f80"); e(f"v_lshlrev_b32 {U2}, {U2}, {T0}"); e(f"v_lshrrev_b32 {U1}, 1, {U1}")
        e(f"v_cmp_eq_u32 vcc, 0, {U1}"); e(f"v_accvgpr_write_b32 {a(aE)}, 0"); e(f"v_accvgpr_write_b32 {a(aE+1)}, 0"); e(f"v_cndmask_b32 {T0}, 0, {U2}, vcc")
        e(f"v_cmp_eq_u32 vcc, 1, {U1}"); e(f"v_accvgpr_write_b32 {a(aE+4)}, 0"); e(f"v_accvgpr_write_b32 {a(aE+5)}, 0"); e(f"v_cndmask_b32 {T1}, 0, {U2}, vcc")
        e(f"v_accvgpr_write_b32 {a(aE+2)}, {T0}"); e(f"v_accvgpr_write_b32 {a(aE+3)}, {T1}")
        for mrel in (1, 2, 3, 0):
            e(f"s_add_u32 s99, s{sW}, {mrel}"); e("s_and_b32 s99, s99, 3"); e("s_mul_i32 s98, s99, 3072")
            if mrel > 1: e(f"s_add_u32 s98, s98, {(mrel-1)*1024}")
            e(f"v_add_u32 {U1}, s98, {v(vLIN)}"); e(f"v_accvgpr_write_b32 {a(aADR + (mrel - 1) % 4)}, {U1}")
        e(f"s_lshl_b32 s98, s{sW}, 2"); e(f"s_add_u32 s98, s98, {R_SP}"); e(f"v_lshl_add_u32 {U1}, v4, 4, s98"); e(f"v_accvgpr_write_b32 {a(aADR+4)}, {U1}")
        e(f"v_lshlrev_b32 {U1}, 4, v4"); e(f"v_add_u32 {U1}, {R_SP}, {U1}"); e(f"v_accvgpr_write_b32 {a(aADR+5)}, {U1}")
        e(f"v_and_b32 {U1}, 1, v5"); e(f"v_lshlrev_b32 {U1}, 1, {U1}"); e(f"v_xor_b32 {U1}, v4, {U1}"); e(f"v_lshlrev_b32 {U1}, 4, {U1}"); e(f"v_lshl_add_u32 {U1}, v5, 12, {U1}")
        for q in range(4): e(f"v_xor_b32 {U2}, {q*64}, {U1}"); e(f"v_accvgpr_write_b32 {a(aADR+6+q)}, {U2}")
        e(f"v_lshl_add_u32 {U2}, v6, 2, v5"); e(f"v_lshlrev_b32 {U2}, 8, {U2}"); e(f"v_lshl_add_u32 {U2}, v7, 3, {U2}")
        e(f"v_and_b32 {T0}, 1, v5"); e(f"v_lshl_add_u32 {T0}, v6, 1, {T0}")
        e(f"s_lshl_b32 s98, s{sW}, 1")
        for k in range(2):
            e(f"s_add_u32 s99, s98, {k}")
            e(f"v_xor_b32 {U1}, s99, {T0}"); e(f"v_lshl_add_u32 {U1}, {U1}, 5, {U2}"); e(f"v_add_u32 {U1}, {R_A}, {U1}"); e(f"v_accvgpr_write_b32 {a(aADR+10+k)}, {U1}")
        for h in range(4):
            e(f"s_add_u32 s98, s{sI}, {h}"); e("s_and_b32 s98, s98, 3")
            e(f"s_mul_i32 s99, s98, {HEADSTRIDE}"); e(f"s_add_u32 s{sSIB+h}, s99, s100")
            e("s_lshl_b32 s98, s98, 2"); e(f"s_add_u32 s98, s98, s{sW}"); e(f"s_lshl_b32 s{sWOB+h}, s98, 15")
        e(f"s_lshl_b32 s{sW1K}, s{sW}, 10")
        for r in range(20): e(f"v_accvgpr_write_b32 {a(aL+r)}, 0")
        e(f"v_mov_b32 {U1}, 0x3f803f80")
        for r in range(4): e(f"v_accvgpr_write_b32 {a(aONE+r)}, {U1}")
        e(f"s_mov_b32 s{sQS}, {f2u(QSCALE)}"); e(f"s_lshl_b32 s98, s{sW}, 2")
        Q = v(vQW); Q1 = v(vQW + 1)
        e(f"v_lshrrev_b32 {Q}, 1, v5"); e(f"v_add_u32 {Q}, s98, {Q}"); e(f"v_xor_b32 {Q}, {Q}, v4"); e(f"v_lshlrev_b32 {Q}, 4, {Q}")
        e(f"v_lshl_add_u32 {Q}, v4, 8, {Q}"); e(f"v_and_b32 {Q1}, 1, v5"); e(f"v_lshl_add_u32 {Q}, {Q1}, 3, {Q}"); e(f"v_add_u32 {Q}, {R_QX}, {Q}"); e(f"v_xor_b32 {Q1}, 32, {Q}")
    fill = capture(setup)
    ne = min(opt("ne", 420), len(fill))
    while ne < len(fill) and fill[ne].split()[0] in GLUE: ne += 1
    early, fill = fill[:ne], fill[ne:]
    groups = list(c01[:n0])
    pin = [[f"buffer_store_dwordx4 v[76:79], {v(vLIN)}, {srd(SRD_PI)}, " + (f"0 offen offset:{j*1024}" if j < 4 else "s101 offen") + " sc1 @ip"] for j in range(5)] if EARLYINIT else []
    tch = []
    for nm, isK, t in (("tk0", True, 0), ("tv0", False, 0), ("tk1", True, 1)):
        n = opt(nm, 0)
        if n: tch.append([f"s_mul_i32 s58, s{sSTEP}, {t}", f"s_add_u32 s58, s58, s{sMIR}", f"s_lshr_b32 s59, s{sI}, 1", "s_lshl_b32 s59, s59, 12", "s_add_u32 s58, s58, s59",
                          f"s_mov_b64 exec, {(1 << n) - 1}" if n < 32 else "s_mov_b32 exec_hi, 0", f"buffer_load_dword {v(vJUNK)}, v3, {srd(SRD_K if isK else SRD_V)}, s58 offen @tch", "s_mov_b64 exec, -1"])
    tp = opt("tp", 13)
    if tp < 90: groups = groups[:tp] + tch + groups[tp:]; tch = []
    ipos = opt("ipos", 99)
    if ipos < 90: groups = groups[:ipos] + pin + groups[ipos:]; pin = []
    for _ in range(4): emit(groups.pop(0))
    emit(mk_srd(SRD_PI, 18, 98, WVS))
    per = max(1, min(len(early), 260) // (len(groups) + 1)); k = 0
    while early:
        L.append("    " + early.pop(0)); k += 1
        if k >= per and groups and (not early or early[0].split()[0] not in GLUE): emit(groups.pop(0)); k = 0
    emit(flat(groups))
    fg = []
    for x in fill:
        if fg and x.split()[0] in GLUE: fg[-1].append(x)
        else: fg.append([x])
    flag_reset = ["s_mov_b64 exec, 1", f"v_mov_b32 v2, s{sFOWN}",
                  "global_store_dwordx2 v2, v[76:77], s[18:19] sc1 @frst", "s_mov_b64 exec, -1"]
    acc = vP; aX = aV; aWf = aV + 40; aX3 = aQ; aW3 = aK + 32
    def reads(cc, ks):
        buf = ks & 1
        r = [f"ds_read_b64_tr_b16 {a(aWf + buf*8 + dd*4 + jh*2, 2)}, {v(vWR+dd)} offset:{ks*8192 + jh*1024}" for dd in range(2) for jh in range(2)]
        return r + [f"ds_read_b128 {a(aX + buf*20 + j*4, 4)}, {v(vXR+ks)} offset:{j*4096} @p{cc}{ks}{j}" for j in range(5)]
    def wrd(ks): return [f"ds_read_b64_tr_b16 {a(aW3 + (ks*2+dd)*4 + jh*2, 2)}, {v(vWR+dd)} offset:{ks*8192 + jh*1024} @w{ks}" for dd in range(2) for jh in range(2)]
    def xrd(j, ks): return f"ds_read_b128 {a(aX3 + (j*4+ks)*4, 4)}, {v(vXR+ks)} offset:{j*4096} @x{j}{ks}"
    TL = OPT.get("tlb", "")
    if TL:
        assert not fill
        e("s_mov_b64 exec, 1"); e("v_mov_b32 v2, 0")
        if "v" in TL: e(f"buffer_load_dword {v(vJUNK)}, v2, {srd(SRD_V)}, 0 offen")
        if "k" in TL: e(f"buffer_load_dword {v(vJUNK)}, v2, {srd(SRD_K)}, 0 offen")
        if "w" in TL: e(f"buffer_load_dword {v(vJUNK)}, v2, {srd(SRD_WO)}, 0 offen")
        if "s" in TL:
            for h in range(4): e(f"buffer_load_dword {v(vJUNK)}, v2, {srd(SRD_O)}, s{sSIB+h} offen")
            e(f"v_mov_b32 v1, s{sFOWN}"); e(f"global_load_dword {v(vJUNK)}, v1, s[18:19]")
        if "o" in TL:
            e(f"s_mul_i32 s58, s{sB}, 81920"); e("v_mov_b32 v1, s58"); e(f"global_load_dword {v(vJUNK)}, v1, s[14:15]")
        if "d" in TL: e(f"global_load_dword {v(vJUNK)}, v2, s[16:17]")
        e("s_mov_b64 exec, -1")
    e("WAITVM c0"); e("s_barrier"); stamp("c0")
    emit(reads(0, 0))
    TB = [x for x in OPT.get("tb", "K0").split(",") if x and x != "no"]
    if TB:
        if opt("tm", 2) == 3: e(f"s_and_b32 s58, s{sB}, 3"); e(f"s_cmp_eq_u32 s58, s{sI}")
        else: e(f"s_and_b32 s58, s{sB}, 1"); e(f"s_lshr_b32 s59, s{sI}, 1"); e("s_cmp_eq_u32 s58, s59")
        e("s_cbranch_scc1 L_touch"); lab("L_touched")
    M = []; G = {g: [] for g in range(-1, 160)}
    for cc in range(3):
        for ks in range(4):
            g0 = len(M); buf = ks & 1
            for j in range(5):
                for dd in range(2):
                    d = v(acc + (j*2+dd)*4, 4)
                    M.append(f"{MF} {d}, {a(aWf + buf*8 + dd*4, 4)}, {a(aX + buf*20 + j*4, 4)}, {'0' if (cc == 0 and ks == 0) else d}")
            G[g0 - 1].append(f"WAITLG p{cc}{ks}1"); G[g0 + 3].append(f"WAITLG p{cc}{ks}4")
            if ks < 3:
                r = reads(cc, ks + 1)
                G[g0] += r[0:3]; G[g0 + 1] += r[3:6]; G[g0 + 2] += r[6:9]
            else:
                dl = [53248, 53248, -106496][cc]
                adj = [f"v_add_u32 {v(vXR+q)}, {dl}, {v(vXR+q)}" for q in range(4)] + [f"v_add_u32 {v(vWR+q)}, {dl}, {v(vWR+q)}" for q in range(2)]
                for gi in range(3): G[g0 + gi] += adj[2*gi:2*gi+2]
                G[g0 + 3] += [f"WAITVM c{cc+1}", "s_barrier", f"STAMP c{cc+1}"]
                r = reads(cc + 1, 0) if cc < 2 else (wrd(0) + [xrd(0, 0)] + wrd(1) + [xrd(0, 1)] + wrd(2) + [xrd(0, 2)])
                for gi in range(5): G[g0 + 4 + gi] += r[3*gi:3*gi+3]
    posts = []
    for j in range(5):
        g0 = len(M)
        for ks in range(4):
            for dd in range(2):
                d = v(acc + (j*2+dd)*4, 4)
                M.append(f"{MF} {d}, {a(aW3 + (ks*2+dd)*4, 4)}, {a(aX3 + (j*4+ks)*4, 4)}, {d}")
        if j == 0:
            G[g0 - 1].append("WAITLG x00"); G[g0] += wrd(3)[:3]; G[g0 + 1] += [wrd(3)[3], xrd(0, 3), "WAITLG x01"]
            G[g0 + 2] += [xrd(1, 0), xrd(1, 1)]; G[g0 + 3] += ["WAITLG x02", xrd(1, 2), xrd(1, 3)]
            G[g0 + 5] += ["WAITLG x03", "s_barrier"]
        else:
            G[g0 - 1].append(f"WAITLG x{j}3")
            if j < 4:
                for ks in range(4): G[g0 + ks].append(xrd(j + 1, ks))
        for dd in range(2):
            r = acc + (j*2+dd)*4
            p = [f"v_mul_f32 {v(r+q)}, s{sQS}, {v(r+q)}" for q in range(4)]
            p += [f"v_cvt_pk_bf16_f32 {v(r)}, {v(r)}, {v(r+1)}", f"v_cvt_pk_bf16_f32 {v(r+1)}, {v(r+2)}, {v(r+3)}",
                  f"ds_write_b64 {v(vQW + dd)}, {v(r, 2)} offset:{j*4096} @qw"]
            posts += [(g0 + 8 + 2, x) for x in p]
    c2 = p1_dma(2); c3 = p1_dma(3); k0d = kv_dma(True, R_A, "K0"); k0d[0] = set_T(True, 0) + k0d[0]
    ka, kb, late, nv0, sp3 = opt("ka", 3), opt("kb", 8), opt("late", 22), opt("nv0", 4), opt("dsp3", 4)
    v0g = kv_dma(False, R_C, "V0"); v0g[0] = set_T(False, 0) + v0g[0]
    k1g = kv_dma(True, R_B, "K1"); k1g[0] = set_T(True, 1) + k1g[0]
    dq = [(0, g) for g in c01[n0:] + tch + c2[:ka]] + [(late, g) for g in c2[ka:kb]] + [(34, g) for g in c2[kb:] + c3[:ka]] + \
         [(40 + late, g) for g in c3[ka:kb]] + [(74, g) for g in c3[kb:] + (pin if ipos == 99 else []) + k0d[:ka]] + [(80 + opt("latek", late), g) for g in k0d[ka:kb] + [flag_reset]] + \
         [(114, g) for g in k0d[kb:] + (pin if ipos == 98 else []) + k1g + v0g[:nv0]]
    left = []; t = 0
    for rdy, g in dq:
        t = max(t, rdy)
        while t < 160 and (sum(1 for x in G[t] if x.startswith("ds_read")) > (1 if t >= 120 else 0) or "s_barrier" in G[t]): t += 1
        if t < 160: G[t] = G[t] + list(g)
        else: left.append(g)
        t += 1 if t < 114 else sp3
    drain = sched(M, G, [posts, [(0, g) for g in fg] + [(0, "MARK fill")]], need={33: ["fill"]}, limit=20)
    for ks in range(4): e(f"v_add_u32 {v(vXR+ks)}, {R_QX}, {v(vXR+ks)}")
    e(f"s_mov_b32 s{SRD_D}, s16"); e(f"s_mov_b32 s{SRD_D+1}, s17"); e(f"s_mov_b32 s{SRD_D+2}, 256"); e(f"s_mov_b32 s{SRD_D+3}, 0x20000")
    drain(0); emit(left)
    e("WAITVM frst"); e("WAITLG qw"); e("s_barrier")
    stamp("Bq")
    def qrd(j): return [f"ds_read_b128 {a(aQ + (j*4+ds)*4, 4)}, {v(vXR+ds)} offset:{j*4096} @q{j}" for ds in range(4)]
    emit(qrd(0))
    e("WAITVM K0")
    emit(kreads(0, "k0"))
    for r in range(20): e(f"v_mov_b32 {v(vNM+r)}, 0")
    e(f"s_lshl_b32 s{sT1}, s{sB}, 5")
    e(f"s_cmp_eq_u32 s{sRANGE}, -1"); e("s_cbranch_scc1 L_rowmax")
    e(f"s_cmp_lg_u32 s{sW}, 0"); e("s_cbranch_scc1 L_noat")
    e("s_mov_b64 exec, 1"); e("v_mov_b32 v1, 1"); e("v_mov_b32 v2, 0")
    L.append(f"    buffer_atomic_add v1, v2, {srd(SRD_D)}, s{sT1} offen sc1")
    e("s_mov_b64 exec, -1")
    lab("L_noat")
    e("WAITLG q0"); emit(qrd(1)); e("WAITLG k0"); emit(qrd(2) + qrd(3))
    k2g = kv_dma(True, R_A, "K2"); k2g[0] = set_T(True, 2) + k2g[0]
    v1g = kv_dma(False, R_D, "V1"); v1g[0] = set_T(False, 1) + v1g[0]
    dm = v0g[nv0:] + (v1g + k2g if VF else k2g + v1g)
    rdk = kreads(1, "k1"); rdv = vreads(0, "v0")
    for j in range(5):
        sb = (5 + j) & 1
        gaps = {g: [] for g in range(-1, 8)}
        if j > 0:
            gaps[-1].append(f"WAITLG q{j}")
            ex = exps(sb ^ 1); cv = cvts(sb ^ 1, j - 1)
            for n in range(8): gaps[n].append(ex[n])
            gaps[2].append(cv[0]); gaps[4].append(cv[1]); gaps[6].append(cv[2]); gaps[7] += ["s_nop 0", cv[3]]
        if j == 1: gaps[-1] += [f"v_add_u32 {v(vVRC+k)}, {R_C}, {v(vVR+k)}" for k in range(8)] + [f"v_mov_b32 {v(vSENT+q)}, -1" for q in range(4)]
        if j == 0:
            for n in range(8):
                if dm: gaps[n] += dm.pop(0)
            gaps[3] += ["WAITLG q1"] + qrd(4)
        else:
            for n in (0, 2, 4, 6):
                if dm: gaps[n] = dm.pop(0) + gaps[n]
            if j == 2:
                gaps[1].insert(0, "WAITVM K1")
                for n in (1, 3, 5, 7): gaps[n] += [rdk.pop(0), rdk.pop(0)]
            if j == 3: gaps[1].insert(0, "WAITVM V0")
            if j >= 3:
                for n in (1, 3, 5, 7): gaps[n] += [rdv.pop(0), rdv.pop(0)]
        interleave(qk(j, 0, sb), gaps)
    emit(flat(dm))
    e(f"s_mov_b32 s{sCNT}, 0")
    emit(set_T(True, 3) + set_T(False, 2))
    e("s_waitcnt lgkmcnt(0)")
    stamp("pro")
    def base_iter(par):
        G = {g: [] for g in range(-1, 85)}; M = []
        for j in range(5):
            sb = (5*par + j) & 1
            M += qk(j, par ^ 1, sb) + pv(j, par)
            put_exp(G, 17*j, sb ^ 1, (j - 1) % 5)
        return M, G
    def half_va(par):
        kd = flat(kv_dma(True, KSLOT[par ^ 1], "lk", nop=False)); vd = flat(kv_dma(False, VSLOT[par], "lv", nop=False))
        G = {g: [] for g in range(-1, 80)}; M = []
        LR = [92, 93, 94, 95, 1]
        for j in range(5):
            sb = (5*par + j) & 1; b = 16*j; jp = (j - 1) % 5; r = vS + (sb ^ 1)*8
            M += qk(j, par ^ 1, sb) + pv(j, par)[:-1]
            ex = exps(sb ^ 1); cv = cvts(sb ^ 1, jp)
            for n in range(8):
                G[b + 2*n].append(ex[n])
                G[b + 2*n + 1].append(f"v_add_f32 {v(LR[jp])}, {v(LR[jp])}, {v(r + n)}")
                if n & 1: G[b + 2*n + 1].append(cv[n >> 1])
        dpos = [1, 5, 11, 15, 21, 25, 31, 35, 41, 45, 51, 55, 61, 65, 71, 75]; mpos = [-1, 17, 37, 57]
        ev = "vaexp" in X
        if ev:
            vpos = [27, 28, 29, 30, 32, 33, 34, 36, 38, 39, 40, 42, 43, 44, 46, 47]; kpos = [59, 60, 62, 63, 64, 66, 67, 68]; vw, kw = 26, 58; tpos = [69, 77, 23, 39]
        else:
            vpos = [27, 29, 29, 33, 33, 37, 39, 41, 43, 45, 47, 49, 49, 53, 53, 57]; kpos = [61, 63, 65, 67, 69, 69, 73, 73]; vw, kw = 25, 59; tpos = [77, 77, 19, 43]
        dma = vd + kd
        for p, s in zip(mpos, [s for s in dma if "m0" in s]): G[p].append(s)
        for p, s in zip(dpos, [s for s in dma if "m0" not in s]): G[p].append(s)
        G[kw].append(f"s_waitcnt vmcnt({sum(1 for p in dpos if p <= kw)})")
        for p, s in zip(kpos, kreads(par)): G[p].append(s)
        G[vw].append(f"s_waitcnt vmcnt({8 + sum(1 for p in dpos if p <= vw)})")
        for p, s in zip(vpos, vreads(par ^ 1)): G[p].append(s)
        for p, r in zip(tpos, (sTK, sTK2, sTV, sTV2)): G[p].append(f"s_add_u32 s{r}, s{r}, s{sSTEP}")
        if par == 0: G[13].append(f"s_add_u32 s{sCNT}, s{sCNT}, 1"); G[79].append(f"s_cmp_eq_u32 s{sCNT}, 3")
        G[79].insert(0, "s_waitcnt lgkmcnt(0)")
        G = {g: [s for s in l if not isv(s)] + [s for s in l if isv(s)] for g, l in G.items()}
        interleave(M, G)
    def half(par):
        if "va" in X or "vaexp" in X: return half_va(par)
        kd = flat(kv_dma(True, KSLOT[par ^ 1], "lk", nop=False)); vd = flat(kv_dma(False, VSLOT[par], "lv", nop=False))
        dma = vd + kd if VF else kd + vd
        M, G = base_iter(par)
        for p, s in zip(S["mpos"], [s for s in dma if "m0" in s]): G[p].append(s)
        for p, s in zip(S["dpos"], [s for s in dma if "m0" not in s]): G[p].append(s)
        G[S["kw"]].append(f"s_waitcnt vmcnt({(0 if VF else 8) + sum(1 for p in S['dpos'] if p <= S['kw'])})")
        for p, s in zip(S["kpos"], kreads(par)): G[p].append(s)
        G[S["vw"]].append(f"s_waitcnt vmcnt({(8 if VF else 0) + sum(1 for p in S['dpos'] if p <= S['vw'])})")
        for p, s in zip(S["vpos"], vreads(par ^ 1)): G[p].append(s)
        for p, r in zip(S["tpos"], (sTK, sTK2, sTV, sTV2)): G[p].append(f"s_add_u32 s{r}, s{r}, s{sSTEP}")
        if par == 0: G[79].append(f"s_add_u32 s{sCNT}, s{sCNT}, 1"); G[84].append(f"s_cmp_eq_u32 s{sCNT}, 3")
        if VF: G[83].append("s_waitcnt lgkmcnt(0)")
        else: G[84].insert(0, "s_waitcnt lgkmcnt(15)"); G[7].append("s_waitcnt lgkmcnt(0)")
        G = {g: [s for s in l if not isv(s)] + [s for s in l if isv(s)] for g, l in G.items()}
        interleave(M, G)
    L.append(".p2align 6")
    lab("L_loop")
    if "unroll" in X:
        half(0); stamp("i0"); half(1); stamp("i1"); half(0); stamp("i2")
        if "nohook" not in X: e("s_branch L_hook")
        lab("L_back")
        half(1); stamp("i3"); half(0); e("s_branch L_exit")
    else:
        half(0)
        e("s_cbranch_scc1 L_exit")
        if "nohook" not in X: e(f"s_cmp_eq_u32 s{sCNT}, {opt('hk', 2)}"); e("s_cbranch_scc1 L_hook")
        lab("L_back")
        half(1)
        e("s_branch L_loop")
    lab("L_hook")
    emit([f"s_lshl_b32 s58, s{sB}, 2", f"s_add_u32 s58, s58, s{sI}", "s_lshl_b32 s58, s58, 2", f"s_add_u32 s58, s58, s{sW}",
          "s_lshl_b32 s58, s58, 12", f"s_lshl_b32 s59, s{sI}, 8", "s_sub_u32 s58, s58, s59", "v_add_u32 v2, s58, v3", "s_mov_b32 exec_hi, 0",
          f"buffer_load_dword {v(vJUNK)}, v2, {srd(SRD_WO)}, 0 offen"] +
         (["s_mov_b32 exec_hi, 0xff", f"buffer_load_dword {v(vJUNK)}, v3, {srd(SRD_O)}, s{sOOWN} offen"] if opt("tch", 2) == 0 else []) +
         ["s_mov_b32 exec_hi, -1", "s_branch L_back"])
    lab("L_exit")
    stamp("exit")
    if "cnt" in X: e(f"s_mov_b32 s{sOI}, 0")
    VM.ops = (["V5"]*8 + ["K6"]*8 + ["V6"]*8 + ["K7"]*8) if VF else (["K6"]*8 + ["V5"]*8 + ["K7"]*8 + ["V6"]*8); LG.ops = ["kr"]*8 + ["vr"]*16
    vXW = vKR; vXRD = vKR + 3; vWOO = vOK; vLW = vOV; vLR = vOV + 1
    def wo_dma(h):
        g = [f"s_add_u32 m0, s{sSLOT}, {WREG[h]}", f"s_add_u32 s{sT3}, s{sWOB+h}, 16384"]
        for pp in range(8):
            if pp == 4: g += [f"s_add_u32 m0, s{sSLOT}, {WREG[h] + 4096}", "NEXTGAP"]
            g.append(f"buffer_load_dwordx4 {v(vWOO + (pp & 3))}, {srd(SRD_WO)}, s{sWOB+h if pp < 4 else sT3} offen offset:{(pp & 3)*1024} lds @wo{h}")
        return g
    def paced(items, t, step):
        r = []
        for x in items:
            r.append((t, x))
            if any(y.startswith("buffer") for y in aslist(x)): t += step
        return r
    def unpark(dst, k): return f"v_accvgpr_read_b32 {v(dst)}, {a(aADR + k)}"
    def pstore(j, data, tag):
        return f"buffer_store_dwordx4 {v(data, 4)}, {v(vLIN)}, {srd(SRD_PI)}, s{sTK2 if j < 4 else sTV2} offen offset:{(j & 3)*1024} sc1 @{tag}"
    def ostore(j, data, tag):
        return f"buffer_store_dwordx4 {v(data, 4)}, {v(vLIN)}, {srd(SRD_O)}, " + (f"s{sOOWN} offen offset:{j*1024}" if j < 4 else f"s{sTK} offen") + " sc1 @" + tag
    def setflag(k, tag): return ["v_mov_b32 v2, 0", f"v_mov_b32 v3, s{sFOWN}", ["s_mov_b64 exec, 1", f"global_store_dword v3, v2, s[18:19] offset:{4*k} sc1 @{tag}", "s_mov_b64 exec, -1"]]
    M, G = base_iter(1)
    G[-1] += ["v_mov_b32 v1, 0", f"buffer_load_dword {v(vJUNK)}, v1, {srd(SRD_D)}, s{sT1} offen sc1 @hs"]
    if opt("tch", 2) == 1: G[1] += ["s_mov_b32 exec_hi, 0xff", f"buffer_load_dword v2, v3, {srd(SRD_O)}, s{sOOWN} offen", "s_mov_b32 exec_hi, -1"]
    G[7].append("s_waitcnt lgkmcnt(0)")
    G[S["kw"]].append("WAITVM K7")
    for p, s in zip(S["kpos"], kreads(1, "k7")): G[p].append(s)
    G[S["vw"]].append("WAITVM V6")
    for p, s in zip(S["vpos"], vreads(0, "v6")): G[p].append(s)
    G[83].append("WAITLG k7")
    hw = max(S["kw"], S["vw"]) + 1
    v7 = [x.replace("s_nop 0", "NEXTGAP") for x in flat(kv_dma(False, VSLOT[1], "V7"))]
    vm = [(0, v7[0])] + paced(v7[2:], 1 if VF else 8, 2)
    vm += paced([ostore(j, vSENT, "io") for j in range(5)], opt("ist", 24), opt("isp", 8))
    W0L = opt("w0t", 95) >= 85
    vm += [(20, unpark(vWOO + q, 6 + q)) for q in range(4)] + ([] if W0L else paced(wo_dma(0), opt("w0t", 95), opt("w0s", 3)))
    hsq = [f"s_add_u32 s{sTK}, s{sOOWN}, 4096", f"s_mov_b32 s{sTK2}, 5120",
           f"s_mov_b32 s{SRD_WS}, s18", f"s_mov_b32 s{SRD_WS+1}, s19", f"s_mov_b32 s{SRD_WS+2}, {WS_FLG + 65536}", f"s_mov_b32 s{SRD_WS+3}, 0x20000", f"s_mov_b32 s{sSPIN}, 0"]
    hsq = [(1, x) for x in hsq] + [(30, f"s_mov_b32 s{sTV2}, 9216"), (hw, "WAITVM hs"), (hw, f"v_readfirstlane_b32 s58, {v(vJUNK)}"), (hw, "NEXTGAP"),
           (hw, ["s_cmp_ge_u32 s58, 32", "s_cbranch_scc0 L_hs", "LABEL L_hsok"])]
    drain = sched(M, G, [hsq, vm], limits={1: opt('l5', 36)})
    drain(0); drain(1)
    stamp("t5")
    FO = [2, 3, 4, 5, 6, 7, 0, 1]
    HZ = opt("hz", 4)
    M = []; G = {7: ["s_waitcnt lgkmcnt(0)"]}; ix = {}
    for j in range(5):
        put_exp(G, len(M), (j & 1) ^ 1, (j - 1) % 5)
        M += qk(j, 1, j & 1) + pv(j, 0)
        if j >= 3: ix[f"p{j-3}"] = len(M); M += pv(j - 3, 1, FO)
    aW = [aK, aQ, aQ + 32, aV]
    aR = [aK + 32, aK + 44, aQ + 64]
    def msum(j):
        return [f"{MF} {v(oreg(k, j), 4)}, {a(aE + (2 if k == 0 else 0), 4)}, {a(aR[j % 3] + s*4, 4)}, {v(oreg(k, j), 4)}" for s in range(3) for k in range(2)]
    put_exp(G, len(M), 0, 4)
    BQ = [vS, vS + 4, vS + 8, vS + 12, vP, vP + 4, vP + 8, vP + 12]
    vWR2 = vVR; vOB = vVR + 2; vVER = vVR + 3; vCHK = vVR + 4; vPRB = vVR + 5; vPRD = vVR + 6; vOWN = vVR + 7; vT = vP + 16
    def bread(j, h, st):
        if h == 0: return [f"ds_read_b128 {v(BQ[st*4 + ks], 4)}, {v(vLIN)} offset:{OWNB[j] + ks*1024} @b{j}{h}" for ks in range(4)]
        return [f"ds_read_b128 {v(BQ[st*4 + ks], 4)}, {v(vOB)} offset:{OBOFF[j] + h*4096 + ks*1024} @b{j}{h}" for ks in range(4)]
    def proj(j, h, st):
        return [f"{MF} {v(oreg(2 + nn, j), 4)}, {a(aW[h] + (ks*2+nn)*4, 4)}, {v(BQ[st*4 + ks], 4)}, {'0' if h == 0 and ks == 0 else v(oreg(2 + nn, j), 4)}"
                for ks in range(4) for nn in range(2)]
    for nm, mm in (("s0", msum(0)), ("p2", pv(2, 1, FO)), ("p3", pv(3, 1, FO)), ("p4", pv(4, 1, FO))):
        ix[nm] = len(M); M += mm
    need = {}; NE = opt("ne4", 0)
    sibrd = {}; BO = opt('bo', 8)
    def group(j, h, st_, first, inbeat):
        g = len(M)
        if first: ix[f"q{j}"] = g
        M.extend(proj(j, h, st_)); ix[f"e{j}"] = len(M) - 1
        need.setdefault(g, []).append(f"!WAITLG b{j}{h}")
        r = bread(j, h, st_)
        if first and inbeat: sibrd[j] = r; return
        if first:
            need.setdefault(g - (BO if j else 7), []).extend([f"v{j}"] + ([OPT.get("pdm", "pp")] if j == opt("pd", 3) else []) + (["n4", "!WAITLG w4"] if j == opt("o4", 4) else []) + ["!s_barrier", f"!STAMP d{j}", f"!MARK d{j}"])
        g1 = g - 8 if (j or not first) else g - 7
        for k in range(4): G.setdefault(g1 + k // 2, []).append(r[k])
    for b in (1, 2, 3, 4):
        ix[f"s{b}"] = len(M); M += msum(b)
        ix[f"o{b-1}"] = len(M); M += proj(b - 1, 0, 0)
        j = b - 5 + NE
        if j >= 0:
            for h in (1, 2, 3): group(j, h, h & 1, h == 1, True)
    st_ = 0 if NE else 1
    O4 = opt("o4", 4)
    for j in range(NE, 5):
        for h in (1, 2, 3):
            if (j == O4 and h == (1 if j == 4 else 3)):
                if j == 4: group(4, 0, st_, True, False)
                else:
                    g = len(M); M.extend(proj(4, 0, st_)); need.setdefault(g, []).append("!WAITLG b40")
                    for k, x in enumerate(bread(4, 0, st_)): G.setdefault(g - 8 + k // 2, []).append(x)
                st_ ^= 1
            group(j, h, st_, h == 1 and not (j == 4 and O4 == 4), False); st_ ^= 1
    def wfr(h, base):
        return [f"ds_read_b64_tr_b16 {a(aW[h] + (ks*2+nn)*4 + jh*2, 2)}, {v(base+nn)} offset:{WREG[h] - R_A + ks*8192 + jh*4096} @f{h}" if h != 2 else
                f"ds_read_b64_tr_b16 {a(aW[h] + (ks*2+nn)*4 + jh*2, 2)}, {v(base+nn)} offset:{ks*8192 + jh*4096} @f{h}"
                for ks in range(4) for nn in range(2) for jh in range(2)]
    nx = [0]
    def xw(j):
        r = []; p = ix[f"p{j}"]
        for mrel in (1, 2, 3):
            t = vTMP + (nx[0] & 1)*4; nx[0] += 1
            ins = pack4(t, oreg(2*mrel, j), oreg(2*mrel + 1, j)) + [f"ds_write_b128 {v(vXW + mrel - 1)}, {v(t, 4)} offset:{XSLOT[j]} @x{j}"]
            r += [(p + 2*mrel - 1 + HZ, s) for s in ins]
            if mrel == 1: r.append((0, f"MARK xa{j}"))
        return r + [(p + 8 + HZ, f"ds_write_b32 {v(vLW)}, {a(aL + j*4)} offset:{j*256} @x{j}"), (0, f"MARK x{j}")]
    def xr(j):
        return [f"ds_read_b128 {v(vNM + j*4, 4)}, {v(vLR)} offset:{j*256} @l{j}"] + \
               [f"ds_read_b128 {a(aR[j % 3] + s*4, 4)}, {v(vXRD)} offset:{XSLOT[j] + s*1024} @r{j}" for s in range(3)] + [f"MARK r{j}"]
    def lsum(j):
        r = vNM + j*4
        return [(0, x) for x in [f"AFTER r{j} 2", f"WAITLG l{j}", f"v_add_f32 {v(r)}, {v(r)}, {v(r+1)}", f"v_add_f32 {v(r+2)}, {v(r+2)}, {v(r+3)}", f"v_add_f32 {v(r)}, {v(r)}, {v(r+2)}",
                f"v_subrev_u32 {v(r+1)}, {LO_BITS}, {v(r)}", [f"v_cmp_lt_u32 vcc, s{sRANGE}, {v(r+1)}", f"v_rcp_f32 {v(r)}, {v(r)}", "s_cbranch_vccnz L_fallback"]]]
    def norm(j):
        r0 = oreg(0, j); r1 = oreg(1, j); t = oreg(4, j)
        ins = [f"v_mul_f32 {v(r+q)}, {v(vNM+j*4)}, {v(r+q)}" for r in (r0, r1) for q in range(4)] + pack4(t, r0, r1) + sanit(t)
        ms = ostore(j, t, f"o{j}")
        PI = [int(x) for x in OPT.get("pi", "3,2,0,0,0").split(",")]
        pin_ = [pstore(k, vSENT, "ip") for k in range(sum(PI[:j]), sum(PI[:j+1]))]
        return [(ix[f"s{j}"] + 5 + HZ, x) for x in ins + [f"STAMP n{j}", ms, f"ds_write_b128 {v(vOWN)}, {v(t, 4)} offset:{OWNB[j]} @w{j}"] + pin_ + [f"MARK n{j}"]]
    def fetch(j):
        r = []
        for h in (1, 2, 3):
            dst = R_B + OBOFF[j] + h*4096
            if j < 4: r.append([f"s_add_u32 m0, s{sW1K}, {dst - j*1024}", "s_nop 0", f"buffer_load_dwordx4 {v(vLIN)}, {srd(SRD_O)}, s{sSIB+h} offen offset:{j*1024} sc1 lds @g{j}"])
            else: r.append([f"s_add_u32 m0, s{sW1K}, {dst}", f"s_add_u32 s{sT3}, s{sSIB+h}, 4096", f"buffer_load_dwordx4 {v(vLIN)}, {srd(SRD_O)}, s{sT3} offen sc1 lds @g{j}"])
        return r
    def vread(j): return [f"ds_read_b32 {v(vT + h)}, {v(vVER)} offset:{OBOFF[j] + h*4096} @t{j}" for h in (1, 2, 3)]
    def vtest(): return [f"v_max3_u32 {v(vT)}, {v(vT+1)}, {v(vT+2)}, {v(vT+3)}", f"v_cmp_eq_u32 vcc, -1, {v(vT)}"]
    def verify(j):
        return [[f"STAMP u{j}", f"WAITVM g{j}", f"STAMP w{j}"]] + vread(j) + [f"MARK t{j}", f"AFTER t{j} 3", f"WAITLG t{j}", vtest()[0], [vtest()[1], "s_nop 0", f"s_cbranch_vccnz L_refetch{j}", f"LABEL L_got{j}"], f"MARK v{j}"]
    def post(j):
        r0 = oreg(2, j)
        return [(ix[f"e{j}"] + HZ, x) for x in pack4(r0, r0, oreg(3, j)) + sanit(r0) + [pstore(j, r0, "pst")]]
    p0 = ix["p0"]
    hs = [(opt("fs", 62), x) for x in ["WAITVM io"] + setflag(0, "fs0")]
    hs += [(0, f"AFTER {OPT.get('fp', 'n3')} 0")] + [(0, x) for x in ["WAITVM ip"] + setflag(1, "fs1")] + [(0, "MARK fs1")]
    def bar(name, afters, waits): return [(0, f"AFTER {x} 0") for x in afters] + [(0, waits + ["s_barrier", f"STAMP {name}", f"MARK {name}"])]
    vs = [(70, unpark(vXW + q, q)) for q in range(4)] + [(70, unpark(vLW, 4)), (70, unpark(vLR, 5))]
    vs += xw(0) + bar("a", [], ["WAITLG x0"]) + lsum(0) + norm(0) + xw(1) + bar("b1", ["f0", "w2"], ["WAITVM wo2", "WAITLG x1", "WAITLG f0"])
    for j in (1, 2, 3):
        vs += xw(j + 1) + lsum(j) + norm(j) + bar(f"b{j+1}", {1: ["f1"], 2: ["w3"], 3: ["f2"]}[j], {1: ["WAITLG f1"], 2: ["WAITVM wo3"], 3: ["WAITLG f2"]}[j] + [f"WAITLG w{j}"])
    vs += lsum(4) + norm(4)
    ps = []
    for j in range(5):
        p = post(j)
        ps += p[:-1] + ([(0, f"AFTER d{opt('pd', 3)} 0")] if j == 0 else []) + p[-1:]
    rs = [(opt("v7r", 36), "WAITVM V7")] + [(0, x) for x in vreads(1, "v7")] + [(0, "MARK v7")]
    rs += [(68, unpark(vWR2, 10)), (68, unpark(vWR2 + 1, 11)), (68, f"v_add_u32 {v(vOB)}, {R_B}, {v(vLIN)}"), (68, f"v_add_u32 {v(vVER)}, s{sW1K}, {v(vOB)}"),
           (68, f"v_accvgpr_read_b32 {v(vPRB)}, {a(aPRB)}"), (68, f"v_add_u32 {v(vOWN)}, s{sW1K}, {v(vLIN)}"), (0, "MARK adr")]
    rs += [(0, "AFTER a 0")] + [(0, x) for x in xr(0)] + [(0, "AFTER w1 0"), (opt("aw", 108), ["WAITVM wo1", "s_barrier", "STAMP aw"])]
    rs += [(0, x) for x in wfr(0, vWR2)] + [(0, "MARK f0")]
    up = [f"v_add_u32 {v(vWR2+q)}, {R_C - R_A}, {v(vWR2+q)}" for q in range(2)]; dn = [f"v_subrev_u32 {v(vWR2+q)}, {R_C - R_A}, {v(vWR2+q)}" for q in range(2)]
    w1 = wfr(1, vWR2); w2 = wfr(2, vWR2)
    extra = {0: w1[:6], 1: w1[6:] + ["MARK f1"] + up + w2[:4], 2: w2[4:] + ["MARK f2"] + dn, 3: wfr(3, vWR2)[:8], 4: wfr(3, vWR2)[8:] + ["MARK f3"]}
    rs += [(0, x) for x in extra[0]]
    for j in (1, 2, 3, 4):
        rs += [(0, f"AFTER b{j} 0")] + [(ix[f"s{j-3}"] + 6 if j >= 3 else 0, x) for x in xr(j)]
        rs += [(ix[f"s{j}"] - 1, x) for x in bread(j - 1, 0, 0)] + [(0, f"MARK bo{j-1}")] + [(0, x) for x in extra[j]]
    MF4, MP = 0xF, 0xFF0000
    def probe(mask, tag=""): return [f"s_mov_b64 exec, {mask}", f"buffer_load_dword {v(vPRD)}, {v(vPRB)}, {srd(SRD_WS)}, 0 offen sc1" + tag, "s_mov_b64 exec, -1"]
    def test(mask): return [f"v_cmp_eq_u32 vcc, -1, {v(vPRD)}", "s_nop 0", f"s_and_b32 s58, vcc_lo, {mask}"]
    ds = (paced(wo_dma(0), opt("w0t", 95) - 85, opt("w0s", 3)) if W0L else []) + paced(wo_dma(1), opt("w1t", 36), opt("w1s", 3)) + [(0, "MARK w1")] + paced(wo_dma(2), opt("w2t", 62), opt("w2s", 3)) + [(0, "MARK w2")]
    ds += [(0, "AFTER adr 0"), (opt("pb", 119), probe(MF4, " @prb")), (0, "AFTER b1 0")] + paced(wo_dma(3), ix["s1"], opt("w3s", 2)) + [(0, "MARK w3")]
    ds += [(0, "WAITVM prb"), (0, test(MF4) + ["s_cbranch_scc1 L_waitf", "LABEL L_fok"])]
    FA = OPT.get("fa", "n2,n3,n4,n4,n4").split(","); FDL = [int(x) for x in OPT.get("fdl", "0,0,0,24,56").split(",")]
    for j in range(5):
        if j == 4: ds += [(0, f"AFTER {'b4' if NE >= 2 else 'd1'} 0")]
        ds += [(0, f"AFTER {FA[j]} {FDL[j]}")] + [(0, f"STAMP f{j}")] + [(0, g) for g in fetch(j)] + [(0, f"MARK g{j}")]
    ds += [(0, "AFTER fs1 0"), (0, probe(MP, " @prp")), (0, "MARK pp")]
    vf = []
    VDL = [int(x) for x in OPT.get("vdl", "20,30,40,40,40").split(",")]
    for j in range(5): vf += [(0, f"AFTER g{j} 1")] + [(ix[f"q{j}"] - (BO if j else 7) - opt("vb", 6), x) for x in verify(j)]
    G.setdefault(p0 - 1, []).extend(["WAITLG v7", "s_barrier", "STAMP bD"])
    need.setdefault(p0 - 1, []).extend(["v7"])
    need.setdefault(ix["q0"] + 16, []).extend(["f3", "!WAITLG f3"])
    for j in range(5): need.setdefault(ix[f"s{j}"], []).extend([f"r{j}"] + ([f"bo{j-1}"] if j else []) + ([f"xa{j+1}"] if j in (1, 2, 3) else []) + [f"!WAITLG r{j}"])
    for j in range(4): need.setdefault(ix[f"o{j}"], []).append(f"!WAITLG b{j}0")
    fin = [f"s_and_b32 s{sT0}, s{sHKV}, 1", f"s_sub_u32 s{sT2}, 3, s{sT0}", f"s_mul_i32 s{sT0}, s{sT0}, 3", f"s_add_u32 s{sT0}, s{sT0}, s{sW}",
           "s_and_b32 s98, s2, 0xf8", f"s_mul_i32 s98, s98, {WGS}", f"s_lshr_b32 s99, s{sHKV}, 1", f"s_mul_i32 s99, s99, {WVS}", "s_add_u32 s98, s98, s99",
           f"s_lshl_b32 s99, s{sT0}, 10", "s_add_u32 s98, s98, s99", f"s_add_u32 s{sMODE}, s98, 5120",
           f"s_lshl_b32 s{sT0}, s{sT0}, 4", f"s_mul_i32 s98, s{sB}, 80", f"s_add_u32 s{sT0}, s{sT0}, s98", f"s_lshl_b32 s{sT0}, s{sT0}, 10",
           f"s_lshl_b32 s98, s{sI}, 8", f"s_add_u32 s{sT0}, s{sT0}, s98", f"s_lshr_b32 s98, s{sHKV}, 1", "s_lshl_b32 s98, s98, 6", f"s_add_u32 s{sT0}, s{sT0}, s98",
           "v_lshlrev_b32 v9, 10, v4", "v_lshl_add_u32 v9, v5, 3, v9",
           f"s_mov_b32 s{SRD_K}, s14", f"s_mov_b32 s{SRD_K+1}, s15", f"s_mov_b32 s{SRD_K+2}, 655360", f"s_mov_b32 s{SRD_K+3}, 0x20000"]
    drain = sched(M, G, [hs, ds, vf, vs, rs, ps, [(ix["q1"], x) for x in fin]], need=need, limit=opt("lim", 16), limits={1: 28, 2: 24})
    for k in range(7): drain(k)
    stamp("pst")
    if "cnt" in X: e(f"s_mov_b32 s{sCNT}, s{sOI}")
    e(f"s_cmp_ge_u32 s{sW}, s{sT2}"); e("s_cbranch_scc1 L_fin")
    e("WAITVM prp")
    emit(test(MP)); e("s_cbranch_scc1 L_waitp")
    lab("L_pok")
    if opt("slp", 0):
        e(f"s_bitcmp1_b32 s{sHKV}, 0"); e("s_cbranch_scc0 L_nosl"); e(f"s_sleep {opt('slp', 0)}"); lab("L_nosl")
    fB = vO + 100
    def redloads():
        e(f"s_mov_b32 s{sT1}, s{sMODE}")
        for p in range(8):
            e(f"buffer_load_dwordx4 {v(fB + p*4, 4)}, {v(vLIN)}, {srd(SRD_WS)}, s{sT1} offen sc1")
            if p < 7: e(f"s_add_u32 s{sT1}, s{sT1}, {WGS}")
    redloads()
    lab("L_red")
    e(f"v_mov_b32 {v(vCHK)}, 0")
    for p in range(8):
        e(f"s_waitcnt vmcnt({7-p})")
        for k in range(2):
            d = v(vS + k*4, 4)
            e(f"{MF} {d}, {a(aE + (2 if k == 0 else 0), 4)}, {v(fB + p*4, 4)}, {'0' if p == 0 else d}")
            if k == 0: e(f"v_max_u32 {v(vCHK)}, {v(vCHK)}, {v(fB + p*4)}")
    e(f"v_cmp_eq_u32 vcc, -1, {v(vCHK)}")
    e("s_nop 4")
    e("s_cbranch_vccnz L_redo")
    lab("L_redok")
    e("s_nop 0")
    e(f"v_cvt_pk_bf16_f32 {v(vS)}, {v(vS)}, {v(vS+1)}"); e(f"v_cvt_pk_bf16_f32 {v(vS+1)}, {v(vS+2)}, {v(vS+3)}")
    e(f"v_cvt_pk_bf16_f32 {v(vS+4)}, {v(vS+4)}, {v(vS+5)}"); e(f"v_cvt_pk_bf16_f32 {v(vS+5)}, {v(vS+6)}, {v(vS+7)}")
    OF = OPT.get("outf", "").replace("_", " ")
    e(f"buffer_store_dwordx2 {v(vS, 2)}, v9, {srd(SRD_K)}, s{sT0} offen {OF}")
    e(f"buffer_store_dwordx2 {v(vS+4, 2)}, v9, {srd(SRD_K)}, s{sT0} offen offset:32 {OF}")
    lab("L_fin")
    stamp("fin")
    if STAMPS and "cnt" in X:
        i = nstamp[0]; nstamp[0] += 1
        e(f"s_add_u32 s{sSTAMP+2*i}, s{sSTAMP+2*i-2}, s{sCNT}"); e(f"s_addc_u32 s{sSTAMP+2*i+1}, s{sSTAMP+2*i-1}, 0")
    write_stamps()
    lab("L_done")
    e("s_endpgm")
    lab("L_redo")
    emit(spin("L_redok")); redloads(); e("s_branch L_red")
    lab("L_hs")
    e("v_mov_b32 v2, 0"); e("s_sleep 4")
    e(f"buffer_load_dword {v(vJUNK)}, v2, {srd(SRD_D)}, s{sT1} offen sc1"); e("s_waitcnt vmcnt(0)")
    emit(spin("L_hsok"))
    e(f"v_readfirstlane_b32 s58, {v(vJUNK)}"); e("s_nop 0"); e("s_cmp_ge_u32 s58, 32"); e("s_cbranch_scc0 L_hs"); e("s_branch L_hsok")
    for nm, mask, ok in (("L_waitf", MF4, "L_fok"), ("L_waitp", MP, "L_pok")):
        lab(nm)
        if "cnt" in X and nm == "L_waitf": e(f"s_add_u32 s{sOI}, s{sOI}, {1 << 15}")
        e("s_sleep 2"); emit(probe(mask)); e("s_waitcnt vmcnt(0)")
        emit(spin(ok)); emit(test(mask)); e(f"s_cbranch_scc1 {nm}"); e(f"s_branch {ok}")
    for j in range(5):
        lab(f"L_refetch{j}")
        if "cnt" in X: e(f"s_add_u32 s{sOI}, s{sOI}, {1 << (3*j)}")
        emit(spin(f"L_got{j}")); emit(fetch(j)); e("s_waitcnt vmcnt(0)")
        emit(vread(j)); e("s_waitcnt lgkmcnt(0)"); emit(vtest()); e("s_nop 1")
        e(f"s_cbranch_vccnz L_refetch{j}"); e(f"s_branch L_got{j}")
    if TB:
        lab("L_touch")
        for x in TB:
            e(f"s_mov_b32 s58, {int(x[1])*8192}")
            if opt("tm", 2) == 2: e(f"s_xor_b32 s58, s58, s{sMIR}")
            if len(x) > 2: e("s_mov_b32 exec_hi, 0") if x[2] == "a" else e("s_mov_b32 exec_lo, 0")
            L.append(f"    buffer_load_dword {v(vJUNK)}, v3, {srd(SRD_K if x[0] == 'K' else SRD_V)}, s58 offen")
        e("s_mov_b64 exec, -1"); e("s_branch L_touched")
    lab("L_fallback")
    e("s_waitcnt vmcnt(0) lgkmcnt(0)")
    e("s_barrier")
    e(f"s_mov_b32 s{sRANGE}, -1")
    e("s_branch L_restart")
    lab("L_rowmax")
    e("s_waitcnt vmcnt(0) lgkmcnt(0)")
    emit(qrd(1) + qrd(2)); e("s_waitcnt lgkmcnt(0)"); emit(qrd(3) + qrd(4))
    vA = vP; vM = vP + 4
    for ds in range(4): e(f"v_subrev_u32 {v(vA+ds)}, {R_A - R_D}, {v(vKR+ds)}")
    for j in range(5): e(f"v_mov_b32 {v(vM+j)}, 0xff800000")
    e(f"s_mov_b32 s{sTK}, 0"); e(f"s_mov_b32 s{sTK2}, 4096")
    lab("L_fbmax")
    emit(flat(kv_dma(True, R_D, "f")))
    e("s_waitcnt vmcnt(0)")
    emit(kreads(0, base=vA, buf=1))
    e("s_waitcnt lgkmcnt(0)")
    for j in range(5):
        emit(qk(j, 1, 0, cinit="0")); e("s_nop 7")
        for n in range(4): e(f"v_max3_f32 {v(vM+j)}, {v(vM+j)}, {v(vS+2*n)}, {v(vS+2*n+1)}")
    e(f"s_add_u32 s{sTK}, s{sTK}, 8192"); e(f"s_add_u32 s{sTK2}, s{sTK2}, 8192")
    e(f"s_cmp_lt_u32 s{sTK}, 65536"); e("s_cbranch_scc1 L_fbmax")
    for j in range(5):
        for op in ("v_permlane32_swap_b32", "v_permlane16_swap_b32"):
            e(f"v_mov_b32 v1, {v(vM+j)}"); e("s_nop 1"); e(f"{op} {v(vM+j)}, v1"); e("s_nop 1"); e(f"v_max_f32 {v(vM+j)}, {v(vM+j)}, v1")
    e(unpark(1, 4)); e(unpark(2, 5))
    for j in range(5): e(f"ds_write_b32 v1, {v(vM+j)} offset:{j*256}")
    e("s_waitcnt lgkmcnt(0)"); e("s_barrier")
    for j in range(5): e(f"ds_read_b128 {v(vNM+j*4, 4)}, v2 offset:{j*256}")
    e("s_waitcnt lgkmcnt(0)")
    for j in range(5):
        r = vNM + j*4
        e(f"v_max3_f32 {v(r)}, {v(r)}, {v(r+1)}, {v(r+2)}"); e(f"v_max_f32 {v(r)}, {v(r)}, {v(r+3)}"); e(f"v_sub_f32 {v(r)}, 0, {v(r)}")
        for q in (1, 2, 3): e(f"v_mov_b32 {v(r+q)}, {v(r)}")
    e("s_branch L_noat")
    lab("L_end")

hdr = open("standalone__gqa_block_cached__near_ridge.s.ref").read().split("\n")
for ln in hdr:
    if ln.startswith("; @launch"): continue
    if not ln.startswith(";"): break
    L.append(ln)
L.append("; @launch grid=(256,1,1) block=(256,1,1) lds=163840")
L.append('.amdgcn_target "amdgcn-amd-amdhsa--gfx950"')
L.append(".text")
kernel()
L.append('.section .rodata,"a"')
L.append(".p2align 6"); L.append(f".amdhsa_kernel {KN}")
for s in ["next_free_vgpr 512", "next_free_sgpr 102", "accum_offset 256", "group_segment_fixed_size 0", "kernarg_size 64", "user_sgpr_count 2", "user_sgpr_kernarg_segment_ptr 1", "system_sgpr_workgroup_id_x 1"]:
    L.append("  .amdhsa_" + s)
L.append(".end_amdhsa_kernel")
import hazard
L = hazard.fix(L)
print("\n".join(L))
```

```python
import sys, math, struct, re, os
sys.path.insert(0, os.path.dirname(os.path.abspath(__file__)))

X = set(a[2:] for a in sys.argv[1:] if a.startswith("--") and "=" not in a)
OPT = dict(a[2:].split("=") for a in sys.argv[1:] if a.startswith("--") and "=" in a)
def opt(k, d): return int(OPT.get(k, d))
STAMPS = "stamps" in X
KN = "standalone__gqa_block_cached__near_ridge_kernel"
L = []

class Tr:
    def __init__(s): s.ops = []
    def add(s, tag): s.ops.append(tag)
    def need(s, tag):
        idx = max(i for i, t in enumerate(s.ops) if t == tag)
        return len(s.ops) - 1 - idx
VM = Tr(); LG = Tr()

def lab(s): L.append(s + ":")
def e(s):
    if s.startswith("LABEL "): lab(s[6:]); return
    if s.startswith("MARK "): return
    if s.startswith("STAMP "): stamp(s[6:]); return
    if s == "NEXTGAP": s = "s_nop 0"
    tag = None
    if " @" in s: s, tag = s.split(" @")
    op = s.split()[0]
    if op == "WAITVM":
        n = VM.need(s.split()[1]); s = f"s_waitcnt vmcnt({min(n, 63)})"
    elif op == "WAITLG":
        n = LG.need(s.split()[1]); s = f"s_waitcnt lgkmcnt({min(n, 15)})"
    elif op.startswith("buffer_") or op.startswith("global_"): VM.add(tag)
    elif op.startswith("ds_"): LG.add(tag)
    L.append("    " + s)
def aslist(it): return it if isinstance(it, list) else [it]
def emit(lst):
    for it in lst:
        for s in aslist(it): e(s)
def flat(groups): return [s for g in groups for s in aslist(g)]
def capture(fn):
    keep = list(L); del L[:]
    fn()
    out = [x.strip() for x in L]; L[:] = keep
    return out

QSCALE = 1.4426950408889634 / math.sqrt(128.0)
def f2u(x): return struct.unpack("<I", struct.pack("<f", x))[0]

S_ST = [0, 53248, 106496, 0]
R_D, R_QX, R_A, R_B, R_C, R_SP = 0, 32768, 53248, 86016, 118784, 151552
KSLOT = [R_A, R_B]; VSLOT = [R_C, R_D]
XSLOT = [0, 12288, 24576, 0, 12288]
OWNB = [36864, 40960, 45056, 49152, 36864]
OBOFF = [0, 16384, 32768, 49152, 0]
WREG = [R_A, R_B, R_C, R_A]
WS_PART = 8 << 20
WS_FLG = 16 << 20
WS_STAMP = 128 << 20
WGS = 40960; WVS = 10240
HEADSTRIDE = 64 * WGS
LO_BITS = 0x21800000
RANGE = 0x3C000000
sW, sHKV, sB, sI, sRANGE = 3, 20, 21, 22, 23
sWOB, sSIB, sOI = 4, 8, 12
SRD_X, SRD_WQ, SRD_K, SRD_V, SRD_O, SRD_WO, SRD_PI = 24, 28, 32, 36, 40, 44, 64
SRD_WS, SRD_D = 24, 28
sTK, sTK2, sTV, sTV2, sSLOT, sCNT = 48, 49, 50, 51, 52, 53
sT0, sT1, sT2, sT3 = 54, 55, 56, 57
sOOWN, sW5K, sSPIN, sFOWN = 60, 61, 62, 63
sSTAMP = 68
sMODE, sXCC, sWB, sXB, sSTEP, sMIR, sW1K, sQS = 89, 90, 91, 92, 93, 94, 95, 96
vKR = 8; vVR = 12; vOK = 20; vOV = 24; vLIN = 26; vJUNK = 27
vP = 28; vS = 48; vNM = 64; vTMP = 84; vO = 96
vVRC = vTMP; vSENT = vTMP + 8; vQW = 73
aQ = 0; aK = 80; aV = 144; aL = 208; aE = 228; aPRB = 234; aADR = 235; aONE = 248

def srd(r): return f"s[{r}:{r+3}]"
def v(r, n=1): return f"v{r}" if n == 1 else f"v[{r}:{r+n-1}]"
def a(r, n=1): return f"a{r}" if n == 1 else f"a[{r}:{r+n-1}]"
MF = "v_mfma_f32_16x16x32_bf16"
SPIN_MAX = opt("spin", 400000)

nstamp = [0]
def stamp(name=""):
    if OPT.get("delay") == name:
        for _ in range(8): L.append("    s_nop 15")
    if not STAMPS: return
    sel = OPT.get("st")
    if sel and name not in sel.split(","): return
    i = nstamp[0]; nstamp[0] += 1
    assert sSTAMP + 2*i + 1 < 89
    sys.stderr.write(f"{i}:{name} ")
    L.append(f"    {'s_memtime' if 'cyc' in X else 's_memrealtime'} s[{sSTAMP+2*i}:{sSTAMP+2*i+1}]")
    L.append("    s_waitcnt lgkmcnt(0)")
def write_stamps():
    if not STAMPS: return
    if "amp" in X:
        e("s_cmp_ge_u32 s2, 8"); e("s_cbranch_scc1 L_done")
        e(f"s_cmp_lg_u32 s{sW}, 0"); e("s_cbranch_scc1 L_done")
        e("s_memrealtime s[80:81]"); e("s_waitcnt lgkmcnt(0)")
        e(f"s_sub_u32 s82, s{sSTAMP+2}, s{sSTAMP}"); e("s_min_u32 s82, s82, 5000"); e("s_mul_i32 s82, s82, 10"); e("s_add_u32 s82, s82, s80")
        lab("L_amp")
        e("s_memrealtime s[84:85]"); e("s_waitcnt lgkmcnt(0)"); e("s_sub_u32 s86, s84, s82"); e("s_cmp_lt_i32 s86, 0"); e("s_cbranch_scc1 L_amp")
        return
    n = nstamp[0]
    e("s_lshl_b32 s58, s2, 2"); e(f"s_add_u32 s58, s58, s{sW}"); e(f"s_mul_i32 s58, s58, {n*8}"); e(f"s_add_u32 s58, s58, {WS_STAMP}")
    e("s_add_u32 s58, s18, s58"); e("s_addc_u32 s59, s19, 0")
    e("s_mov_b64 exec, 1"); e("v_mov_b32 v1, 0")
    for i in range(n):
        e(f"v_mov_b32 v2, s{sSTAMP+2*i}"); e(f"v_mov_b32 v3, s{sSTAMP+2*i+1}")
        e(f"global_store_dwordx2 v1, v[2:3], s[58:59] offset:{i*8}"); e("s_nop 1")
    sys.stderr.write(f"\nstamps: {n}\n")

njit = [0]
def jitter(mask, sh):
    if "jitter" not in X: return
    k = njit[0]; njit[0] += 1
    e(f"s_mul_i32 s98, s2, {2654435761 >> (k + 3)}"); e(f"s_mul_i32 s99, s{sW}, {40503 * (k + 1)}"); e("s_add_u32 s98, s98, s99")
    e(f"s_lshr_b32 s98, s98, {sh}"); e(f"s_and_b32 s98, s98, {mask}")
    lab(f"L_jit{k}"); e("s_cmp_eq_u32 s98, 0"); e(f"s_cbranch_scc1 L_jite{k}"); e("s_sleep 8"); e("s_sub_u32 s98, s98, 1"); e(f"s_branch L_jit{k}"); lab(f"L_jite{k}")
def mk_srd(r, pbase, off_sgpr, size):
    return [f"s_add_u32 s{r}, s{pbase}, s{off_sgpr}", f"s_addc_u32 s{r+1}, s{pbase+1}, 0", f"s_mov_b32 s{r+2}, {size}", f"s_mov_b32 s{r+3}, 0x20000"]

PSEUDO = ("MARK", "LABEL", "STAMP")
WIDE = ("ds_write_b128", "buffer_store_dwordx4")
def isv(s): return s.startswith("v_")
def gaptime(ins):
    ins = [s for s in ins if not s.startswith(PSEUDO)]
    nv = [s for s in ins if not isv(s)]
    t = 4
    if nv: t += 20 if nv[0].startswith(WIDE) else 4
    first = True
    for s in ins:
        if not isv(s):
            if first: first = False; continue
            t += 24 if s.startswith(WIDE) else 4
        else:
            t = max(t, 8) + (8 if s.startswith(("v_exp", "v_rcp")) else 4)
    return t
def order_gap(items):
    def indep(k):
        x = items[k]
        if isinstance(x, list) or x.startswith(("v_",) + PSEUDO + WIDE + ("ds_write",)): return False
        return all(isinstance(y, str) and isv(y) and not y.startswith(("v_accvgpr_read", "v_mov", "v_cmp", "v_readf", "v_add_u32", "v_subrev")) for y in items[:k])
    for k in range(1, len(items)):
        if indep(k): items.insert(0, items.pop(k)); break
    return items
def interleave(mfmas, gaps):
    emit(gaps.get(-1, []))
    for i, m in enumerate(mfmas):
        e(m); emit(gaps.get(i, []))
def sched(mfmas, fixed, streams, need=None, limit=16, limits=None):
    need = need or {}
    streams = [list(s) for s in streams]
    done = {}
    cur = [0]
    def put(it):
        for s in aslist(it):
            if s.startswith("MARK "): done[s[5:]] = cur[0]
            e(s)
    def flush(mark):
        if mark in done: return
        for st in streams:
            if any(f"MARK {mark}" in aslist(it) for _, it in st):
                while mark not in done:
                    it = st.pop(0)[1]
                    if isinstance(it, str) and it.startswith("AFTER "): flush(it.split()[1]); continue
                    put(it)
                return
        raise Exception("mark " + mark)
    cur[0] = -1
    for it in fixed.get(-1, []): put(it)
    for i, m in enumerate(mfmas):
        cur[0] = i - 1
        for mk in need.get(i, []):
            if mk.startswith("!"): put(mk[1:])
            else: flush(mk)
        e(m)
        cur[0] = i
        items = list(fixed.get(i, []))
        closed = any(s.startswith("v_exp") for s in flat(items))
        blocked = set(); prog = True; seen = dict(done)
        for s in flat(items):
            if s.startswith("MARK "): seen[s[5:]] = i
        while prog:
            prog = False
            for k, st in enumerate(streams):
                if k in blocked or not st: continue
                rdy, it = st[0]
                if it == "NEXTGAP": st.pop(0); blocked.add(k); continue
                if isinstance(it, str) and it.startswith("AFTER "):
                    _, mk, d = it.split()
                    if mk in seen and seen[mk] + int(d) <= i: st.pop(0); prog = True; break
                    continue
                if rdy > i: continue
                real = [s for s in aslist(it) if not s.startswith(PSEUDO)]
                empty = not [s for s in flat(items) if not s.startswith(PSEUDO)]
                if not real or (not closed and (empty or gaptime(flat(items) + real) <= (limits or {}).get(k, limit))):
                    st.pop(0); items.append(it); prog = True
                    for s in aslist(it):
                        if s.startswith("MARK "): seen[s[5:]] = i
                    break
        for it in order_gap(items): put(it)
    cur[0] = len(mfmas)
    def drain(k):
        st = streams[k]
        while st:
            it = st.pop(0)[1]
            if isinstance(it, str) and it.startswith("AFTER "): flush(it.split()[1]); continue
            put(it)
    return drain

def kv_dma(isK, slot_base, tag, nop=True):
    g = []
    for p in range(8):
        grp = []
        if p % 4 == 0:
            grp.append(f"s_add_u32 m0, s{sSLOT}, {slot_base + (p // 4) * 4096}")
            if nop: grp.append("s_nop 0")
        vo = vOK + (p >> 1) if isK else vOV + ((p >> 1) & 1)
        so = (sTK if isK else sTV) + (0 if p < 4 else 1)
        grp.append(f"buffer_load_dwordx4 {v(vo)}, {srd(SRD_K if isK else SRD_V)}, s{so} offen offset:{(p % 4)*1024} lds @{tag}")
        g.append(grp)
    return g
NSH = opt("nsh", 0)
def set_T(isK, t):
    r = sTK if isK else sTV
    if t < NSH: return [f"s_mov_b32 s{r}, {t*8192}", f"s_mov_b32 s{r+1}, {t*8192+4096}"]
    return [f"s_mul_i32 s{r}, s{sSTEP}, {t}", f"s_add_u32 s{r}, s{r}, s{sMIR}", f"s_add_u32 s{r+1}, s{r}, 4096"]
def kreads(slot, tag="kr", base=vKR, buf=None):
    buf = slot if buf is None else buf
    return [f"ds_read_b128 {a(aK + buf*32 + (kt*4+ds)*4, 4)}, {v(base+ds)} offset:{(KSLOT[slot]-R_A) + kt*1024} @{tag}" for kt in range(2) for ds in range(4)]
def vreads(slot, tag="vr"):
    base = vVRC if slot == 0 else vVR
    return [f"ds_read_b64_tr_b16 {a(aV + slot*32 + k*4 + jh*2, 2)}, {v(base+k)} offset:{jh*1024} @{tag}" for k in range(8) for jh in range(2)]
def qk(j, kbuf, sbuf, cinit=None):
    m = []
    for kt in range(2):
        for ds in range(4):
            d = v(vS + sbuf*8 + kt*4, 4)
            c = (cinit or v(vNM + j*4, 4)) if ds == 0 else d
            m.append(f"{MF} {d}, {a(aK + kbuf*32 + (kt*4+ds)*4, 4)}, {a(aQ + (j*4+ds)*4, 4)}, {c}")
    return m
def oreg(k, j): return vO + (k*5+j)*4
def pv(j, vbuf, ks=range(8)):
    m = [f"{MF} {v(oreg(k, j), 4)}, {a(aV + vbuf*32 + k*4, 4)}, {v(vP + j*4, 4)}, {v(oreg(k, j), 4)}" for k in ks]
    m.append(f"{MF} {a(aL + j*4, 4)}, {a(aONE, 4)}, {v(vP + j*4, 4)}, {a(aL + j*4, 4)}")
    return m
def exps(sbuf): return [f"v_exp_f32 {v(vS + sbuf*8 + n)}, {v(vS + sbuf*8 + n)}" for n in range(8)]
def cvts(sbuf, j): return [f"v_cvt_pk_bf16_f32 {v(vP + j*4 + n)}, {v(vS + sbuf*8 + 2*n)}, {v(vS + sbuf*8 + 2*n+1)}" for n in range(4)]
def put_exp(G, base, sbuf, j):
    ex = exps(sbuf); cv = cvts(sbuf, j)
    for n in range(8): G.setdefault(base + 2*n, []).append(ex[n])
    for n in range(4): G.setdefault(base + 4*n + 3, []).append(cv[n])
def pack4(t, r0, r1):
    return [f"v_cvt_pk_bf16_f32 {v(t)}, {v(r0)}, {v(r0+1)}", f"v_cvt_pk_bf16_f32 {v(t+1)}, {v(r0+2)}, {v(r0+3)}",
            f"v_cvt_pk_bf16_f32 {v(t+2)}, {v(r1)}, {v(r1+1)}", f"v_cvt_pk_bf16_f32 {v(t+3)}, {v(r1+2)}, {v(r1+3)}"]
def sanit(t): return [f"v_min_u32 {v(t)}, -2, {v(t)}"]
def spin(lbl): return [f"s_add_u32 s{sSPIN}, s{sSPIN}, 1", f"s_cmp_ge_u32 s{sSPIN}, {SPIN_MAX}", f"s_cbranch_scc1 {lbl}"]
if "loopinit" not in X and "earlyinit" not in X: X.add("lateinit")
EARLYINIT = "earlyinit" in X
LINIT = opt("linit", 0)
if LINIT: X.discard("lateinit"); X.add("wt")
LATEINIT = "lateinit" in X or EARLYINIT or LINIT
P_INIT0 = f"buffer_store_dwordx4 {v(vSENT, 4)}, {v(vLIN)}, {srd(SRD_PI)}, 0 offen sc1"
TOUCH = ["s_mov_b64 exec, 0xff", f"buffer_load_dword {v(vJUNK)}, v3, {srd(SRD_O)}, s{sOI} offen"] + \
        ([f"buffer_load_dword {v(vJUNK)}, v2, {srd(SRD_WO)}, s{sOI} offen"] if "wsp" in X else []) + ["s_mov_b64 exec, -1"]
S = dict(dpos=[1, 5, 9, 13, 20, 24, 28, 32, 37, 43, 49, 54, 60, 66, 71, 77], mpos=[-1, 16, 35, 58],
         kw=33, kpos=[33, 35, 39, 39, 41, 43, 45, 47],
         vw=50, vpos=[50, 52, 52, 56, 56, 60, 62, 64, 64, 67, 67, 69, 69, 73, 73, 75], tpos=[18, 47, 77, 79])
VF = "kfirst" not in X
if VF:
    S = dict(dpos=[9, 13, 18, 22, 26, 30, 35, 39, 45, 49, 54, 58, 64, 69, 73, 77], mpos=[5, 24, 41, 60],
             vw=28, vpos=[28, 30, 32, 33, 33, 35, 37, 39, 43, 43, 47, 47, 50, 50, 52, 52],
             kw=56, kpos=[56, 60, 62, 64, 66, 67, 67, 69], tpos=[71, 81, 33 + 8, 43 + 2])
if VF and OPT.get("sched") == "b":
    S = dict(dpos=[1, 5, 11, 16, 22, 26, 32, 37, 43, 47, 52, 58, 64, 69, 73, 77], mpos=[-1, 18, 39, 60],
             vw=28, vpos=[28, 30, 30, 33, 33, 35, 35, 39, 41, 43, 45, 47, 49, 50, 50, 52],
             kw=60, kpos=[62, 64, 66, 67, 67, 69, 71, 73], tpos=[75, 81, 24, 41])
if VF and OPT.get("sched") == "c":
    S = dict(dpos=[1, 5, 9, 13, 18, 22, 26, 30, 35, 39, 45, 49, 54, 58, 62, 66], mpos=[-1, 16, 33, 52],
             vw=37, vpos=[39, 41, 43, 43, 45, 47, 47, 49, 50, 50, 52, 54, 56, 56, 58, 60],
             kw=64, kpos=[64, 67, 67, 69, 69, 71, 73, 73], tpos=[60, 75, 20, 32])
GLUE = ("s_addc_u32", "s_cselect_b32", "s_subb_u32")

def kernel():
    L.append(f".globl {KN}"); L.append(".p2align 8"); L.append(f".type {KN},@function"); lab(KN)
    e("s_cmp_ge_u32 s2, 256"); e("s_cbranch_scc1 L_done")
    e("v_lshrrev_b32 v1, 6, v0")
    e("v_and_b32 v0, 63, v0")
    e(f"v_readfirstlane_b32 s{sW}, v1")
    e(f"s_mov_b32 s{sRANGE}, {RANGE}")
    lab("L_restart")
    e("s_load_dwordx16 s[4:19], s[0:1], 0")
    e(f"s_and_b32 s{sHKV}, s2, 7"); e(f"s_lshr_b32 s{sB}, s2, 3"); e(f"s_and_b32 s{sB}, s{sB}, 7"); e(f"s_lshr_b32 s{sI}, s2, 6")
    stamp("start")
    jitter(63, 7)
    e("s_getpc_b64 s[58:59]"); lab("L_pc0")
    e(f"s_sub_u32 s58, s58, L_pc0-{KN}"); e("s_subb_u32 s59, s59, 0")
    e(f"s_lshr_b32 s{sT3}, s2, 3"); e(f"s_lshl_b32 s{sT3}, s{sT3}, 2"); e(f"s_add_u32 s{sT3}, s{sT3}, s{sW}"); e(f"s_lshl_b32 s{sT3}, s{sT3}, 8")
    e("v_lshlrev_b32 v3, 7, v0"); e(f"v_add_u32 v2, s{sT3}, v3"); e(f"v_min_u32 v2, L_end-{KN}-4, v2")
    e("s_mov_b64 exec, 3"); e(f"global_load_dword {v(vJUNK)}, v2, s[58:59] @pfc"); e("s_mov_b64 exec, -1")
    e("v_and_b32 v4, 15, v0"); e("v_lshrrev_b32 v5, 4, v0"); e("v_bfe_u32 v6, v0, 2, 2"); e("v_and_b32 v7, 3, v0")
    vXO = vTMP; vWO = vTMP + 4; vXR = vTMP + 6; vWR = vTMP + 10
    e("v_xor_b32 v1, v4, v5")
    for pp in range(4):
        e(f"s_add_u32 s{sT0}, s{sW}, {pp}"); e(f"s_and_b32 s{sT0}, s{sT0}, 3"); e(f"s_lshl_b32 s{sT0}, s{sT0}, 2")
        e(f"v_xor_b32 v2, s{sT0}, v1"); e("v_lshlrev_b32 v2, 4, v2"); e(f"v_lshl_add_u32 {v(vXO+pp)}, v5, 10, v2")
    e("v_lshlrev_b32 v2, 1, v5"); e("v_xor_b32 v2, v4, v2"); e("v_lshlrev_b32 v2, 4, v2")
    e(f"v_lshl_add_u32 {v(vWO)}, v5, 13, v2"); e(f"v_xor_b32 {v(vWO+1)}, 128, {v(vWO)}")
    e(f"v_lshl_add_u32 {v(vOV)}, v5, 8, v2"); e(f"v_xor_b32 {v(vOV+1)}, 128, {v(vOV)}")
    e(f"s_mul_i32 s58, s{sB}, 81920")
    e(f"s_lshl_b32 s59, s{sHKV}, 2"); e(f"s_add_u32 s59, s59, s{sI}"); e("s_lshl_b32 s59, s59, 8")
    e(f"s_sub_u32 s{sT3}, 4194304, s59")
    e(f"s_mul_i32 s{sT0}, s{sW}, 20480"); e(f"s_mul_i32 s{sW5K}, s{sW}, 5120")
    e(f"s_lshl_b32 s{sT2}, s{sW}, 18"); e(f"s_lshl_b32 s{sSLOT}, s{sW}, 13")
    XB = [sTK, sTK2, sXB, sT0]; WB = [sTV, sTV2, sWB, sT2]
    e(f"s_add_u32 s{sCNT}, s{sB}, s{sI}")
    for cc in range(4):
        e(f"s_add_u32 s{sSPIN}, s{sCNT}, {cc}"); e(f"s_and_b32 s{sSPIN}, s{sSPIN}, 3")
        e(f"s_lshl_b32 s{sOOWN}, s{sSPIN}, 8"); e(f"s_add_u32 s{XB[cc]}, s{sT0}, s{sOOWN}")
        e(f"s_lshl_b32 s{sOOWN}, s{sSPIN}, 20"); e(f"s_add_u32 s{WB[cc]}, s{sT2}, s{sOOWN}")
    e(f"v_lshlrev_b32 {v(vLIN)}, 4, v0")
    e(f"s_mul_i32 s98, s2, {WGS}"); e(f"s_lshl_b32 s99, s{sW5K}, 1"); e("s_add_u32 s98, s98, s99"); e("s_mov_b32 s101, 9216")
    for q in range(4): e(f"v_mov_b32 v{76+q}, -1")
    e("s_waitcnt lgkmcnt(0)")
    emit(mk_srd(SRD_X, 4, 58, 81920)); emit(mk_srd(SRD_WQ, 10, 59, f"s{sT3}"))
    def p1_dma(cc):
        g = []
        for pp in range(5):
            g.append([f"s_add_u32 m0, s{sW5K}, {S_ST[cc] + pp*1024}", f"s_add_u32 s{sT3}, s{XB[cc]}, {pp*4096}",
                      f"buffer_load_dwordx4 {v(vXO + (pp & 3))}, {srd(SRD_X)}, s{sT3} offen lds @c{cc}"])
        for pp in range(8):
            g.append([f"s_add_u32 m0, s{sSLOT}, {S_ST[cc] + 20480 + pp*1024}", f"s_add_u32 s{sT3}, s{WB[cc]}, {4*pp*8192}",
                      f"buffer_load_dwordx4 {v(vWO + ((pp >> 1) & 1))}, {srd(SRD_WQ)}, s{sT3} offen lds @c{cc}"])
        return g
    c01 = p1_dma(0) + p1_dma(1)
    n0 = opt("n0", 16)
    t0, t1, t2, u1, u2 = 68, 69, 70, 71, 72
    def setup():
        U1, U2, T0, T1, T2 = v(u1), v(u2), v(t0), v(t1), v(t2)
        e(f"s_lshl_b32 s98, s{sB}, 3"); e(f"s_add_u32 s98, s98, s{sHKV}"); e("s_lshl_b32 s98, s98, 18")
        e(f"s_lshl_b32 s99, s{sW}, 16"); e("s_add_u32 s98, s98, s99")
        emit(mk_srd(SRD_K, 6, 98, 65536)); emit(mk_srd(SRD_V, 8, 98, 65536))
        e(f"s_bitcmp1_b32 s{sI}, 0"); e(f"s_cselect_b32 s{sMIR}, {(7 + NSH)*8192}, 0"); e(f"s_cselect_b32 s{sSTEP}, -1, 1"); e(f"s_lshl_b32 s{sSTEP}, s{sSTEP}, 13")
        e(f"v_lshlrev_b32 {U2}, 4, v1"); e(f"v_lshl_add_u32 {v(vXR)}, v4, 8, {U2}")
        for ks in range(1, 4): e(f"v_xor_b32 {v(vXR+ks)}, {ks*64}, {v(vXR)}")
        e(f"v_lshl_add_u32 {v(vOK)}, v5, 8, {U2}")
        for q in range(1, 4): e(f"v_xor_b32 {v(vOK+q)}, {q*64}, {v(vOK)}")
        e(f"v_lshrrev_b32 {T0}, 2, v4"); e(f"v_lshlrev_b32 {T0}, 3, {T0}"); e(f"v_and_b32 {U1}, 3, v4"); e(f"v_add_u32 {T0}, {T0}, {U1}")
        e(f"v_lshl_add_u32 {U2}, {T0}, 8, {U2}"); e(f"v_add_u32 {U2}, s{sSLOT}, {U2}"); e(f"v_add_u32 {v(vKR)}, {R_A}, {U2}")
        for ds in range(1, 4): e(f"v_xor_b32 {v(vKR+ds)}, {ds*64}, {v(vKR)}")
        e(f"v_lshl_add_u32 {U2}, v5, 3, v6"); e(f"v_lshlrev_b32 {U2}, 8, {U2}"); e(f"v_lshl_add_u32 {U2}, v7, 3, {U2}")
        e(f"v_and_b32 {T0}, 1, v5"); e(f"v_lshl_add_u32 {T0}, {T0}, 2, v6")
        e(f"s_lshl_b32 s98, s{sW}, 1")
        for k in range(8):
            e(f"s_add_u32 s99, s98, {k}"); e("s_and_b32 s99, s99, 7")
            e(f"v_xor_b32 {U1}, s99, {T0}"); e(f"v_lshl_add_u32 {U1}, {U1}, 5, {U2}")
            if k < 2: e(f"v_add_u32 {v(vWR+k)}, 20480, {U1}")
            e(f"v_add_u32 {v(vVR+k)}, s{sSLOT}, {U1}")
        for r in range(160): e(f"v_mov_b32 {v(vO+r)}, 0")
        e("s_and_b32 s98, s2, 63"); e(f"s_mul_i32 s98, s98, {WGS}"); emit(mk_srd(SRD_O, 18, 98, 3*HEADSTRIDE + WGS))
        e(f"s_mul_i32 s{sOOWN}, s{sI}, {HEADSTRIDE}"); e(f"s_lshl_b32 s100, s{sW5K}, 1"); e(f"s_add_u32 s{sOOWN}, s{sOOWN}, s100")
        e(f"s_lshl_b32 s{sFOWN}, s2, 2"); e(f"s_add_u32 s{sFOWN}, s{sFOWN}, s{sW}"); e(f"s_lshl_b32 s{sFOWN}, s{sFOWN}, 6"); e(f"s_add_u32 s{sFOWN}, s{sFOWN}, {WS_FLG}")
        e("s_and_b32 s98, s2, 63"); e("s_lshl_b32 s98, s98, 2"); e(f"s_add_u32 s98, s98, s{sW}"); e("s_lshl_b32 s98, s98, 6"); e(f"s_add_u32 s98, s98, {WS_FLG}")
        e(f"v_and_b32 {T0}, 3, v0"); e(f"v_lshl_add_u32 {T0}, {T0}, 14, s98")
        e("s_and_b32 s98, s2, 0xf8"); e("s_lshl_b32 s98, s98, 8"); e(f"s_lshr_b32 s99, s{sHKV}, 1"); e("s_lshl_b32 s99, s99, 6")
        e("v_cmp_gt_u32 vcc, 16, v0"); e("s_add_u32 s98, s98, s99"); e(f"s_add_u32 s98, s98, {WS_FLG + 4}")
        e(f"v_and_b32 {T1}, 7, v0"); e(f"v_lshl_add_u32 {T1}, {T1}, 8, s98"); e(f"v_cndmask_b32 {T0}, {T1}, {T0}, vcc")
        e(f"v_accvgpr_write_b32 {a(aPRB)}, {T0}")
        e(f"s_lshl_b32 s98, s{sHKV}, 19"); e(f"s_lshl_b32 s99, s{sI}, 8"); e("s_add_u32 s98, s98, s99"); e("s_sub_u32 s99, 524288, s99")
        emit(mk_srd(SRD_WO, 12, 98, "s99"))
        e(f"v_lshlrev_b32 {U1}, 2, v5"); e(f"v_sub_u32 {U1}, v4, {U1}"); e(f"v_and_b32 {U2}, 1, {U1}"); e(f"v_lshlrev_b32 {U2}, 4, {U2}")
        e(f"v_mov_b32 {T0}, 0x3f80"); e(f"v_lshlrev_b32 {U2}, {U2}, {T0}"); e(f"v_lshrrev_b32 {U1}, 1, {U1}")
        e(f"v_cmp_eq_u32 vcc, 0, {U1}"); e(f"v_accvgpr_write_b32 {a(aE)}, 0"); e(f"v_accvgpr_write_b32 {a(aE+1)}, 0"); e(f"v_cndmask_b32 {T0}, 0, {U2}, vcc")
        e(f"v_cmp_eq_u32 vcc, 1, {U1}"); e(f"v_accvgpr_write_b32 {a(aE+4)}, 0"); e(f"v_accvgpr_write_b32 {a(aE+5)}, 0"); e(f"v_cndmask_b32 {T1}, 0, {U2}, vcc")
        e(f"v_accvgpr_write_b32 {a(aE+2)}, {T0}"); e(f"v_accvgpr_write_b32 {a(aE+3)}, {T1}")
        for mrel in (1, 2, 3, 0):
            e(f"s_add_u32 s99, s{sW}, {mrel}"); e("s_and_b32 s99, s99, 3"); e("s_mul_i32 s98, s99, 3072")
            if mrel > 1: e(f"s_add_u32 s98, s98, {(mrel-1)*1024}")
            e(f"v_add_u32 {U1}, s98, {v(vLIN)}"); e(f"v_accvgpr_write_b32 {a(aADR + (mrel - 1) % 4)}, {U1}")
        e(f"s_lshl_b32 s98, s{sW}, 2"); e(f"s_add_u32 s98, s98, {R_SP}"); e(f"v_lshl_add_u32 {U1}, v4, 4, s98"); e(f"v_accvgpr_write_b32 {a(aADR+4)}, {U1}")
        e(f"v_lshlrev_b32 {U1}, 4, v4"); e(f"v_add_u32 {U1}, {R_SP}, {U1}"); e(f"v_accvgpr_write_b32 {a(aADR+5)}, {U1}")
        e(f"v_and_b32 {U1}, 1, v5"); e(f"v_lshlrev_b32 {U1}, 1, {U1}"); e(f"v_xor_b32 {U1}, v4, {U1}"); e(f"v_lshlrev_b32 {U1}, 4, {U1}"); e(f"v_lshl_add_u32 {U1}, v5, 12, {U1}")
        for q in range(4): e(f"v_xor_b32 {U2}, {q*64}, {U1}"); e(f"v_accvgpr_write_b32 {a(aADR+6+q)}, {U2}")
        e(f"v_lshl_add_u32 {U2}, v6, 2, v5"); e(f"v_lshlrev_b32 {U2}, 8, {U2}"); e(f"v_lshl_add_u32 {U2}, v7, 3, {U2}")
        e(f"v_and_b32 {T0}, 1, v5"); e(f"v_lshl_add_u32 {T0}, v6, 1, {T0}")
        e(f"s_lshl_b32 s98, s{sW}, 1")
        for k in range(2):
            e(f"s_add_u32 s99, s98, {k}")
            e(f"v_xor_b32 {U1}, s99, {T0}"); e(f"v_lshl_add_u32 {U1}, {U1}, 5, {U2}"); e(f"v_add_u32 {U1}, {R_A}, {U1}"); e(f"v_accvgpr_write_b32 {a(aADR+10+k)}, {U1}")
        for h in range(4):
            e(f"s_add_u32 s98, s{sI}, {h}"); e("s_and_b32 s98, s98, 3")
            e(f"s_mul_i32 s99, s98, {HEADSTRIDE}"); e(f"s_add_u32 s{sSIB+h}, s99, s100")
            e("s_lshl_b32 s98, s98, 2"); e(f"s_add_u32 s98, s98, s{sW}"); e(f"s_lshl_b32 s{sWOB+h}, s98, 15")
        e(f"s_lshl_b32 s{sW1K}, s{sW}, 10")
        for r in range(20): e(f"v_accvgpr_write_b32 {a(aL+r)}, 0")
        e(f"v_mov_b32 {U1}, 0x3f803f80")
        for r in range(4): e(f"v_accvgpr_write_b32 {a(aONE+r)}, {U1}")
        e(f"s_mov_b32 s{sQS}, {f2u(QSCALE)}"); e(f"s_lshl_b32 s98, s{sW}, 2")
        Q = v(vQW); Q1 = v(vQW + 1)
        e(f"v_lshrrev_b32 {Q}, 1, v5"); e(f"v_add_u32 {Q}, s98, {Q}"); e(f"v_xor_b32 {Q}, {Q}, v4"); e(f"v_lshlrev_b32 {Q}, 4, {Q}")
        e(f"v_lshl_add_u32 {Q}, v4, 8, {Q}"); e(f"v_and_b32 {Q1}, 1, v5"); e(f"v_lshl_add_u32 {Q}, {Q1}, 3, {Q}"); e(f"v_add_u32 {Q}, {R_QX}, {Q}"); e(f"v_xor_b32 {Q1}, 32, {Q}")
    fill = capture(setup)
    ne = min(opt("ne", 420), len(fill))
    while ne < len(fill) and fill[ne].split()[0] in GLUE: ne += 1
    early, fill = fill[:ne], fill[ne:]
    groups = list(c01[:n0])
    pin = [[f"buffer_store_dwordx4 v[76:79], {v(vLIN)}, {srd(SRD_PI)}, " + (f"0 offen offset:{j*1024}" if j < 4 else "s101 offen") + " sc1 @ip"] for j in range(5)] if EARLYINIT else []
    tch = []
    for nm, isK, t in (("tk0", True, 0), ("tv0", False, 0), ("tk1", True, 1)):
        n = opt(nm, 0)
        if n: tch.append([f"s_mul_i32 s58, s{sSTEP}, {t}", f"s_add_u32 s58, s58, s{sMIR}", f"s_lshr_b32 s59, s{sI}, 1", "s_lshl_b32 s59, s59, 12", "s_add_u32 s58, s58, s59",
                          f"s_mov_b64 exec, {(1 << n) - 1}" if n < 32 else "s_mov_b32 exec_hi, 0", f"buffer_load_dword {v(vJUNK)}, v3, {srd(SRD_K if isK else SRD_V)}, s58 offen @tch", "s_mov_b64 exec, -1"])
    tp = opt("tp", 13)
    if tp < 90: groups = groups[:tp] + tch + groups[tp:]; tch = []
    ipos = opt("ipos", 99)
    if ipos < 90: groups = groups[:ipos] + pin + groups[ipos:]; pin = []
    for _ in range(4): emit(groups.pop(0))
    emit(mk_srd(SRD_PI, 18, 98, WVS))
    per = max(1, min(len(early), 260) // (len(groups) + 1)); k = 0
    while early:
        L.append("    " + early.pop(0)); k += 1
        if k >= per and groups and (not early or early[0].split()[0] not in GLUE): emit(groups.pop(0)); k = 0
    emit(flat(groups))
    fg = []
    for x in fill:
        if fg and x.split()[0] in GLUE: fg[-1].append(x)
        else: fg.append([x])
    flag_reset = ["s_mov_b64 exec, 1", f"v_mov_b32 v2, s{sFOWN}",
                  "global_store_dwordx2 v2, v[76:77], s[18:19] sc1 @frst", "s_mov_b64 exec, -1"]
    acc = vP; aX = aV; aWf = aV + 40; aX3 = aQ; aW3 = aK + 32
    def reads(cc, ks):
        buf = ks & 1
        r = [f"ds_read_b64_tr_b16 {a(aWf + buf*8 + dd*4 + jh*2, 2)}, {v(vWR+dd)} offset:{ks*8192 + jh*1024}" for dd in range(2) for jh in range(2)]
        return r + [f"ds_read_b128 {a(aX + buf*20 + j*4, 4)}, {v(vXR+ks)} offset:{j*4096} @p{cc}{ks}{j}" for j in range(5)]
    def wrd(ks): return [f"ds_read_b64_tr_b16 {a(aW3 + (ks*2+dd)*4 + jh*2, 2)}, {v(vWR+dd)} offset:{ks*8192 + jh*1024} @w{ks}" for dd in range(2) for jh in range(2)]
    def xrd(j, ks): return f"ds_read_b128 {a(aX3 + (j*4+ks)*4, 4)}, {v(vXR+ks)} offset:{j*4096} @x{j}{ks}"
    TL = OPT.get("tlb", "")
    if TL:
        assert not fill
        e("s_mov_b64 exec, 1"); e("v_mov_b32 v2, 0")
        if "v" in TL: e(f"buffer_load_dword {v(vJUNK)}, v2, {srd(SRD_V)}, 0 offen")
        if "k" in TL: e(f"buffer_load_dword {v(vJUNK)}, v2, {srd(SRD_K)}, 0 offen")
        if "w" in TL: e(f"buffer_load_dword {v(vJUNK)}, v2, {srd(SRD_WO)}, 0 offen")
        if "s" in TL:
            for h in range(4): e(f"buffer_load_dword {v(vJUNK)}, v2, {srd(SRD_O)}, s{sSIB+h} offen")
            e(f"v_mov_b32 v1, s{sFOWN}"); e(f"global_load_dword {v(vJUNK)}, v1, s[18:19]")
        if "o" in TL:
            e(f"s_mul_i32 s58, s{sB}, 81920"); e("v_mov_b32 v1, s58"); e(f"global_load_dword {v(vJUNK)}, v1, s[14:15]")
        if "d" in TL: e(f"global_load_dword {v(vJUNK)}, v2, s[16:17]")
        e("s_mov_b64 exec, -1")
    e("WAITVM c0"); e("s_barrier"); stamp("c0")
    emit(reads(0, 0))
    TB = [x for x in OPT.get("tb", "K0,V0a").split(",") if x and x != "no"]
    if TB:
        tgrp = [f"s_and_b32 s58, s{sB}, 1", f"s_lshr_b32 s59, s{sI}, 1", "s_cmp_eq_u32 s58, s59", f"s_cselect_b32 s58, s{sMIR}, 0x10000", "s_cselect_b64 exec, -1, 1"]
        for x in TB:
            if len(x) > 2: tgrp.append("s_mov_b32 exec_hi, 0")
            if x[1] != "0": tgrp.append(f"s_xor_b32 s59, s58, {int(x[1])*8192}")
            tgrp.append(f"buffer_load_dword {v(vJUNK)}, v3, {srd(SRD_K if x[0] == 'K' else SRD_V)}, s{58 if x[1] == '0' else 59} offen @tch")
        tgrp.append("s_mov_b64 exec, -1")
        if opt("tq", 10) == 0: emit(tgrp)
    M = []; G = {g: [] for g in range(-1, 160)}
    for cc in range(3):
        for ks in range(4):
            g0 = len(M); buf = ks & 1
            for j in range(5):
                for dd in range(2):
                    d = v(acc + (j*2+dd)*4, 4)
                    M.append(f"{MF} {d}, {a(aWf + buf*8 + dd*4, 4)}, {a(aX + buf*20 + j*4, 4)}, {'0' if (cc == 0 and ks == 0) else d}")
            G[g0 - 1].append(f"WAITLG p{cc}{ks}1"); G[g0 + 3].append(f"WAITLG p{cc}{ks}4")
            if ks < 3:
                r = reads(cc, ks + 1)
                G[g0] += r[0:3]; G[g0 + 1] += r[3:6]; G[g0 + 2] += r[6:9]
            else:
                dl = [53248, 53248, -106496][cc]
                adj = [f"v_add_u32 {v(vXR+q)}, {dl}, {v(vXR+q)}" for q in range(4)] + [f"v_add_u32 {v(vWR+q)}, {dl}, {v(vWR+q)}" for q in range(2)]
                for gi in range(3): G[g0 + gi] += adj[2*gi:2*gi+2]
                G[g0 + 3] += [f"WAITVM c{cc+1}", "s_barrier", f"STAMP c{cc+1}"]
                r = reads(cc + 1, 0) if cc < 2 else (wrd(0) + [xrd(0, 0)] + wrd(1) + [xrd(0, 1)] + wrd(2) + [xrd(0, 2)])
                for gi in range(5): G[g0 + 4 + gi] += r[3*gi:3*gi+3]
    posts = []
    for j in range(5):
        g0 = len(M)
        for ks in range(4):
            for dd in range(2):
                d = v(acc + (j*2+dd)*4, 4)
                M.append(f"{MF} {d}, {a(aW3 + (ks*2+dd)*4, 4)}, {a(aX3 + (j*4+ks)*4, 4)}, {d}")
        if j == 0:
            G[g0 - 1].append("WAITLG x00"); G[g0] += wrd(3)[:3]; G[g0 + 1] += [wrd(3)[3], xrd(0, 3), "WAITLG x01"]
            G[g0 + 2] += [xrd(1, 0), xrd(1, 1)]; G[g0 + 3] += ["WAITLG x02", xrd(1, 2), xrd(1, 3)]
            G[g0 + 5] += ["WAITLG x03", "s_barrier"]
        else:
            G[g0 - 1].append(f"WAITLG x{j}3")
            if j < 4:
                for ks in range(4): G[g0 + ks].append(xrd(j + 1, ks))
        for dd in range(2):
            r = acc + (j*2+dd)*4
            p = [f"v_mul_f32 {v(r+q)}, s{sQS}, {v(r+q)}" for q in range(4)]
            p += [f"v_cvt_pk_bf16_f32 {v(r)}, {v(r)}, {v(r+1)}", f"v_cvt_pk_bf16_f32 {v(r+1)}, {v(r+2)}, {v(r+3)}",
                  f"ds_write_b64 {v(vQW + dd)}, {v(r, 2)} offset:{j*4096} @qw"]
            posts += [(g0 + 8 + 2, x) for x in p]
    c2 = p1_dma(2); c3 = p1_dma(3); k0d = kv_dma(True, R_A, "K0"); k0d[0] = set_T(True, 0) + k0d[0]
    ka, kb, late, nv0, sp3 = opt("ka", 3), opt("kb", 8), opt("late", 22), opt("nv0", 4), opt("dsp3", 4)
    v0g = kv_dma(False, R_C, "V0"); v0g[0] = set_T(False, 0) + v0g[0]
    k1g = kv_dma(True, R_B, "K1"); k1g[0] = set_T(True, 1) + k1g[0]
    dq = [(0, g) for g in c01[n0:] + tch + c2[:ka]] + [(late, g) for g in c2[ka:kb]] + [(34, g) for g in c2[kb:] + c3[:ka]] + \
         [(40 + late, g) for g in c3[ka:kb]] + [(74, g) for g in c3[kb:] + (pin if ipos == 99 else []) + k0d[:ka]] + [(80 + opt("latek", late), g) for g in k0d[ka:kb] + [flag_reset]] + \
         [(114, g) for g in k0d[kb:] + (pin if ipos == 98 else []) + k1g + v0g[:nv0]]
    if TB and opt("tq", 10):
        k = opt("tq", 10); dq.insert(k, (dq[k - 1][0], tgrp))
    left = []; t = 0
    rush = opt("rush", 0); last = [g for r_, g in dq if r_ == 114][:rush]
    for g in last: G[113] += list(g); dq.remove((114, g))
    for rdy, g in dq:
        t = max(t, rdy)
        while t < 160 and (sum(1 for x in G[t] if x.startswith("ds_read")) > (1 if t >= 120 else 0) or "s_barrier" in G[t]): t += 1
        if t < 160: G[t] = G[t] + list(g)
        else: left.append(g)
        t += 1 if t < 114 else sp3
    drain = sched(M, G, [posts, [(0, g) for g in fg] + [(0, "MARK fill")]], need={33: ["fill"]}, limit=20)
    for ks in range(4): e(f"v_add_u32 {v(vXR+ks)}, {R_QX}, {v(vXR+ks)}")
    e(f"s_mov_b32 s{SRD_D}, s16"); e(f"s_mov_b32 s{SRD_D+1}, s17"); e(f"s_mov_b32 s{SRD_D+2}, 256"); e(f"s_mov_b32 s{SRD_D+3}, 0x20000")
    drain(0); emit(left)
    e("WAITVM frst"); e("WAITLG qw"); e("s_barrier")
    stamp("Bq")
    def qrd(j): return [f"ds_read_b128 {a(aQ + (j*4+ds)*4, 4)}, {v(vXR+ds)} offset:{j*4096} @q{j}" for ds in range(4)]
    emit(qrd(0))
    e("WAITVM K0")
    emit(kreads(0, "k0"))
    for r in range(20): e(f"v_mov_b32 {v(vNM+r)}, 0")
    e(f"s_lshl_b32 s{sT1}, s{sB}, 5")
    e(f"s_cmp_eq_u32 s{sRANGE}, -1"); e("s_cbranch_scc1 L_rowmax")
    e(f"s_cmp_lg_u32 s{sW}, 0"); e("s_cbranch_scc1 L_noat")
    e("s_mov_b64 exec, 1"); e("v_mov_b32 v1, 1"); e("v_mov_b32 v2, 0")
    L.append(f"    buffer_atomic_add v1, v2, {srd(SRD_D)}, s{sT1} offen sc1")
    e("s_mov_b64 exec, -1")
    lab("L_noat")
    e("WAITLG q0"); emit(qrd(1)); e("WAITLG k0"); emit(qrd(2) + qrd(3))
    k2g = kv_dma(True, R_A, "K2"); k2g[0] = set_T(True, 2) + k2g[0]
    v1g = kv_dma(False, R_D, "V1"); v1g[0] = set_T(False, 1) + v1g[0]
    dm = v0g[nv0:] + (v1g + k2g if VF else k2g + v1g)
    rdk = kreads(1, "k1"); rdv = vreads(0, "v0")
    for j in range(5):
        sb = (5 + j) & 1
        gaps = {g: [] for g in range(-1, 8)}
        if j > 0:
            gaps[-1].append(f"WAITLG q{j}")
            ex = exps(sb ^ 1); cv = cvts(sb ^ 1, j - 1)
            for n in range(8): gaps[n].append(ex[n])
            gaps[2].append(cv[0]); gaps[4].append(cv[1]); gaps[6].append(cv[2]); gaps[7] += ["s_nop 0", cv[3]]
        if j == 1: gaps[-1] += [f"v_add_u32 {v(vVRC+k)}, {R_C}, {v(vVR+k)}" for k in range(8)] + [f"v_mov_b32 {v(vSENT+q)}, -1" for q in range(4)]
        if j == 0:
            for n in range(8):
                if dm: gaps[n] += dm.pop(0)
            gaps[3] += ["WAITLG q1"] + qrd(4)
        else:
            for n in (0, 2, 4, 6):
                if dm: gaps[n] = dm.pop(0) + gaps[n]
            if j == 2:
                gaps[1].insert(0, "WAITVM K1")
                for n in (1, 3, 5, 7): gaps[n] += [rdk.pop(0), rdk.pop(0)]
            if j == 3: gaps[1].insert(0, "WAITVM V0")
            if j >= 3:
                for n in (1, 3, 5, 7): gaps[n] += [rdv.pop(0), rdv.pop(0)]
        interleave(qk(j, 0, sb), gaps)
    emit(flat(dm))
    e(f"s_mov_b32 s{sCNT}, 0")
    emit(set_T(True, 3) + set_T(False, 2))
    e("s_waitcnt lgkmcnt(0)")
    stamp("pro")
    jitter(15, 9)
    def base_iter(par):
        G = {g: [] for g in range(-1, 85)}; M = []
        for j in range(5):
            sb = (5*par + j) & 1
            M += qk(j, par ^ 1, sb) + pv(j, par)
            put_exp(G, 17*j, sb ^ 1, (j - 1) % 5)
        return M, G
    def half_va(par):
        kd = flat(kv_dma(True, KSLOT[par ^ 1], "lk", nop=False)); vd = flat(kv_dma(False, VSLOT[par], "lv", nop=False))
        G = {g: [] for g in range(-1, 80)}; M = []
        LR = [92, 93, 94, 95, 1]
        for j in range(5):
            sb = (5*par + j) & 1; b = 16*j; jp = (j - 1) % 5; r = vS + (sb ^ 1)*8
            M += qk(j, par ^ 1, sb) + pv(j, par)[:-1]
            ex = exps(sb ^ 1); cv = cvts(sb ^ 1, jp)
            for n in range(8):
                G[b + 2*n].append(ex[n])
                G[b + 2*n + 1].append(f"v_add_f32 {v(LR[jp])}, {v(LR[jp])}, {v(r + n)}")
                if n & 1: G[b + 2*n + 1].append(cv[n >> 1])
        dpos = [1, 5, 11, 15, 21, 25, 31, 35, 41, 45, 51, 55, 61, 65, 71, 75]; mpos = [-1, 17, 37, 57]
        ev = "vaexp" in X
        if ev:
            vpos = [27, 28, 29, 30, 32, 33, 34, 36, 38, 39, 40, 42, 43, 44, 46, 47]; kpos = [59, 60, 62, 63, 64, 66, 67, 68]; vw, kw = 26, 58; tpos = [69, 77, 23, 39]
        else:
            vpos = [27, 29, 29, 33, 33, 37, 39, 41, 43, 45, 47, 49, 49, 53, 53, 57]; kpos = [61, 63, 65, 67, 69, 69, 73, 73]; vw, kw = 25, 59; tpos = [77, 77, 19, 43]
        dma = vd + kd
        for p, s in zip(mpos, [s for s in dma if "m0" in s]): G[p].append(s)
        for p, s in zip(dpos, [s for s in dma if "m0" not in s]): G[p].append(s)
        G[kw].append(f"s_waitcnt vmcnt({sum(1 for p in dpos if p <= kw)})")
        for p, s in zip(kpos, kreads(par)): G[p].append(s)
        G[vw].append(f"s_waitcnt vmcnt({8 + sum(1 for p in dpos if p <= vw)})")
        for p, s in zip(vpos, vreads(par ^ 1)): G[p].append(s)
        for p, r in zip(tpos, (sTK, sTK2, sTV, sTV2)): G[p].append(f"s_add_u32 s{r}, s{r}, s{sSTEP}")
        if par == 0: G[13].append(f"s_add_u32 s{sCNT}, s{sCNT}, 1"); G[79].append(f"s_cmp_eq_u32 s{sCNT}, 3")
        G[79].insert(0, "s_waitcnt lgkmcnt(0)")
        G = {g: [s for s in l if not isv(s)] + [s for s in l if isv(s)] for g, l in G.items()}
        interleave(M, G)
    def half(par):
        if "va" in X or "vaexp" in X: return half_va(par)
        kd = flat(kv_dma(True, KSLOT[par ^ 1], "lk", nop=False)); vd = flat(kv_dma(False, VSLOT[par], "lv", nop=False))
        dma = vd + kd if VF else kd + vd
        M, G = base_iter(par)
        for p, s in zip(S["mpos"], [s for s in dma if "m0" in s]): G[p].append(s)
        for p, s in zip(S["dpos"], [s for s in dma if "m0" not in s]): G[p].append(s)
        G[S["kw"]].append(f"s_waitcnt vmcnt({(0 if VF else 8) + sum(1 for p in S['dpos'] if p <= S['kw'])})")
        for p, s in zip(S["kpos"], kreads(par)): G[p].append(s)
        G[S["vw"]].append(f"s_waitcnt vmcnt({(8 if VF else 0) + sum(1 for p in S['dpos'] if p <= S['vw'])})")
        for p, s in zip(S["vpos"], vreads(par ^ 1)): G[p].append(s)
        for p, r in zip(S["tpos"], (sTK, sTK2, sTV, sTV2)): G[p].append(f"s_add_u32 s{r}, s{r}, s{sSTEP}")
        if par == 0: G[79].append(f"s_add_u32 s{sCNT}, s{sCNT}, 1"); G[84].append(f"s_cmp_eq_u32 s{sCNT}, 3")
        if par == 1 and opt("hkb", 0): G[opt("hkb", 0)] += [f"s_cmp_eq_u32 s{sCNT}, {opt('hk', 1)}", "s_cbranch_scc1 L_hook", "LABEL L_back"]
        if VF: G[83].append("s_waitcnt lgkmcnt(0)")
        else: G[84].insert(0, "s_waitcnt lgkmcnt(15)"); G[7].append("s_waitcnt lgkmcnt(0)")
        G = {g: [s for s in l if not isv(s)] + [s for s in l if isv(s)] for g, l in G.items()}
        interleave(M, G)
    L.append(".p2align 6")
    lab("L_loop")
    if "unroll" in X:
        half(0); stamp("i0"); half(1); stamp("i1"); half(0); stamp("i2")
        if "nohook" not in X: e("s_branch L_hook")
        lab("L_back")
        half(1); stamp("i3"); half(0); e("s_branch L_exit")
    else:
        half(0)
        e("s_cbranch_scc1 L_exit")
        if not opt("hkb", 0): e(f"s_cmp_eq_u32 s{sCNT}, {opt('hk', 2)}"); e("s_cbranch_scc1 L_hook"); lab("L_back")
        half(1)
        e("s_branch L_loop")
    lab("L_hook")
    emit([f"s_lshl_b32 s58, s{sB}, 2", f"s_add_u32 s58, s58, s{sI}", "s_lshl_b32 s58, s58, 2", f"s_add_u32 s58, s58, s{sW}",
          "s_lshl_b32 s58, s58, 12", f"s_lshl_b32 s59, s{sI}, 8", "s_sub_u32 s58, s58, s59", "v_add_u32 v2, s58, v3", "s_mov_b32 exec_hi, 0",
          f"buffer_load_dword {v(vJUNK)}, v2, {srd(SRD_WO)}, 0 offen"] +
         (["s_mov_b32 exec_hi, 0xff", f"buffer_load_dword {v(vJUNK)}, v3, {srd(SRD_O)}, s{sOOWN} offen"] if opt("tch", 2) == 0 else []) +
         ["s_mov_b32 exec_hi, -1", "s_branch L_back"])
    lab("L_exit")
    stamp("exit")
    jitter(31, 5)
    if "cnt" in X: e(f"s_mov_b32 s{sOI}, 0")
    VM.ops = (["V5"]*8 + ["K6"]*8 + ["V6"]*8 + ["K7"]*8) if VF else (["K6"]*8 + ["V5"]*8 + ["K7"]*8 + ["V6"]*8); LG.ops = ["kr"]*8 + ["vr"]*16
    vXW = vKR; vXRD = vKR + 3; vWOO = vOK; vLW = vOV; vLR = vOV + 1
    def wo_dma(h):
        g = [f"s_add_u32 m0, s{sSLOT}, {WREG[h]}", f"s_add_u32 s{sT3}, s{sWOB+h}, 16384"]
        for pp in range(8):
            if pp == 4: g += [f"s_add_u32 m0, s{sSLOT}, {WREG[h] + 4096}", "NEXTGAP"]
            g.append(f"buffer_load_dwordx4 {v(vWOO + (pp & 3))}, {srd(SRD_WO)}, s{sWOB+h if pp < 4 else sT3} offen offset:{(pp & 3)*1024} lds @wo{h}")
        return g
    def paced(items, t, step):
        r = []
        for x in items:
            r.append((t, x))
            if any(y.startswith("buffer") for y in aslist(x)): t += step
        return r
    def unpark(dst, k): return f"v_accvgpr_read_b32 {v(dst)}, {a(aADR + k)}"
    def pstore(j, data, tag):
        return f"buffer_store_dwordx4 {v(data, 4)}, {v(vLIN)}, {srd(SRD_PI)}, s{sTK2 if j < 4 else sTV2} offen offset:{(j & 3)*1024} sc1 @{tag}"
    def ostore(j, data, tag):
        return f"buffer_store_dwordx4 {v(data, 4)}, {v(vLIN)}, {srd(SRD_O)}, " + (f"s{sOOWN} offen offset:{j*1024}" if j < 4 else f"s{sTK} offen") + " sc1 @" + tag
    def setflag(k, tag): return ["v_mov_b32 v2, 0", f"v_mov_b32 v3, s{sFOWN}", ["s_mov_b64 exec, 1", f"global_store_dword v3, v2, s[18:19] offset:{4*k} sc1 @{tag}", "s_mov_b64 exec, -1"]]
    M, G = base_iter(1)
    G[-1] += ["v_mov_b32 v1, 0", f"buffer_load_dword {v(vJUNK)}, v1, {srd(SRD_D)}, s{sT1} offen sc1 @hs"]
    if opt("tch", 2) == 1: G[1] += ["s_mov_b32 exec_hi, 0xff", f"buffer_load_dword v2, v3, {srd(SRD_O)}, s{sOOWN} offen", "s_mov_b32 exec_hi, -1"]
    G[7].append("s_waitcnt lgkmcnt(0)")
    G[S["kw"]].append("WAITVM K7")
    for p, s in zip(S["kpos"], kreads(1, "k7")): G[p].append(s)
    G[S["vw"]].append("WAITVM V6")
    for p, s in zip(S["vpos"], vreads(0, "v6")): G[p].append(s)
    G[83].append("WAITLG k7")
    hw = max(S["kw"], S["vw"]) + 1
    v7 = [x.replace("s_nop 0", "NEXTGAP") for x in flat(kv_dma(False, VSLOT[1], "V7"))]
    vm = [(0, v7[0])] + paced(v7[2:], 1 if VF else 8, 2)
    vm += paced([ostore(j, vSENT, "io") for j in range(5)], opt("ist", 24), opt("isp", 8))
    W0L = opt("w0t", 95) >= 85
    vm += [(20, unpark(vWOO + q, 6 + q)) for q in range(4)] + ([] if W0L else paced(wo_dma(0), opt("w0t", 95), opt("w0s", 3)))
    hsq = [f"s_add_u32 s{sTK}, s{sOOWN}, 4096", f"s_mov_b32 s{sTK2}, 5120",
           f"s_mov_b32 s{SRD_WS}, s18", f"s_mov_b32 s{SRD_WS+1}, s19", f"s_mov_b32 s{SRD_WS+2}, {WS_FLG + 65536}", f"s_mov_b32 s{SRD_WS+3}, 0x20000", f"s_mov_b32 s{sSPIN}, 0"]
    hsq = [(1, x) for x in hsq] + [(30, f"s_mov_b32 s{sTV2}, 9216"), (hw, "WAITVM hs"), (hw, f"v_readfirstlane_b32 s58, {v(vJUNK)}"), (hw, "NEXTGAP"),
           (hw, ["s_cmp_ge_u32 s58, 32", "s_cbranch_scc0 L_hs", "LABEL L_hsok"])]
    drain = sched(M, G, [hsq, vm], limits={1: opt('l5', 36)})
    drain(0); drain(1)
    stamp("t5")
    jitter(7, 11)
    FO = [2, 3, 4, 5, 6, 7, 0, 1]
    HZ = opt("hz", 4)
    M = []; G = {7: ["s_waitcnt lgkmcnt(0)"]}; ix = {}
    for j in range(5):
        put_exp(G, len(M), (j & 1) ^ 1, (j - 1) % 5)
        M += qk(j, 1, j & 1) + pv(j, 0)
        if j >= 3: ix[f"p{j-3}"] = len(M); M += pv(j - 3, 1, FO)
    aW = [aK, aQ, aQ + 32, aV]
    aR = [aK + 32, aK + 44, aQ + 64]
    def msum(j):
        return [f"{MF} {v(oreg(k, j), 4)}, {a(aE + (2 if k == 0 else 0), 4)}, {a(aR[j % 3] + s*4, 4)}, {v(oreg(k, j), 4)}" for s in range(3) for k in range(2)]
    put_exp(G, len(M), 0, 4)
    BQ = [vS, vS + 4, vS + 8, vS + 12, vP, vP + 4, vP + 8, vP + 12, vNM, vNM + 4, vNM + 8, vNM + 12]
    vWR2 = vVR; vOB = vVR + 2; vVER = vVR + 3; vCHK = vVR + 4; vPRB = vVR + 5; vPRD = vVR + 6; vOWN = vVR + 7; vT = vP + 16
    def bread(j, h, st):
        if h == 0: return [f"ds_read_b128 {v(BQ[st*4 + ks], 4)}, {v(vLIN)} offset:{OWNB[j] + ks*1024} @b{j}{h}" for ks in range(4)]
        return [f"ds_read_b128 {v(BQ[st*4 + ks], 4)}, {v(vOB)} offset:{OBOFF[j] + h*4096 + ks*1024} @b{j}{h}" for ks in range(4)]
    def proj(j, h, st):
        return [f"{MF} {v(oreg(2 + nn, j), 4)}, {a(aW[h] + (ks*2+nn)*4, 4)}, {v(BQ[st*4 + ks], 4)}, {'0' if h == 0 and ks == 0 else v(oreg(2 + nn, j), 4)}"
                for ks in range(4) for nn in range(2)]
    for nm, mm in (("s0", msum(0)), ("p2", pv(2, 1, FO)), ("p3", pv(3, 1, FO)), ("p4", pv(4, 1, FO))):
        ix[nm] = len(M); M += mm
    need = {}; NE = opt("ne4", 0)
    sibrd = {}; B3 = 'b2' not in X; BO = opt('bo', 8); fg_ = [0]
    def group(j, h, st_, first, inbeat):
        g = len(M)
        if first: ix[f"q{j}"] = g
        M.extend(proj(j, h, st_)); ix[f"e{j}"] = len(M) - 1
        need.setdefault(g, []).append(f"!WAITLG b{j}{h}")
        r = bread(j, h, st_)
        if first and inbeat: sibrd[j] = r; return
        if first:
            need.setdefault(g - (BO if j else 7), []).extend([f"v{j}"] + ([OPT.get("pdm", "pp")] if j == opt("pd", 3) else []) + (["n4", "!WAITLG w4"] if j == (3 if "o4" in X else 4) else []) + ["!s_barrier", f"!STAMP d{j}", f"!MARK d{j}"])
        if first: g1 = g - (BO if j else 7); fg_[0] = g1
        else: g1 = max(g - 16, fg_[0] + 2) if B3 else g - 8
        if not first and B3: fg_[0] = g1
        for k in range(4): G.setdefault(g1 + k // 2, []).append(r[k])
    for b in (1, 2, 3, 4):
        ix[f"s{b}"] = len(M); M += msum(b)
        ix[f"o{b-1}"] = len(M); M += proj(b - 1, 0, 0)
        j = b - 5 + NE
        if j >= 0:
            for h in (1, 2, 3): group(j, h, h & 1, h == 1, True)
    st_ = 1
    for j in range(5):
        if j == 4 and "o4" in X:
            g = len(M); M.extend(proj(4, 0, st_)); need.setdefault(g, []).append("!WAITLG b40")
            for k, x in enumerate(bread(4, 0, st_)): G.setdefault(g - (16 if B3 else 8) + k // 2, []).append(x)
            st_ = (st_ + 1) % (3 if B3 else 2)
        for h in ((1, 2, 3) if (j < 4 or "o4" in X) else (0, 1, 2, 3)):
            group(j, h, st_, h == (1 if (j < 4 or "o4" in X) else 0), False); st_ = (st_ + 1) % (3 if B3 else 2)
    def wfr(h, base):
        return [f"ds_read_b64_tr_b16 {a(aW[h] + (ks*2+nn)*4 + jh*2, 2)}, {v(base+nn)} offset:{WREG[h] - R_A + ks*8192 + jh*4096} @f{h}" if h != 2 else
                f"ds_read_b64_tr_b16 {a(aW[h] + (ks*2+nn)*4 + jh*2, 2)}, {v(base+nn)} offset:{ks*8192 + jh*4096} @f{h}"
                for ks in range(4) for nn in range(2) for jh in range(2)]
    nx = [0]
    def xw(j):
        r = []; p = ix[f"p{j}"]
        for mrel in (1, 2, 3):
            t = vTMP + (nx[0] & 1)*4; nx[0] += 1
            ins = pack4(t, oreg(2*mrel, j), oreg(2*mrel + 1, j)) + [f"ds_write_b128 {v(vXW + mrel - 1)}, {v(t, 4)} offset:{XSLOT[j]} @x{j}"]
            r += [(p + 2*mrel - 1 + HZ, s) for s in ins]
            if mrel == 1: r.append((0, f"MARK xa{j}"))
        return r + [(p + 8 + HZ, f"ds_write_b32 {v(vLW)}, {a(aL + j*4)} offset:{j*256} @x{j}"), (0, f"MARK x{j}")]
    def xr(j):
        return [f"ds_read_b128 {v(vNM + j*4, 4)}, {v(vLR)} offset:{j*256} @l{j}"] + \
               [f"ds_read_b128 {a(aR[j % 3] + s*4, 4)}, {v(vXRD)} offset:{XSLOT[j] + s*1024} @r{j}" for s in range(3)] + [f"MARK r{j}"]
    def lsum(j):
        r = vNM + j*4
        return [(0, x) for x in [f"AFTER r{j} 2", f"WAITLG l{j}", f"v_add_f32 {v(r)}, {v(r)}, {v(r+1)}", f"v_add_f32 {v(r+2)}, {v(r+2)}, {v(r+3)}", f"v_add_f32 {v(r)}, {v(r)}, {v(r+2)}",
                f"v_subrev_u32 {v(r+1)}, {LO_BITS}, {v(r)}", [f"v_cmp_lt_u32 vcc, s{sRANGE}, {v(r+1)}", f"v_rcp_f32 {v(r)}, {v(r)}", "s_cbranch_vccnz L_fallback"]]]
    def norm(j):
        r0 = oreg(0, j); r1 = oreg(1, j); t = oreg(4, j)
        ins = [f"v_mul_f32 {v(r+q)}, {v(vNM+j*4)}, {v(r+q)}" for r in (r0, r1) for q in range(4)] + pack4(t, r0, r1) + sanit(t)
        ms = ostore(j, t, f"o{j}")
        PI = [int(x) for x in OPT.get("pi", "3,2,0,0,0").split(",")]
        pin_ = [pstore(k, vSENT, "ip") for k in range(sum(PI[:j]), sum(PI[:j+1]))]
        return [(ix[f"s{j}"] + 5 + HZ, x) for x in ins + [f"STAMP n{j}", ms, f"ds_write_b128 {v(vOWN)}, {v(t, 4)} offset:{OWNB[j]} @w{j}"] + pin_ + [f"MARK n{j}"]]
    def fetch(j):
        r = []
        for h in (1, 2, 3):
            dst = R_B + OBOFF[j] + h*4096
            if j < 4: r.append([f"s_add_u32 m0, s{sW1K}, {dst - j*1024}", "s_nop 0", f"buffer_load_dwordx4 {v(vLIN)}, {srd(SRD_O)}, s{sSIB+h} offen offset:{j*1024} sc1 lds @g{j}"])
            else: r.append([f"s_add_u32 m0, s{sW1K}, {dst}", f"s_add_u32 s{sT3}, s{sSIB+h}, 4096", f"buffer_load_dwordx4 {v(vLIN)}, {srd(SRD_O)}, s{sT3} offen sc1 lds @g{j}"])
        return r
    def vread(j): return [f"ds_read_b32 {v(vT + h)}, {v(vVER)} offset:{OBOFF[j] + h*4096} @t{j}" for h in (1, 2, 3)]
    def vtest(): return [f"v_max3_u32 {v(vT)}, {v(vT+1)}, {v(vT+2)}, {v(vT+3)}", f"v_cmp_eq_u32 vcc, -1, {v(vT)}"]
    def verify(j):
        return [[f"STAMP u{j}", f"WAITVM g{j}", f"STAMP w{j}"]] + vread(j) + [f"MARK t{j}", f"AFTER t{j} 3", f"WAITLG t{j}", vtest()[0], [vtest()[1], "s_nop 0", f"s_cbranch_vccnz L_refetch{j}", f"LABEL L_got{j}"], f"MARK v{j}"]
    def post(j):
        r0 = oreg(2, j)
        return [(ix[f"e{j}"] + HZ, x) for x in pack4(r0, r0, oreg(3, j)) + sanit(r0) + [pstore(j, r0, "pst")]]
    p0 = ix["p0"]
    hs = [(opt("fs", 62), x) for x in ["WAITVM io"] + setflag(0, "fs0")]
    hs += [(0, f"AFTER {OPT.get('fp', 'n3')} 0")] + [(0, x) for x in ["WAITVM ip"] + setflag(1, "fs1")] + [(0, "MARK fs1")]
    def bar(name, afters, waits): return [(0, f"AFTER {x} 0") for x in afters] + [(0, waits + ["s_barrier", f"STAMP {name}", f"MARK {name}"])]
    vs = [(40, unpark(vXW + q, q)) for q in range(4)] + [(40, unpark(vLW, 4)), (40, unpark(vLR, 5))]
    vs += xw(0) + bar("a", ["f0", "w1"], ["WAITVM wo1", "WAITLG x0", "WAITLG f0"]) + lsum(0) + [(0, "AFTER w3 0")] + norm(0) + xw(1) + bar("b1", ["f1"], ["WAITVM wo3", "WAITLG x1", "WAITLG f1"])
    for j in (1, 2, 3):
        vs += xw(j + 1) + lsum(j) + norm(j) + bar(f"b{j+1}", {1: [], 2: ["f2"], 3: []}[j], {1: [], 2: ["WAITLG f2"], 3: []}[j] + [f"WAITLG w{j}"])
    vs += lsum(4) + norm(4)
    ps = []
    for j in range(5):
        p = post(j)
        ps += p[:-1] + ([(0, f"AFTER d{opt('pd', 3)} 0")] if j == 0 else []) + p[-1:]
    rs = [(opt("v7r", 36), "WAITVM V7")] + [(0, x) for x in vreads(1, "v7")] + [(0, "MARK v7")]
    rs += [(68, unpark(vWR2, 10)), (68, unpark(vWR2 + 1, 11))]
    adr = [(68, f"v_add_u32 {v(vOB)}, {R_B}, {v(vLIN)}"), (68, f"v_add_u32 {v(vVER)}, s{sW1K}, {v(vOB)}"),
           (68, f"v_accvgpr_read_b32 {v(vPRB)}, {a(aPRB)}"), (68, f"v_add_u32 {v(vOWN)}, s{sW1K}, {v(vLIN)}"), (0, "MARK adr")]
    rs += [(0, x) for x in wfr(0, vWR2)] + [(0, "MARK f0"), (0, "AFTER a 0")] + [(0, x) for x in xr(0)] + [(0, x) for x in wfr(1, vWR2)] + [(0, "MARK f1")]
    up = [f"v_add_u32 {v(vWR2+q)}, {R_C - R_A}, {v(vWR2+q)}" for q in range(2)]; dn = [f"v_subrev_u32 {v(vWR2+q)}, {R_C - R_A}, {v(vWR2+q)}" for q in range(2)]
    w2 = wfr(2, vWR2); w3 = wfr(3, vWR2)
    extra = {1: up + w2[:8], 2: w2[8:] + ["MARK f2"] + dn, 3: w3[:8], 4: w3[8:] + ["MARK f3"]}
    for j in (1, 2, 3, 4):
        rs += [(0, f"AFTER b{j} 0")] + [(ix[f"s{j-3}"] + 6 if j >= 3 else 0, x) for x in xr(j)]
        rs += [(ix[f"s{j}"] - 1, x) for x in bread(j - 1, 0, 0)] + [(0, f"MARK bo{j-1}")] + [(0, x) for x in extra[j]]
    MF4, MP = 0xF, 0xFF0000
    def probe(mask, tag=""): return [f"s_mov_b64 exec, {mask}", f"buffer_load_dword {v(vPRD)}, {v(vPRB)}, {srd(SRD_WS)}, 0 offen sc1" + tag, "s_mov_b64 exec, -1"]
    def test(mask): return [f"v_cmp_eq_u32 vcc, -1, {v(vPRD)}", "s_nop 0", f"s_and_b32 s58, vcc_lo, {mask}"]
    ds = (paced(wo_dma(0), opt("w0t", 95) - 85, opt("w0s", 3)) if W0L else []) + paced(wo_dma(1), opt("w1t", 36), opt("w1s", 3)) + [(0, "MARK w1")] + paced(wo_dma(2), opt("w2t", 62), opt("w2s", 3)) + [(0, "MARK w2")]
    ds += [(0, "AFTER a 0")] + [(0, y) for x in wo_dma(3) for y in ([x, "NEXTGAP"] if x.startswith("buffer") else [x])] + [(0, "AFTER adr 0"), (opt("pb", 112), probe(MF4, " @prb")), (0, "MARK w3")]
    ds += [(0, "AFTER b1 0"), (0, "WAITVM prb"), (0, test(MF4) + ["s_cbranch_scc1 L_waitf", "LABEL L_fok"])]
    FA = OPT.get("fa", "n2,n3,n4,n4,n4").split(","); FDL = [int(x) for x in OPT.get("fdl", "0,0,0,24,56").split(",")]
    for j in range(5):
        if j == 4: ds += [(0, f"AFTER {'b4' if NE >= 2 else 'd1'} 0")]
        ds += [(0, f"AFTER {FA[j]} {FDL[j]}")] + [(0, f"STAMP f{j}")] + [(0, g) for g in fetch(j)] + [(0, f"MARK g{j}")]
    ds += [(0, "AFTER fs1 0"), (0, probe(MP, " @prp")), (0, "MARK pp")]
    vf = []
    VDL = [int(x) for x in OPT.get("vdl", "20,30,40,40,40").split(",")]
    for j in range(5): vf += [(0, f"AFTER g{j} 1")] + [(ix[f"q{j}"] - (BO if j else 7) - opt("vb", 6), x) for x in verify(j)]
    G.setdefault(p0 - 1, []).extend(["WAITLG v7", "WAITVM wo0", "s_barrier", "STAMP bD"])
    need.setdefault(p0 - 1, []).extend(["v7"])
    need.setdefault(ix["q0"] + 16, []).extend(["f3", "!WAITLG f3"])
    for j in range(5): need.setdefault(ix[f"s{j}"], []).extend([f"r{j}"] + ([f"bo{j-1}"] if j else []) + ([f"xa{j+1}"] if j in (1, 2, 3) else []) + [f"!WAITLG r{j}"])
    for j in range(4): need.setdefault(ix[f"o{j}"], []).append(f"!WAITLG b{j}0")
    OW = opt("ow", 2)
    if OW == 0: OUTA = ["v_lshlrev_b32 v9, 10, v4", "v_lshl_add_u32 v9, v5, 3, v9"]
    else:
        OUTA = ["v_lshrrev_b32 v1, 3, v4", "v_bfe_u32 v2, v4, 1, 1", "v_lshl_add_u32 v1, v1, 1, v2", "v_bfe_u32 v2, v4, 2, 1", "v_lshlrev_b32 v2, 1, v2",
                "v_xor_b32 v2, v2, v5", "v_lshl_add_u32 v1, v2, 2, v1", "v_and_b32 v2, 1, v4", "v_lshlrev_b32 v2, 4, v2", "v_mov_b32 v3, 0x3f80", "v_lshlrev_b32 v2, v2, v3"]
        OUTA += [[f"v_cmp_eq_u32 vcc, {m}, v1", "s_nop 1", f"v_cndmask_b32 {v(vTMP + m)}, 0, v2, vcc"] for m in range(8)]
        if OW == 1: OUTA += ["v_lshlrev_b32 v9, 10, v4", "v_lshl_add_u32 v9, v5, 4, v9"]
        else: OUTA += ["v_lshrrev_b32 v9, 2, v0", "v_lshlrev_b32 v9, 10, v9", "v_lshl_add_u32 v9, v7, 4, v9",
                       "v_lshlrev_b32 v10, 6, v4", "v_lshl_add_u32 v10, v5, 4, v10", f"v_add_u32 v10, s{sW1K}, v10"]
    fin = [f"s_and_b32 s{sT0}, s{sHKV}, 1", f"s_sub_u32 s{sT2}, 3, s{sT0}", f"s_mul_i32 s{sT0}, s{sT0}, 3", f"s_add_u32 s{sT0}, s{sT0}, s{sW}",
           "s_and_b32 s98, s2, 0xf8", f"s_mul_i32 s98, s98, {WGS}", f"s_lshr_b32 s99, s{sHKV}, 1", f"s_mul_i32 s99, s99, {WVS}", "s_add_u32 s98, s98, s99",
           f"s_lshl_b32 s99, s{sT0}, 10", "s_add_u32 s98, s98, s99", f"s_add_u32 s{sMODE}, s98, 5120",
           f"s_lshl_b32 s{sT0}, s{sT0}, 4", f"s_mul_i32 s98, s{sB}, 80", f"s_add_u32 s{sT0}, s{sT0}, s98", f"s_lshl_b32 s{sT0}, s{sT0}, 10",
           f"s_lshl_b32 s98, s{sI}, 8", f"s_add_u32 s{sT0}, s{sT0}, s98", f"s_lshr_b32 s98, s{sHKV}, 1", "s_lshl_b32 s98, s98, 6", f"s_add_u32 s{sT0}, s{sT0}, s98",
           ] + OUTA + [
           f"s_mov_b32 s{SRD_K}, s14", f"s_mov_b32 s{SRD_K+1}, s15", f"s_mov_b32 s{SRD_K+2}, 655360", f"s_mov_b32 s{SRD_K+3}, 0x20000"]
    drain = sched(M, G, [hs, ds, vf, vs, rs, ps, adr + [(0, "AFTER n4 2")] + [(ix["q1"], x) for x in fin]], need=need, limit=opt("lim", 16), limits={1: 28, 2: 24, 3: opt('lv', 16)})
    for k in range(7): drain(k)
    stamp("pst")
    if "cnt" in X: e(f"s_mov_b32 s{sCNT}, s{sOI}")
    e(f"s_cmp_ge_u32 s{sW}, s{sT2}"); e("s_cbranch_scc1 L_fin")
    e("WAITVM prp")
    emit(test(MP)); e("s_cbranch_scc1 L_waitp")
    lab("L_pok")
    if opt("slp", 0):
        e(f"s_bitcmp1_b32 s{sHKV}, 0"); e("s_cbranch_scc0 L_nosl"); e(f"s_sleep {opt('slp', 0)}"); lab("L_nosl")
    fB = vO + 100
    def redloads():
        e(f"s_mov_b32 s{sT1}, s{sMODE}")
        for p in range(8):
            e(f"buffer_load_dwordx4 {v(fB + p*4, 4)}, {v(vLIN)}, {srd(SRD_WS)}, s{sT1} offen sc1")
            if p < 7: e(f"s_add_u32 s{sT1}, s{sT1}, {WGS}")
    redloads()
    lab("L_red")
    e(f"v_mov_b32 {v(vCHK)}, 0")
    for p in range(8):
        e(f"s_waitcnt vmcnt({7-p})")
        for k in range(2):
            d = v(vS + k*4, 4)
            e(f"{MF} {d}, {v(vTMP + 4*k, 4) if OW else a(aE + (2 if k == 0 else 0), 4)}, {v(fB + p*4, 4)}, {'0' if p == 0 else d}")
            if k == 0: e(f"v_max_u32 {v(vCHK)}, {v(vCHK)}, {v(fB + p*4)}")
    e(f"v_cmp_eq_u32 vcc, -1, {v(vCHK)}")
    e("s_nop 4")
    e("s_cbranch_vccnz L_redo")
    lab("L_redok")
    e("s_nop 0")
    OF = OPT.get("outf", "sc1").replace("_", " ")
    if OW == 0:
        e(f"v_cvt_pk_bf16_f32 {v(vS)}, {v(vS)}, {v(vS+1)}"); e(f"v_cvt_pk_bf16_f32 {v(vS+1)}, {v(vS+2)}, {v(vS+3)}")
        e(f"v_cvt_pk_bf16_f32 {v(vS+4)}, {v(vS+4)}, {v(vS+5)}"); e(f"v_cvt_pk_bf16_f32 {v(vS+5)}, {v(vS+6)}, {v(vS+7)}")
        e(f"buffer_store_dwordx2 {v(vS, 2)}, v9, {srd(SRD_K)}, s{sT0} offen {OF}")
        e(f"buffer_store_dwordx2 {v(vS+4, 2)}, v9, {srd(SRD_K)}, s{sT0} offen offset:32 {OF}")
    else:
        emit(pack4(vS, vS, vS + 4))
        if OW == 2:
            e(f"ds_write_b128 v10, {v(vS, 4)}"); e("s_waitcnt lgkmcnt(0)"); e(f"ds_read_b128 {v(vS, 4)}, {v(vOWN)}"); e("s_waitcnt lgkmcnt(0)")
        e(f"buffer_store_dwordx4 {v(vS, 4)}, v9, {srd(SRD_K)}, s{sT0} offen {OF}")
    lab("L_fin")
    stamp("fin")
    if STAMPS and "cnt" in X:
        i = nstamp[0]; nstamp[0] += 1
        e(f"s_add_u32 s{sSTAMP+2*i}, s{sSTAMP+2*i-2}, s{sCNT}"); e(f"s_addc_u32 s{sSTAMP+2*i+1}, s{sSTAMP+2*i-1}, 0")
    write_stamps()
    lab("L_done")
    e("s_endpgm")
    lab("L_redo")
    emit(spin("L_redok")); redloads(); e("s_branch L_red")
    lab("L_hs")
    e("v_mov_b32 v2, 0"); e("s_sleep 4")
    e(f"buffer_load_dword {v(vJUNK)}, v2, {srd(SRD_D)}, s{sT1} offen sc1"); e("s_waitcnt vmcnt(0)")
    emit(spin("L_hsok"))
    e(f"v_readfirstlane_b32 s58, {v(vJUNK)}"); e("s_nop 0"); e("s_cmp_ge_u32 s58, 32"); e("s_cbranch_scc0 L_hs"); e("s_branch L_hsok")
    for nm, mask, ok in (("L_waitf", MF4, "L_fok"), ("L_waitp", MP, "L_pok")):
        lab(nm)
        if "cnt" in X and nm == "L_waitf": e(f"s_add_u32 s{sOI}, s{sOI}, {1 << 15}")
        e("s_sleep 2"); emit(probe(mask)); e("s_waitcnt vmcnt(0)")
        emit(spin(ok)); emit(test(mask)); e(f"s_cbranch_scc1 {nm}"); e(f"s_branch {ok}")
    for j in range(5):
        lab(f"L_refetch{j}")
        if "cnt" in X: e(f"s_add_u32 s{sOI}, s{sOI}, {1 << (3*j)}")
        emit(spin(f"L_got{j}")); emit(fetch(j)); e("s_waitcnt vmcnt(0)")
        emit(vread(j)); e("s_waitcnt lgkmcnt(0)"); emit(vtest()); e("s_nop 1")
        e(f"s_cbranch_vccnz L_refetch{j}"); e(f"s_branch L_got{j}")
    lab("L_fallback")
    e("s_waitcnt vmcnt(0) lgkmcnt(0)")
    e("s_barrier")
    e(f"s_mov_b32 s{sRANGE}, -1")
    e("s_branch L_restart")
    lab("L_rowmax")
    e("s_waitcnt vmcnt(0) lgkmcnt(0)")
    emit(qrd(1) + qrd(2)); e("s_waitcnt lgkmcnt(0)"); emit(qrd(3) + qrd(4))
    vA = vP; vM = vP + 4
    for ds in range(4): e(f"v_subrev_u32 {v(vA+ds)}, {R_A - R_D}, {v(vKR+ds)}")
    for j in range(5): e(f"v_mov_b32 {v(vM+j)}, 0xff800000")
    e(f"s_mov_b32 s{sTK}, 0"); e(f"s_mov_b32 s{sTK2}, 4096")
    lab("L_fbmax")
    emit(flat(kv_dma(True, R_D, "f")))
    e("s_waitcnt vmcnt(0)")
    emit(kreads(0, base=vA, buf=1))
    e("s_waitcnt lgkmcnt(0)")
    for j in range(5):
        emit(qk(j, 1, 0, cinit="0")); e("s_nop 7")
        for n in range(4): e(f"v_max3_f32 {v(vM+j)}, {v(vM+j)}, {v(vS+2*n)}, {v(vS+2*n+1)}")
    e(f"s_add_u32 s{sTK}, s{sTK}, 8192"); e(f"s_add_u32 s{sTK2}, s{sTK2}, 8192")
    e(f"s_cmp_lt_u32 s{sTK}, 65536"); e("s_cbranch_scc1 L_fbmax")
    for j in range(5):
        for op in ("v_permlane32_swap_b32", "v_permlane16_swap_b32"):
            e(f"v_mov_b32 v1, {v(vM+j)}"); e("s_nop 1"); e(f"{op} {v(vM+j)}, v1"); e("s_nop 1"); e(f"v_max_f32 {v(vM+j)}, {v(vM+j)}, v1")
    e(unpark(1, 4)); e(unpark(2, 5))
    for j in range(5): e(f"ds_write_b32 v1, {v(vM+j)} offset:{j*256}")
    e("s_waitcnt lgkmcnt(0)"); e("s_barrier")
    for j in range(5): e(f"ds_read_b128 {v(vNM+j*4, 4)}, v2 offset:{j*256}")
    e("s_waitcnt lgkmcnt(0)")
    for j in range(5):
        r = vNM + j*4
        e(f"v_max3_f32 {v(r)}, {v(r)}, {v(r+1)}, {v(r+2)}"); e(f"v_max_f32 {v(r)}, {v(r)}, {v(r+3)}"); e(f"v_sub_f32 {v(r)}, 0, {v(r)}")
        for q in (1, 2, 3): e(f"v_mov_b32 {v(r+q)}, {v(r)}")
    e("s_branch L_noat")
    lab("L_end")

hdr = open("standalone__gqa_block_cached__near_ridge.s.ref").read().split("\n")
for ln in hdr:
    if ln.startswith("; @launch"): continue
    if not ln.startswith(";"): break
    L.append(ln)
L.append("; @launch grid=(256,1,1) block=(256,1,1) lds=163840")
L.append('.amdgcn_target "amdgcn-amd-amdhsa--gfx950"')
L.append(".text")
kernel()
L.append('.section .rodata,"a"')
L.append(".p2align 6"); L.append(f".amdhsa_kernel {KN}")
for s in ["next_free_vgpr 512", "next_free_sgpr 102", "accum_offset 256", "group_segment_fixed_size 0", "kernarg_size 64", "user_sgpr_count 2", "user_sgpr_kernarg_segment_ptr 1", "system_sgpr_workgroup_id_x 1"]:
    L.append("  .amdhsa_" + s)
L.append(".end_amdhsa_kernel")
import hazard
L = hazard.fix(L)
print("\n".join(L))
```

```python
import sys, math, struct, re, os
sys.path.insert(0, os.path.dirname(os.path.abspath(__file__)))

X = set(a[2:] for a in sys.argv[1:] if a.startswith("--") and "=" not in a)
OPT = dict(a[2:].split("=") for a in sys.argv[1:] if a.startswith("--") and "=" in a)
def opt(k, d): return int(OPT.get(k, d))
STAMPS = "stamps" in X
KN = "standalone__gqa_block_cached__near_ridge_kernel"
L = []

class Tr:
    def __init__(s): s.ops = []
    def add(s, tag): s.ops.append(tag)
    def need(s, tag):
        idx = max(i for i, t in enumerate(s.ops) if t == tag)
        return len(s.ops) - 1 - idx
VM = Tr(); LG = Tr()

def lab(s): L.append(s + ":")
def e(s):
    if s.startswith("LABEL "): lab(s[6:]); return
    if s.startswith("MARK "): return
    if s.startswith("STAMP "): stamp(s[6:]); return
    if s == "NEXTGAP": s = "s_nop 0"
    tag = None
    if " @" in s: s, tag = s.split(" @")
    op = s.split()[0]
    if op == "WAITVM":
        n = VM.need(s.split()[1]); s = f"s_waitcnt vmcnt({min(n, 63)})"
    elif op == "WAITLG":
        n = LG.need(s.split()[1]); s = f"s_waitcnt lgkmcnt({min(n, 15)})"
    elif op.startswith("buffer_") or op.startswith("global_"): VM.add(tag)
    elif op.startswith("ds_"): LG.add(tag)
    L.append("    " + s)
def aslist(it): return it if isinstance(it, list) else [it]
def emit(lst):
    for it in lst:
        for s in aslist(it): e(s)
def flat(groups): return [s for g in groups for s in aslist(g)]
def capture(fn):
    keep = list(L); del L[:]
    fn()
    out = [x.strip() for x in L]; L[:] = keep
    return out

QSCALE = 1.4426950408889634 / math.sqrt(128.0)
def f2u(x): return struct.unpack("<I", struct.pack("<f", x))[0]

S_ST = [0, 53248, 106496, 0]
R_D, R_QX, R_A, R_B, R_C, R_SP = 0, 32768, 53248, 86016, 118784, 151552
KSLOT = [R_A, R_B]; VSLOT = [R_C, R_D]
XSLOT = [0, 12288, 24576, 0, 12288]
OWNB = [36864, 40960, 45056, 49152, 36864]
OBOFF = [0, 16384, 32768, 49152, 0]
WREG = [R_A, R_B, R_C, R_A]
WS_PART = 8 << 20
WS_FLG = 16 << 20
WS_STAMP = 128 << 20
WGS = 40960; WVS = 10240
HEADSTRIDE = 64 * WGS
LO_BITS = 0x21800000
RANGE = 0x3C000000
sW, sHKV, sB, sI, sRANGE = 3, 20, 21, 22, 23
sWOB, sSIB, sOI = 4, 8, 12
SRD_X, SRD_WQ, SRD_K, SRD_V, SRD_O, SRD_WO, SRD_PI = 24, 28, 32, 36, 40, 44, 64
SRD_WS, SRD_D = 24, 28
sTK, sTK2, sTV, sTV2, sSLOT, sCNT = 48, 49, 50, 51, 52, 53
sT0, sT1, sT2, sT3 = 54, 55, 56, 57
sOOWN, sW5K, sSPIN, sFOWN = 60, 61, 62, 63
sSTAMP = 68
sMODE, sXCC, sWB, sXB, sSTEP, sMIR, sW1K, sQS = 89, 90, 91, 92, 93, 94, 95, 96
vKR = 8; vVR = 12; vOK = 20; vOV = 24; vLIN = 26; vJUNK = 27
vP = 28; vS = 48; vNM = 64; vTMP = 84; vO = 96
vVRC = vTMP; vSENT = vTMP + 8; vQW = 73
aQ = 0; aK = 80; aV = 144; aL = 208; aE = 228; aPRB = 234; aADR = 235; aONE = 248

def srd(r): return f"s[{r}:{r+3}]"
def v(r, n=1): return f"v{r}" if n == 1 else f"v[{r}:{r+n-1}]"
def a(r, n=1): return f"a{r}" if n == 1 else f"a[{r}:{r+n-1}]"
MF = "v_mfma_f32_16x16x32_bf16"
SPIN_MAX = opt("spin", 400000)

nstamp = [0]
def stamp(name=""):
    if OPT.get("delay") == name:
        for _ in range(8): L.append("    s_nop 15")
    if not STAMPS: return
    sel = OPT.get("st")
    if sel and name not in sel.split(","): return
    i = nstamp[0]; nstamp[0] += 1
    assert sSTAMP + 2*i + 1 < 89
    sys.stderr.write(f"{i}:{name} ")
    L.append(f"    {'s_memtime' if 'cyc' in X else 's_memrealtime'} s[{sSTAMP+2*i}:{sSTAMP+2*i+1}]")
    L.append("    s_waitcnt lgkmcnt(0)")
def write_stamps():
    if not STAMPS: return
    if "amp" in X:
        e("s_cmp_ge_u32 s2, 8"); e("s_cbranch_scc1 L_done")
        e(f"s_cmp_lg_u32 s{sW}, 0"); e("s_cbranch_scc1 L_done")
        e("s_memrealtime s[80:81]"); e("s_waitcnt lgkmcnt(0)")
        e(f"s_sub_u32 s82, s{sSTAMP+2}, s{sSTAMP}"); e("s_min_u32 s82, s82, 5000"); e("s_mul_i32 s82, s82, 10"); e("s_add_u32 s82, s82, s80")
        lab("L_amp")
        e("s_memrealtime s[84:85]"); e("s_waitcnt lgkmcnt(0)"); e("s_sub_u32 s86, s84, s82"); e("s_cmp_lt_i32 s86, 0"); e("s_cbranch_scc1 L_amp")
        return
    n = nstamp[0]
    e("s_lshl_b32 s58, s2, 2"); e(f"s_add_u32 s58, s58, s{sW}"); e(f"s_mul_i32 s58, s58, {n*8}"); e(f"s_add_u32 s58, s58, {WS_STAMP}")
    e("s_add_u32 s58, s18, s58"); e("s_addc_u32 s59, s19, 0")
    e("s_mov_b64 exec, 1"); e("v_mov_b32 v1, 0")
    for i in range(n):
        e(f"v_mov_b32 v2, s{sSTAMP+2*i}"); e(f"v_mov_b32 v3, s{sSTAMP+2*i+1}")
        e(f"global_store_dwordx2 v1, v[2:3], s[58:59] offset:{i*8}"); e("s_nop 1")
    sys.stderr.write(f"\nstamps: {n}\n")

njit = [0]
def jitter(mask, sh):
    if "jitter" not in X: return
    k = njit[0]; njit[0] += 1
    e(f"s_mul_i32 s98, s2, {2654435761 >> (k + 3)}"); e(f"s_mul_i32 s99, s{sW}, {40503 * (k + 1)}"); e("s_add_u32 s98, s98, s99")
    e(f"s_lshr_b32 s98, s98, {sh}"); e(f"s_and_b32 s98, s98, {mask}")
    lab(f"L_jit{k}"); e("s_cmp_eq_u32 s98, 0"); e(f"s_cbranch_scc1 L_jite{k}"); e("s_sleep 8"); e("s_sub_u32 s98, s98, 1"); e(f"s_branch L_jit{k}"); lab(f"L_jite{k}")
def mk_srd(r, pbase, off_sgpr, size):
    return [f"s_add_u32 s{r}, s{pbase}, s{off_sgpr}", f"s_addc_u32 s{r+1}, s{pbase+1}, 0", f"s_mov_b32 s{r+2}, {size}", f"s_mov_b32 s{r+3}, 0x20000"]

PSEUDO = ("MARK", "LABEL", "STAMP")
WIDE = ("ds_write_b128", "buffer_store_dwordx4")
def isv(s): return s.startswith("v_")
def gaptime(ins):
    ins = [s for s in ins if not s.startswith(PSEUDO)]
    nv = [s for s in ins if not isv(s)]
    t = 4
    if nv: t += 20 if nv[0].startswith(WIDE) else 4
    first = True
    for s in ins:
        if not isv(s):
            if first: first = False; continue
            t += 24 if s.startswith(WIDE) else 4
        else:
            t = max(t, 8) + (8 if s.startswith(("v_exp", "v_rcp")) else 4)
    return t
def order_gap(items):
    def indep(k):
        x = items[k]
        if isinstance(x, list) or x.startswith(("v_",) + PSEUDO + WIDE + ("ds_write",)): return False
        return all(isinstance(y, str) and isv(y) and not y.startswith(("v_accvgpr_read", "v_mov", "v_cmp", "v_readf", "v_add_u32", "v_subrev")) for y in items[:k])
    for k in range(1, len(items)):
        if indep(k): items.insert(0, items.pop(k)); break
    return items
def interleave(mfmas, gaps):
    emit(gaps.get(-1, []))
    for i, m in enumerate(mfmas):
        e(m); emit(gaps.get(i, []))
def sched(mfmas, fixed, streams, need=None, limit=16, limits=None):
    need = need or {}
    streams = [list(s) for s in streams]
    done = {}
    cur = [0]
    def put(it):
        for s in aslist(it):
            if s.startswith("MARK "): done[s[5:]] = cur[0]
            e(s)
    def flush(mark):
        if mark in done: return
        for st in streams:
            if any(f"MARK {mark}" in aslist(it) for _, it in st):
                while mark not in done:
                    it = st.pop(0)[1]
                    if isinstance(it, str) and it.startswith("AFTER "): flush(it.split()[1]); continue
                    put(it)
                return
        raise Exception("mark " + mark)
    cur[0] = -1
    for it in fixed.get(-1, []): put(it)
    for i, m in enumerate(mfmas):
        cur[0] = i - 1
        for mk in need.get(i, []):
            if mk.startswith("!"): put(mk[1:])
            else: flush(mk)
        e(m)
        cur[0] = i
        items = list(fixed.get(i, []))
        closed = any(s.startswith("v_exp") for s in flat(items))
        blocked = set(); prog = True; seen = dict(done)
        for s in flat(items):
            if s.startswith("MARK "): seen[s[5:]] = i
        while prog:
            prog = False
            for k, st in enumerate(streams):
                if k in blocked or not st: continue
                rdy, it = st[0]
                if it == "NEXTGAP": st.pop(0); blocked.add(k); continue
                if isinstance(it, str) and it.startswith("AFTER "):
                    _, mk, d = it.split()
                    if mk in seen and seen[mk] + int(d) <= i: st.pop(0); prog = True; break
                    continue
                if rdy > i: continue
                real = [s for s in aslist(it) if not s.startswith(PSEUDO)]
                empty = not [s for s in flat(items) if not s.startswith(PSEUDO)]
                if not real or (not closed and (empty or gaptime(flat(items) + real) <= (limits or {}).get(k, limit))):
                    st.pop(0); items.append(it); prog = True
                    for s in aslist(it):
                        if s.startswith("MARK "): seen[s[5:]] = i
                    break
        for it in order_gap(items): put(it)
    cur[0] = len(mfmas)
    def drain(k):
        st = streams[k]
        while st:
            it = st.pop(0)[1]
            if isinstance(it, str) and it.startswith("AFTER "): flush(it.split()[1]); continue
            put(it)
    return drain

def kv_dma(isK, slot_base, tag, nop=True):
    g = []
    for p in range(8):
        grp = []
        if p % 4 == 0:
            grp.append(f"s_add_u32 m0, s{sSLOT}, {slot_base + (p // 4) * 4096}")
            if nop: grp.append("s_nop 0")
        vo = vOK + (p >> 1) if isK else vOV + ((p >> 1) & 1)
        so = (sTK if isK else sTV) + (0 if p < 4 else 1)
        grp.append(f"buffer_load_dwordx4 {v(vo)}, {srd(SRD_K if isK else SRD_V)}, s{so} offen offset:{(p % 4)*1024} lds @{tag}")
        g.append(grp)
    return g
SEQ = {"mirror": ["01234567", "76543210", "76543210"], "pair": ["01234567", "10325476", "02143657"], "pair0": ["01234567", "10325476", "10325476"],
       "same": ["01234567"]*3, "quad": ["01234567", "23016745", "01452367"], "quad2": ["01234567", "23016745", "04512367"]}[OPT.get("seq", "mirror")]
def seqword(q): return sum(int(c) << (4*n) for n, c in enumerate(q))
def seqtail(q, t0): return sum(int(c) << (13 + 3*n) for n, c in enumerate(q[t0:]))
sSEQ, sSK, sSV = sMIR, sSTEP, sXCC
def set_T(isK, t):
    r = sTK if isK else sTV
    return [f"s_bfe_u32 s{r}, s{sSEQ}, {(4 << 16) | (4*t)}", f"s_lshl_b32 s{r}, s{r}, 13", f"s_or_b32 s{r+1}, s{r}, 4096"]
def kreads(slot, tag="kr", base=vKR, buf=None):
    buf = slot if buf is None else buf
    return [f"ds_read_b128 {a(aK + buf*32 + (kt*4+ds)*4, 4)}, {v(base+ds)} offset:{(KSLOT[slot]-R_A) + kt*1024} @{tag}" for kt in range(2) for ds in range(4)]
def vreads(slot, tag="vr"):
    base = vVRC if slot == 0 else vVR
    return [f"ds_read_b64_tr_b16 {a(aV + slot*32 + k*4 + jh*2, 2)}, {v(base+k)} offset:{jh*1024} @{tag}" for k in range(8) for jh in range(2)]
def qk(j, kbuf, sbuf, cinit=None):
    m = []
    for kt in range(2):
        for ds in range(4):
            d = v(vS + sbuf*8 + kt*4, 4)
            c = (cinit or v(vNM + j*4, 4)) if ds == 0 else d
            m.append(f"{MF} {d}, {a(aK + kbuf*32 + (kt*4+ds)*4, 4)}, {a(aQ + (j*4+ds)*4, 4)}, {c}")
    return m
def oreg(k, j): return vO + (k*5+j)*4
def pv(j, vbuf, ks=range(8)):
    m = [f"{MF} {v(oreg(k, j), 4)}, {a(aV + vbuf*32 + k*4, 4)}, {v(vP + j*4, 4)}, {v(oreg(k, j), 4)}" for k in ks]
    m.append(f"{MF} {a(aL + j*4, 4)}, {a(aONE, 4)}, {v(vP + j*4, 4)}, {a(aL + j*4, 4)}")
    return m
def exps(sbuf): return [f"v_exp_f32 {v(vS + sbuf*8 + n)}, {v(vS + sbuf*8 + n)}" for n in range(8)]
def cvts(sbuf, j): return [f"v_cvt_pk_bf16_f32 {v(vP + j*4 + n)}, {v(vS + sbuf*8 + 2*n)}, {v(vS + sbuf*8 + 2*n+1)}" for n in range(4)]
def put_exp(G, base, sbuf, j):
    ex = exps(sbuf); cv = cvts(sbuf, j)
    for n in range(8): G.setdefault(base + 2*n, []).append(ex[n])
    for n in range(4): G.setdefault(base + 4*n + 3, []).append(cv[n])
def pack4(t, r0, r1):
    return [f"v_cvt_pk_bf16_f32 {v(t)}, {v(r0)}, {v(r0+1)}", f"v_cvt_pk_bf16_f32 {v(t+1)}, {v(r0+2)}, {v(r0+3)}",
            f"v_cvt_pk_bf16_f32 {v(t+2)}, {v(r1)}, {v(r1+1)}", f"v_cvt_pk_bf16_f32 {v(t+3)}, {v(r1+2)}, {v(r1+3)}"]
def sanit(t): return [f"v_min_u32 {v(t)}, -2, {v(t)}"]
def spin(lbl): return [f"s_add_u32 s{sSPIN}, s{sSPIN}, 1", f"s_cmp_ge_u32 s{sSPIN}, {SPIN_MAX}", f"s_cbranch_scc1 {lbl}"]
if "loopinit" not in X and "earlyinit" not in X: X.add("lateinit")
EARLYINIT = "earlyinit" in X
LINIT = opt("linit", 0)
if LINIT: X.discard("lateinit"); X.add("wt")
LATEINIT = "lateinit" in X or EARLYINIT or LINIT
P_INIT0 = f"buffer_store_dwordx4 {v(vSENT, 4)}, {v(vLIN)}, {srd(SRD_PI)}, 0 offen sc1"
TOUCH = ["s_mov_b64 exec, 0xff", f"buffer_load_dword {v(vJUNK)}, v3, {srd(SRD_O)}, s{sOI} offen"] + \
        ([f"buffer_load_dword {v(vJUNK)}, v2, {srd(SRD_WO)}, s{sOI} offen"] if "wsp" in X else []) + ["s_mov_b64 exec, -1"]
S = dict(dpos=[1, 5, 9, 13, 20, 24, 28, 32, 37, 43, 49, 54, 60, 66, 71, 77], mpos=[-1, 16, 35, 58],
         kw=33, kpos=[33, 35, 39, 39, 41, 43, 45, 47],
         vw=50, vpos=[50, 52, 52, 56, 56, 60, 62, 64, 64, 67, 67, 69, 69, 73, 73, 75], tpos=[18, 47, 77, 79])
VF = "kfirst" not in X
if VF:
    S = dict(dpos=[9, 13, 18, 22, 26, 30, 35, 39, 45, 49, 54, 58, 64, 69, 73, 77], mpos=[5, 24, 41, 60],
             vw=28, vpos=[28, 30, 32, 33, 33, 35, 37, 39, 43, 43, 47, 47, 50, 50, 52, 52],
             kw=56, kpos=[56, 60, 62, 64, 66, 67, 67, 69], tpos=[71, 81, 33 + 8, 43 + 2])
if VF and OPT.get("sched") == "b":
    S = dict(dpos=[1, 5, 11, 16, 22, 26, 32, 37, 43, 47, 52, 58, 64, 69, 73, 77], mpos=[-1, 18, 39, 60],
             vw=28, vpos=[28, 30, 30, 33, 33, 35, 35, 39, 41, 43, 45, 47, 49, 50, 50, 52],
             kw=60, kpos=[62, 64, 66, 67, 67, 69, 71, 73], tpos=[75, 81, 24, 41])
if VF and OPT.get("sched") == "c":
    S = dict(dpos=[1, 5, 9, 13, 18, 22, 26, 30, 35, 39, 45, 49, 54, 58, 62, 66], mpos=[-1, 16, 33, 52],
             vw=37, vpos=[39, 41, 43, 43, 45, 47, 47, 49, 50, 50, 52, 54, 56, 56, 58, 60],
             kw=64, kpos=[64, 67, 67, 69, 69, 71, 73, 73], tpos=[60, 75, 20, 32])
GLUE = ("s_addc_u32", "s_cselect_b32", "s_subb_u32")
def glued(lst, k):
    return lst[k].split()[0] in GLUE or (k + 1 < len(lst) and lst[k].startswith("s_mov_b32") and lst[k + 1].startswith("s_cselect"))

def kernel():
    L.append(f".globl {KN}"); L.append(".p2align 8"); L.append(f".type {KN},@function"); lab(KN)
    e("s_cmp_ge_u32 s2, 256"); e("s_cbranch_scc1 L_done")
    e("v_lshrrev_b32 v1, 6, v0")
    e("v_and_b32 v0, 63, v0")
    e(f"v_readfirstlane_b32 s{sW}, v1")
    e(f"s_mov_b32 s{sRANGE}, {RANGE}")
    lab("L_restart")
    e("s_load_dwordx16 s[4:19], s[0:1], 0")
    e(f"s_and_b32 s{sHKV}, s2, 7"); e(f"s_lshr_b32 s{sB}, s2, 3"); e(f"s_and_b32 s{sB}, s{sB}, 7"); e(f"s_lshr_b32 s{sI}, s2, 6")
    stamp("start")
    jitter(63, 7)
    e("s_getpc_b64 s[58:59]"); lab("L_pc0")
    e(f"s_sub_u32 s58, s58, L_pc0-{KN}"); e("s_subb_u32 s59, s59, 0")
    e(f"s_lshr_b32 s{sT3}, s2, 3"); e(f"s_lshl_b32 s{sT3}, s{sT3}, 2"); e(f"s_add_u32 s{sT3}, s{sT3}, s{sW}"); e(f"s_lshl_b32 s{sT3}, s{sT3}, 8")
    e("v_lshlrev_b32 v3, 7, v0"); e(f"v_add_u32 v2, s{sT3}, v3"); e(f"v_min_u32 v2, L_end-{KN}-4, v2")
    e("s_mov_b64 exec, 3"); e(f"global_load_dword {v(vJUNK)}, v2, s[58:59] @pfc"); e("s_mov_b64 exec, -1")
    e("v_and_b32 v4, 15, v0"); e("v_lshrrev_b32 v5, 4, v0"); e("v_bfe_u32 v6, v0, 2, 2"); e("v_and_b32 v7, 3, v0")
    vXO = vTMP; vWO = vTMP + 4; vXR = vTMP + 6; vWR = vTMP + 10
    e("v_xor_b32 v1, v4, v5")
    for pp in range(4):
        e(f"s_add_u32 s{sT0}, s{sW}, {pp}"); e(f"s_and_b32 s{sT0}, s{sT0}, 3"); e(f"s_lshl_b32 s{sT0}, s{sT0}, 2")
        e(f"v_xor_b32 v2, s{sT0}, v1"); e("v_lshlrev_b32 v2, 4, v2"); e(f"v_lshl_add_u32 {v(vXO+pp)}, v5, 10, v2")
    e("v_lshlrev_b32 v2, 1, v5"); e("v_xor_b32 v2, v4, v2"); e("v_lshlrev_b32 v2, 4, v2")
    e(f"v_lshl_add_u32 {v(vWO)}, v5, 13, v2"); e(f"v_xor_b32 {v(vWO+1)}, 128, {v(vWO)}")
    e(f"v_lshl_add_u32 {v(vOV)}, v5, 8, v2"); e(f"v_xor_b32 {v(vOV+1)}, 128, {v(vOV)}")
    e(f"s_mul_i32 s58, s{sB}, 81920")
    e(f"s_lshl_b32 s59, s{sHKV}, 2"); e(f"s_add_u32 s59, s59, s{sI}"); e("s_lshl_b32 s59, s59, 8")
    e(f"s_sub_u32 s{sT3}, 4194304, s59")
    e(f"s_mul_i32 s{sT0}, s{sW}, 20480"); e(f"s_mul_i32 s{sW5K}, s{sW}, 5120")
    e(f"s_lshl_b32 s{sT2}, s{sW}, 18"); e(f"s_lshl_b32 s{sSLOT}, s{sW}, 13")
    XB = [sTK, sTK2, sXB, sT0]; WB = [sTV, sTV2, sWB, sT2]
    e(f"s_add_u32 s{sCNT}, s{sB}, s{sI}")
    for cc in range(4):
        e(f"s_add_u32 s{sSPIN}, s{sCNT}, {cc}"); e(f"s_and_b32 s{sSPIN}, s{sSPIN}, 3")
        e(f"s_lshl_b32 s{sOOWN}, s{sSPIN}, 8"); e(f"s_add_u32 s{XB[cc]}, s{sT0}, s{sOOWN}")
        e(f"s_lshl_b32 s{sOOWN}, s{sSPIN}, 20"); e(f"s_add_u32 s{WB[cc]}, s{sT2}, s{sOOWN}")
    e(f"v_lshlrev_b32 {v(vLIN)}, 4, v0")
    e(f"s_mul_i32 s98, s2, {WGS}"); e(f"s_lshl_b32 s99, s{sW5K}, 1"); e("s_add_u32 s98, s98, s99"); e("s_mov_b32 s101, 9216")
    for q in range(4): e(f"v_mov_b32 v{76+q}, -1")
    e("s_waitcnt lgkmcnt(0)")
    emit(mk_srd(SRD_X, 4, 58, 81920)); emit(mk_srd(SRD_WQ, 10, 59, f"s{sT3}"))
    def p1_dma(cc):
        g = []
        for pp in range(5):
            g.append([f"s_add_u32 m0, s{sW5K}, {S_ST[cc] + pp*1024}", f"s_add_u32 s{sT3}, s{XB[cc]}, {pp*4096}",
                      f"buffer_load_dwordx4 {v(vXO + (pp & 3))}, {srd(SRD_X)}, s{sT3} offen lds @c{cc}"])
        for pp in range(8):
            g.append([f"s_add_u32 m0, s{sSLOT}, {S_ST[cc] + 20480 + pp*1024}", f"s_add_u32 s{sT3}, s{WB[cc]}, {4*pp*8192}",
                      f"buffer_load_dwordx4 {v(vWO + ((pp >> 1) & 1))}, {srd(SRD_WQ)}, s{sT3} offen lds @c{cc}"])
        return g
    c01 = p1_dma(0) + p1_dma(1)
    n0 = opt("n0", 16)
    t0, t1, t2, u1, u2 = 68, 69, 70, 71, 72
    def setup():
        U1, U2, T0, T1, T2 = v(u1), v(u2), v(t0), v(t1), v(t2)
        e(f"s_lshl_b32 s98, s{sB}, 3"); e(f"s_add_u32 s98, s98, s{sHKV}"); e("s_lshl_b32 s98, s98, 18")
        e(f"s_lshl_b32 s99, s{sW}, 16"); e("s_add_u32 s98, s98, s99")
        emit(mk_srd(SRD_K, 6, 98, 65536)); emit(mk_srd(SRD_V, 8, 98, 65536))
        e(f"s_bitcmp1_b32 s{sB}, 0")
        for r, f in ((sSEQ, seqword), (sSK, lambda q: seqtail(q, 3)), (sSV, lambda q: seqtail(q, 2))):
            e(f"s_mov_b32 s{r}, {f(SEQ[1])}"); e(f"s_cselect_b32 s{r}, {f(SEQ[2])}, s{r}")
        e(f"s_bitcmp1_b32 s{sI}, 0")
        for r, f in ((sSEQ, seqword), (sSK, lambda q: seqtail(q, 3)), (sSV, lambda q: seqtail(q, 2))):
            e(f"s_cselect_b32 s{r}, s{r}, {f(SEQ[0])}")
        e(f"v_lshlrev_b32 {U2}, 4, v1"); e(f"v_lshl_add_u32 {v(vXR)}, v4, 8, {U2}")
        for ks in range(1, 4): e(f"v_xor_b32 {v(vXR+ks)}, {ks*64}, {v(vXR)}")
        e(f"v_lshl_add_u32 {v(vOK)}, v5, 8, {U2}")
        for q in range(1, 4): e(f"v_xor_b32 {v(vOK+q)}, {q*64}, {v(vOK)}")
        e(f"v_lshrrev_b32 {T0}, 2, v4"); e(f"v_lshlrev_b32 {T0}, 3, {T0}"); e(f"v_and_b32 {U1}, 3, v4"); e(f"v_add_u32 {T0}, {T0}, {U1}")
        e(f"v_lshl_add_u32 {U2}, {T0}, 8, {U2}"); e(f"v_add_u32 {U2}, s{sSLOT}, {U2}"); e(f"v_add_u32 {v(vKR)}, {R_A}, {U2}")
        for ds in range(1, 4): e(f"v_xor_b32 {v(vKR+ds)}, {ds*64}, {v(vKR)}")
        e(f"v_lshl_add_u32 {U2}, v5, 3, v6"); e(f"v_lshlrev_b32 {U2}, 8, {U2}"); e(f"v_lshl_add_u32 {U2}, v7, 3, {U2}")
        e(f"v_and_b32 {T0}, 1, v5"); e(f"v_lshl_add_u32 {T0}, {T0}, 2, v6")
        e(f"s_lshl_b32 s98, s{sW}, 1")
        for k in range(8):
            e(f"s_add_u32 s99, s98, {k}"); e("s_and_b32 s99, s99, 7")
            e(f"v_xor_b32 {U1}, s99, {T0}"); e(f"v_lshl_add_u32 {U1}, {U1}, 5, {U2}")
            if k < 2: e(f"v_add_u32 {v(vWR+k)}, 20480, {U1}")
            e(f"v_add_u32 {v(vVR+k)}, s{sSLOT}, {U1}")
        for r in range(160): e(f"v_mov_b32 {v(vO+r)}, 0")
        e("s_and_b32 s98, s2, 63"); e(f"s_mul_i32 s98, s98, {WGS}"); emit(mk_srd(SRD_O, 18, 98, 3*HEADSTRIDE + WGS))
        e(f"s_mul_i32 s{sOOWN}, s{sI}, {HEADSTRIDE}"); e(f"s_lshl_b32 s100, s{sW5K}, 1"); e(f"s_add_u32 s{sOOWN}, s{sOOWN}, s100")
        e(f"s_lshl_b32 s{sFOWN}, s2, 2"); e(f"s_add_u32 s{sFOWN}, s{sFOWN}, s{sW}"); e(f"s_lshl_b32 s{sFOWN}, s{sFOWN}, 6"); e(f"s_add_u32 s{sFOWN}, s{sFOWN}, {WS_FLG}")
        e("s_and_b32 s98, s2, 63"); e("s_lshl_b32 s98, s98, 2"); e(f"s_add_u32 s98, s98, s{sW}"); e("s_lshl_b32 s98, s98, 6"); e(f"s_add_u32 s98, s98, {WS_FLG}")
        e(f"v_and_b32 {T0}, 3, v0"); e(f"v_lshl_add_u32 {T0}, {T0}, 14, s98")
        e("s_and_b32 s98, s2, 0xf8"); e("s_lshl_b32 s98, s98, 8"); e(f"s_lshr_b32 s99, s{sHKV}, 1"); e("s_lshl_b32 s99, s99, 6")
        e("v_cmp_gt_u32 vcc, 16, v0"); e("s_add_u32 s98, s98, s99"); e(f"s_add_u32 s98, s98, {WS_FLG + 4}")
        e(f"v_and_b32 {T1}, 7, v0"); e(f"v_lshl_add_u32 {T1}, {T1}, 8, s98"); e(f"v_cndmask_b32 {T0}, {T1}, {T0}, vcc")
        e(f"v_accvgpr_write_b32 {a(aPRB)}, {T0}")
        e(f"s_lshl_b32 s98, s{sHKV}, 19"); e(f"s_lshl_b32 s99, s{sI}, 8"); e("s_add_u32 s98, s98, s99"); e("s_sub_u32 s99, 524288, s99")
        emit(mk_srd(SRD_WO, 12, 98, "s99"))
        e(f"v_lshlrev_b32 {U1}, 2, v5"); e(f"v_sub_u32 {U1}, v4, {U1}"); e(f"v_and_b32 {U2}, 1, {U1}"); e(f"v_lshlrev_b32 {U2}, 4, {U2}")
        e(f"v_mov_b32 {T0}, 0x3f80"); e(f"v_lshlrev_b32 {U2}, {U2}, {T0}"); e(f"v_lshrrev_b32 {U1}, 1, {U1}")
        e(f"v_cmp_eq_u32 vcc, 0, {U1}"); e(f"v_accvgpr_write_b32 {a(aE)}, 0"); e(f"v_accvgpr_write_b32 {a(aE+1)}, 0"); e(f"v_cndmask_b32 {T0}, 0, {U2}, vcc")
        e(f"v_cmp_eq_u32 vcc, 1, {U1}"); e(f"v_accvgpr_write_b32 {a(aE+4)}, 0"); e(f"v_accvgpr_write_b32 {a(aE+5)}, 0"); e(f"v_cndmask_b32 {T1}, 0, {U2}, vcc")
        e(f"v_accvgpr_write_b32 {a(aE+2)}, {T0}"); e(f"v_accvgpr_write_b32 {a(aE+3)}, {T1}")
        for mrel in (1, 2, 3, 0):
            e(f"s_add_u32 s99, s{sW}, {mrel}"); e("s_and_b32 s99, s99, 3"); e("s_mul_i32 s98, s99, 3072")
            if mrel > 1: e(f"s_add_u32 s98, s98, {(mrel-1)*1024}")
            e(f"v_add_u32 {U1}, s98, {v(vLIN)}"); e(f"v_accvgpr_write_b32 {a(aADR + (mrel - 1) % 4)}, {U1}")
        e(f"s_lshl_b32 s98, s{sW}, 2"); e(f"s_add_u32 s98, s98, {R_SP}"); e(f"v_lshl_add_u32 {U1}, v4, 4, s98")
        if "lsame" not in X: e(f"v_mul_u32_u24 {U2}, 1288, v5"); e(f"v_add_u32 {U1}, {U1}, {U2}")
        e(f"v_accvgpr_write_b32 {a(aADR+4)}, {U1}")
        e(f"v_lshlrev_b32 {U1}, 4, v4"); e(f"v_add_u32 {U1}, {R_SP}, {U1}"); e(f"v_accvgpr_write_b32 {a(aADR+5)}, {U1}")
        e(f"v_and_b32 {U1}, 1, v5"); e(f"v_lshlrev_b32 {U1}, 1, {U1}"); e(f"v_xor_b32 {U1}, v4, {U1}"); e(f"v_lshlrev_b32 {U1}, 4, {U1}"); e(f"v_lshl_add_u32 {U1}, v5, 12, {U1}")
        for q in range(4): e(f"v_xor_b32 {U2}, {q*64}, {U1}"); e(f"v_accvgpr_write_b32 {a(aADR+6+q)}, {U2}")
        e(f"v_lshl_add_u32 {U2}, v6, 2, v5"); e(f"v_lshlrev_b32 {U2}, 8, {U2}"); e(f"v_lshl_add_u32 {U2}, v7, 3, {U2}")
        e(f"v_and_b32 {T0}, 1, v5"); e(f"v_lshl_add_u32 {T0}, v6, 1, {T0}")
        e(f"s_lshl_b32 s98, s{sW}, 1")
        for k in range(2):
            e(f"s_add_u32 s99, s98, {k}")
            e(f"v_xor_b32 {U1}, s99, {T0}"); e(f"v_lshl_add_u32 {U1}, {U1}, 5, {U2}"); e(f"v_add_u32 {U1}, {R_A}, {U1}"); e(f"v_accvgpr_write_b32 {a(aADR+10+k)}, {U1}")
        for h in range(4):
            e(f"s_add_u32 s98, s{sI}, {h}"); e("s_and_b32 s98, s98, 3")
            e(f"s_mul_i32 s99, s98, {HEADSTRIDE}"); e(f"s_add_u32 s{sSIB+h}, s99, s100")
            e("s_lshl_b32 s98, s98, 2"); e(f"s_add_u32 s98, s98, s{sW}"); e(f"s_lshl_b32 s{sWOB+h}, s98, 15")
        e(f"s_lshl_b32 s{sW1K}, s{sW}, 10")
        for r in range(20): e(f"v_accvgpr_write_b32 {a(aL+r)}, 0")
        e(f"v_mov_b32 {U1}, 0x3f803f80")
        for r in range(4): e(f"v_accvgpr_write_b32 {a(aONE+r)}, {U1}")
        e(f"s_mov_b32 s{sQS}, {f2u(QSCALE)}"); e(f"s_lshl_b32 s98, s{sW}, 2")
        Q = v(vQW); Q1 = v(vQW + 1)
        e(f"v_lshrrev_b32 {Q}, 1, v5"); e(f"v_add_u32 {Q}, s98, {Q}"); e(f"v_xor_b32 {Q}, {Q}, v4"); e(f"v_lshlrev_b32 {Q}, 4, {Q}")
        e(f"v_lshl_add_u32 {Q}, v4, 8, {Q}"); e(f"v_and_b32 {Q1}, 1, v5"); e(f"v_lshl_add_u32 {Q}, {Q1}, 3, {Q}"); e(f"v_add_u32 {Q}, {R_QX}, {Q}"); e(f"v_xor_b32 {Q1}, 32, {Q}")
    fill = capture(setup)
    ne = min(opt("ne", 420), len(fill))
    while ne < len(fill) and glued(fill, ne): ne += 1
    early, fill = fill[:ne], fill[ne:]
    groups = list(c01[:n0])
    pin = [[f"buffer_store_dwordx4 v[76:79], {v(vLIN)}, {srd(SRD_PI)}, " + (f"0 offen offset:{j*1024}" if j < 4 else "s101 offen") + " sc1 @ip"] for j in range(5)] if EARLYINIT else []
    tch = []
    for nm, isK, t in (("tk0", True, 0), ("tv0", False, 0), ("tk1", True, 1)):
        n = opt(nm, 0)
        if n: tch.append([f"s_mul_i32 s58, s{sSTEP}, {t}", f"s_add_u32 s58, s58, s{sMIR}", f"s_lshr_b32 s59, s{sI}, 1", "s_lshl_b32 s59, s59, 12", "s_add_u32 s58, s58, s59",
                          f"s_mov_b64 exec, {(1 << n) - 1}" if n < 32 else "s_mov_b32 exec_hi, 0", f"buffer_load_dword {v(vJUNK)}, v3, {srd(SRD_K if isK else SRD_V)}, s58 offen @tch", "s_mov_b64 exec, -1"])
    tp = opt("tp", 13)
    if tp < 90: groups = groups[:tp] + tch + groups[tp:]; tch = []
    ipos = opt("ipos", 99)
    if ipos < 90: groups = groups[:ipos] + pin + groups[ipos:]; pin = []
    for _ in range(4): emit(groups.pop(0))
    emit(mk_srd(SRD_PI, 18, 98, WVS))
    per = max(1, min(len(early), 260) // (len(groups) + 1)); k = 0
    while early:
        L.append("    " + early.pop(0)); k += 1
        if k >= per and groups and (not early or not glued(early, 0)): emit(groups.pop(0)); k = 0
    emit(flat(groups))
    fg = []
    for x in fill:
        if fg and x.split()[0] in GLUE: fg[-1].append(x)
        else: fg.append([x])
    flag_reset = ["s_mov_b64 exec, 1", f"v_mov_b32 v2, s{sFOWN}",
                  "global_store_dwordx2 v2, v[76:77], s[18:19] sc1 @frst", "s_mov_b64 exec, -1"]
    L.append("; ---- query projection")
    acc = vP; aX = aV; aWf = aV + 40; aX3 = aQ; aW3 = aK + 32
    def reads(cc, ks):
        buf = ks & 1
        r = [f"ds_read_b64_tr_b16 {a(aWf + buf*8 + dd*4 + jh*2, 2)}, {v(vWR+dd)} offset:{ks*8192 + jh*1024}" for dd in range(2) for jh in range(2)]
        return r + [f"ds_read_b128 {a(aX + buf*20 + j*4, 4)}, {v(vXR+ks)} offset:{j*4096} @p{cc}{ks}{j}" for j in range(5)]
    def wrd(ks): return [f"ds_read_b64_tr_b16 {a(aW3 + (ks*2+dd)*4 + jh*2, 2)}, {v(vWR+dd)} offset:{ks*8192 + jh*1024} @w{ks}" for dd in range(2) for jh in range(2)]
    def xrd(j, ks): return f"ds_read_b128 {a(aX3 + (j*4+ks)*4, 4)}, {v(vXR+ks)} offset:{j*4096} @x{j}{ks}"
    TL = OPT.get("tlb", "")
    if TL:
        assert not fill
        e("s_mov_b64 exec, 1"); e("v_mov_b32 v2, 0")
        if "v" in TL: e(f"buffer_load_dword {v(vJUNK)}, v2, {srd(SRD_V)}, 0 offen")
        if "k" in TL: e(f"buffer_load_dword {v(vJUNK)}, v2, {srd(SRD_K)}, 0 offen")
        if "w" in TL: e(f"buffer_load_dword {v(vJUNK)}, v2, {srd(SRD_WO)}, 0 offen")
        if "s" in TL:
            for h in range(4): e(f"buffer_load_dword {v(vJUNK)}, v2, {srd(SRD_O)}, s{sSIB+h} offen")
            e(f"v_mov_b32 v1, s{sFOWN}"); e(f"global_load_dword {v(vJUNK)}, v1, s[18:19]")
        if "o" in TL:
            e(f"s_mul_i32 s58, s{sB}, 81920"); e("v_mov_b32 v1, s58"); e(f"global_load_dword {v(vJUNK)}, v1, s[14:15]")
        if "d" in TL: e(f"global_load_dword {v(vJUNK)}, v2, s[16:17]")
        e("s_mov_b64 exec, -1")
    e("WAITVM c0"); e("s_barrier"); stamp("c0")
    emit(reads(0, 0))
    TB = [x for x in OPT.get("tb", "K0,V0").split(",") if x and x != "no"]
    if TB:
        tgrp = [f"s_bfe_u32 s58, s{sB}, {(1 << 16) | opt('tbit', 0)}", f"s_lshr_b32 s59, s{sI}, 1", "s_cmp_eq_u32 s58, s59", "s_cselect_b32 s58, 0, 0x10000", "s_cselect_b64 exec, -1, 1"]
        for x in TB:
            if len(x) > 2: tgrp.append("s_mov_b32 exec_hi, 0")
            tgrp += [f"s_bfe_u32 s59, s{sSEQ}, {(4 << 16) | (4*int(x[1]))}", "s_lshl_b32 s59, s59, 13", "s_or_b32 s59, s59, s58"]
            tgrp.append(f"buffer_load_dword {v(vJUNK)}, v3, {srd(SRD_K if x[0] == 'K' else SRD_V)}, s59 offen @tch")
        tgrp.append("s_mov_b64 exec, -1")
        if opt("tq", 10) == 0: emit(tgrp)
    M = []; G = {g: [] for g in range(-1, 160)}
    for cc in range(3):
        for ks in range(4):
            g0 = len(M); buf = ks & 1
            for j in range(5):
                for dd in range(2):
                    d = v(acc + (j*2+dd)*4, 4)
                    M.append(f"{MF} {d}, {a(aWf + buf*8 + dd*4, 4)}, {a(aX + buf*20 + j*4, 4)}, {'0' if (cc == 0 and ks == 0) else d}")
            G[g0 - 1].append(f"WAITLG p{cc}{ks}1"); G[g0 + 3].append(f"WAITLG p{cc}{ks}4")
            if ks < 3:
                r = reads(cc, ks + 1)
                G[g0] += r[0:3]; G[g0 + 1] += r[3:6]; G[g0 + 2] += r[6:9]
            else:
                dl = [53248, 53248, -106496][cc]
                adj = [f"v_add_u32 {v(vXR+q)}, {dl}, {v(vXR+q)}" for q in range(4)] + [f"v_add_u32 {v(vWR+q)}, {dl}, {v(vWR+q)}" for q in range(2)]
                for gi in range(3): G[g0 + gi] += adj[2*gi:2*gi+2]
                G[g0 + 3] += [f"WAITVM c{cc+1}", "s_barrier", f"STAMP c{cc+1}"]
                r = reads(cc + 1, 0) if cc < 2 else (wrd(0) + [xrd(0, 0)] + wrd(1) + [xrd(0, 1)] + wrd(2) + [xrd(0, 2)])
                for gi in range(5): G[g0 + 4 + gi] += r[3*gi:3*gi+3]
    posts = []
    for j in range(5):
        g0 = len(M)
        for ks in range(4):
            for dd in range(2):
                d = v(acc + (j*2+dd)*4, 4)
                M.append(f"{MF} {d}, {a(aW3 + (ks*2+dd)*4, 4)}, {a(aX3 + (j*4+ks)*4, 4)}, {d}")
        if j == 0:
            G[g0 - 1].append("WAITLG x00"); G[g0] += wrd(3)[:3]; G[g0 + 1] += [wrd(3)[3], xrd(0, 3), "WAITLG x01"]
            G[g0 + 2] += [xrd(1, 0), xrd(1, 1)]; G[g0 + 3] += ["WAITLG x02", xrd(1, 2), xrd(1, 3)]
            G[g0 + 5] += ["WAITLG x03", "s_barrier"]
        else:
            G[g0 - 1].append(f"WAITLG x{j}3")
            if j < 4:
                for ks in range(4): G[g0 + ks].append(xrd(j + 1, ks))
        for dd in range(2):
            r = acc + (j*2+dd)*4
            p = [f"v_mul_f32 {v(r+q)}, s{sQS}, {v(r+q)}" for q in range(4)]
            p += [f"v_cvt_pk_bf16_f32 {v(r)}, {v(r)}, {v(r+1)}", f"v_cvt_pk_bf16_f32 {v(r+1)}, {v(r+2)}, {v(r+3)}",
                  f"ds_write_b64 {v(vQW + dd)}, {v(r, 2)} offset:{j*4096} @qw"]
            posts += [(g0 + 8 + 2, x) for x in p]
    c2 = p1_dma(2); c3 = p1_dma(3); k0d = kv_dma(True, R_A, "K0"); k0d[0] = set_T(True, 0) + k0d[0]
    ka, kb, late, nv0, sp3 = opt("ka", 3), opt("kb", 8), opt("late", 22), opt("nv0", 4), opt("dsp3", 4)
    v0g = kv_dma(False, R_C, "V0"); v0g[0] = set_T(False, 0) + v0g[0]
    k1g = kv_dma(True, R_B, "K1"); k1g[0] = set_T(True, 1) + k1g[0]
    dq = [(0, g) for g in c01[n0:] + tch + c2[:ka]] + [(late, g) for g in c2[ka:kb]] + [(34, g) for g in c2[kb:] + c3[:ka]] + \
         [(40 + late, g) for g in c3[ka:kb]] + [(74, g) for g in c3[kb:] + (pin if ipos == 99 else []) + k0d[:ka]] + [(80 + opt("latek", late), g) for g in k0d[ka:kb] + [flag_reset]] + \
         [(114, g) for g in k0d[kb:] + (pin if ipos == 98 else []) + k1g + v0g[:nv0]]
    if TB and opt("tq", 10):
        k = opt("tq", 10); dq.insert(k, (dq[k - 1][0], tgrp))
    left = []; t = 0
    rush = opt("rush", 0); last = [g for r_, g in dq if r_ == 114][:rush]
    for g in last: G[113] += list(g); dq.remove((114, g))
    for rdy, g in dq:
        t = max(t, rdy)
        while t < 160 and (sum(1 for x in G[t] if x.startswith("ds_read")) > (1 if t >= 120 else 0) or "s_barrier" in G[t]): t += 1
        if t < 160: G[t] = G[t] + list(g)
        else: left.append(g)
        t += 1 if t < 114 else sp3
    drain = sched(M, G, [posts, [(0, g) for g in fg] + [(0, "MARK fill")]], need={33: ["fill"]}, limit=20)
    for ks in range(4): e(f"v_add_u32 {v(vXR+ks)}, {R_QX}, {v(vXR+ks)}")
    e(f"s_mov_b32 s{SRD_D}, s16"); e(f"s_mov_b32 s{SRD_D+1}, s17"); e(f"s_mov_b32 s{SRD_D+2}, 256"); e(f"s_mov_b32 s{SRD_D+3}, 0x20000")
    drain(0); emit(left)
    e("WAITVM frst"); e("WAITLG qw"); e("s_barrier")
    stamp("Bq")
    def qrd(j): return [f"ds_read_b128 {a(aQ + (j*4+ds)*4, 4)}, {v(vXR+ds)} offset:{j*4096} @q{j}" for ds in range(4)]
    emit(qrd(0))
    e("WAITVM K0")
    emit(kreads(0, "k0"))
    for r in range(20): e(f"v_mov_b32 {v(vNM+r)}, 0")
    e(f"s_lshl_b32 s{sT1}, s{sB}, 5")
    e(f"s_cmp_eq_u32 s{sRANGE}, -1"); e("s_cbranch_scc1 L_rowmax")
    e(f"s_cmp_lg_u32 s{sW}, 0"); e("s_cbranch_scc1 L_noat")
    e("s_mov_b64 exec, 1"); e("v_mov_b32 v1, 1"); e("v_mov_b32 v2, 0")
    L.append(f"    buffer_atomic_add v1, v2, {srd(SRD_D)}, s{sT1} offen sc1")
    e("s_mov_b64 exec, -1")
    lab("L_noat")
    e("WAITLG q0"); emit(qrd(1)); e("WAITLG k0"); emit(qrd(2) + qrd(3))
    L.append("; ---- first score tile")
    k2g = kv_dma(True, R_A, "K2"); k2g[0] = set_T(True, 2) + k2g[0]
    v1g = kv_dma(False, R_D, "V1"); v1g[0] = set_T(False, 1) + v1g[0]
    dm = v0g[nv0:] + (v1g + k2g if VF else k2g + v1g)
    rdk = kreads(1, "k1"); rdv = vreads(0, "v0")
    for j in range(5):
        sb = (5 + j) & 1
        gaps = {g: [] for g in range(-1, 8)}
        if j > 0:
            gaps[-1].append(f"WAITLG q{j}")
            ex = exps(sb ^ 1); cv = cvts(sb ^ 1, j - 1)
            for n in range(8): gaps[n].append(ex[n])
            gaps[2].append(cv[0]); gaps[4].append(cv[1]); gaps[6].append(cv[2]); gaps[7] += ["s_nop 0", cv[3]]
        if j == 1: gaps[-1] += [f"v_add_u32 {v(vVRC+k)}, {R_C}, {v(vVR+k)}" for k in range(8)] + [f"v_mov_b32 {v(vSENT+q)}, -1" for q in range(4)]
        if j == 0:
            for n in range(8):
                if dm: gaps[n] += dm.pop(0)
            gaps[3] += ["WAITLG q1"] + qrd(4)
        else:
            for n in (0, 2, 4, 6):
                if dm: gaps[n] = dm.pop(0) + gaps[n]
            if j == 2:
                gaps[1].insert(0, "WAITVM K1")
                for n in (1, 3, 5, 7): gaps[n] += [rdk.pop(0), rdk.pop(0)]
            if j == 3: gaps[1].insert(0, "WAITVM V0")
            if j >= 3:
                for n in (1, 3, 5, 7): gaps[n] += [rdv.pop(0), rdv.pop(0)]
        interleave(qk(j, 0, sb), gaps)
    emit(flat(dm))
    e(f"s_mov_b32 s{sCNT}, 0")
    emit(set_T(True, 3) + set_T(False, 2))
    if OPT.get("hm"):
        me, mo = OPT["hm"].split(",")
        emit([f"s_lshl_b32 s58, s{sB}, 2", f"s_add_u32 s58, s58, s{sI}", "s_lshl_b32 s58, s58, 2", f"s_add_u32 s58, s58, s{sW}",
              "s_lshl_b32 s58, s58, 12", f"s_lshl_b32 s59, s{sI}, 8", "s_sub_u32 s58, s58, s59", "v_add_u32 v2, s58, v3",
              f"s_bitcmp1_b32 s{sB}, 0", f"s_cselect_b32 s{sOI}, {mo}, {me}"])
    e("s_waitcnt lgkmcnt(0)")
    stamp("pro")
    jitter(15, 9)
    L.append("; ---- main loop: key tiles 0..4")
    def base_iter(par):
        G = {g: [] for g in range(-1, 85)}; M = []
        for j in range(5):
            sb = (5*par + j) & 1
            M += qk(j, par ^ 1, sb) + pv(j, par)
            put_exp(G, 17*j, sb ^ 1, (j - 1) % 5)
        return M, G
    def half_va(par):
        kd = flat(kv_dma(True, KSLOT[par ^ 1], "lk", nop=False)); vd = flat(kv_dma(False, VSLOT[par], "lv", nop=False))
        G = {g: [] for g in range(-1, 80)}; M = []
        LR = [92, 93, 94, 95, 1]
        for j in range(5):
            sb = (5*par + j) & 1; b = 16*j; jp = (j - 1) % 5; r = vS + (sb ^ 1)*8
            M += qk(j, par ^ 1, sb) + pv(j, par)[:-1]
            ex = exps(sb ^ 1); cv = cvts(sb ^ 1, jp)
            for n in range(8):
                G[b + 2*n].append(ex[n])
                G[b + 2*n + 1].append(f"v_add_f32 {v(LR[jp])}, {v(LR[jp])}, {v(r + n)}")
                if n & 1: G[b + 2*n + 1].append(cv[n >> 1])
        dpos = [1, 5, 11, 15, 21, 25, 31, 35, 41, 45, 51, 55, 61, 65, 71, 75]; mpos = [-1, 17, 37, 57]
        ev = "vaexp" in X
        if ev:
            vpos = [27, 28, 29, 30, 32, 33, 34, 36, 38, 39, 40, 42, 43, 44, 46, 47]; kpos = [59, 60, 62, 63, 64, 66, 67, 68]; vw, kw = 26, 58; tpos = [69, 77, 23, 39]
        else:
            vpos = [27, 29, 29, 33, 33, 37, 39, 41, 43, 45, 47, 49, 49, 53, 53, 57]; kpos = [61, 63, 65, 67, 69, 69, 73, 73]; vw, kw = 25, 59; tpos = [77, 77, 19, 43]
        dma = vd + kd
        for p, s in zip(mpos, [s for s in dma if "m0" in s]): G[p].append(s)
        for p, s in zip(dpos, [s for s in dma if "m0" not in s]): G[p].append(s)
        G[kw].append(f"s_waitcnt vmcnt({sum(1 for p in dpos if p <= kw)})")
        for p, s in zip(kpos, kreads(par)): G[p].append(s)
        G[vw].append(f"s_waitcnt vmcnt({8 + sum(1 for p in dpos if p <= vw)})")
        for p, s in zip(vpos, vreads(par ^ 1)): G[p].append(s)
        for p, r in zip(tpos, (sTK, sTK2, sTV, sTV2)): G[p].append(f"s_add_u32 s{r}, s{r}, s{sSTEP}")
        if par == 0: G[13].append(f"s_add_u32 s{sCNT}, s{sCNT}, 1"); G[79].append(f"s_cmp_eq_u32 s{sCNT}, 3")
        G[79].insert(0, "s_waitcnt lgkmcnt(0)")
        G = {g: [s for s in l if not isv(s)] + [s for s in l if isv(s)] for g, l in G.items()}
        interleave(M, G)
    def half(par):
        if "va" in X or "vaexp" in X: return half_va(par)
        kd = flat(kv_dma(True, KSLOT[par ^ 1], "lk", nop=False)); vd = flat(kv_dma(False, VSLOT[par], "lv", nop=False))
        dma = vd + kd if VF else kd + vd
        M, G = base_iter(par)
        for p, s in zip(S["mpos"], [s for s in dma if "m0" in s]): G[p].append(s)
        for p, s in zip(S["dpos"], [s for s in dma if "m0" not in s]): G[p].append(s)
        G[S["kw"]].append(f"s_waitcnt vmcnt({(0 if VF else 8) + sum(1 for p in S['dpos'] if p <= S['kw'])})")
        for p, s in zip(S["kpos"], kreads(par)): G[p].append(s)
        G[S["vw"]].append(f"s_waitcnt vmcnt({(8 if VF else 0) + sum(1 for p in S['dpos'] if p <= S['vw'])})")
        for p, s in zip(S["vpos"], vreads(par ^ 1)): G[p].append(s)
        for p, q, r, w in ((S["tpos"][0], S["tpos"][1], sTK, sSK), (S["tpos"][2], S["tpos"][3], sTV, sSV)):
            G[16 if r == sTV else 1].append(f"s_lshr_b32 s{w}, s{w}, 3"); G[p].append(f"s_and_b32 s{r}, s{w}, 0xe000"); G[q].append(f"s_or_b32 s{r+1}, s{r}, 4096")
        if par == 0: G[79].append(f"s_add_u32 s{sCNT}, s{sCNT}, 1"); G[84].append(f"s_cmp_eq_u32 s{sCNT}, 3")
        if par == 1 and opt("hkb", 0): G[opt("hkb", 0)] += [f"s_cmp_eq_u32 s{sCNT}, {opt('hk', 1)}", "s_cbranch_scc1 L_hook", "LABEL L_back"]
        if VF: G[83].append("s_waitcnt lgkmcnt(0)")
        else: G[84].insert(0, "s_waitcnt lgkmcnt(15)"); G[7].append("s_waitcnt lgkmcnt(0)")
        G = {g: [s for s in l if not isv(s)] + [s for s in l if isv(s)] for g, l in G.items()}
        interleave(M, G)
    L.append(".p2align 6")
    lab("L_loop")
    WOT = [f"s_lshl_b32 s58, s{sB}, 2", f"s_add_u32 s58, s58, s{sI}", "s_lshl_b32 s58, s58, 2", f"s_add_u32 s58, s58, s{sW}",
           "s_lshl_b32 s58, s58, 12", f"s_lshl_b32 s59, s{sI}, 8", "s_sub_u32 s58, s58, s59", "v_add_u32 v2, s58, v3", "s_mov_b32 exec_hi, 0",
           f"buffer_load_dword v1, v2, {srd(SRD_WO)}, 0 offen", "s_mov_b32 exec_hi, -1"]
    HM = OPT.get("hm")
    hooks = []
    def hook():
        if not HM: return
        k = len(hooks); hooks.append(k)
        e(f"s_bitcmp1_b32 s{sOI}, 0"); e(f"s_cbranch_scc1 L_hk{k}"); lab(f"L_hr{k}"); e(f"s_lshr_b32 s{sOI}, s{sOI}, 1")
    if "unroll" in X:
        half(0); hook(); stamp("i0"); half(1); hook(); stamp("i1"); half(0); hook(); stamp("i2")
        if opt("wt5", -1) < 0 and not HM: e("s_branch L_hook")
        lab("L_back")
        half(1); hook(); stamp("i3"); half(0); e("s_branch L_exit")
    else:
        half(0)
        e("s_cbranch_scc1 L_exit")
        if opt("wt5", -1) >= 0 or HM: lab("L_back")
        else: e(f"s_cmp_eq_u32 s{sCNT}, {opt('hk', 2)}"); e("s_cbranch_scc1 L_hook"); lab("L_back")
        hook()
        half(1)
        hook()
        e("s_branch L_loop")
    lab("L_hook")
    emit(WOT + ["s_branch L_back"])
    for k in hooks:
        nl = opt("hl", 16)
        lab(f"L_hk{k}"); e(f"s_mov_b64 exec, {(1 << nl) - 1}"); L.append(f"    buffer_load_dword v1, v2, {srd(SRD_WO)}, 0 offen"); e("s_mov_b64 exec, -1")
        e(f"v_add_u32 v2, {nl*128}, v2"); e(f"s_branch L_hr{k}")
    lab("L_exit")
    stamp("exit")
    jitter(31, 5)
    if "cnt" in X: e(f"s_mov_b32 s{sOI}, 0")
    L.append("; ---- key tile 5")
    VM.ops = (["V5"]*8 + ["K6"]*8 + ["V6"]*8 + ["K7"]*8) if VF else (["K6"]*8 + ["V5"]*8 + ["K7"]*8 + ["V6"]*8); LG.ops = ["kr"]*8 + ["vr"]*16
    vXW = vKR; vXRD = vKR + 3; vWOO = vOK; vLW = vOV; vLR = vOV + 1
    def wo_dma(h):
        g = [f"s_add_u32 m0, s{sSLOT}, {WREG[h]}", f"s_add_u32 s{sT3}, s{sWOB+h}, 16384"]
        for pp in range(8):
            if pp == 4: g += [f"s_add_u32 m0, s{sSLOT}, {WREG[h] + 4096}", "NEXTGAP"]
            g.append(f"buffer_load_dwordx4 {v(vWOO + (pp & 3))}, {srd(SRD_WO)}, s{sWOB+h if pp < 4 else sT3} offen offset:{(pp & 3)*1024} lds @wo{h}")
        return g
    def paced(items, t, step):
        r = []
        for x in items:
            r.append((t, x))
            if any(y.startswith("buffer") for y in aslist(x)): t += step
        return r
    def unpark(dst, k): return f"v_accvgpr_read_b32 {v(dst)}, {a(aADR + k)}"
    def pstore(j, data, tag):
        return f"buffer_store_dwordx4 {v(data, 4)}, {v(vLIN)}, {srd(SRD_PI)}, s{sTK2 if j < 4 else sTV2} offen offset:{(j & 3)*1024} sc1 @{tag}"
    def ostore(j, data, tag):
        return f"buffer_store_dwordx4 {v(data, 4)}, {v(vLIN)}, {srd(SRD_O)}, " + (f"s{sOOWN} offen offset:{j*1024}" if j < 4 else f"s{sTK} offen") + " sc1 @" + tag
    def setflag(k, tag): return ["v_mov_b32 v2, 0", f"v_mov_b32 v3, s{sFOWN}", ["s_mov_b64 exec, 1", f"global_store_dword v3, v2, s[18:19] offset:{4*k} sc1 @{tag}", "s_mov_b64 exec, -1"]]
    M, G = base_iter(1)
    G[-1] += ["v_mov_b32 v1, 0", f"buffer_load_dword {v(vJUNK)}, v1, {srd(SRD_D)}, s{sT1} offen sc1 @hs"]
    if opt("tch", 2) == 1: G[1] += ["s_mov_b32 exec_hi, 0xff", f"buffer_load_dword v2, v3, {srd(SRD_O)}, s{sOOWN} offen", "s_mov_b32 exec_hi, -1"]
    G[7].append("s_waitcnt lgkmcnt(0)")
    G[S["kw"]].append("WAITVM K7")
    for p, s in zip(S["kpos"], kreads(1, "k7")): G[p].append(s)
    G[S["vw"]].append("WAITVM V6")
    for p, s in zip(S["vpos"], vreads(0, "v6")): G[p].append(s)
    G[83].append("WAITLG k7")
    hw = max(S["kw"], S["vw"]) + 1
    v7 = [x.replace("s_nop 0", "NEXTGAP") for x in flat(kv_dma(False, VSLOT[1], "V7"))]
    vm = [(0, v7[0])] + paced(v7[2:], 1 if VF else 8, 2)
    if opt("wt5", -1) >= 0:
        vm += [(0, x) for x in WOT[:8]] + [(opt("wt5", -1), WOT[8:])]
    vm += paced([ostore(j, vSENT, "io") for j in range(5)], opt("ist", 24), opt("isp", 8))
    W0L = opt("w0t", 95) >= 85
    vm += [(20, unpark(vWOO + q, 6 + q)) for q in range(4)] + ([] if W0L else paced(wo_dma(0), opt("w0t", 95), opt("w0s", 3)))
    hsq = [f"s_add_u32 s{sTK}, s{sOOWN}, 4096", f"s_mov_b32 s{sTK2}, 5120",
           f"s_mov_b32 s{SRD_WS}, s18", f"s_mov_b32 s{SRD_WS+1}, s19", f"s_mov_b32 s{SRD_WS+2}, {WS_FLG + 65536}", f"s_mov_b32 s{SRD_WS+3}, 0x20000", f"s_mov_b32 s{sSPIN}, 0"]
    hsq = [(1, x) for x in hsq] + [(30, f"s_mov_b32 s{sTV2}, 9216"), (hw, "WAITVM hs"), (hw, f"v_readfirstlane_b32 s58, {v(vJUNK)}"), (hw, "NEXTGAP"),
           (hw, ["s_cmp_ge_u32 s58, 32", "s_cbranch_scc0 L_hs", "LABEL L_hsok"])]
    drain = sched(M, G, [hsq, vm], limits={1: opt('l5', 36)})
    drain(0); drain(1)
    stamp("t5")
    jitter(7, 11)
    L.append("; ---- key tiles 6 and 7, combine, output projection (pipelined over the five query tiles)")
    FO = [2, 3, 4, 5, 6, 7, 0, 1]
    HZ = opt("hz", 4)
    M = []; G = {7: ["s_waitcnt lgkmcnt(0)"]}; ix = {}
    for j in range(5):
        put_exp(G, len(M), (j & 1) ^ 1, (j - 1) % 5)
        M += qk(j, 1, j & 1) + pv(j, 0)
        if j >= 3: ix[f"p{j-3}"] = len(M); M += pv(j - 3, 1, FO)
    aW = [aK, aQ, aQ + 32, aV]
    aR = [aK + 32, aK + 44, aQ + 64]
    def msum(j):
        return [f"{MF} {v(oreg(k, j), 4)}, {a(aE + (2 if k == 0 else 0), 4)}, {a(aR[j % 3] + s*4, 4)}, {v(oreg(k, j), 4)}" for s in range(3) for k in range(2)]
    put_exp(G, len(M), 0, 4)
    BQ = [vS, vS + 4, vS + 8, vS + 12, vP, vP + 4, vP + 8, vP + 12, vNM, vNM + 4, vNM + 8, vNM + 12]
    vWR2 = vVR; vOB = vVR + 2; vVER = vVR + 3; vCHK = vVR + 4; vPRB = vVR + 5; vPRD = vVR + 6; vOWN = vVR + 7; vT = vP + 16
    def bread(j, h, st):
        if h == 0: return [f"ds_read_b128 {v(BQ[st*4 + ks], 4)}, {v(vLIN)} offset:{OWNB[j] + ks*1024} @b{j}{h}" for ks in range(4)]
        return [f"ds_read_b128 {v(BQ[st*4 + ks], 4)}, {v(vOB)} offset:{OBOFF[j] + h*4096 + ks*1024} @b{j}{h}" for ks in range(4)]
    def proj(j, h, st):
        return [f"{MF} {v(oreg(2 + nn, j), 4)}, {a(aW[h] + (ks*2+nn)*4, 4)}, {v(BQ[st*4 + ks], 4)}, {'0' if h == 0 and ks == 0 else v(oreg(2 + nn, j), 4)}"
                for ks in range(4) for nn in range(2)]
    for nm, mm in (("s0", msum(0)), ("p2", pv(2, 1, FO)), ("p3", pv(3, 1, FO)), ("p4", pv(4, 1, FO))):
        ix[nm] = len(M); M += mm
    need = {}; NE = opt("ne4", 0)
    sibrd = {}; B3 = 'b2' not in X; BO = opt('bo', 8); fg_ = [0]
    def group(j, h, st_, first, inbeat):
        g = len(M)
        if first: ix[f"q{j}"] = g
        M.extend(proj(j, h, st_)); ix[f"e{j}"] = len(M) - 1
        need.setdefault(g, []).append(f"!WAITLG b{j}{h}")
        r = bread(j, h, st_)
        if first and inbeat: sibrd[j] = r; return
        if first:
            need.setdefault(g - (BO if j else 7), []).extend([f"v{j}"] + ([OPT.get("pdm", "pp")] if j == opt("pd", 3) else []) + (["n4", "!WAITLG w4"] if j == (3 if "o4" in X else 4) else []) + ["!s_barrier", f"!STAMP d{j}", f"!MARK d{j}"])
        if first: g1 = g - (BO if j else 7); fg_[0] = g1
        else: g1 = max(g - 16, fg_[0] + 2) if B3 else g - 8
        if not first and B3: fg_[0] = g1
        for k in range(4): G.setdefault(g1 + k // 2, []).append(r[k])
    for b in (1, 2, 3, 4):
        ix[f"s{b}"] = len(M); M += msum(b)
        ix[f"o{b-1}"] = len(M); M += proj(b - 1, 0, 0)
        j = b - 5 + NE
        if j >= 0:
            for h in (1, 2, 3): group(j, h, h & 1, h == 1, True)
    st_ = 1
    for j in range(5):
        if j == 4 and "o4" in X:
            g = len(M); M.extend(proj(4, 0, st_)); need.setdefault(g, []).append("!WAITLG b40")
            for k, x in enumerate(bread(4, 0, st_)): G.setdefault(g - (16 if B3 else 8) + k // 2, []).append(x)
            st_ = (st_ + 1) % (3 if B3 else 2)
        for h in ((1, 2, 3) if (j < 4 or "o4" in X) else (0, 1, 2, 3)):
            group(j, h, st_, h == (1 if (j < 4 or "o4" in X) else 0), False); st_ = (st_ + 1) % (3 if B3 else 2)
    def wfr(h, base):
        return [f"ds_read_b64_tr_b16 {a(aW[h] + (ks*2+nn)*4 + jh*2, 2)}, {v(base+nn)} offset:{WREG[h] - R_A + ks*8192 + jh*4096} @f{h}" if h != 2 else
                f"ds_read_b64_tr_b16 {a(aW[h] + (ks*2+nn)*4 + jh*2, 2)}, {v(base+nn)} offset:{ks*8192 + jh*4096} @f{h}"
                for ks in range(4) for nn in range(2) for jh in range(2)]
    nx = [0]
    def xw(j):
        r = []; p = ix[f"p{j}"]
        for mrel in (1, 2, 3):
            t = vTMP + (nx[0] & 1)*4; nx[0] += 1
            ins = pack4(t, oreg(2*mrel, j), oreg(2*mrel + 1, j)) + [f"ds_write_b128 {v(vXW + mrel - 1)}, {v(t, 4)} offset:{XSLOT[j]} @x{j}"]
            r += [(p + 2*mrel - 1 + HZ, s) for s in ins]
            if mrel == 1: r.append((0, f"MARK xa{j}"))
        return r + [(p + 8 + HZ, f"ds_write_b32 {v(vLW)}, {a(aL + j*4)} offset:{j*256} @x{j}"), (0, f"MARK x{j}")]
    def xr(j):
        return [f"ds_read_b128 {v(vNM + j*4, 4)}, {v(vLR)} offset:{j*256} @l{j}"] + \
               [f"ds_read_b128 {a(aR[j % 3] + s*4, 4)}, {v(vXRD)} offset:{XSLOT[j] + s*1024} @r{j}" for s in range(3)] + [f"MARK r{j}"]
    def lsum(j):
        r = vNM + j*4
        return [(0, x) for x in [f"AFTER r{j} 2", f"WAITLG l{j}", f"v_add_f32 {v(r)}, {v(r)}, {v(r+1)}", f"v_add_f32 {v(r+2)}, {v(r+2)}, {v(r+3)}", f"v_add_f32 {v(r)}, {v(r)}, {v(r+2)}",
                f"v_subrev_u32 {v(r+1)}, {LO_BITS}, {v(r)}", [f"v_cmp_lt_u32 vcc, s{sRANGE}, {v(r+1)}", f"v_rcp_f32 {v(r)}, {v(r)}", "s_cbranch_vccnz L_fallback"]]]
    def norm(j):
        r0 = oreg(0, j); r1 = oreg(1, j); t = oreg(4, j)
        if "pk" in X: ins = [f"v_pk_mul_f32 {v(r+q, 2)}, {v(r+q, 2)}, {v(vNM+j*4, 2)} op_sel_hi:[1,0]" for r in (r0, r1) for q in (0, 2)] + pack4(t, r0, r1) + sanit(t)
        else: ins = [f"v_mul_f32 {v(r+q)}, {v(vNM+j*4)}, {v(r+q)}" for r in (r0, r1) for q in range(4)] + pack4(t, r0, r1) + sanit(t)
        ms = ostore(j, t, f"o{j}")
        PI = [int(x) for x in OPT.get("pi", "3,2,0,0,0").split(",")]
        pin_ = [pstore(k, vSENT, "ip") for k in range(sum(PI[:j]), sum(PI[:j+1]))]
        return [(ix[f"s{j}"] + 5 + HZ, x) for x in ins + [f"STAMP n{j}", ms, f"ds_write_b128 {v(vOWN)}, {v(t, 4)} offset:{OWNB[j]} @w{j}"] + pin_ + [f"MARK n{j}"]]
    def fetch(j):
        r = []
        for h in (1, 2, 3):
            dst = R_B + OBOFF[j] + h*4096
            if j < 4: r.append([f"s_add_u32 m0, s{sW1K}, {dst - j*1024}", "s_nop 0", f"buffer_load_dwordx4 {v(vLIN)}, {srd(SRD_O)}, s{sSIB+h} offen offset:{j*1024} sc1 lds @g{j}"])
            else: r.append([f"s_add_u32 m0, s{sW1K}, {dst}", f"s_add_u32 s{sT3}, s{sSIB+h}, 4096", f"buffer_load_dwordx4 {v(vLIN)}, {srd(SRD_O)}, s{sT3} offen sc1 lds @g{j}"])
        return r
    def vread(j): return [f"ds_read_b32 {v(vT + h)}, {v(vVER)} offset:{OBOFF[j] + h*4096} @t{j}" for h in (1, 2, 3)]
    def vtest(): return [f"v_max3_u32 {v(vT)}, {v(vT+1)}, {v(vT+2)}, {v(vT+3)}", f"v_cmp_eq_u32 vcc, -1, {v(vT)}"]
    def verify(j):
        return [[f"STAMP u{j}", f"WAITVM g{j}", f"STAMP w{j}"]] + vread(j) + [f"MARK t{j}", f"AFTER t{j} 3", f"WAITLG t{j}", vtest()[0], [vtest()[1], "s_nop 0", f"s_cbranch_vccnz L_refetch{j}", f"LABEL L_got{j}"], f"MARK v{j}"]
    def post(j):
        r0 = oreg(2, j)
        return [(ix[f"e{j}"] + HZ, x) for x in pack4(r0, r0, oreg(3, j)) + sanit(r0) + [pstore(j, r0, "pst")]]
    p0 = ix["p0"]
    hs = [(opt("fs", 62), x) for x in ["WAITVM io"] + setflag(0, "fs0")]
    hs += [(0, f"AFTER {OPT.get('fp', 'n3')} 0")] + [(0, x) for x in ["WAITVM ip"] + setflag(1, "fs1")] + [(0, "MARK fs1")]
    def bar(name, afters, waits): return [(0, f"AFTER {x} 0") for x in afters] + [(0, waits + ["s_barrier", f"STAMP {name}", f"MARK {name}"])]
    vs = [(40, unpark(vXW + q, q)) for q in range(4)] + [(40, unpark(vLW, 4)), (40, unpark(vLR, 5))]
    vs += xw(0) + bar("a", ["f0", "w1"], ["WAITVM wo1", "WAITLG x0", "WAITLG f0"]) + lsum(0) + [(0, "AFTER w3 0")] + norm(0) + xw(1) + bar("b1", ["f1"], ["WAITVM wo3", "WAITLG x1", "WAITLG f1"])
    for j in (1, 2, 3):
        vs += xw(j + 1) + lsum(j) + norm(j) + ([(0, f"AFTER n{j} {opt('hold', 4) - 1}")] if opt("hold", 4) else []) + bar(f"b{j+1}", {1: [], 2: ["f2"], 3: []}[j], {1: [], 2: ["WAITLG f2"], 3: []}[j] + [f"WAITLG w{j}"])
    vs += lsum(4) + norm(4)
    ps = []
    for j in range(5):
        p = post(j)
        ps += p[:-1] + ([(0, f"AFTER d{opt('pd', 3)} 0")] if j == 0 else []) + p[-1:]
    rs = [(opt("v7r", 36), "WAITVM V7")] + [(0, x) for x in vreads(1, "v7")] + [(0, "MARK v7")]
    rs += [(68, unpark(vWR2, 10)), (68, unpark(vWR2 + 1, 11))]
    adr = [(68, f"v_add_u32 {v(vOB)}, {R_B}, {v(vLIN)}"), (68, f"v_add_u32 {v(vVER)}, s{sW1K}, {v(vOB)}"),
           (68, f"v_accvgpr_read_b32 {v(vPRB)}, {a(aPRB)}"), (68, f"v_add_u32 {v(vOWN)}, s{sW1K}, {v(vLIN)}"), (0, "MARK adr")]
    rs += [(0, x) for x in wfr(0, vWR2)] + [(0, "MARK f0"), (0, "AFTER a 0")] + [(0, x) for x in xr(0)] + [(0, x) for x in wfr(1, vWR2)] + [(0, "MARK f1")]
    up = [f"v_add_u32 {v(vWR2+q)}, {R_C - R_A}, {v(vWR2+q)}" for q in range(2)]; dn = [f"v_subrev_u32 {v(vWR2+q)}, {R_C - R_A}, {v(vWR2+q)}" for q in range(2)]
    w2 = wfr(2, vWR2); w3 = wfr(3, vWR2)
    extra = {1: up + w2[:8], 2: w2[8:] + ["MARK f2"] + dn, 3: w3[:8], 4: w3[8:] + ["MARK f3"]}
    for j in (1, 2, 3, 4):
        rs += [(0, f"AFTER b{j} 0")] + [(ix[f"s{j-3}"] + 6 if j >= 3 else 0, x) for x in xr(j)]
        rs += [(ix[f"s{j}"] - 1, x) for x in bread(j - 1, 0, 0)] + [(0, f"MARK bo{j-1}")] + [(0, x) for x in extra[j]]
    MF4, MP = 0xF, 0xFF0000
    def probe(mask, tag=""): return [f"s_mov_b64 exec, {mask}", f"buffer_load_dword {v(vPRD)}, {v(vPRB)}, {srd(SRD_WS)}, 0 offen sc1" + tag, "s_mov_b64 exec, -1"]
    def test(mask): return [f"v_cmp_eq_u32 vcc, -1, {v(vPRD)}", "s_nop 0", f"s_and_b32 s58, vcc_lo, {mask}"]
    ds = (paced(wo_dma(0), opt("w0t", 95) - 85, opt("w0s", 3)) if W0L else []) + paced(wo_dma(1), opt("w1t", 36), opt("w1s", 3)) + [(0, "MARK w1")] + paced(wo_dma(2), opt("w2t", 62), opt("w2s", 3)) + [(0, "MARK w2")]
    ds += [(0, "AFTER a 0")] + [(0, y) for x in wo_dma(3) for y in ([x, "NEXTGAP"] if x.startswith("buffer") else [x])] + [(0, "AFTER adr 0"), (opt("pb", 112), probe(MF4, " @prb")), (0, "MARK w3")]
    ds += [(0, "AFTER b1 0"), (0, "WAITVM prb"), (0, test(MF4) + ["s_cbranch_scc1 L_waitf", "LABEL L_fok"])]
    FA = OPT.get("fa", "n2,n3,n4,n4,n4").split(","); FDL = [int(x) for x in OPT.get("fdl", "0,0,0,24,56").split(",")]
    for j in range(5):
        if j == 4: ds += [(0, f"AFTER {'b4' if NE >= 2 else 'd1'} 0")]
        ds += [(0, f"AFTER {FA[j]} {FDL[j]}")] + [(0, f"STAMP f{j}")] + [(0, y) for g in fetch(j) for y in [g] + ["NEXTGAP"]*opt("fst", 0)] + [(0, f"MARK g{j}")]
    ds += [(0, "AFTER fs1 0"), (0, probe(MP, " @prp")), (0, "MARK pp")]
    vf = []
    VDL = [int(x) for x in OPT.get("vdl", "20,30,40,40,40").split(",")]
    for j in range(5): vf += [(0, f"AFTER g{j} 1")] + [(ix[f"q{j}"] - (BO if j else 7) - opt("vb", 6), x) for x in verify(j)]
    G.setdefault(p0 - 1, []).extend(["WAITLG v7", "WAITVM wo0", "s_barrier", "STAMP bD"])
    need.setdefault(p0 - 1, []).extend(["v7"])
    need.setdefault(ix["q0"] + 16, []).extend(["f3", "!WAITLG f3"])
    for j in range(5): need.setdefault(ix[f"s{j}"], []).extend([f"r{j}"] + ([f"bo{j-1}"] if j else []) + ([f"xa{j+1}"] if j in (1, 2, 3) else []) + [f"!WAITLG r{j}"])
    for j in range(4): need.setdefault(ix[f"o{j}"], []).append(f"!WAITLG b{j}0")
    if opt("hold", 4):
        for j in (1, 2, 3): need.setdefault(ix[f"o{j-1}"] + 8 - opt("hold", 4), []).append(f"n{j}")
    OW = opt("ow", 2)
    if OW == 0: OUTA = ["v_lshlrev_b32 v9, 10, v4", "v_lshl_add_u32 v9, v5, 3, v9"]
    else:
        OUTA = ["v_lshrrev_b32 v1, 3, v4", "v_bfe_u32 v2, v4, 1, 1", "v_lshl_add_u32 v1, v1, 1, v2", "v_bfe_u32 v2, v4, 2, 1", "v_lshlrev_b32 v2, 1, v2",
                "v_xor_b32 v2, v2, v5", "v_lshl_add_u32 v1, v2, 2, v1", "v_and_b32 v2, 1, v4", "v_lshlrev_b32 v2, 4, v2", "v_mov_b32 v3, 0x3f80", "v_lshlrev_b32 v2, v2, v3"]
        OUTA += [[f"v_cmp_eq_u32 vcc, {m}, v1", "s_nop 1", f"v_cndmask_b32 {v(vTMP + m)}, 0, v2, vcc"] for m in range(8)]
        if OW == 1: OUTA += ["v_lshlrev_b32 v9, 10, v4", "v_lshl_add_u32 v9, v5, 4, v9"]
        else: OUTA += ["v_lshrrev_b32 v9, 2, v0", "v_lshlrev_b32 v9, 10, v9", "v_lshl_add_u32 v9, v7, 4, v9",
                       "v_lshlrev_b32 v10, 6, v4", "v_lshl_add_u32 v10, v5, 4, v10", f"v_add_u32 v10, s{sW1K}, v10"]
    fin = [f"s_and_b32 s{sT0}, s{sHKV}, 1", f"s_sub_u32 s{sT2}, 3, s{sT0}", f"s_mul_i32 s{sT0}, s{sT0}, 3", f"s_add_u32 s{sT0}, s{sT0}, s{sW}",
           "s_and_b32 s98, s2, 0xf8", f"s_mul_i32 s98, s98, {WGS}", f"s_lshr_b32 s99, s{sHKV}, 1", f"s_mul_i32 s99, s99, {WVS}", "s_add_u32 s98, s98, s99",
           f"s_lshl_b32 s99, s{sT0}, 10", "s_add_u32 s98, s98, s99", f"s_add_u32 s{sMODE}, s98, 5120",
           f"s_lshl_b32 s{sT0}, s{sT0}, 4", f"s_mul_i32 s98, s{sB}, 80", f"s_add_u32 s{sT0}, s{sT0}, s98", f"s_lshl_b32 s{sT0}, s{sT0}, 10",
           f"s_lshl_b32 s98, s{sI}, 8", f"s_add_u32 s{sT0}, s{sT0}, s98", f"s_lshr_b32 s98, s{sHKV}, 1", "s_lshl_b32 s98, s98, 6", f"s_add_u32 s{sT0}, s{sT0}, s98",
           ] + OUTA + [
           f"s_mov_b32 s{SRD_K}, s14", f"s_mov_b32 s{SRD_K+1}, s15", f"s_mov_b32 s{SRD_K+2}, 655360", f"s_mov_b32 s{SRD_K+3}, 0x20000"]
    drain = sched(M, G, [hs, ds, vf, vs, rs, ps, adr + [(0, "AFTER n4 2")] + [(ix["q1"], x) for x in fin]], need=need, limit=opt("lim", 16), limits={1: 28, 2: 24, 3: opt('lv', 16)})
    for k in range(7): drain(k)
    stamp("pst")
    if "cnt" in X: e(f"s_mov_b32 s{sCNT}, s{sOI}")
    e(f"s_cmp_ge_u32 s{sW}, s{sT2}"); e("s_cbranch_scc1 L_fin")
    e("WAITVM prp")
    emit(test(MP)); e("s_cbranch_scc1 L_waitp")
    lab("L_pok")
    if opt("slp", 0):
        e(f"s_bitcmp1_b32 s{sHKV}, 0"); e("s_cbranch_scc0 L_nosl"); e(f"s_sleep {opt('slp', 0)}"); lab("L_nosl")
    fB = vO + 100
    def redloads():
        e(f"s_mov_b32 s{sT1}, s{sMODE}")
        for p in range(8):
            e(f"buffer_load_dwordx4 {v(fB + p*4, 4)}, {v(vLIN)}, {srd(SRD_WS)}, s{sT1} offen sc1")
            if p < 7: e(f"s_add_u32 s{sT1}, s{sT1}, {WGS}")
    redloads()
    lab("L_red")
    e(f"v_mov_b32 {v(vCHK)}, 0")
    for p in range(8):
        e(f"s_waitcnt vmcnt({7-p})")
        for k in range(2):
            d = v(vS + k*4, 4)
            e(f"{MF} {d}, {v(vTMP + 4*k, 4) if OW else a(aE + (2 if k == 0 else 0), 4)}, {v(fB + p*4, 4)}, {'0' if p == 0 else d}")
            if k == 0: e(f"v_max_u32 {v(vCHK)}, {v(vCHK)}, {v(fB + p*4)}")
    e(f"v_cmp_eq_u32 vcc, -1, {v(vCHK)}")
    e("s_nop 4")
    e("s_cbranch_vccnz L_redo")
    lab("L_redok")
    e("s_nop 0")
    OF = OPT.get("outf", "sc1").replace("_", " ")
    if OW == 0:
        e(f"v_cvt_pk_bf16_f32 {v(vS)}, {v(vS)}, {v(vS+1)}"); e(f"v_cvt_pk_bf16_f32 {v(vS+1)}, {v(vS+2)}, {v(vS+3)}")
        e(f"v_cvt_pk_bf16_f32 {v(vS+4)}, {v(vS+4)}, {v(vS+5)}"); e(f"v_cvt_pk_bf16_f32 {v(vS+5)}, {v(vS+6)}, {v(vS+7)}")
        e(f"buffer_store_dwordx2 {v(vS, 2)}, v9, {srd(SRD_K)}, s{sT0} offen {OF}")
        e(f"buffer_store_dwordx2 {v(vS+4, 2)}, v9, {srd(SRD_K)}, s{sT0} offen offset:32 {OF}")
    else:
        emit(pack4(vS, vS, vS + 4))
        if OW == 2:
            e(f"ds_write_b128 v10, {v(vS, 4)}"); e("s_waitcnt lgkmcnt(0)"); e(f"ds_read_b128 {v(vS, 4)}, {v(vOWN)}"); e("s_waitcnt lgkmcnt(0)")
        e(f"buffer_store_dwordx4 {v(vS, 4)}, v9, {srd(SRD_K)}, s{sT0} offen {OF}")
    lab("L_fin")
    stamp("fin")
    if STAMPS and "cnt" in X:
        i = nstamp[0]; nstamp[0] += 1
        e(f"s_add_u32 s{sSTAMP+2*i}, s{sSTAMP+2*i-2}, s{sCNT}"); e(f"s_addc_u32 s{sSTAMP+2*i+1}, s{sSTAMP+2*i-1}, 0")
    write_stamps()
    lab("L_done")
    e("s_endpgm")
    L.append("; ---- out-of-line waits and rare paths")
    lab("L_redo")
    emit(spin("L_redok")); redloads(); e("s_branch L_red")
    lab("L_hs")
    e("v_mov_b32 v2, 0"); e("s_sleep 4")
    e(f"buffer_load_dword {v(vJUNK)}, v2, {srd(SRD_D)}, s{sT1} offen sc1"); e("s_waitcnt vmcnt(0)")
    emit(spin("L_hsok"))
    e(f"v_readfirstlane_b32 s58, {v(vJUNK)}"); e("s_nop 0"); e("s_cmp_ge_u32 s58, 32"); e("s_cbranch_scc0 L_hs"); e("s_branch L_hsok")
    for nm, mask, ok in (("L_waitf", MF4, "L_fok"), ("L_waitp", MP, "L_pok")):
        lab(nm)
        if "cnt" in X and nm == "L_waitf": e(f"s_add_u32 s{sOI}, s{sOI}, {1 << 15}")
        e("s_sleep 2"); emit(probe(mask)); e("s_waitcnt vmcnt(0)")
        emit(spin(ok)); emit(test(mask)); e(f"s_cbranch_scc1 {nm}"); e(f"s_branch {ok}")
    for j in range(5):
        lab(f"L_refetch{j}")
        if "cnt" in X: e(f"s_add_u32 s{sOI}, s{sOI}, {1 << (3*j)}")
        emit(spin(f"L_got{j}")); emit(fetch(j)); e("s_waitcnt vmcnt(0)")
        emit(vread(j)); e("s_waitcnt lgkmcnt(0)"); emit(vtest()); e("s_nop 1")
        e(f"s_cbranch_vccnz L_refetch{j}"); e(f"s_branch L_got{j}")
    lab("L_fallback")
    e("s_waitcnt vmcnt(0) lgkmcnt(0)")
    e("s_barrier")
    e(f"s_mov_b32 s{sRANGE}, -1")
    e("s_branch L_restart")
    lab("L_rowmax")
    e("s_waitcnt vmcnt(0) lgkmcnt(0)")
    emit(qrd(1) + qrd(2)); e("s_waitcnt lgkmcnt(0)"); emit(qrd(3) + qrd(4))
    vA = vP; vM = vP + 4
    for ds in range(4): e(f"v_subrev_u32 {v(vA+ds)}, {R_A - R_D}, {v(vKR+ds)}")
    for j in range(5): e(f"v_mov_b32 {v(vM+j)}, 0xff800000")
    e(f"s_mov_b32 s{sTK}, 0"); e(f"s_mov_b32 s{sTK2}, 4096")
    lab("L_fbmax")
    emit(flat(kv_dma(True, R_D, "f")))
    e("s_waitcnt vmcnt(0)")
    emit(kreads(0, base=vA, buf=1))
    e("s_waitcnt lgkmcnt(0)")
    for j in range(5):
        emit(qk(j, 1, 0, cinit="0")); e("s_nop 7")
        for n in range(4): e(f"v_max3_f32 {v(vM+j)}, {v(vM+j)}, {v(vS+2*n)}, {v(vS+2*n+1)}")
    e(f"s_add_u32 s{sTK}, s{sTK}, 8192"); e(f"s_add_u32 s{sTK2}, s{sTK2}, 8192")
    e(f"s_cmp_lt_u32 s{sTK}, 65536"); e("s_cbranch_scc1 L_fbmax")
    for j in range(5):
        for op in ("v_permlane32_swap_b32", "v_permlane16_swap_b32"):
            e(f"v_mov_b32 v1, {v(vM+j)}"); e("s_nop 1"); e(f"{op} {v(vM+j)}, v1"); e("s_nop 1"); e(f"v_max_f32 {v(vM+j)}, {v(vM+j)}, v1")
    e(unpark(1, 4)); e(unpark(2, 5))
    for j in range(5): e(f"ds_write_b32 v1, {v(vM+j)} offset:{j*256}")
    e("s_waitcnt lgkmcnt(0)"); e("s_barrier")
    for j in range(5): e(f"ds_read_b128 {v(vNM+j*4, 4)}, v2 offset:{j*256}")
    e("s_waitcnt lgkmcnt(0)")
    for j in range(5):
        r = vNM + j*4
        e(f"v_max3_f32 {v(r)}, {v(r)}, {v(r+1)}, {v(r+2)}"); e(f"v_max_f32 {v(r)}, {v(r)}, {v(r+3)}"); e(f"v_sub_f32 {v(r)}, 0, {v(r)}")
        for q in (1, 2, 3): e(f"v_mov_b32 {v(r+q)}, {v(r)}")
    e("s_branch L_noat")
    lab("L_end")

DOC = """
; One workgroup per (batch b, query head): wg = hkv + 8*b + 64*i, head = 4*hkv + i.  Four waves, 512 registers each.
;     computes the true row maxima and uses those as m (softmax is invariant under the shift).
;  3. Per 16-query tile: the waves' partial O are summed through LDS, normalised and published in d_ws; the four heads of a
;  landed; they are reset at start, and a counter per batch in d_debug says that the resets have landed.
"""
hdr = open("standalone__gqa_block_cached__near_ridge.s.ref").read().split("\n")
for ln in hdr:
    if ln.startswith("; @launch"): continue
    if not ln.startswith(";"): break
    L.append(ln)
L.append("; @launch grid=(256,1,1) block=(256,1,1) lds=163840")
L.append('.amdgcn_target "amdgcn-amd-amdhsa--gfx950"')
L.append(".text")
L.extend(DOC.strip("\n").split("\n"))
kernel()
L.append('.section .rodata,"a"')
L.append(".p2align 6"); L.append(f".amdhsa_kernel {KN}")
for s in ["next_free_vgpr 512", "next_free_sgpr 102", "accum_offset 256", "group_segment_fixed_size 0", "kernarg_size 64", "user_sgpr_count 2", "user_sgpr_kernarg_segment_ptr 1", "system_sgpr_workgroup_id_x 1"]:
    L.append("  .amdhsa_" + s)
L.append(".end_amdhsa_kernel")
import hazard
L = hazard.fix(L)
print("\n".join(L))
```

```python
import sys, math, struct, re, os
sys.path.insert(0, os.path.dirname(os.path.abspath(__file__)))

X = set(a[2:] for a in sys.argv[1:] if a.startswith("--") and "=" not in a)
OPT = dict(a[2:].split("=") for a in sys.argv[1:] if a.startswith("--") and "=" in a)
def opt(k, d): return int(OPT.get(k, d))
STAMPS = "stamps" in X
KN = "standalone__gqa_block_cached__near_ridge_kernel"
L = []

class Tr:
    def __init__(s): s.ops = []
    def add(s, tag): s.ops.append(tag)
    def need(s, tag):
        idx = max(i for i, t in enumerate(s.ops) if t == tag)
        return len(s.ops) - 1 - idx
VM = Tr(); LG = Tr()

def lab(s): L.append(s + ":")
def e(s):
    if s.startswith("LABEL "): lab(s[6:]); return
    if s.startswith("MARK "): return
    if s.startswith("STAMP "): stamp(s[6:]); return
    if s == "NEXTGAP": s = "s_nop 0"
    tag = None
    if " @" in s: s, tag = s.split(" @")
    op = s.split()[0]
    if op == "WAITVM":
        n = VM.need(s.split()[1]); s = f"s_waitcnt vmcnt({min(n, 63)})"
    elif op == "WAITLG":
        n = LG.need(s.split()[1]); s = f"s_waitcnt lgkmcnt({min(n, 15)})"
    elif op.startswith("buffer_") or op.startswith("global_"): VM.add(tag)
    elif op.startswith("ds_"): LG.add(tag)
    L.append("    " + s)
def aslist(it): return it if isinstance(it, list) else [it]
def emit(lst):
    for it in lst:
        for s in aslist(it): e(s)
def flat(groups): return [s for g in groups for s in aslist(g)]
def capture(fn):
    keep = list(L); del L[:]
    fn()
    out = [x.strip() for x in L]; L[:] = keep
    return out

QSCALE = 1.4426950408889634 / math.sqrt(128.0)
def f2u(x): return struct.unpack("<I", struct.pack("<f", x))[0]

S_ST = [0, 53248, 106496, 0]
R_D, R_QX, R_A, R_B, R_C, R_SP = 0, 32768, 53248, 86016, 118784, 151552
KSLOT = [R_A, R_B]; VSLOT = [R_C, R_D]
XSLOT = [0, 12288, 24576, 0, 12288]
OWNB = [36864, 40960, 45056, 49152, 36864]
OBOFF = [0, 16384, 32768, 49152, 0]
WREG = [R_A, R_B, R_C, R_A]
WS_PART = 8 << 20
WS_FLG = 16 << 20
WS_STAMP = 128 << 20
WGS = 40960; WVS = 10240
HEADSTRIDE = 64 * WGS
LO_BITS = 0x21800000
RANGE = 0x3C000000
sW, sHKV, sB, sI, sRANGE = 3, 20, 21, 22, 23
sWOB, sSIB, sOI = 4, 8, 12
SRD_X, SRD_WQ, SRD_K, SRD_V, SRD_O, SRD_WO, SRD_PI = 24, 28, 32, 36, 40, 44, 64
SRD_WS, SRD_D = 24, 28
sTK, sTK2, sTV, sTV2, sSLOT, sCNT = 48, 49, 50, 51, 52, 53
sT0, sT1, sT2, sT3 = 54, 55, 56, 57
sOOWN, sW5K, sSPIN, sFOWN = 60, 61, 62, 63
sSTAMP = 68
sMODE, sXCC, sWB, sXB, sSTEP, sMIR, sW1K, sQS = 89, 90, 91, 92, 93, 94, 95, 96
vKR = 8; vVR = 12; vOK = 20; vOV = 24; vLIN = 26; vJUNK = 27
vP = 28; vS = 48; vNM = 64; vTMP = 84; vO = 96
vVRC = vTMP; vSENT = vTMP + 8; vQW = 73
aQ = 0; aK = 80; aV = 144; aL = 208; aE = 228; aPRB = 234; aADR = 235; aONE = 248

def srd(r): return f"s[{r}:{r+3}]"
def v(r, n=1): return f"v{r}" if n == 1 else f"v[{r}:{r+n-1}]"
def a(r, n=1): return f"a{r}" if n == 1 else f"a[{r}:{r+n-1}]"
MF = "v_mfma_f32_16x16x32_bf16"
SPIN_MAX = opt("spin", 400000)

nstamp = [0]
def stamp(name=""):
    if OPT.get("delay") == name:
        for _ in range(8): L.append("    s_nop 15")
    if not STAMPS: return
    sel = OPT.get("st")
    if sel and name not in sel.split(","): return
    i = nstamp[0]; nstamp[0] += 1
    assert sSTAMP + 2*i + 1 < 89
    sys.stderr.write(f"{i}:{name} ")
    L.append(f"    {'s_memtime' if 'cyc' in X else 's_memrealtime'} s[{sSTAMP+2*i}:{sSTAMP+2*i+1}]")
    L.append("    s_waitcnt lgkmcnt(0)")
def write_stamps():
    if not STAMPS: return
    if "amp" in X:
        e("s_cmp_ge_u32 s2, 8"); e("s_cbranch_scc1 L_done")
        e(f"s_cmp_lg_u32 s{sW}, 0"); e("s_cbranch_scc1 L_done")
        e("s_memrealtime s[80:81]"); e("s_waitcnt lgkmcnt(0)")
        e(f"s_sub_u32 s82, s{sSTAMP+2}, s{sSTAMP}"); e("s_min_u32 s82, s82, 5000"); e("s_mul_i32 s82, s82, 10"); e("s_add_u32 s82, s82, s80")
        lab("L_amp")
        e("s_memrealtime s[84:85]"); e("s_waitcnt lgkmcnt(0)"); e("s_sub_u32 s86, s84, s82"); e("s_cmp_lt_i32 s86, 0"); e("s_cbranch_scc1 L_amp")
        return
    n = nstamp[0]
    e("s_lshl_b32 s58, s2, 2"); e(f"s_add_u32 s58, s58, s{sW}"); e(f"s_mul_i32 s58, s58, {n*8}"); e(f"s_add_u32 s58, s58, {WS_STAMP}")
    e("s_add_u32 s58, s18, s58"); e("s_addc_u32 s59, s19, 0")
    e("s_mov_b64 exec, 1"); e("v_mov_b32 v1, 0")
    for i in range(n):
        e(f"v_mov_b32 v2, s{sSTAMP+2*i}"); e(f"v_mov_b32 v3, s{sSTAMP+2*i+1}")
        e(f"global_store_dwordx2 v1, v[2:3], s[58:59] offset:{i*8}"); e("s_nop 1")
    sys.stderr.write(f"\nstamps: {n}\n")

njit = [0]
def jitter(mask, sh):
    if "jitter" not in X: return
    k = njit[0]; njit[0] += 1
    e(f"s_mul_i32 s98, s2, {2654435761 >> (k + 3)}"); e(f"s_mul_i32 s99, s{sW}, {40503 * (k + 1)}"); e("s_add_u32 s98, s98, s99")
    e(f"s_lshr_b32 s98, s98, {sh}"); e(f"s_and_b32 s98, s98, {mask}")
    lab(f"L_jit{k}"); e("s_cmp_eq_u32 s98, 0"); e(f"s_cbranch_scc1 L_jite{k}"); e("s_sleep 8"); e("s_sub_u32 s98, s98, 1"); e(f"s_branch L_jit{k}"); lab(f"L_jite{k}")
def mk_srd(r, pbase, off_sgpr, size):
    return [f"s_add_u32 s{r}, s{pbase}, s{off_sgpr}", f"s_addc_u32 s{r+1}, s{pbase+1}, 0", f"s_mov_b32 s{r+2}, {size}", f"s_mov_b32 s{r+3}, 0x20000"]

PSEUDO = ("MARK", "LABEL", "STAMP")
WIDE = ("ds_write_b128", "buffer_store_dwordx4")
def isv(s): return s.startswith("v_")
def gaptime(ins):
    ins = [s for s in ins if not s.startswith(PSEUDO)]
    nv = [s for s in ins if not isv(s)]
    t = 4
    if nv: t += 20 if nv[0].startswith(WIDE) else 4
    first = True
    for s in ins:
        if not isv(s):
            if first: first = False; continue
            t += 24 if s.startswith(WIDE) else 4
        else:
            t = max(t, 8) + (8 if s.startswith(("v_exp", "v_rcp")) else 4)
    return t
def order_gap(items):
    def indep(k):
        x = items[k]
        if isinstance(x, list) or x.startswith(("v_",) + PSEUDO + WIDE + ("ds_write",)): return False
        return all(isinstance(y, str) and isv(y) and not y.startswith(("v_accvgpr_read", "v_mov", "v_cmp", "v_readf", "v_add_u32", "v_subrev")) for y in items[:k])
    for k in range(1, len(items)):
        if indep(k): items.insert(0, items.pop(k)); break
    return items
def interleave(mfmas, gaps):
    emit(gaps.get(-1, []))
    for i, m in enumerate(mfmas):
        e(m); emit(gaps.get(i, []))
def sched(mfmas, fixed, streams, need=None, limit=16, limits=None):
    need = need or {}
    streams = [list(s) for s in streams]
    done = {}
    cur = [0]
    def put(it):
        for s in aslist(it):
            if s.startswith("MARK "): done[s[5:]] = cur[0]
            e(s)
    def flush(mark):
        if mark in done: return
        for st in streams:
            if any(f"MARK {mark}" in aslist(it) for _, it in st):
                while mark not in done:
                    it = st.pop(0)[1]
                    if isinstance(it, str) and it.startswith("AFTER "): flush(it.split()[1]); continue
                    put(it)
                return
        raise Exception("mark " + mark)
    cur[0] = -1
    for it in fixed.get(-1, []): put(it)
    for i, m in enumerate(mfmas):
        cur[0] = i - 1
        for mk in need.get(i, []):
            if mk.startswith("!"): put(mk[1:])
            else: flush(mk)
        e(m)
        cur[0] = i
        items = list(fixed.get(i, []))
        closed = any(s.startswith("v_exp") for s in flat(items))
        blocked = set(); prog = True; seen = dict(done)
        for s in flat(items):
            if s.startswith("MARK "): seen[s[5:]] = i
        while prog:
            prog = False
            for k, st in enumerate(streams):
                if k in blocked or not st: continue
                rdy, it = st[0]
                if it == "NEXTGAP": st.pop(0); blocked.add(k); continue
                if isinstance(it, str) and it.startswith("AFTER "):
                    _, mk, d = it.split()
                    if mk in seen and seen[mk] + int(d) <= i: st.pop(0); prog = True; break
                    continue
                if rdy > i: continue
                real = [s for s in aslist(it) if not s.startswith(PSEUDO)]
                empty = not [s for s in flat(items) if not s.startswith(PSEUDO)]
                if not real or (not closed and (empty or gaptime(flat(items) + real) <= (limits or {}).get(k, limit))):
                    st.pop(0); items.append(it); prog = True
                    for s in aslist(it):
                        if s.startswith("MARK "): seen[s[5:]] = i
                    break
        for it in order_gap(items): put(it)
    cur[0] = len(mfmas)
    def drain(k):
        st = streams[k]
        while st:
            it = st.pop(0)[1]
            if isinstance(it, str) and it.startswith("AFTER "): flush(it.split()[1]); continue
            put(it)
    return drain

def kv_dma(isK, slot_base, tag, nop=True):
    g = []
    for p in range(8):
        grp = []
        if p % 4 == 0:
            grp.append(f"s_add_u32 m0, s{sSLOT}, {slot_base + (p // 4) * 4096}")
            if nop: grp.append("s_nop 0")
        vo = vOK + (p >> 1) if isK else vOV + ((p >> 1) & 1)
        so = (sTK if isK else sTV) + (0 if p < 4 else 1)
        grp.append(f"buffer_load_dwordx4 {v(vo)}, {srd(SRD_K if isK else SRD_V)}, s{so} offen offset:{(p % 4)*1024} lds @{tag}")
        g.append(grp)
    return g
SEQ = {"mirror": ["01234567", "76543210", "76543210"], "pair": ["01234567", "10325476", "02143657"], "pair0": ["01234567", "10325476", "10325476"],
       "same": ["01234567"]*3, "quad": ["01234567", "23016745", "01452367"], "quad2": ["01234567", "23016745", "04512367"]}[OPT.get("seq", "mirror")]
def seqword(q): return sum(int(c) << (4*n) for n, c in enumerate(q))
def seqtail(q, t0): return sum(int(c) << (13 + 3*n) for n, c in enumerate(q[t0:]))
sSEQ, sSK, sSV = sMIR, sSTEP, sXCC
def set_T(isK, t):
    r = sTK if isK else sTV
    return [f"s_bfe_u32 s{r}, s{sSEQ}, {(4 << 16) | (4*t)}", f"s_lshl_b32 s{r}, s{r}, 13", f"s_or_b32 s{r+1}, s{r}, 4096"]
def kreads(slot, tag="kr", base=vKR, buf=None):
    buf = slot if buf is None else buf
    return [f"ds_read_b128 {a(aK + buf*32 + (kt*4+ds)*4, 4)}, {v(base+ds)} offset:{(KSLOT[slot]-R_A) + kt*1024} @{tag}" for kt in range(2) for ds in range(4)]
def vreads(slot, tag="vr"):
    base = vVRC if slot == 0 else vVR
    return [f"ds_read_b64_tr_b16 {a(aV + slot*32 + k*4 + jh*2, 2)}, {v(base+k)} offset:{jh*1024} @{tag}" for k in range(8) for jh in range(2)]
def qk(j, kbuf, sbuf, cinit=None):
    m = []
    for kt in range(2):
        for ds in range(4):
            d = v(vS + sbuf*8 + kt*4, 4)
            c = (cinit or v(vNM + j*4, 4)) if ds == 0 else d
            m.append(f"{MF} {d}, {a(aK + kbuf*32 + (kt*4+ds)*4, 4)}, {a(aQ + (j*4+ds)*4, 4)}, {c}")
    return m
def oreg(k, j): return vO + (k*5+j)*4
def pv(j, vbuf, ks=range(8)):
    m = [f"{MF} {v(oreg(k, j), 4)}, {a(aV + vbuf*32 + k*4, 4)}, {v(vP + j*4, 4)}, {v(oreg(k, j), 4)}" for k in ks]
    m.append(f"{MF} {a(aL + j*4, 4)}, {a(aONE, 4)}, {v(vP + j*4, 4)}, {a(aL + j*4, 4)}")
    return m
def exps(sbuf): return [f"v_exp_f32 {v(vS + sbuf*8 + n)}, {v(vS + sbuf*8 + n)}" for n in range(8)]
def cvts(sbuf, j): return [f"v_cvt_pk_bf16_f32 {v(vP + j*4 + n)}, {v(vS + sbuf*8 + 2*n)}, {v(vS + sbuf*8 + 2*n+1)}" for n in range(4)]
def put_exp(G, base, sbuf, j):
    ex = exps(sbuf); cv = cvts(sbuf, j)
    for n in range(8): G.setdefault(base + 2*n, []).append(ex[n])
    for n in range(4): G.setdefault(base + 4*n + 3, []).append(cv[n])
def pack4(t, r0, r1):
    return [f"v_cvt_pk_bf16_f32 {v(t)}, {v(r0)}, {v(r0+1)}", f"v_cvt_pk_bf16_f32 {v(t+1)}, {v(r0+2)}, {v(r0+3)}",
            f"v_cvt_pk_bf16_f32 {v(t+2)}, {v(r1)}, {v(r1+1)}", f"v_cvt_pk_bf16_f32 {v(t+3)}, {v(r1+2)}, {v(r1+3)}"]
def sanit(t): return [f"v_min_u32 {v(t)}, -2, {v(t)}"]
def spin(lbl): return [f"s_add_u32 s{sSPIN}, s{sSPIN}, 1", f"s_cmp_ge_u32 s{sSPIN}, {SPIN_MAX}", f"s_cbranch_scc1 {lbl}"]
if "loopinit" not in X and "earlyinit" not in X: X.add("lateinit")
EARLYINIT = "earlyinit" in X
LINIT = opt("linit", 0)
if LINIT: X.discard("lateinit"); X.add("wt")
LATEINIT = "lateinit" in X or EARLYINIT or LINIT
P_INIT0 = f"buffer_store_dwordx4 {v(vSENT, 4)}, {v(vLIN)}, {srd(SRD_PI)}, 0 offen sc1"
TOUCH = ["s_mov_b64 exec, 0xff", f"buffer_load_dword {v(vJUNK)}, v3, {srd(SRD_O)}, s{sOI} offen"] + \
        ([f"buffer_load_dword {v(vJUNK)}, v2, {srd(SRD_WO)}, s{sOI} offen"] if "wsp" in X else []) + ["s_mov_b64 exec, -1"]
S = dict(dpos=[1, 5, 9, 13, 20, 24, 28, 32, 37, 43, 49, 54, 60, 66, 71, 77], mpos=[-1, 16, 35, 58],
         kw=33, kpos=[33, 35, 39, 39, 41, 43, 45, 47],
         vw=50, vpos=[50, 52, 52, 56, 56, 60, 62, 64, 64, 67, 67, 69, 69, 73, 73, 75], tpos=[18, 47, 77, 79])
VF = "kfirst" not in X
if VF:
    S = dict(dpos=[9, 13, 18, 22, 26, 30, 35, 39, 45, 49, 54, 58, 64, 69, 73, 77], mpos=[5, 24, 41, 60],
             vw=28, vpos=[28, 30, 32, 33, 33, 35, 37, 39, 43, 43, 47, 47, 50, 50, 52, 52],
             kw=56, kpos=[56, 60, 62, 64, 66, 67, 67, 69], tpos=[71, 81, 33 + 8, 43 + 2])
if VF and OPT.get("sched") == "b":
    S = dict(dpos=[1, 5, 11, 16, 22, 26, 32, 37, 43, 47, 52, 58, 64, 69, 73, 77], mpos=[-1, 18, 39, 60],
             vw=28, vpos=[28, 30, 30, 33, 33, 35, 35, 39, 41, 43, 45, 47, 49, 50, 50, 52],
             kw=60, kpos=[62, 64, 66, 67, 67, 69, 71, 73], tpos=[75, 81, 24, 41])
if VF and OPT.get("sched") == "c":
    S = dict(dpos=[1, 5, 9, 13, 18, 22, 26, 30, 35, 39, 45, 49, 54, 58, 62, 66], mpos=[-1, 16, 33, 52],
             vw=37, vpos=[39, 41, 43, 43, 45, 47, 47, 49, 50, 50, 52, 54, 56, 56, 58, 60],
             kw=64, kpos=[64, 67, 67, 69, 69, 71, 73, 73], tpos=[60, 75, 20, 32])
GLUE = ("s_addc_u32", "s_cselect_b32", "s_subb_u32")
def glued(lst, k):
    return lst[k].split()[0] in GLUE or (k + 1 < len(lst) and lst[k].startswith("s_mov_b32") and lst[k + 1].startswith("s_cselect"))

def kernel():
    L.append(f".globl {KN}"); L.append(".p2align 8"); L.append(f".type {KN},@function"); lab(KN)
    e("s_cmp_ge_u32 s2, 256"); e("s_cbranch_scc1 L_done")
    e("v_lshrrev_b32 v1, 6, v0")
    e("v_and_b32 v0, 63, v0")
    e(f"v_readfirstlane_b32 s{sW}, v1")
    e(f"s_mov_b32 s{sRANGE}, {RANGE}")
    lab("L_restart")
    e("s_load_dwordx16 s[4:19], s[0:1], 0")
    e(f"s_and_b32 s{sHKV}, s2, 7"); e(f"s_lshr_b32 s{sB}, s2, 3"); e(f"s_and_b32 s{sB}, s{sB}, 7"); e(f"s_lshr_b32 s{sI}, s2, 6")
    stamp("start")
    jitter(63, 7)
    e("s_getpc_b64 s[58:59]"); lab("L_pc0")
    e(f"s_sub_u32 s58, s58, L_pc0-{KN}"); e("s_subb_u32 s59, s59, 0")
    e(f"s_lshr_b32 s{sT3}, s2, 3"); e(f"s_lshl_b32 s{sT3}, s{sT3}, 2"); e(f"s_add_u32 s{sT3}, s{sT3}, s{sW}"); e(f"s_lshl_b32 s{sT3}, s{sT3}, 8")
    e("v_lshlrev_b32 v3, 7, v0"); e(f"v_add_u32 v2, s{sT3}, v3"); e(f"v_min_u32 v2, L_end-{KN}-4, v2")
    e("s_mov_b64 exec, 3"); e(f"global_load_dword {v(vJUNK)}, v2, s[58:59] @pfc"); e("s_mov_b64 exec, -1")
    e("v_and_b32 v4, 15, v0"); e("v_lshrrev_b32 v5, 4, v0"); e("v_bfe_u32 v6, v0, 2, 2"); e("v_and_b32 v7, 3, v0")
    vXO = vTMP; vWO = vTMP + 4; vXR = vTMP + 6; vWR = vTMP + 10
    e("v_xor_b32 v1, v4, v5")
    for pp in range(4):
        e(f"s_add_u32 s{sT0}, s{sW}, {pp}"); e(f"s_and_b32 s{sT0}, s{sT0}, 3"); e(f"s_lshl_b32 s{sT0}, s{sT0}, 2")
        e(f"v_xor_b32 v2, s{sT0}, v1"); e("v_lshlrev_b32 v2, 4, v2"); e(f"v_lshl_add_u32 {v(vXO+pp)}, v5, 10, v2")
    e("v_lshlrev_b32 v2, 1, v5"); e("v_xor_b32 v2, v4, v2"); e("v_lshlrev_b32 v2, 4, v2")
    e(f"v_lshl_add_u32 {v(vWO)}, v5, 13, v2"); e(f"v_xor_b32 {v(vWO+1)}, 128, {v(vWO)}")
    e(f"v_lshl_add_u32 {v(vOV)}, v5, 8, v2"); e(f"v_xor_b32 {v(vOV+1)}, 128, {v(vOV)}")
    e(f"s_mul_i32 s58, s{sB}, 81920")
    e(f"s_lshl_b32 s59, s{sHKV}, 2"); e(f"s_add_u32 s59, s59, s{sI}"); e("s_lshl_b32 s59, s59, 8")
    e(f"s_sub_u32 s{sT3}, 4194304, s59")
    e(f"s_mul_i32 s{sT0}, s{sW}, 20480"); e(f"s_mul_i32 s{sW5K}, s{sW}, 5120")
    e(f"s_lshl_b32 s{sT2}, s{sW}, 18"); e(f"s_lshl_b32 s{sSLOT}, s{sW}, 13")
    XB = [sTK, sTK2, sXB, sT0]; WB = [sTV, sTV2, sWB, sT2]
    e(f"s_add_u32 s{sCNT}, s{sB}, s{sI}")
    for cc in range(4):
        e(f"s_add_u32 s{sSPIN}, s{sCNT}, {cc}"); e(f"s_and_b32 s{sSPIN}, s{sSPIN}, 3")
        e(f"s_lshl_b32 s{sOOWN}, s{sSPIN}, 8"); e(f"s_add_u32 s{XB[cc]}, s{sT0}, s{sOOWN}")
        e(f"s_lshl_b32 s{sOOWN}, s{sSPIN}, 20"); e(f"s_add_u32 s{WB[cc]}, s{sT2}, s{sOOWN}")
    e(f"v_lshlrev_b32 {v(vLIN)}, 4, v0")
    e(f"s_mul_i32 s98, s2, {WGS}"); e(f"s_lshl_b32 s99, s{sW5K}, 1"); e("s_add_u32 s98, s98, s99"); e("s_mov_b32 s101, 9216")
    for q in range(4): e(f"v_mov_b32 v{76+q}, -1")
    e("s_waitcnt lgkmcnt(0)")
    emit(mk_srd(SRD_X, 4, 58, 81920)); emit(mk_srd(SRD_WQ, 10, 59, f"s{sT3}"))
    def p1_dma(cc):
        g = []
        for pp in range(5):
            g.append([f"s_add_u32 m0, s{sW5K}, {S_ST[cc] + pp*1024}", f"s_add_u32 s{sT3}, s{XB[cc]}, {pp*4096}",
                      f"buffer_load_dwordx4 {v(vXO + (pp & 3))}, {srd(SRD_X)}, s{sT3} offen lds @c{cc}"])
        for pp in range(8):
            g.append([f"s_add_u32 m0, s{sSLOT}, {S_ST[cc] + 20480 + pp*1024}", f"s_add_u32 s{sT3}, s{WB[cc]}, {4*pp*8192}",
                      f"buffer_load_dwordx4 {v(vWO + ((pp >> 1) & 1))}, {srd(SRD_WQ)}, s{sT3} offen lds @c{cc}"])
        return g
    c01 = p1_dma(0) + p1_dma(1)
    n0 = opt("n0", 16)
    t0, t1, t2, u1, u2 = 68, 69, 70, 71, 72
    def setup():
        U1, U2, T0, T1, T2 = v(u1), v(u2), v(t0), v(t1), v(t2)
        e(f"s_lshl_b32 s98, s{sB}, 3"); e(f"s_add_u32 s98, s98, s{sHKV}"); e("s_lshl_b32 s98, s98, 18")
        e(f"s_lshl_b32 s99, s{sW}, 16"); e("s_add_u32 s98, s98, s99")
        emit(mk_srd(SRD_K, 6, 98, 65536)); emit(mk_srd(SRD_V, 8, 98, 65536))
        e(f"s_bitcmp1_b32 s{sB}, 0")
        for r, f in ((sSEQ, seqword), (sSK, lambda q: seqtail(q, 3)), (sSV, lambda q: seqtail(q, 2))):
            e(f"s_mov_b32 s{r}, {f(SEQ[1])}"); e(f"s_cselect_b32 s{r}, {f(SEQ[2])}, s{r}")
        e(f"s_bitcmp1_b32 s{sI}, 0")
        for r, f in ((sSEQ, seqword), (sSK, lambda q: seqtail(q, 3)), (sSV, lambda q: seqtail(q, 2))):
            e(f"s_cselect_b32 s{r}, s{r}, {f(SEQ[0])}")
        e(f"v_lshlrev_b32 {U2}, 4, v1"); e(f"v_lshl_add_u32 {v(vXR)}, v4, 8, {U2}")
        for ks in range(1, 4): e(f"v_xor_b32 {v(vXR+ks)}, {ks*64}, {v(vXR)}")
        e(f"v_lshl_add_u32 {v(vOK)}, v5, 8, {U2}")
        for q in range(1, 4): e(f"v_xor_b32 {v(vOK+q)}, {q*64}, {v(vOK)}")
        e(f"v_lshrrev_b32 {T0}, 2, v4"); e(f"v_lshlrev_b32 {T0}, 3, {T0}"); e(f"v_and_b32 {U1}, 3, v4"); e(f"v_add_u32 {T0}, {T0}, {U1}")
        e(f"v_lshl_add_u32 {U2}, {T0}, 8, {U2}"); e(f"v_add_u32 {U2}, s{sSLOT}, {U2}"); e(f"v_add_u32 {v(vKR)}, {R_A}, {U2}")
        for ds in range(1, 4): e(f"v_xor_b32 {v(vKR+ds)}, {ds*64}, {v(vKR)}")
        e(f"v_lshl_add_u32 {U2}, v5, 3, v6"); e(f"v_lshlrev_b32 {U2}, 8, {U2}"); e(f"v_lshl_add_u32 {U2}, v7, 3, {U2}")
        e(f"v_and_b32 {T0}, 1, v5"); e(f"v_lshl_add_u32 {T0}, {T0}, 2, v6")
        e(f"s_lshl_b32 s98, s{sW}, 1")
        for k in range(8):
            e(f"s_add_u32 s99, s98, {k}"); e("s_and_b32 s99, s99, 7")
            e(f"v_xor_b32 {U1}, s99, {T0}"); e(f"v_lshl_add_u32 {U1}, {U1}, 5, {U2}")
            if k < 2: e(f"v_add_u32 {v(vWR+k)}, 20480, {U1}")
            e(f"v_add_u32 {v(vVR+k)}, s{sSLOT}, {U1}")
        for r in range(160): e(f"v_mov_b32 {v(vO+r)}, 0")
        e("s_and_b32 s98, s2, 63"); e(f"s_mul_i32 s98, s98, {WGS}"); emit(mk_srd(SRD_O, 18, 98, 3*HEADSTRIDE + WGS))
        e(f"s_mul_i32 s{sOOWN}, s{sI}, {HEADSTRIDE}"); e(f"s_lshl_b32 s100, s{sW5K}, 1"); e(f"s_add_u32 s{sOOWN}, s{sOOWN}, s100")
        e(f"s_lshl_b32 s{sFOWN}, s2, 2"); e(f"s_add_u32 s{sFOWN}, s{sFOWN}, s{sW}"); e(f"s_lshl_b32 s{sFOWN}, s{sFOWN}, 6"); e(f"s_add_u32 s{sFOWN}, s{sFOWN}, {WS_FLG}")
        e("s_and_b32 s98, s2, 63"); e("s_lshl_b32 s98, s98, 2"); e(f"s_add_u32 s98, s98, s{sW}"); e("s_lshl_b32 s98, s98, 6"); e(f"s_add_u32 s98, s98, {WS_FLG}")
        e(f"v_and_b32 {T0}, 3, v0"); e(f"v_lshl_add_u32 {T0}, {T0}, 14, s98")
        e("s_and_b32 s98, s2, 0xf8"); e("s_lshl_b32 s98, s98, 8"); e(f"s_lshr_b32 s99, s{sHKV}, 1"); e("s_lshl_b32 s99, s99, 6")
        e("v_cmp_gt_u32 vcc, 16, v0"); e("s_add_u32 s98, s98, s99"); e(f"s_add_u32 s98, s98, {WS_FLG + 4}")
        e(f"v_and_b32 {T1}, 7, v0"); e(f"v_lshl_add_u32 {T1}, {T1}, 8, s98"); e(f"v_cndmask_b32 {T0}, {T1}, {T0}, vcc")
        e(f"v_accvgpr_write_b32 {a(aPRB)}, {T0}")
        e(f"s_lshl_b32 s98, s{sHKV}, 19"); e(f"s_lshl_b32 s99, s{sI}, 8"); e("s_add_u32 s98, s98, s99"); e("s_sub_u32 s99, 524288, s99")
        emit(mk_srd(SRD_WO, 12, 98, "s99"))
        e(f"v_lshlrev_b32 {U1}, 2, v5"); e(f"v_sub_u32 {U1}, v4, {U1}"); e(f"v_and_b32 {U2}, 1, {U1}"); e(f"v_lshlrev_b32 {U2}, 4, {U2}")
        e(f"v_mov_b32 {T0}, 0x3f80"); e(f"v_lshlrev_b32 {U2}, {U2}, {T0}"); e(f"v_lshrrev_b32 {U1}, 1, {U1}")
        e(f"v_cmp_eq_u32 vcc, 0, {U1}"); e(f"v_accvgpr_write_b32 {a(aE)}, 0"); e(f"v_accvgpr_write_b32 {a(aE+1)}, 0"); e(f"v_cndmask_b32 {T0}, 0, {U2}, vcc")
        e(f"v_cmp_eq_u32 vcc, 1, {U1}"); e(f"v_accvgpr_write_b32 {a(aE+4)}, 0"); e(f"v_accvgpr_write_b32 {a(aE+5)}, 0"); e(f"v_cndmask_b32 {T1}, 0, {U2}, vcc")
        e(f"v_accvgpr_write_b32 {a(aE+2)}, {T0}"); e(f"v_accvgpr_write_b32 {a(aE+3)}, {T1}")
        for mrel in (1, 2, 3, 0):
            e(f"s_add_u32 s99, s{sW}, {mrel}"); e("s_and_b32 s99, s99, 3"); e("s_mul_i32 s98, s99, 3072")
            if mrel > 1: e(f"s_add_u32 s98, s98, {(mrel-1)*1024}")
            e(f"v_add_u32 {U1}, s98, {v(vLIN)}"); e(f"v_accvgpr_write_b32 {a(aADR + (mrel - 1) % 4)}, {U1}")
        e(f"s_lshl_b32 s98, s{sW}, 2"); e(f"s_add_u32 s98, s98, {R_SP}"); e(f"v_lshl_add_u32 {U1}, v4, 4, s98")
        if "lsame" not in X: e(f"v_mul_u32_u24 {U2}, 1288, v5"); e(f"v_add_u32 {U1}, {U1}, {U2}")
        e(f"v_accvgpr_write_b32 {a(aADR+4)}, {U1}")
        e(f"v_lshlrev_b32 {U1}, 4, v4"); e(f"v_add_u32 {U1}, {R_SP}, {U1}"); e(f"v_accvgpr_write_b32 {a(aADR+5)}, {U1}")
        e(f"v_and_b32 {U1}, 1, v5"); e(f"v_lshlrev_b32 {U1}, 1, {U1}"); e(f"v_xor_b32 {U1}, v4, {U1}"); e(f"v_lshlrev_b32 {U1}, 4, {U1}"); e(f"v_lshl_add_u32 {U1}, v5, 12, {U1}")
        for q in range(4): e(f"v_xor_b32 {U2}, {q*64}, {U1}"); e(f"v_accvgpr_write_b32 {a(aADR+6+q)}, {U2}")
        e(f"v_lshl_add_u32 {U2}, v6, 2, v5"); e(f"v_lshlrev_b32 {U2}, 8, {U2}"); e(f"v_lshl_add_u32 {U2}, v7, 3, {U2}")
        e(f"v_and_b32 {T0}, 1, v5"); e(f"v_lshl_add_u32 {T0}, v6, 1, {T0}")
        e(f"s_lshl_b32 s98, s{sW}, 1")
        for k in range(2):
            e(f"s_add_u32 s99, s98, {k}")
            e(f"v_xor_b32 {U1}, s99, {T0}"); e(f"v_lshl_add_u32 {U1}, {U1}, 5, {U2}"); e(f"v_add_u32 {U1}, {R_A}, {U1}"); e(f"v_accvgpr_write_b32 {a(aADR+10+k)}, {U1}")
        for h in range(4):
            e(f"s_add_u32 s98, s{sI}, {h}"); e("s_and_b32 s98, s98, 3")
            e(f"s_mul_i32 s99, s98, {HEADSTRIDE}"); e(f"s_add_u32 s{sSIB+h}, s99, s100")
            e("s_lshl_b32 s98, s98, 2"); e(f"s_add_u32 s98, s98, s{sW}"); e(f"s_lshl_b32 s{sWOB+h}, s98, 15")
        e(f"s_lshl_b32 s{sW1K}, s{sW}, 10")
        for r in range(20): e(f"v_accvgpr_write_b32 {a(aL+r)}, 0")
        e(f"v_mov_b32 {U1}, 0x3f803f80")
        for r in range(4): e(f"v_accvgpr_write_b32 {a(aONE+r)}, {U1}")
        e(f"s_mov_b32 s{sQS}, {f2u(QSCALE)}"); e(f"s_lshl_b32 s98, s{sW}, 2")
        Q = v(vQW); Q1 = v(vQW + 1)
        e(f"v_lshrrev_b32 {Q}, 1, v5"); e(f"v_add_u32 {Q}, s98, {Q}"); e(f"v_xor_b32 {Q}, {Q}, v4"); e(f"v_lshlrev_b32 {Q}, 4, {Q}")
        e(f"v_lshl_add_u32 {Q}, v4, 8, {Q}"); e(f"v_and_b32 {Q1}, 1, v5"); e(f"v_lshl_add_u32 {Q}, {Q1}, 3, {Q}"); e(f"v_add_u32 {Q}, {R_QX}, {Q}"); e(f"v_xor_b32 {Q1}, 32, {Q}")
    fill = capture(setup)
    ne = min(opt("ne", 420), len(fill))
    while ne < len(fill) and glued(fill, ne): ne += 1
    early, fill = fill[:ne], fill[ne:]
    groups = list(c01[:n0])
    pin = [[f"buffer_store_dwordx4 v[76:79], {v(vLIN)}, {srd(SRD_PI)}, " + (f"0 offen offset:{j*1024}" if j < 4 else "s101 offen") + " sc1 @ip"] for j in range(5)] if EARLYINIT else []
    tch = []
    for nm, isK, t in (("tk0", True, 0), ("tv0", False, 0), ("tk1", True, 1)):
        n = opt(nm, 0)
        if n: tch.append([f"s_mul_i32 s58, s{sSTEP}, {t}", f"s_add_u32 s58, s58, s{sMIR}", f"s_lshr_b32 s59, s{sI}, 1", "s_lshl_b32 s59, s59, 12", "s_add_u32 s58, s58, s59",
                          f"s_mov_b64 exec, {(1 << n) - 1}" if n < 32 else "s_mov_b32 exec_hi, 0", f"buffer_load_dword {v(vJUNK)}, v3, {srd(SRD_K if isK else SRD_V)}, s58 offen @tch", "s_mov_b64 exec, -1"])
    tp = opt("tp", 13)
    if tp < 90: groups = groups[:tp] + tch + groups[tp:]; tch = []
    ipos = opt("ipos", 99)
    if ipos < 90: groups = groups[:ipos] + pin + groups[ipos:]; pin = []
    for _ in range(4): emit(groups.pop(0))
    emit(mk_srd(SRD_PI, 18, 98, WVS))
    per = max(1, min(len(early), 260) // (len(groups) + 1)); k = 0
    while early:
        L.append("    " + early.pop(0)); k += 1
        if k >= per and groups and (not early or not glued(early, 0)): emit(groups.pop(0)); k = 0
    emit(flat(groups))
    fg = []
    for x in fill:
        if fg and x.split()[0] in GLUE: fg[-1].append(x)
        else: fg.append([x])
    flag_reset = ["s_mov_b64 exec, 1", f"v_mov_b32 v2, s{sFOWN}",
                  "global_store_dwordx2 v2, v[76:77], s[18:19] sc1 @frst", "s_mov_b64 exec, -1"]
    L.append("; ---- query projection")
    acc = vP; aX = aV; aWf = aV + 40; aX3 = aQ; aW3 = aK + 32
    def reads(cc, ks):
        buf = ks & 1
        r = [f"ds_read_b64_tr_b16 {a(aWf + buf*8 + dd*4 + jh*2, 2)}, {v(vWR+dd)} offset:{ks*8192 + jh*1024}" for dd in range(2) for jh in range(2)]
        return r + [f"ds_read_b128 {a(aX + buf*20 + j*4, 4)}, {v(vXR+ks)} offset:{j*4096} @p{cc}{ks}{j}" for j in range(5)]
    def wrd(ks): return [f"ds_read_b64_tr_b16 {a(aW3 + (ks*2+dd)*4 + jh*2, 2)}, {v(vWR+dd)} offset:{ks*8192 + jh*1024} @w{ks}" for dd in range(2) for jh in range(2)]
    def xrd(j, ks): return f"ds_read_b128 {a(aX3 + (j*4+ks)*4, 4)}, {v(vXR+ks)} offset:{j*4096} @x{j}{ks}"
    TL = OPT.get("tlb", "")
    if TL:
        assert not fill
        e("s_mov_b64 exec, 1"); e("v_mov_b32 v2, 0")
        if "v" in TL: e(f"buffer_load_dword {v(vJUNK)}, v2, {srd(SRD_V)}, 0 offen")
        if "k" in TL: e(f"buffer_load_dword {v(vJUNK)}, v2, {srd(SRD_K)}, 0 offen")
        if "w" in TL: e(f"buffer_load_dword {v(vJUNK)}, v2, {srd(SRD_WO)}, 0 offen")
        if "s" in TL:
            for h in range(4): e(f"buffer_load_dword {v(vJUNK)}, v2, {srd(SRD_O)}, s{sSIB+h} offen")
            e(f"v_mov_b32 v1, s{sFOWN}"); e(f"global_load_dword {v(vJUNK)}, v1, s[18:19]")
        if "o" in TL:
            e(f"s_mul_i32 s58, s{sB}, 81920"); e("v_mov_b32 v1, s58"); e(f"global_load_dword {v(vJUNK)}, v1, s[14:15]")
        if "d" in TL: e(f"global_load_dword {v(vJUNK)}, v2, s[16:17]")
        e("s_mov_b64 exec, -1")
    e("WAITVM c0"); e("s_barrier"); stamp("c0")
    emit(reads(0, 0))
    TB = [x for x in OPT.get("tb", "K0,V0a").split(",") if x and x != "no"]
    if TB:
        tgrp = [f"s_bfe_u32 s58, s{sB}, {(1 << 16) | opt('tbit', 0)}", f"s_lshr_b32 s59, s{sI}, 1", "s_cmp_eq_u32 s58, s59", "s_cselect_b32 s58, 0, 0x10000", "s_cselect_b64 exec, -1, 1"]
        for x in TB:
            if len(x) > 2: tgrp.append("s_mov_b32 exec_hi, 0")
            tgrp += [f"s_bfe_u32 s59, s{sSEQ}, {(4 << 16) | (4*int(x[1]))}", "s_lshl_b32 s59, s59, 13", "s_or_b32 s59, s59, s58"]
            tgrp.append(f"buffer_load_dword {v(vJUNK)}, v3, {srd(SRD_K if x[0] == 'K' else SRD_V)}, s59 offen @tch")
        tgrp.append("s_mov_b64 exec, -1")
        if opt("tq", 10) == 0: emit(tgrp)
    M = []; G = {g: [] for g in range(-1, 160)}
    for cc in range(3):
        for ks in range(4):
            g0 = len(M); buf = ks & 1
            for j in range(5):
                for dd in range(2):
                    d = v(acc + (j*2+dd)*4, 4)
                    M.append(f"{MF} {d}, {a(aWf + buf*8 + dd*4, 4)}, {a(aX + buf*20 + j*4, 4)}, {'0' if (cc == 0 and ks == 0) else d}")
            G[g0 - 1].append(f"WAITLG p{cc}{ks}1"); G[g0 + 3].append(f"WAITLG p{cc}{ks}4")
            if ks < 3:
                r = reads(cc, ks + 1)
                G[g0] += r[0:3]; G[g0 + 1] += r[3:6]; G[g0 + 2] += r[6:9]
            else:
                dl = [53248, 53248, -106496][cc]
                adj = [f"v_add_u32 {v(vXR+q)}, {dl}, {v(vXR+q)}" for q in range(4)] + [f"v_add_u32 {v(vWR+q)}, {dl}, {v(vWR+q)}" for q in range(2)]
                for gi in range(3): G[g0 + gi] += adj[2*gi:2*gi+2]
                G[g0 + 3] += [f"WAITVM c{cc+1}", "s_barrier", f"STAMP c{cc+1}"]
                r = reads(cc + 1, 0) if cc < 2 else (wrd(0) + [xrd(0, 0)] + wrd(1) + [xrd(0, 1)] + wrd(2) + [xrd(0, 2)])
                for gi in range(5): G[g0 + 4 + gi] += r[3*gi:3*gi+3]
    posts = []
    for j in range(5):
        g0 = len(M)
        for ks in range(4):
            for dd in range(2):
                d = v(acc + (j*2+dd)*4, 4)
                M.append(f"{MF} {d}, {a(aW3 + (ks*2+dd)*4, 4)}, {a(aX3 + (j*4+ks)*4, 4)}, {d}")
        if j == 0:
            G[g0 - 1].append("WAITLG x00"); G[g0] += wrd(3)[:3]; G[g0 + 1] += [wrd(3)[3], xrd(0, 3), "WAITLG x01"]
            G[g0 + 2] += [xrd(1, 0), xrd(1, 1)]; G[g0 + 3] += ["WAITLG x02", xrd(1, 2), xrd(1, 3)]
            G[g0 + 5] += ["WAITLG x03", "s_barrier"]
        else:
            G[g0 - 1].append(f"WAITLG x{j}3")
            if j < 4:
                for ks in range(4): G[g0 + ks].append(xrd(j + 1, ks))
        for dd in range(2):
            r = acc + (j*2+dd)*4
            p = [f"v_mul_f32 {v(r+q)}, s{sQS}, {v(r+q)}" for q in range(4)]
            p += [f"v_cvt_pk_bf16_f32 {v(r)}, {v(r)}, {v(r+1)}", f"v_cvt_pk_bf16_f32 {v(r+1)}, {v(r+2)}, {v(r+3)}",
                  f"ds_write_b64 {v(vQW + dd)}, {v(r, 2)} offset:{j*4096} @qw"]
            posts += [(g0 + 8 + 2, x) for x in p]
    c2 = p1_dma(2); c3 = p1_dma(3); k0d = kv_dma(True, R_A, "K0"); k0d[0] = set_T(True, 0) + k0d[0]
    ka, kb, late, nv0, sp3 = opt("ka", 3), opt("kb", 8), opt("late", 22), opt("nv0", 4), opt("dsp3", 4)
    v0g = kv_dma(False, R_C, "V0"); v0g[0] = set_T(False, 0) + v0g[0]
    k1g = kv_dma(True, R_B, "K1"); k1g[0] = set_T(True, 1) + k1g[0]
    dq = [(0, g) for g in c01[n0:] + tch + c2[:ka]] + [(late, g) for g in c2[ka:kb]] + [(34, g) for g in c2[kb:] + c3[:ka]] + \
         [(40 + late, g) for g in c3[ka:kb]] + [(74, g) for g in c3[kb:] + (pin if ipos == 99 else []) + k0d[:ka]] + [(80 + opt("latek", late), g) for g in k0d[ka:kb] + [flag_reset]] + \
         [(114, g) for g in k0d[kb:] + (pin if ipos == 98 else []) + k1g + v0g[:nv0]]
    if TB and opt("tq", 10):
        k = opt("tq", 10); dq.insert(k, (dq[k - 1][0], tgrp))
    left = []; t = 0
    rush = opt("rush", 0); last = [g for r_, g in dq if r_ == 114][:rush]
    for g in last: G[113] += list(g); dq.remove((114, g))
    for rdy, g in dq:
        t = max(t, rdy)
        while t < 160 and (sum(1 for x in G[t] if x.startswith("ds_read")) > (1 if t >= 120 else 0) or "s_barrier" in G[t]): t += 1
        if t < 160: G[t] = G[t] + list(g)
        else: left.append(g)
        t += 1 if t < 114 else sp3
    drain = sched(M, G, [posts, [(0, g) for g in fg] + [(0, "MARK fill")]], need={33: ["fill"]}, limit=20)
    for ks in range(4): e(f"v_add_u32 {v(vXR+ks)}, {R_QX}, {v(vXR+ks)}")
    e(f"s_mov_b32 s{SRD_D}, s16"); e(f"s_mov_b32 s{SRD_D+1}, s17"); e(f"s_mov_b32 s{SRD_D+2}, 256"); e(f"s_mov_b32 s{SRD_D+3}, 0x20000")
    drain(0); emit(left)
    e("WAITVM frst"); e("WAITLG qw"); e("s_barrier")
    stamp("Bq")
    def qrd(j): return [f"ds_read_b128 {a(aQ + (j*4+ds)*4, 4)}, {v(vXR+ds)} offset:{j*4096} @q{j}" for ds in range(4)]
    emit(qrd(0))
    e("WAITVM K0")
    emit(kreads(0, "k0"))
    for r in range(20): e(f"v_mov_b32 {v(vNM+r)}, 0")
    e(f"s_lshl_b32 s{sT1}, s{sB}, 5")
    e(f"s_cmp_eq_u32 s{sRANGE}, -1"); e("s_cbranch_scc1 L_rowmax")
    e(f"s_cmp_lg_u32 s{sW}, 0"); e("s_cbranch_scc1 L_noat")
    e("s_mov_b64 exec, 1"); e("v_mov_b32 v1, 1"); e("v_mov_b32 v2, 0")
    L.append(f"    buffer_atomic_add v1, v2, {srd(SRD_D)}, s{sT1} offen sc1")
    e("s_mov_b64 exec, -1")
    lab("L_noat")
    e("WAITLG q0"); emit(qrd(1)); e("WAITLG k0"); emit(qrd(2) + qrd(3))
    L.append("; ---- first score tile")
    k2g = kv_dma(True, R_A, "K2"); k2g[0] = set_T(True, 2) + k2g[0]
    v1g = kv_dma(False, R_D, "V1"); v1g[0] = set_T(False, 1) + v1g[0]
    dm = v0g[nv0:] + (v1g + k2g if VF else k2g + v1g)
    rdk = kreads(1, "k1"); rdv = vreads(0, "v0")
    for j in range(5):
        sb = (5 + j) & 1
        gaps = {g: [] for g in range(-1, 8)}
        if j > 0:
            gaps[-1].append(f"WAITLG q{j}")
            ex = exps(sb ^ 1); cv = cvts(sb ^ 1, j - 1)
            for n in range(8): gaps[n].append(ex[n])
            gaps[2].append(cv[0]); gaps[4].append(cv[1]); gaps[6].append(cv[2]); gaps[7] += ["s_nop 0", cv[3]]
        if j == 1: gaps[-1] += [f"v_add_u32 {v(vVRC+k)}, {R_C}, {v(vVR+k)}" for k in range(8)] + [f"v_mov_b32 {v(vSENT+q)}, -1" for q in range(4)]
        if j == 0:
            for n in range(8):
                if dm: gaps[n] += dm.pop(0)
            gaps[3] += ["WAITLG q1"] + qrd(4)
        else:
            for n in (0, 2, 4, 6):
                if dm: gaps[n] = dm.pop(0) + gaps[n]
            if j == 2:
                gaps[1].insert(0, "WAITVM K1")
                for n in (1, 3, 5, 7): gaps[n] += [rdk.pop(0), rdk.pop(0)]
            if j == 3: gaps[1].insert(0, "WAITVM V0")
            if j >= 3:
                for n in (1, 3, 5, 7): gaps[n] += [rdv.pop(0), rdv.pop(0)]
        interleave(qk(j, 0, sb), gaps)
    emit(flat(dm))
    e(f"s_mov_b32 s{sCNT}, 0")
    emit(set_T(True, 3) + set_T(False, 2))
    if OPT.get("hm"):
        me, mo = OPT["hm"].split(",")
        emit([f"s_lshl_b32 s58, s{sB}, 2", f"s_add_u32 s58, s58, s{sI}", "s_lshl_b32 s58, s58, 2", f"s_add_u32 s58, s58, s{sW}",
              "s_lshl_b32 s58, s58, 12", f"s_lshl_b32 s59, s{sI}, 8", "s_sub_u32 s58, s58, s59", "v_add_u32 v2, s58, v3",
              f"s_bitcmp1_b32 s{sB}, 0", f"s_cselect_b32 s{sOI}, {mo}, {me}"])
    e("s_waitcnt lgkmcnt(0)")
    stamp("pro")
    jitter(15, 9)
    L.append("; ---- main loop: key tiles 0..4")
    def base_iter(par):
        G = {g: [] for g in range(-1, 85)}; M = []
        for j in range(5):
            sb = (5*par + j) & 1
            M += qk(j, par ^ 1, sb) + pv(j, par)
            put_exp(G, 17*j, sb ^ 1, (j - 1) % 5)
        return M, G
    def half_va(par):
        kd = flat(kv_dma(True, KSLOT[par ^ 1], "lk", nop=False)); vd = flat(kv_dma(False, VSLOT[par], "lv", nop=False))
        G = {g: [] for g in range(-1, 80)}; M = []
        LR = [92, 93, 94, 95, 1]
        for j in range(5):
            sb = (5*par + j) & 1; b = 16*j; jp = (j - 1) % 5; r = vS + (sb ^ 1)*8
            M += qk(j, par ^ 1, sb) + pv(j, par)[:-1]
            ex = exps(sb ^ 1); cv = cvts(sb ^ 1, jp)
            for n in range(8):
                G[b + 2*n].append(ex[n])
                G[b + 2*n + 1].append(f"v_add_f32 {v(LR[jp])}, {v(LR[jp])}, {v(r + n)}")
                if n & 1: G[b + 2*n + 1].append(cv[n >> 1])
        dpos = [1, 5, 11, 15, 21, 25, 31, 35, 41, 45, 51, 55, 61, 65, 71, 75]; mpos = [-1, 17, 37, 57]
        ev = "vaexp" in X
        if ev:
            vpos = [27, 28, 29, 30, 32, 33, 34, 36, 38, 39, 40, 42, 43, 44, 46, 47]; kpos = [59, 60, 62, 63, 64, 66, 67, 68]; vw, kw = 26, 58; tpos = [69, 77, 23, 39]
        else:
            vpos = [27, 29, 29, 33, 33, 37, 39, 41, 43, 45, 47, 49, 49, 53, 53, 57]; kpos = [61, 63, 65, 67, 69, 69, 73, 73]; vw, kw = 25, 59; tpos = [77, 77, 19, 43]
        dma = vd + kd
        for p, s in zip(mpos, [s for s in dma if "m0" in s]): G[p].append(s)
        for p, s in zip(dpos, [s for s in dma if "m0" not in s]): G[p].append(s)
        G[kw].append(f"s_waitcnt vmcnt({sum(1 for p in dpos if p <= kw)})")
        for p, s in zip(kpos, kreads(par)): G[p].append(s)
        G[vw].append(f"s_waitcnt vmcnt({8 + sum(1 for p in dpos if p <= vw)})")
        for p, s in zip(vpos, vreads(par ^ 1)): G[p].append(s)
        for p, r in zip(tpos, (sTK, sTK2, sTV, sTV2)): G[p].append(f"s_add_u32 s{r}, s{r}, s{sSTEP}")
        if par == 0: G[13].append(f"s_add_u32 s{sCNT}, s{sCNT}, 1"); G[79].append(f"s_cmp_eq_u32 s{sCNT}, 3")
        G[79].insert(0, "s_waitcnt lgkmcnt(0)")
        G = {g: [s for s in l if not isv(s)] + [s for s in l if isv(s)] for g, l in G.items()}
        interleave(M, G)
    def half(par):
        if "va" in X or "vaexp" in X: return half_va(par)
        kd = flat(kv_dma(True, KSLOT[par ^ 1], "lk", nop=False)); vd = flat(kv_dma(False, VSLOT[par], "lv", nop=False))
        dma = vd + kd if VF else kd + vd
        M, G = base_iter(par)
        for p, s in zip(S["mpos"], [s for s in dma if "m0" in s]): G[p].append(s)
        for p, s in zip(S["dpos"], [s for s in dma if "m0" not in s]): G[p].append(s)
        G[S["kw"]].append(f"s_waitcnt vmcnt({(0 if VF else 8) + sum(1 for p in S['dpos'] if p <= S['kw'])})")
        for p, s in zip(S["kpos"], kreads(par)): G[p].append(s)
        G[S["vw"]].append(f"s_waitcnt vmcnt({(8 if VF else 0) + sum(1 for p in S['dpos'] if p <= S['vw'])})")
        for p, s in zip(S["vpos"], vreads(par ^ 1)): G[p].append(s)
        for p, q, r, w in ((S["tpos"][0], S["tpos"][1], sTK, sSK), (S["tpos"][2], S["tpos"][3], sTV, sSV)):
            G[16 if r == sTV else 1].append(f"s_lshr_b32 s{w}, s{w}, 3"); G[p].append(f"s_and_b32 s{r}, s{w}, 0xe000"); G[q].append(f"s_or_b32 s{r+1}, s{r}, 4096")
        if par == 0: G[79].append(f"s_add_u32 s{sCNT}, s{sCNT}, 1"); G[84].append(f"s_cmp_eq_u32 s{sCNT}, 3")
        if par == 1 and opt("hkb", 0): G[opt("hkb", 0)] += [f"s_cmp_eq_u32 s{sCNT}, {opt('hk', 1)}", "s_cbranch_scc1 L_hook", "LABEL L_back"]
        if VF: G[83].append("s_waitcnt lgkmcnt(0)")
        else: G[84].insert(0, "s_waitcnt lgkmcnt(15)"); G[7].append("s_waitcnt lgkmcnt(0)")
        G = {g: [s for s in l if not isv(s)] + [s for s in l if isv(s)] for g, l in G.items()}
        interleave(M, G)
    L.append(".p2align 6")
    for _ in range(opt("ph", 0)): L.append("    s_nop 0")
    lab("L_loop")
    WOT = [f"s_lshl_b32 s58, s{sB}, 2", f"s_add_u32 s58, s58, s{sI}", "s_lshl_b32 s58, s58, 2", f"s_add_u32 s58, s58, s{sW}",
           "s_lshl_b32 s58, s58, 12", f"s_lshl_b32 s59, s{sI}, 8", "s_sub_u32 s58, s58, s59", "v_add_u32 v2, s58, v3", "s_mov_b32 exec_hi, 0",
           f"buffer_load_dword v1, v2, {srd(SRD_WO)}, 0 offen", "s_mov_b32 exec_hi, -1"]
    HM = OPT.get("hm")
    hooks = []
    def hook():
        if not HM: return
        k = len(hooks); hooks.append(k)
        e(f"s_bitcmp1_b32 s{sOI}, 0"); e(f"s_cbranch_scc1 L_hk{k}"); lab(f"L_hr{k}"); e(f"s_lshr_b32 s{sOI}, s{sOI}, 1")
    if "unroll" in X:
        half(0); hook(); stamp("i0"); half(1); hook(); stamp("i1"); half(0); hook(); stamp("i2")
        if opt("wt5", -1) < 0 and not HM: e("s_branch L_hook")
        lab("L_back")
        half(1); hook(); stamp("i3"); half(0); e("s_branch L_exit")
    else:
        half(0)
        e("s_cbranch_scc1 L_exit")
        if opt("wt5", -1) >= 0 or HM: lab("L_back")
        else: e(f"s_cmp_eq_u32 s{sCNT}, {opt('hk', 2)}"); e("s_cbranch_scc1 L_hook"); lab("L_back")
        hook()
        half(1)
        hook()
        e("s_branch L_loop")
    lab("L_hook")
    if "wol" in X:
        emit([f"s_and_b32 s58, s{sB}, 1", f"s_lshr_b32 s59, s{sI}, 1", "s_cmp_eq_u32 s58, s59", "s_cbranch_scc1 L_back",
              f"s_and_b32 s58, s{sI}, 1", f"s_xor_b32 s59, s{sB}, 1", "s_lshl_b32 s59, s59, 1", "s_add_u32 s58, s58, s59", "s_lshl_b32 s58, s58, 2", f"s_add_u32 s58, s58, s{sW}",
              "s_lshl_b32 s58, s58, 13", f"s_lshl_b32 s59, s{sI}, 8", "s_sub_u32 s58, s58, s59", "v_add_u32 v2, s58, v3",
              f"buffer_load_dword v1, v2, {srd(SRD_WO)}, 0 offen", "s_branch L_back"])
    else:
        emit(WOT)
        if "pfc2" in X:
            e("s_getpc_b64 s[58:59]"); lab("L_pc1")
            e(f"s_lshr_b32 s{sT3}, s2, 3"); e(f"s_lshl_b32 s{sT3}, s{sT3}, 2"); e(f"s_add_u32 s{sT3}, s{sT3}, s{sW}"); e(f"s_lshl_b32 s{sT3}, s{sT3}, 7")
            e(f"s_min_u32 s{sT3}, s{sT3}, L_end-L_pc1-4"); e(f"v_mov_b32 v2, s{sT3}")
            e("s_mov_b64 exec, 1"); L.append("    global_load_dword v1, v2, s[58:59]"); e("s_mov_b64 exec, -1")
        e("s_branch L_back")
    for k in hooks:
        nl = opt("hl", 16)
        lab(f"L_hk{k}"); e(f"s_mov_b64 exec, {(1 << nl) - 1}"); L.append(f"    buffer_load_dword v1, v2, {srd(SRD_WO)}, 0 offen"); e("s_mov_b64 exec, -1")
        e(f"v_add_u32 v2, {nl*128}, v2"); e(f"s_branch L_hr{k}")
    lab("L_exit")
    stamp("exit")
    jitter(31, 5)
    if "cnt" in X: e(f"s_mov_b32 s{sOI}, 0")
    L.append("; ---- key tile 5")
    VM.ops = (["V5"]*8 + ["K6"]*8 + ["V6"]*8 + ["K7"]*8) if VF else (["K6"]*8 + ["V5"]*8 + ["K7"]*8 + ["V6"]*8); LG.ops = ["kr"]*8 + ["vr"]*16
    vXW = vKR; vXRD = vKR + 3; vWOO = vOK; vLW = vOV; vLR = vOV + 1
    def wo_dma(h):
        g = [f"s_add_u32 m0, s{sSLOT}, {WREG[h]}", f"s_add_u32 s{sT3}, s{sWOB+h}, 16384"]
        for pp in range(8):
            if pp == 4: g += [f"s_add_u32 m0, s{sSLOT}, {WREG[h] + 4096}", "NEXTGAP"]
            g.append(f"buffer_load_dwordx4 {v(vWOO + (pp & 3))}, {srd(SRD_WO)}, s{sWOB+h if pp < 4 else sT3} offen offset:{(pp & 3)*1024} lds @wo{h}")
        return g
    def paced(items, t, step):
        r = []
        for x in items:
            r.append((t, x))
            if any(y.startswith("buffer") for y in aslist(x)): t += step
        return r
    def unpark(dst, k): return f"v_accvgpr_read_b32 {v(dst)}, {a(aADR + k)}"
    def pstore(j, data, tag):
        return f"buffer_store_dwordx4 {v(data, 4)}, {v(vLIN)}, {srd(SRD_PI)}, s{sTK2 if j < 4 else sTV2} offen offset:{(j & 3)*1024} sc1 @{tag}"
    def ostore(j, data, tag):
        return f"buffer_store_dwordx4 {v(data, 4)}, {v(vLIN)}, {srd(SRD_O)}, " + (f"s{sOOWN} offen offset:{j*1024}" if j < 4 else f"s{sTK} offen") + " sc1 @" + tag
    def setflag(k, tag): return ["v_mov_b32 v2, 0", f"v_mov_b32 v3, s{sFOWN}", ["s_mov_b64 exec, 1", f"global_store_dword v3, v2, s[18:19] offset:{4*k} sc1 @{tag}", "s_mov_b64 exec, -1"]]
    M, G = base_iter(1)
    G[-1] += ["v_mov_b32 v1, 0", f"buffer_load_dword {v(vJUNK)}, v1, {srd(SRD_D)}, s{sT1} offen sc1 @hs"]
    if opt("tch", 2) == 1: G[1] += ["s_mov_b32 exec_hi, 0xff", f"buffer_load_dword v2, v3, {srd(SRD_O)}, s{sOOWN} offen", "s_mov_b32 exec_hi, -1"]
    G[7].append("s_waitcnt lgkmcnt(0)")
    G[S["kw"]].append("WAITVM K7")
    for p, s in zip(S["kpos"], kreads(1, "k7")): G[p].append(s)
    G[S["vw"]].append("WAITVM V6")
    for p, s in zip(S["vpos"], vreads(0, "v6")): G[p].append(s)
    G[83].append("WAITLG k7")
    hw = max(S["kw"], S["vw"]) + 1
    v7 = [x.replace("s_nop 0", "NEXTGAP") for x in flat(kv_dma(False, VSLOT[1], "V7"))]
    vm = [(0, v7[0])] + paced(v7[2:], 1 if VF else 8, 2)
    if opt("wt5", -1) >= 0:
        vm += [(0, x) for x in WOT[:8]] + [(opt("wt5", -1), WOT[8:])]
    vm += paced([ostore(j, vSENT, "io") for j in range(5)], opt("ist", 24), opt("isp", 8))
    W0L = opt("w0t", 95) >= 85
    vm += [(20, unpark(vWOO + q, 6 + q)) for q in range(4)] + ([] if W0L else paced(wo_dma(0), opt("w0t", 95), opt("w0s", 3)))
    hsq = [f"s_add_u32 s{sTK}, s{sOOWN}, 4096", f"s_mov_b32 s{sTK2}, 5120",
           f"s_mov_b32 s{SRD_WS}, s18", f"s_mov_b32 s{SRD_WS+1}, s19", f"s_mov_b32 s{SRD_WS+2}, {WS_FLG + 65536}", f"s_mov_b32 s{SRD_WS+3}, 0x20000", f"s_mov_b32 s{sSPIN}, 0"]
    hsq = [(1, x) for x in hsq] + [(30, f"s_mov_b32 s{sTV2}, 9216"), (hw, "WAITVM hs"), (hw, f"v_readfirstlane_b32 s58, {v(vJUNK)}"), (hw, "NEXTGAP"),
           (hw, ["s_cmp_ge_u32 s58, 32", "s_cbranch_scc0 L_hs", "LABEL L_hsok"])]
    drain = sched(M, G, [hsq, vm], limits={1: opt('l5', 36)})
    drain(0); drain(1)
    stamp("t5")
    jitter(7, 11)
    L.append("; ---- key tiles 6 and 7, combine, output projection (pipelined over the five query tiles)")
    FO = [2, 3, 4, 5, 6, 7, 0, 1]
    HZ = opt("hz", 4)
    M = []; G = {7: ["s_waitcnt lgkmcnt(0)"]}; ix = {}
    for j in range(5):
        put_exp(G, len(M), (j & 1) ^ 1, (j - 1) % 5)
        M += qk(j, 1, j & 1) + pv(j, 0)
        if j >= 3: ix[f"p{j-3}"] = len(M); M += pv(j - 3, 1, FO)
    aW = [aK, aQ, aQ + 32, aV]
    aR = [aK + 32, aK + 44, aQ + 64]
    def msum(j):
        return [f"{MF} {v(oreg(k, j), 4)}, {a(aE + (2 if k == 0 else 0), 4)}, {a(aR[j % 3] + s*4, 4)}, {v(oreg(k, j), 4)}" for s in range(3) for k in range(2)]
    put_exp(G, len(M), 0, 4)
    BQ = [vS, vS + 4, vS + 8, vS + 12, vP, vP + 4, vP + 8, vP + 12, vNM, vNM + 4, vNM + 8, vNM + 12]
    vWR2 = vVR; vOB = vVR + 2; vVER = vVR + 3; vCHK = vVR + 4; vPRB = vVR + 5; vPRD = vVR + 6; vOWN = vVR + 7; vT = vP + 16
    def bread(j, h, st):
        if h == 0: return [f"ds_read_b128 {v(BQ[st*4 + ks], 4)}, {v(vLIN)} offset:{OWNB[j] + ks*1024} @b{j}{h}" for ks in range(4)]
        return [f"ds_read_b128 {v(BQ[st*4 + ks], 4)}, {v(vOB)} offset:{OBOFF[j] + h*4096 + ks*1024} @b{j}{h}" for ks in range(4)]
    def proj(j, h, st):
        return [f"{MF} {v(oreg(2 + nn, j), 4)}, {a(aW[h] + (ks*2+nn)*4, 4)}, {v(BQ[st*4 + ks], 4)}, {'0' if h == 0 and ks == 0 else v(oreg(2 + nn, j), 4)}"
                for ks in range(4) for nn in range(2)]
    for nm, mm in (("s0", msum(0)), ("p2", pv(2, 1, FO)), ("p3", pv(3, 1, FO)), ("p4", pv(4, 1, FO))):
        ix[nm] = len(M); M += mm
    need = {}; NE = opt("ne4", 0)
    sibrd = {}; B3 = 'b2' not in X; BO = opt('bo', 8); fg_ = [0]
    def group(j, h, st_, first, inbeat):
        g = len(M)
        if first: ix[f"q{j}"] = g
        M.extend(proj(j, h, st_)); ix[f"e{j}"] = len(M) - 1
        need.setdefault(g, []).append(f"!WAITLG b{j}{h}")
        r = bread(j, h, st_)
        if first and inbeat: sibrd[j] = r; return
        if first:
            need.setdefault(g - (BO if j else 7), []).extend([f"v{j}"] + ([OPT.get("pdm", "pp")] if j == opt("pd", 3) else []) + (["n4", "!WAITLG w4"] if j == (3 if "o4" in X else 4) else []) + ["!s_barrier", f"!STAMP d{j}", f"!MARK d{j}"])
        if first: g1 = g - (BO if j else 7); fg_[0] = g1
        else: g1 = max(g - 16, fg_[0] + 2) if B3 else g - 8
        if not first and B3: fg_[0] = g1
        for k in range(4): G.setdefault(g1 + k // 2, []).append(r[k])
    for b in (1, 2, 3, 4):
        ix[f"s{b}"] = len(M); M += msum(b)
        ix[f"o{b-1}"] = len(M); M += proj(b - 1, 0, 0)
        j = b - 5 + NE
        if j >= 0:
            for h in (1, 2, 3): group(j, h, h & 1, h == 1, True)
    st_ = 1
    for j in range(5):
        if j == 4 and "o4" in X:
            g = len(M); M.extend(proj(4, 0, st_)); need.setdefault(g, []).append("!WAITLG b40")
            for k, x in enumerate(bread(4, 0, st_)): G.setdefault(g - (16 if B3 else 8) + k // 2, []).append(x)
            st_ = (st_ + 1) % (3 if B3 else 2)
        for h in ((1, 2, 3) if (j < 4 or "o4" in X) else (0, 1, 2, 3)):
            group(j, h, st_, h == (1 if (j < 4 or "o4" in X) else 0), False); st_ = (st_ + 1) % (3 if B3 else 2)
    def wfr(h, base):
        return [f"ds_read_b64_tr_b16 {a(aW[h] + (ks*2+nn)*4 + jh*2, 2)}, {v(base+nn)} offset:{WREG[h] - R_A + ks*8192 + jh*4096} @f{h}" if h != 2 else
                f"ds_read_b64_tr_b16 {a(aW[h] + (ks*2+nn)*4 + jh*2, 2)}, {v(base+nn)} offset:{ks*8192 + jh*4096} @f{h}"
                for ks in range(4) for nn in range(2) for jh in range(2)]
    nx = [0]
    def xw(j):
        r = []; p = ix[f"p{j}"]
        for mrel in (1, 2, 3):
            t = vTMP + (nx[0] & 1)*4; nx[0] += 1
            ins = pack4(t, oreg(2*mrel, j), oreg(2*mrel + 1, j)) + [f"ds_write_b128 {v(vXW + mrel - 1)}, {v(t, 4)} offset:{XSLOT[j]} @x{j}"]
            r += [(p + 2*mrel - 1 + HZ, s) for s in ins]
            if mrel == 1: r.append((0, f"MARK xa{j}"))
        return r + [(p + 8 + HZ, f"ds_write_b32 {v(vLW)}, {a(aL + j*4)} offset:{j*256} @x{j}"), (0, f"MARK x{j}")]
    def xr(j):
        return [f"ds_read_b128 {v(vNM + j*4, 4)}, {v(vLR)} offset:{j*256} @l{j}"] + \
               [f"ds_read_b128 {a(aR[j % 3] + s*4, 4)}, {v(vXRD)} offset:{XSLOT[j] + s*1024} @r{j}" for s in range(3)] + [f"MARK r{j}"]
    def lsum(j):
        r = vNM + j*4
        return [(0, x) for x in [f"AFTER r{j} 2", f"WAITLG l{j}", f"v_add_f32 {v(r)}, {v(r)}, {v(r+1)}", f"v_add_f32 {v(r+2)}, {v(r+2)}, {v(r+3)}", f"v_add_f32 {v(r)}, {v(r)}, {v(r+2)}",
                f"v_subrev_u32 {v(r+1)}, {LO_BITS}, {v(r)}", [f"v_cmp_lt_u32 vcc, s{sRANGE}, {v(r+1)}", f"v_rcp_f32 {v(r)}, {v(r)}", "s_cbranch_vccnz L_fallback"]]]
    def norm(j):
        r0 = oreg(0, j); r1 = oreg(1, j); t = oreg(4, j)
        if "pk" in X: ins = [f"v_pk_mul_f32 {v(r+q, 2)}, {v(r+q, 2)}, {v(vNM+j*4, 2)} op_sel_hi:[1,0]" for r in (r0, r1) for q in (0, 2)] + pack4(t, r0, r1) + sanit(t)
        else: ins = [f"v_mul_f32 {v(r+q)}, {v(vNM+j*4)}, {v(r+q)}" for r in (r0, r1) for q in range(4)] + pack4(t, r0, r1) + sanit(t)
        ms = ostore(j, t, f"o{j}")
        PI = [int(x) for x in OPT.get("pi", "3,2,0,0,0").split(",")]
        pin_ = [pstore(k, vSENT, "ip") for k in range(sum(PI[:j]), sum(PI[:j+1]))]
        return [(ix[f"s{j}"] + 5 + HZ, x) for x in ins + [f"STAMP n{j}", ms, f"ds_write_b128 {v(vOWN)}, {v(t, 4)} offset:{OWNB[j]} @w{j}"] + pin_ + [f"MARK n{j}"]]
    def fetch(j):
        r = []
        for h in (1, 2, 3):
            dst = R_B + OBOFF[j] + h*4096
            if j < 4: r.append([f"s_add_u32 m0, s{sW1K}, {dst - j*1024}", "s_nop 0", f"buffer_load_dwordx4 {v(vLIN)}, {srd(SRD_O)}, s{sSIB+h} offen offset:{j*1024} sc1 lds @g{j}"])
            else: r.append([f"s_add_u32 m0, s{sW1K}, {dst}", f"s_add_u32 s{sT3}, s{sSIB+h}, 4096", f"buffer_load_dwordx4 {v(vLIN)}, {srd(SRD_O)}, s{sT3} offen sc1 lds @g{j}"])
        return r
    def vread(j): return [f"ds_read_b32 {v(vT + h)}, {v(vVER)} offset:{OBOFF[j] + h*4096} @t{j}" for h in (1, 2, 3)]
    def vtest(): return [f"v_max3_u32 {v(vT)}, {v(vT+1)}, {v(vT+2)}, {v(vT+3)}", f"v_cmp_eq_u32 vcc, -1, {v(vT)}"]
    def verify(j):
        return [[f"STAMP u{j}", f"WAITVM g{j}", f"STAMP w{j}"]] + vread(j) + [f"MARK t{j}", f"AFTER t{j} 3", f"WAITLG t{j}", vtest()[0], [vtest()[1], "s_nop 0", f"s_cbranch_vccnz L_refetch{j}", f"LABEL L_got{j}"], f"MARK v{j}"]
    def post(j):
        r0 = oreg(2, j)
        return [(ix[f"e{j}"] + HZ, x) for x in pack4(r0, r0, oreg(3, j)) + sanit(r0) + [pstore(j, r0, "pst")]]
    p0 = ix["p0"]
    hs = [(opt("fs", 62), x) for x in ["WAITVM io"] + setflag(0, "fs0")]
    hs += [(0, f"AFTER {OPT.get('fp', 'n3')} 0")] + [(0, x) for x in ["WAITVM ip"] + setflag(1, "fs1")] + [(0, "MARK fs1")]
    def bar(name, afters, waits): return [(0, f"AFTER {x} 0") for x in afters] + [(0, waits + ["s_barrier", f"STAMP {name}", f"MARK {name}"])]
    vs = [(40, unpark(vXW + q, q)) for q in range(4)] + [(40, unpark(vLW, 4)), (40, unpark(vLR, 5))]
    vs += xw(0) + bar("a", ["f0", "w1"], ["WAITVM wo1", "WAITLG x0", "WAITLG f0"]) + lsum(0) + [(0, "AFTER w3 0")] + norm(0) + xw(1) + bar("b1", ["f1"], ["WAITVM wo3", "WAITLG x1", "WAITLG f1"])
    for j in (1, 2, 3):
        vs += xw(j + 1) + lsum(j) + norm(j) + ([(0, f"AFTER n{j} {opt('hold', 4) - 1}")] if opt("hold", 4) else []) + bar(f"b{j+1}", {1: [], 2: ["f2"], 3: []}[j], {1: [], 2: ["WAITLG f2"], 3: []}[j] + [f"WAITLG w{j}"])
    vs += lsum(4) + norm(4)
    ps = []
    for j in range(5):
        p = post(j)
        ps += p[:-1] + ([(0, f"AFTER d{opt('pd', 3)} 0")] if j == 0 else []) + p[-1:]
    rs = [(opt("v7r", 36), "WAITVM V7")] + [(0, x) for x in vreads(1, "v7")] + [(0, "MARK v7")]
    rs += [(68, unpark(vWR2, 10)), (68, unpark(vWR2 + 1, 11))]
    adr = [(68, f"v_add_u32 {v(vOB)}, {R_B}, {v(vLIN)}"), (68, f"v_add_u32 {v(vVER)}, s{sW1K}, {v(vOB)}"),
           (68, f"v_accvgpr_read_b32 {v(vPRB)}, {a(aPRB)}"), (68, f"v_add_u32 {v(vOWN)}, s{sW1K}, {v(vLIN)}"), (0, "MARK adr")]
    rs += [(0, x) for x in wfr(0, vWR2)] + [(0, "MARK f0"), (0, "AFTER a 0")] + [(0, x) for x in xr(0)] + [(0, x) for x in wfr(1, vWR2)] + [(0, "MARK f1")]
    up = [f"v_add_u32 {v(vWR2+q)}, {R_C - R_A}, {v(vWR2+q)}" for q in range(2)]; dn = [f"v_subrev_u32 {v(vWR2+q)}, {R_C - R_A}, {v(vWR2+q)}" for q in range(2)]
    w2 = wfr(2, vWR2); w3 = wfr(3, vWR2)
    extra = {1: up + w2[:8], 2: w2[8:] + ["MARK f2"] + dn, 3: w3[:8], 4: w3[8:] + ["MARK f3"]}
    for j in (1, 2, 3, 4):
        rs += [(0, f"AFTER b{j} 0")] + [(ix[f"s{j-3}"] + 6 if j >= 3 else 0, x) for x in xr(j)]
        rs += [(ix[f"s{j}"] - 1, x) for x in bread(j - 1, 0, 0)] + [(0, f"MARK bo{j-1}")] + [(0, x) for x in extra[j]]
    MF4, MP = 0xF, 0xFF0000
    def probe(mask, tag=""): return [f"s_mov_b64 exec, {mask}", f"buffer_load_dword {v(vPRD)}, {v(vPRB)}, {srd(SRD_WS)}, 0 offen sc1" + tag, "s_mov_b64 exec, -1"]
    def test(mask): return [f"v_cmp_eq_u32 vcc, -1, {v(vPRD)}", "s_nop 0", f"s_and_b32 s58, vcc_lo, {mask}"]
    ds = (paced(wo_dma(0), opt("w0t", 95) - 85, opt("w0s", 3)) if W0L else []) + paced(wo_dma(1), opt("w1t", 36), opt("w1s", 3)) + [(0, "MARK w1")] + paced(wo_dma(2), opt("w2t", 62), opt("w2s", 3)) + [(0, "MARK w2")]
    ds += [(0, "AFTER a 0")] + [(0, y) for x in wo_dma(3) for y in ([x, "NEXTGAP"] if x.startswith("buffer") else [x])] + [(0, "AFTER adr 0"), (opt("pb", 112), probe(MF4, " @prb")), (0, "MARK w3")]
    ds += [(0, "AFTER b1 0"), (0, "WAITVM prb"), (0, test(MF4) + ["s_cbranch_scc1 L_waitf", "LABEL L_fok"])]
    FA = OPT.get("fa", "n2,n3,n4,n4,n4").split(","); FDL = [int(x) for x in OPT.get("fdl", "0,0,0,24,56").split(",")]
    for j in range(5):
        if j == 4: ds += [(0, f"AFTER {'b4' if NE >= 2 else 'd1'} 0")]
        ds += [(0, f"AFTER {FA[j]} {FDL[j]}")] + [(0, f"STAMP f{j}")] + [(0, y) for g in fetch(j) for y in [g] + ["NEXTGAP"]*opt("fst", 0)] + [(0, f"MARK g{j}")]
    ds += [(0, "AFTER fs1 0"), (0, probe(MP, " @prp")), (0, "MARK pp")]
    vf = []
    VDL = [int(x) for x in OPT.get("vdl", "20,30,40,40,40").split(",")]
    for j in range(5): vf += [(0, f"AFTER g{j} 1")] + [(ix[f"q{j}"] - (BO if j else 7) - opt("vb", 6), x) for x in verify(j)]
    G.setdefault(p0 - 1, []).extend(["WAITLG v7", "WAITVM wo0", "s_barrier", "STAMP bD"])
    need.setdefault(p0 - 1, []).extend(["v7"])
    need.setdefault(ix["q0"] + 16, []).extend(["f3", "!WAITLG f3"])
    for j in range(5): need.setdefault(ix[f"s{j}"], []).extend([f"r{j}"] + ([f"bo{j-1}"] if j else []) + ([f"xa{j+1}"] if j in (1, 2, 3) else []) + [f"!WAITLG r{j}"])
    for j in range(4): need.setdefault(ix[f"o{j}"], []).append(f"!WAITLG b{j}0")
    if opt("hold", 4):
        for j in (1, 2, 3): need.setdefault(ix[f"o{j-1}"] + 8 - opt("hold", 4), []).append(f"n{j}")
    OW = opt("ow", 2)
    if OW == 0: OUTA = ["v_lshlrev_b32 v9, 10, v4", "v_lshl_add_u32 v9, v5, 3, v9"]
    else:
        OUTA = ["v_lshrrev_b32 v1, 3, v4", "v_bfe_u32 v2, v4, 1, 1", "v_lshl_add_u32 v1, v1, 1, v2", "v_bfe_u32 v2, v4, 2, 1", "v_lshlrev_b32 v2, 1, v2",
                "v_xor_b32 v2, v2, v5", "v_lshl_add_u32 v1, v2, 2, v1", "v_and_b32 v2, 1, v4", "v_lshlrev_b32 v2, 4, v2", "v_mov_b32 v3, 0x3f80", "v_lshlrev_b32 v2, v2, v3"]
        OUTA += [[f"v_cmp_eq_u32 vcc, {m}, v1", "s_nop 1", f"v_cndmask_b32 {v(vTMP + m)}, 0, v2, vcc"] for m in range(8)]
        if OW == 1: OUTA += ["v_lshlrev_b32 v9, 10, v4", "v_lshl_add_u32 v9, v5, 4, v9"]
        else: OUTA += ["v_lshrrev_b32 v9, 2, v0", "v_lshlrev_b32 v9, 10, v9", "v_lshl_add_u32 v9, v7, 4, v9",
                       "v_lshlrev_b32 v10, 6, v4", "v_lshl_add_u32 v10, v5, 4, v10", f"v_add_u32 v10, s{sW1K}, v10"]
    fin = [f"s_and_b32 s{sT0}, s{sHKV}, 1", f"s_sub_u32 s{sT2}, 3, s{sT0}", f"s_mul_i32 s{sT0}, s{sT0}, 3", f"s_add_u32 s{sT0}, s{sT0}, s{sW}",
           "s_and_b32 s98, s2, 0xf8", f"s_mul_i32 s98, s98, {WGS}", f"s_lshr_b32 s99, s{sHKV}, 1", f"s_mul_i32 s99, s99, {WVS}", "s_add_u32 s98, s98, s99",
           f"s_lshl_b32 s99, s{sT0}, 10", "s_add_u32 s98, s98, s99", f"s_add_u32 s{sMODE}, s98, 5120",
           f"s_lshl_b32 s{sT0}, s{sT0}, 4", f"s_mul_i32 s98, s{sB}, 80", f"s_add_u32 s{sT0}, s{sT0}, s98", f"s_lshl_b32 s{sT0}, s{sT0}, 10",
           f"s_lshl_b32 s98, s{sI}, 8", f"s_add_u32 s{sT0}, s{sT0}, s98", f"s_lshr_b32 s98, s{sHKV}, 1", "s_lshl_b32 s98, s98, 6", f"s_add_u32 s{sT0}, s{sT0}, s98",
           ] + OUTA + [
           f"s_mov_b32 s{SRD_K}, s14", f"s_mov_b32 s{SRD_K+1}, s15", f"s_mov_b32 s{SRD_K+2}, 655360", f"s_mov_b32 s{SRD_K+3}, 0x20000"]
    drain = sched(M, G, [hs, ds, vf, vs, rs, ps, adr + [(0, "AFTER n4 2")] + [(ix["q1"], x) for x in fin]], need=need, limit=opt("lim", 16), limits={1: 28, 2: 24, 3: opt('lv', 16)})
    for k in range(7): drain(k)
    stamp("pst")
    if "cnt" in X: e(f"s_mov_b32 s{sCNT}, s{sOI}")
    e(f"s_cmp_ge_u32 s{sW}, s{sT2}"); e("s_cbranch_scc1 L_fin")
    e("WAITVM prp")
    emit(test(MP)); e("s_cbranch_scc1 L_waitp")
    lab("L_pok")
    if opt("slp", 0):
        e(f"s_bitcmp1_b32 s{sHKV}, 0"); e("s_cbranch_scc0 L_nosl"); e(f"s_sleep {opt('slp', 0)}"); lab("L_nosl")
    fB = vO + 100
    def redloads():
        e(f"s_mov_b32 s{sT1}, s{sMODE}")
        for p in range(8):
            e(f"buffer_load_dwordx4 {v(fB + p*4, 4)}, {v(vLIN)}, {srd(SRD_WS)}, s{sT1} offen sc1")
            if p < 7: e(f"s_add_u32 s{sT1}, s{sT1}, {WGS}")
    redloads()
    lab("L_red")
    e(f"v_mov_b32 {v(vCHK)}, 0")
    for p in range(8):
        e(f"s_waitcnt vmcnt({7-p})")
        for k in range(2):
            d = v(vS + k*4, 4)
            e(f"{MF} {d}, {v(vTMP + 4*k, 4) if OW else a(aE + (2 if k == 0 else 0), 4)}, {v(fB + p*4, 4)}, {'0' if p == 0 else d}")
            if k == 0: e(f"v_max_u32 {v(vCHK)}, {v(vCHK)}, {v(fB + p*4)}")
    e(f"v_cmp_eq_u32 vcc, -1, {v(vCHK)}")
    e("s_nop 4")
    e("s_cbranch_vccnz L_redo")
    lab("L_redok")
    e("s_nop 0")
    OF = OPT.get("outf", "sc1").replace("_", " ")
    if OW == 0:
        e(f"v_cvt_pk_bf16_f32 {v(vS)}, {v(vS)}, {v(vS+1)}"); e(f"v_cvt_pk_bf16_f32 {v(vS+1)}, {v(vS+2)}, {v(vS+3)}")
        e(f"v_cvt_pk_bf16_f32 {v(vS+4)}, {v(vS+4)}, {v(vS+5)}"); e(f"v_cvt_pk_bf16_f32 {v(vS+5)}, {v(vS+6)}, {v(vS+7)}")
        e(f"buffer_store_dwordx2 {v(vS, 2)}, v9, {srd(SRD_K)}, s{sT0} offen {OF}")
        e(f"buffer_store_dwordx2 {v(vS+4, 2)}, v9, {srd(SRD_K)}, s{sT0} offen offset:32 {OF}")
    else:
        emit(pack4(vS, vS, vS + 4))
        if OW == 2:
            e(f"ds_write_b128 v10, {v(vS, 4)}"); e("s_waitcnt lgkmcnt(0)"); e(f"ds_read_b128 {v(vS, 4)}, {v(vOWN)}"); e("s_waitcnt lgkmcnt(0)")
        e(f"buffer_store_dwordx4 {v(vS, 4)}, v9, {srd(SRD_K)}, s{sT0} offen {OF}")
    lab("L_fin")
    stamp("fin")
    if STAMPS and "cnt" in X:
        i = nstamp[0]; nstamp[0] += 1
        e(f"s_add_u32 s{sSTAMP+2*i}, s{sSTAMP+2*i-2}, s{sCNT}"); e(f"s_addc_u32 s{sSTAMP+2*i+1}, s{sSTAMP+2*i-1}, 0")
    write_stamps()
    lab("L_done")
    e("s_endpgm")
    L.append("; ---- out-of-line waits and rare paths")
    lab("L_redo")
    emit(spin("L_redok")); redloads(); e("s_branch L_red")
    lab("L_hs")
    e("v_mov_b32 v2, 0"); e("s_sleep 4")
    e(f"buffer_load_dword {v(vJUNK)}, v2, {srd(SRD_D)}, s{sT1} offen sc1"); e("s_waitcnt vmcnt(0)")
    emit(spin("L_hsok"))
    e(f"v_readfirstlane_b32 s58, {v(vJUNK)}"); e("s_nop 0"); e("s_cmp_ge_u32 s58, 32"); e("s_cbranch_scc0 L_hs"); e("s_branch L_hsok")
    for nm, mask, ok in (("L_waitf", MF4, "L_fok"), ("L_waitp", MP, "L_pok")):
        lab(nm)
        if "cnt" in X and nm == "L_waitf": e(f"s_add_u32 s{sOI}, s{sOI}, {1 << 15}")
        e("s_sleep 2"); emit(probe(mask)); e("s_waitcnt vmcnt(0)")
        emit(spin(ok)); emit(test(mask)); e(f"s_cbranch_scc1 {nm}"); e(f"s_branch {ok}")
    for j in range(5):
        lab(f"L_refetch{j}")
        if "cnt" in X: e(f"s_add_u32 s{sOI}, s{sOI}, {1 << (3*j)}")
        emit(spin(f"L_got{j}")); emit(fetch(j)); e("s_waitcnt vmcnt(0)")
        emit(vread(j)); e("s_waitcnt lgkmcnt(0)"); emit(vtest()); e("s_nop 1")
        e(f"s_cbranch_vccnz L_refetch{j}"); e(f"s_branch L_got{j}")
    lab("L_fallback")
    e("s_waitcnt vmcnt(0) lgkmcnt(0)")
    e("s_barrier")
    e(f"s_mov_b32 s{sRANGE}, -1")
    e("s_branch L_restart")
    lab("L_rowmax")
    e("s_waitcnt vmcnt(0) lgkmcnt(0)")
    emit(qrd(1) + qrd(2)); e("s_waitcnt lgkmcnt(0)"); emit(qrd(3) + qrd(4))
    vA = vP; vM = vP + 4
    for ds in range(4): e(f"v_subrev_u32 {v(vA+ds)}, {R_A - R_D}, {v(vKR+ds)}")
    for j in range(5): e(f"v_mov_b32 {v(vM+j)}, 0xff800000")
    e(f"s_mov_b32 s{sTK}, 0"); e(f"s_mov_b32 s{sTK2}, 4096")
    lab("L_fbmax")
    emit(flat(kv_dma(True, R_D, "f")))
    e("s_waitcnt vmcnt(0)")
    emit(kreads(0, base=vA, buf=1))
    e("s_waitcnt lgkmcnt(0)")
    for j in range(5):
        emit(qk(j, 1, 0, cinit="0")); e("s_nop 7")
        for n in range(4): e(f"v_max3_f32 {v(vM+j)}, {v(vM+j)}, {v(vS+2*n)}, {v(vS+2*n+1)}")
    e(f"s_add_u32 s{sTK}, s{sTK}, 8192"); e(f"s_add_u32 s{sTK2}, s{sTK2}, 8192")
    e(f"s_cmp_lt_u32 s{sTK}, 65536"); e("s_cbranch_scc1 L_fbmax")
    for j in range(5):
        for op in ("v_permlane32_swap_b32", "v_permlane16_swap_b32"):
            e(f"v_mov_b32 v1, {v(vM+j)}"); e("s_nop 1"); e(f"{op} {v(vM+j)}, v1"); e("s_nop 1"); e(f"v_max_f32 {v(vM+j)}, {v(vM+j)}, v1")
    e(unpark(1, 4)); e(unpark(2, 5))
    for j in range(5): e(f"ds_write_b32 v1, {v(vM+j)} offset:{j*256}")
    e("s_waitcnt lgkmcnt(0)"); e("s_barrier")
    for j in range(5): e(f"ds_read_b128 {v(vNM+j*4, 4)}, v2 offset:{j*256}")
    e("s_waitcnt lgkmcnt(0)")
    for j in range(5):
        r = vNM + j*4
        e(f"v_max3_f32 {v(r)}, {v(r)}, {v(r+1)}, {v(r+2)}"); e(f"v_max_f32 {v(r)}, {v(r)}, {v(r+3)}"); e(f"v_sub_f32 {v(r)}, 0, {v(r)}")
        for q in (1, 2, 3): e(f"v_mov_b32 {v(r+q)}, {v(r)}")
    e("s_branch L_noat")
    lab("L_end")

DOC = """
; One workgroup per (batch b, query head): wg = hkv + 8*b + 64*i, head = 4*hkv + i.  Four waves, 512 registers each.
;     computes the true row maxima and uses those as m (softmax is invariant under the shift).
;  3. Per 16-query tile: the waves' partial O are summed through LDS, normalised and published in d_ws; the four heads of a
;  landed; they are reset at start, and a counter per batch in d_debug says that the resets have landed.
"""
hdr = open("standalone__gqa_block_cached__near_ridge.s.ref").read().split("\n")
for ln in hdr:
    if ln.startswith("; @launch"): continue
    if not ln.startswith(";"): break
    L.append(ln)
L.append("; @launch grid=(256,1,1) block=(256,1,1) lds=163840")
L.append('.amdgcn_target "amdgcn-amd-amdhsa--gfx950"')
L.append(".text")
L.extend(DOC.strip("\n").split("\n"))
kernel()
L.append('.section .rodata,"a"')
L.append(".p2align 6"); L.append(f".amdhsa_kernel {KN}")
for s in ["next_free_vgpr 512", "next_free_sgpr 102", "accum_offset 256", "group_segment_fixed_size 0", "kernarg_size 64", "user_sgpr_count 2", "user_sgpr_kernarg_segment_ptr 1", "system_sgpr_workgroup_id_x 1"]:
    L.append("  .amdhsa_" + s)
L.append(".end_amdhsa_kernel")
import hazard
L = hazard.fix(L)
print("\n".join(L))
```

```python
import sys, math, struct, re, os
sys.path.insert(0, os.path.dirname(os.path.abspath(__file__)))

X = {"pfc2"} | set(a[2:] for a in sys.argv[1:] if a.startswith("--") and "=" not in a)
OPT = dict(a[2:].split("=") for a in sys.argv[1:] if a.startswith("--") and "=" in a)
def opt(k, d): return int(OPT.get(k, d))
STAMPS = "stamps" in X
KN = "standalone__gqa_block_cached__near_ridge_kernel"
L = []

class Tr:
    def __init__(s): s.ops = []
    def add(s, tag): s.ops.append(tag)
    def need(s, tag):
        idx = max(i for i, t in enumerate(s.ops) if t == tag)
        return len(s.ops) - 1 - idx
VM = Tr(); LG = Tr()

def lab(s): L.append(s + ":")
def e(s):
    if s.startswith("LABEL "): lab(s[6:]); return
    if s.startswith("MARK "): return
    if s.startswith("STAMP "): stamp(s[6:]); return
    if s == "NEXTGAP": s = "s_nop 0"
    tag = None
    if " @" in s: s, tag = s.split(" @")
    op = s.split()[0]
    if op == "WAITVM":
        n = VM.need(s.split()[1]); s = f"s_waitcnt vmcnt({min(n, 63)})"
    elif op == "WAITLG":
        n = LG.need(s.split()[1]); s = f"s_waitcnt lgkmcnt({min(n, 15)})"
    elif op.startswith("buffer_") or op.startswith("global_"): VM.add(tag)
    elif op.startswith("ds_"): LG.add(tag)
    L.append("    " + s)
def aslist(it): return it if isinstance(it, list) else [it]
def emit(lst):
    for it in lst:
        for s in aslist(it): e(s)
def flat(groups): return [s for g in groups for s in aslist(g)]
def capture(fn):
    keep = list(L); del L[:]
    fn()
    out = [x.strip() for x in L]; L[:] = keep
    return out

QSCALE = 1.4426950408889634 / math.sqrt(128.0)
def f2u(x): return struct.unpack("<I", struct.pack("<f", x))[0]

S_ST = [0, 53248, 106496, 0]
R_D, R_QX, R_A, R_B, R_C, R_SP = 0, 32768, 53248, 86016, 118784, 151552
KSLOT = [R_A, R_B]; VSLOT = [R_C, R_D]
XSLOT = [0, 12288, 24576, 0, 12288]
OWNB = [36864, 40960, 45056, 49152, 36864]
OBOFF = [0, 16384, 32768, 49152, 0]
WREG = [R_A, R_B, R_C, R_A]
WS_PART = 8 << 20
WS_FLG = 16 << 20
WS_STAMP = 128 << 20
WGS = 40960; WVS = 10240
HEADSTRIDE = 64 * WGS
LO_BITS = 0x21800000
RANGE = 0x3C000000
sW, sHKV, sB, sI, sRANGE = 3, 20, 21, 22, 23
sWOB, sSIB, sOI = 4, 8, 12
SRD_X, SRD_WQ, SRD_K, SRD_V, SRD_O, SRD_WO, SRD_PI = 24, 28, 32, 36, 40, 44, 64
SRD_WS, SRD_D = 24, 28
sTK, sTK2, sTV, sTV2, sSLOT, sCNT = 48, 49, 50, 51, 52, 53
sT0, sT1, sT2, sT3 = 54, 55, 56, 57
sOOWN, sW5K, sSPIN, sFOWN = 60, 61, 62, 63
sSTAMP = 68
sMODE, sXCC, sWB, sXB, sSTEP, sMIR, sW1K, sQS = 89, 90, 91, 92, 93, 94, 95, 96
vKR = 8; vVR = 12; vOK = 20; vOV = 24; vLIN = 26; vJUNK = 27
vP = 28; vS = 48; vNM = 64; vTMP = 84; vO = 96
vVRC = vTMP; vSENT = vTMP + 8; vQW = 73
aQ = 0; aK = 80; aV = 144; aL = 208; aE = 228; aPRB = 234; aADR = 235; aONE = 248

def srd(r): return f"s[{r}:{r+3}]"
def v(r, n=1): return f"v{r}" if n == 1 else f"v[{r}:{r+n-1}]"
def a(r, n=1): return f"a{r}" if n == 1 else f"a[{r}:{r+n-1}]"
MF = "v_mfma_f32_16x16x32_bf16"
SPIN_MAX = opt("spin", 400000)

nstamp = [0]
def stamp(name=""):
    if OPT.get("delay") == name:
        for _ in range(8): L.append("    s_nop 15")
    if not STAMPS: return
    sel = OPT.get("st")
    if sel and name not in sel.split(","): return
    i = nstamp[0]; nstamp[0] += 1
    assert sSTAMP + 2*i + 1 < 89
    sys.stderr.write(f"{i}:{name} ")
    L.append(f"    {'s_memtime' if 'cyc' in X else 's_memrealtime'} s[{sSTAMP+2*i}:{sSTAMP+2*i+1}]")
    L.append("    s_waitcnt lgkmcnt(0)")
def write_stamps():
    if not STAMPS: return
    if "amp" in X:
        e("s_cmp_ge_u32 s2, 8"); e("s_cbranch_scc1 L_done")
        e(f"s_cmp_lg_u32 s{sW}, 0"); e("s_cbranch_scc1 L_done")
        e("s_memrealtime s[80:81]"); e("s_waitcnt lgkmcnt(0)")
        e(f"s_sub_u32 s82, s{sSTAMP+2}, s{sSTAMP}"); e("s_min_u32 s82, s82, 5000"); e("s_mul_i32 s82, s82, 10"); e("s_add_u32 s82, s82, s80")
        lab("L_amp")
        e("s_memrealtime s[84:85]"); e("s_waitcnt lgkmcnt(0)"); e("s_sub_u32 s86, s84, s82"); e("s_cmp_lt_i32 s86, 0"); e("s_cbranch_scc1 L_amp")
        return
    n = nstamp[0]
    e("s_lshl_b32 s58, s2, 2"); e(f"s_add_u32 s58, s58, s{sW}"); e(f"s_mul_i32 s58, s58, {n*8}"); e(f"s_add_u32 s58, s58, {WS_STAMP}")
    e("s_add_u32 s58, s18, s58"); e("s_addc_u32 s59, s19, 0")
    e("s_mov_b64 exec, 1"); e("v_mov_b32 v1, 0")
    for i in range(n):
        e(f"v_mov_b32 v2, s{sSTAMP+2*i}"); e(f"v_mov_b32 v3, s{sSTAMP+2*i+1}")
        e(f"global_store_dwordx2 v1, v[2:3], s[58:59] offset:{i*8}"); e("s_nop 1")
    sys.stderr.write(f"\nstamps: {n}\n")

njit = [0]
def jitter(mask, sh):
    if "jitter" not in X: return
    k = njit[0]; njit[0] += 1
    e(f"s_mul_i32 s98, s2, {2654435761 >> (k + 3)}"); e(f"s_mul_i32 s99, s{sW}, {40503 * (k + 1)}"); e("s_add_u32 s98, s98, s99")
    e(f"s_lshr_b32 s98, s98, {sh}"); e(f"s_and_b32 s98, s98, {mask}")
    lab(f"L_jit{k}"); e("s_cmp_eq_u32 s98, 0"); e(f"s_cbranch_scc1 L_jite{k}"); e("s_sleep 8"); e("s_sub_u32 s98, s98, 1"); e(f"s_branch L_jit{k}"); lab(f"L_jite{k}")
def mk_srd(r, pbase, off_sgpr, size):
    return [f"s_add_u32 s{r}, s{pbase}, s{off_sgpr}", f"s_addc_u32 s{r+1}, s{pbase+1}, 0", f"s_mov_b32 s{r+2}, {size}", f"s_mov_b32 s{r+3}, 0x20000"]

PSEUDO = ("MARK", "LABEL", "STAMP")
WIDE = ("ds_write_b128", "buffer_store_dwordx4")
def isv(s): return s.startswith("v_")
def gaptime(ins):
    ins = [s for s in ins if not s.startswith(PSEUDO)]
    nv = [s for s in ins if not isv(s)]
    t = 4
    if nv: t += 20 if nv[0].startswith(WIDE) else 4
    first = True
    for s in ins:
        if not isv(s):
            if first: first = False; continue
            t += 24 if s.startswith(WIDE) else 4
        else:
            t = max(t, 8) + (8 if s.startswith(("v_exp", "v_rcp")) else 4)
    return t
def order_gap(items):
    def indep(k):
        x = items[k]
        if isinstance(x, list) or x.startswith(("v_",) + PSEUDO + WIDE + ("ds_write",)): return False
        return all(isinstance(y, str) and isv(y) and not y.startswith(("v_accvgpr_read", "v_mov", "v_cmp", "v_readf", "v_add_u32", "v_subrev")) for y in items[:k])
    for k in range(1, len(items)):
        if indep(k): items.insert(0, items.pop(k)); break
    return items
def interleave(mfmas, gaps):
    emit(gaps.get(-1, []))
    for i, m in enumerate(mfmas):
        e(m); emit(gaps.get(i, []))
def sched(mfmas, fixed, streams, need=None, limit=16, limits=None):
    need = need or {}
    streams = [list(s) for s in streams]
    done = {}
    cur = [0]
    def put(it):
        for s in aslist(it):
            if s.startswith("MARK "): done[s[5:]] = cur[0]
            e(s)
    def flush(mark):
        if mark in done: return
        for st in streams:
            if any(f"MARK {mark}" in aslist(it) for _, it in st):
                while mark not in done:
                    it = st.pop(0)[1]
                    if isinstance(it, str) and it.startswith("AFTER "): flush(it.split()[1]); continue
                    put(it)
                return
        raise Exception("mark " + mark)
    cur[0] = -1
    for it in fixed.get(-1, []): put(it)
    for i, m in enumerate(mfmas):
        cur[0] = i - 1
        for mk in need.get(i, []):
            if mk.startswith("!"): put(mk[1:])
            else: flush(mk)
        e(m)
        cur[0] = i
        items = list(fixed.get(i, []))
        closed = any(s.startswith("v_exp") for s in flat(items))
        blocked = set(); prog = True; seen = dict(done)
        for s in flat(items):
            if s.startswith("MARK "): seen[s[5:]] = i
        while prog:
            prog = False
            for k, st in enumerate(streams):
                if k in blocked or not st: continue
                rdy, it = st[0]
                if it == "NEXTGAP": st.pop(0); blocked.add(k); continue
                if isinstance(it, str) and it.startswith("AFTER "):
                    _, mk, d = it.split()
                    if mk in seen and seen[mk] + int(d) <= i: st.pop(0); prog = True; break
                    continue
                if rdy > i: continue
                real = [s for s in aslist(it) if not s.startswith(PSEUDO)]
                empty = not [s for s in flat(items) if not s.startswith(PSEUDO)]
                if not real or (not closed and (empty or gaptime(flat(items) + real) <= (limits or {}).get(k, limit))):
                    st.pop(0); items.append(it); prog = True
                    for s in aslist(it):
                        if s.startswith("MARK "): seen[s[5:]] = i
                    break
        for it in order_gap(items): put(it)
    cur[0] = len(mfmas)
    def drain(k):
        st = streams[k]
        while st:
            it = st.pop(0)[1]
            if isinstance(it, str) and it.startswith("AFTER "): flush(it.split()[1]); continue
            put(it)
    return drain

def kv_dma(isK, slot_base, tag, nop=True):
    g = []
    for p in range(8):
        grp = []
        if p % 4 == 0:
            grp.append(f"s_add_u32 m0, s{sSLOT}, {slot_base + (p // 4) * 4096}")
            if nop: grp.append("s_nop 0")
        vo = vOK + (p >> 1) if isK else vOV + ((p >> 1) & 1)
        so = (sTK if isK else sTV) + (0 if p < 4 else 1)
        grp.append(f"buffer_load_dwordx4 {v(vo)}, {srd(SRD_K if isK else SRD_V)}, s{so} offen offset:{(p % 4)*1024} lds @{tag}")
        g.append(grp)
    return g
SEQ = {"mirror": ["01234567", "76543210", "76543210"], "pair": ["01234567", "10325476", "02143657"], "pair0": ["01234567", "10325476", "10325476"],
       "same": ["01234567"]*3, "quad": ["01234567", "23016745", "01452367"], "quad2": ["01234567", "23016745", "04512367"]}[OPT.get("seq", "mirror")]
def seqword(q): return sum(int(c) << (4*n) for n, c in enumerate(q))
def seqtail(q, t0): return sum(int(c) << (13 + 3*n) for n, c in enumerate(q[t0:]))
sSEQ, sSK, sSV = sMIR, sSTEP, sXCC
def set_T(isK, t):
    r = sTK if isK else sTV
    return [f"s_bfe_u32 s{r}, s{sSEQ}, {(4 << 16) | (4*t)}", f"s_lshl_b32 s{r}, s{r}, 13", f"s_or_b32 s{r+1}, s{r}, 4096"]
def kreads(slot, tag="kr", base=vKR, buf=None):
    buf = slot if buf is None else buf
    return [f"ds_read_b128 {a(aK + buf*32 + (kt*4+ds)*4, 4)}, {v(base+ds)} offset:{(KSLOT[slot]-R_A) + kt*1024} @{tag}" for kt in range(2) for ds in range(4)]
def vreads(slot, tag="vr"):
    base = vVRC if slot == 0 else vVR
    return [f"ds_read_b64_tr_b16 {a(aV + slot*32 + k*4 + jh*2, 2)}, {v(base+k)} offset:{jh*1024} @{tag}" for k in range(8) for jh in range(2)]
def qk(j, kbuf, sbuf, cinit=None):
    m = []
    for kt in range(2):
        for ds in range(4):
            d = v(vS + sbuf*8 + kt*4, 4)
            c = (cinit or v(vNM + j*4, 4)) if ds == 0 else d
            m.append(f"{MF} {d}, {a(aK + kbuf*32 + (kt*4+ds)*4, 4)}, {a(aQ + (j*4+ds)*4, 4)}, {c}")
    return m
def oreg(k, j): return vO + (k*5+j)*4
def pv(j, vbuf, ks=range(8)):
    m = [f"{MF} {v(oreg(k, j), 4)}, {a(aV + vbuf*32 + k*4, 4)}, {v(vP + j*4, 4)}, {v(oreg(k, j), 4)}" for k in ks]
    m.append(f"{MF} {a(aL + j*4, 4)}, {a(aONE, 4)}, {v(vP + j*4, 4)}, {a(aL + j*4, 4)}")
    return m
def exps(sbuf): return [f"v_exp_f32 {v(vS + sbuf*8 + n)}, {v(vS + sbuf*8 + n)}" for n in range(8)]
def cvts(sbuf, j): return [f"v_cvt_pk_bf16_f32 {v(vP + j*4 + n)}, {v(vS + sbuf*8 + 2*n)}, {v(vS + sbuf*8 + 2*n+1)}" for n in range(4)]
def put_exp(G, base, sbuf, j):
    ex = exps(sbuf); cv = cvts(sbuf, j)
    for n in range(8): G.setdefault(base + 2*n, []).append(ex[n])
    for n in range(4): G.setdefault(base + 4*n + 3, []).append(cv[n])
def pack4(t, r0, r1):
    return [f"v_cvt_pk_bf16_f32 {v(t)}, {v(r0)}, {v(r0+1)}", f"v_cvt_pk_bf16_f32 {v(t+1)}, {v(r0+2)}, {v(r0+3)}",
            f"v_cvt_pk_bf16_f32 {v(t+2)}, {v(r1)}, {v(r1+1)}", f"v_cvt_pk_bf16_f32 {v(t+3)}, {v(r1+2)}, {v(r1+3)}"]
def sanit(t): return [f"v_min_u32 {v(t)}, -2, {v(t)}"]
def spin(lbl): return [f"s_add_u32 s{sSPIN}, s{sSPIN}, 1", f"s_cmp_ge_u32 s{sSPIN}, {SPIN_MAX}", f"s_cbranch_scc1 {lbl}"]
if "loopinit" not in X and "earlyinit" not in X: X.add("lateinit")
EARLYINIT = "earlyinit" in X
LINIT = opt("linit", 0)
if LINIT: X.discard("lateinit"); X.add("wt")
LATEINIT = "lateinit" in X or EARLYINIT or LINIT
P_INIT0 = f"buffer_store_dwordx4 {v(vSENT, 4)}, {v(vLIN)}, {srd(SRD_PI)}, 0 offen sc1"
TOUCH = ["s_mov_b64 exec, 0xff", f"buffer_load_dword {v(vJUNK)}, v3, {srd(SRD_O)}, s{sOI} offen"] + \
        ([f"buffer_load_dword {v(vJUNK)}, v2, {srd(SRD_WO)}, s{sOI} offen"] if "wsp" in X else []) + ["s_mov_b64 exec, -1"]
S = dict(dpos=[1, 5, 9, 13, 20, 24, 28, 32, 37, 43, 49, 54, 60, 66, 71, 77], mpos=[-1, 16, 35, 58],
         kw=33, kpos=[33, 35, 39, 39, 41, 43, 45, 47],
         vw=50, vpos=[50, 52, 52, 56, 56, 60, 62, 64, 64, 67, 67, 69, 69, 73, 73, 75], tpos=[18, 47, 77, 79])
VF = "kfirst" not in X
if VF:
    S = dict(dpos=[9, 13, 18, 22, 26, 30, 35, 39, 45, 49, 54, 58, 64, 69, 73, 77], mpos=[5, 24, 41, 60],
             vw=28, vpos=[28, 30, 32, 33, 33, 35, 37, 39, 43, 43, 47, 47, 50, 50, 52, 52],
             kw=56, kpos=[56, 60, 62, 64, 66, 67, 67, 69], tpos=[71, 81, 33 + 8, 43 + 2])
if VF and OPT.get("sched") == "b":
    S = dict(dpos=[1, 5, 11, 16, 22, 26, 32, 37, 43, 47, 52, 58, 64, 69, 73, 77], mpos=[-1, 18, 39, 60],
             vw=28, vpos=[28, 30, 30, 33, 33, 35, 35, 39, 41, 43, 45, 47, 49, 50, 50, 52],
             kw=60, kpos=[62, 64, 66, 67, 67, 69, 71, 73], tpos=[75, 81, 24, 41])
if VF and OPT.get("sched") == "c":
    S = dict(dpos=[1, 5, 9, 13, 18, 22, 26, 30, 35, 39, 45, 49, 54, 58, 62, 66], mpos=[-1, 16, 33, 52],
             vw=37, vpos=[39, 41, 43, 43, 45, 47, 47, 49, 50, 50, 52, 54, 56, 56, 58, 60],
             kw=64, kpos=[64, 67, 67, 69, 69, 71, 73, 73], tpos=[60, 75, 20, 32])
GLUE = ("s_addc_u32", "s_cselect_b32", "s_subb_u32")
def glued(lst, k):
    return lst[k].split()[0] in GLUE or (k + 1 < len(lst) and lst[k].startswith("s_mov_b32") and lst[k + 1].startswith("s_cselect"))

def kernel():
    L.append(f".globl {KN}"); L.append(".p2align 8"); L.append(f".type {KN},@function"); lab(KN)
    e("s_cmp_ge_u32 s2, 256"); e("s_cbranch_scc1 L_done")
    if STAMPS and "raw" in X: L.append("    s_memtime s[84:85]")
    e("s_load_dwordx16 s[4:19], s[0:1], 0")
    e("s_getpc_b64 s[58:59]"); lab("L_pc0")
    e(f"s_and_b32 s{sT3}, s2, 0xf8"); e(f"s_lshl_b32 s{sT3}, s{sT3}, 5"); e(f"v_add_u32 v2, s{sT3}, v0"); e("v_lshlrev_b32 v2, 2, v2"); e("v_and_b32 v2, 0x7f80, v2")
    e("v_min_u32 v2, L_end-L_pc0-4, v2"); e(f"global_load_dword {v(vJUNK)}, v2, s[58:59] @pfc")
    e("v_lshrrev_b32 v1, 6, v0")
    e("v_and_b32 v0, 63, v0")
    e(f"v_readfirstlane_b32 s{sW}, v1")
    e(f"s_mov_b32 s{sRANGE}, {RANGE}")
    lab("L_restart")
    e(f"s_and_b32 s{sHKV}, s2, 7"); e(f"s_bfe_u32 s{sB}, s2, {(3 << 16) | 3}"); e(f"s_lshr_b32 s{sI}, s2, 6")
    stamp("start")
    jitter(63, 7)
    e("v_lshlrev_b32 v3, 7, v0")
    e("v_and_b32 v4, 15, v0"); e("v_lshrrev_b32 v5, 4, v0"); e("v_bfe_u32 v6, v0, 2, 2"); e("v_and_b32 v7, 3, v0")
    vXO = vTMP; vWO = vTMP + 4; vXR = vTMP + 6; vWR = vTMP + 10
    e("v_xor_b32 v1, v4, v5")
    e(f"s_lshl_b32 s{sT0}, s{sW}, 2"); e(f"v_xor_b32 v2, s{sT0}, v1"); e("v_lshlrev_b32 v2, 4, v2"); e(f"v_lshl_add_u32 {v(vXO)}, v5, 10, v2")
    e("v_lshlrev_b32 v2, 1, v5"); e("v_xor_b32 v2, v4, v2"); e("v_lshlrev_b32 v2, 4, v2")
    e(f"v_lshl_add_u32 {v(vWO)}, v5, 13, v2"); e(f"v_xor_b32 {v(vWO+1)}, 128, {v(vWO)}")
    e(f"v_lshl_add_u32 {v(vOV)}, v5, 8, v2"); e(f"v_xor_b32 {v(vOV+1)}, 128, {v(vOV)}")
    e(f"s_mul_i32 s58, s{sB}, 81920")
    e(f"s_lshl_b32 s59, s{sHKV}, 2"); e(f"s_add_u32 s59, s59, s{sI}"); e("s_lshl_b32 s59, s59, 8")
    e(f"s_sub_u32 s{sT3}, 4194304, s59")
    e(f"s_lshl_b32 s{sT0}, s{sW}, 12"); e(f"s_mul_i32 s{sW5K}, s{sW}, 5120"); e(f"s_lshl_b32 s{sW1K}, s{sW}, 10")
    e(f"s_lshl_b32 s{sT2}, s{sW}, 18"); e(f"s_lshl_b32 s{sSLOT}, s{sW}, 13")
    XB = [sTK, sTK2, sXB, sT0]; WB = [sTV, sTV2, sWB, sT2]
    e(f"s_add_u32 s{sCNT}, s{sB}, s{sI}")
    for cc in range(4):
        e(f"s_add_u32 s{sSPIN}, s{sCNT}, {cc}"); e(f"s_and_b32 s{sSPIN}, s{sSPIN}, 3")
        e(f"s_lshl_b32 s{sOOWN}, s{sSPIN}, 8"); e(f"s_add_u32 s{XB[cc]}, s{sT0}, s{sOOWN}")
        e(f"s_lshl_b32 s{sOOWN}, s{sSPIN}, 20"); e(f"s_add_u32 s{WB[cc]}, s{sT2}, s{sOOWN}")
    e(f"v_lshlrev_b32 {v(vLIN)}, 4, v0")
    e(f"s_mul_i32 s98, s2, {WGS}"); e(f"s_lshl_b32 s99, s{sW5K}, 1"); e("s_add_u32 s98, s98, s99"); e("s_mov_b32 s101, 9216")
    for q in range(4): e(f"v_mov_b32 v{76+q}, -1")
    e("s_waitcnt lgkmcnt(0)")
    emit(mk_srd(SRD_X, 4, 58, 81920)); emit(mk_srd(SRD_WQ, 10, 59, f"s{sT3}"))
    stamp("k")
    PROG = "prog" in X
    def p1_dma(cc):
        gx = [[f"s_add_u32 m0, s{sW1K}, {S_ST[cc] + pp*4096}", f"s_add_u32 s{sT3}, s{XB[cc]}, {pp*16384}",
               f"buffer_load_dwordx4 {v(vXO)}, {srd(SRD_X)}, s{sT3} offen lds @c{cc}" + (f"x{pp}" if cc == 3 and PROG else "")] for pp in range(5)]
        gw = [[f"s_add_u32 m0, s{sSLOT}, {S_ST[cc] + 20480 + pp*1024}", f"s_add_u32 s{sT3}, s{WB[cc]}, {4*pp*8192}",
               f"buffer_load_dwordx4 {v(vWO + ((pp >> 1) & 1))}, {srd(SRD_WQ)}, s{sT3} offen lds @c{cc}"] for pp in range(8)]
        return gw + gx if cc == 3 and PROG else gx + gw
    c01 = p1_dma(0) + p1_dma(1)
    n0 = opt("n0", 16)
    t0, t1, t2, u1, u2 = 68, 69, 70, 71, 72
    def setup():
        U1, U2, T0, T1, T2 = v(u1), v(u2), v(t0), v(t1), v(t2)
        e(f"s_lshl_b32 s98, s{sB}, 3"); e(f"s_add_u32 s98, s98, s{sHKV}"); e("s_lshl_b32 s98, s98, 18")
        e(f"s_lshl_b32 s99, s{sW}, 16"); e("s_add_u32 s98, s98, s99")
        emit(mk_srd(SRD_K, 6, 98, 65536)); emit(mk_srd(SRD_V, 8, 98, 65536))
        e(f"s_bitcmp1_b32 s{sB}, 0")
        for r, f in ((sSEQ, seqword), (sSK, lambda q: seqtail(q, 3)), (sSV, lambda q: seqtail(q, 2))):
            e(f"s_mov_b32 s{r}, {f(SEQ[1])}"); e(f"s_cselect_b32 s{r}, {f(SEQ[2])}, s{r}")
        e(f"s_bitcmp1_b32 s{sI}, 0")
        for r, f in ((sSEQ, seqword), (sSK, lambda q: seqtail(q, 3)), (sSV, lambda q: seqtail(q, 2))):
            e(f"s_cselect_b32 s{r}, s{r}, {f(SEQ[0])}")
        e(f"v_lshlrev_b32 {U2}, 4, v1"); e(f"v_lshl_add_u32 {v(vXR)}, v4, 8, {U2}")
        for ks in range(1, 4): e(f"v_xor_b32 {v(vXR+ks)}, {ks*64}, {v(vXR)}")
        e(f"v_lshl_add_u32 {v(vOK)}, v5, 8, {U2}")
        for q in range(1, 4): e(f"v_xor_b32 {v(vOK+q)}, {q*64}, {v(vOK)}")
        e(f"v_lshrrev_b32 {T0}, 2, v4"); e(f"v_lshlrev_b32 {T0}, 3, {T0}"); e(f"v_and_b32 {U1}, 3, v4"); e(f"v_add_u32 {T0}, {T0}, {U1}")
        e(f"v_lshl_add_u32 {U2}, {T0}, 8, {U2}"); e(f"v_add_u32 {U2}, s{sSLOT}, {U2}"); e(f"v_add_u32 {v(vKR)}, {R_A}, {U2}")
        for ds in range(1, 4): e(f"v_xor_b32 {v(vKR+ds)}, {ds*64}, {v(vKR)}")
        e(f"v_lshl_add_u32 {U2}, v5, 3, v6"); e(f"v_lshlrev_b32 {U2}, 8, {U2}"); e(f"v_lshl_add_u32 {U2}, v7, 3, {U2}")
        e(f"v_and_b32 {T0}, 1, v5"); e(f"v_lshl_add_u32 {T0}, {T0}, 2, v6")
        e(f"s_lshl_b32 s98, s{sW}, 1")
        for k in range(8):
            e(f"s_add_u32 s99, s98, {k}"); e("s_and_b32 s99, s99, 7")
            e(f"v_xor_b32 {U1}, s99, {T0}"); e(f"v_lshl_add_u32 {U1}, {U1}, 5, {U2}")
            if k < 2: e(f"v_add_u32 {v(vWR+k)}, 20480, {U1}")
            e(f"v_add_u32 {v(vVR+k)}, s{sSLOT}, {U1}")
        for r in range(160): e(f"v_mov_b32 {v(vO+r)}, 0")
        e("s_and_b32 s98, s2, 63"); e(f"s_mul_i32 s98, s98, {WGS}"); emit(mk_srd(SRD_O, 18, 98, 3*HEADSTRIDE + WGS))
        e(f"s_mul_i32 s{sOOWN}, s{sI}, {HEADSTRIDE}"); e(f"s_lshl_b32 s100, s{sW5K}, 1"); e(f"s_add_u32 s{sOOWN}, s{sOOWN}, s100")
        e(f"s_lshl_b32 s{sFOWN}, s2, 2"); e(f"s_add_u32 s{sFOWN}, s{sFOWN}, s{sW}"); e(f"s_lshl_b32 s{sFOWN}, s{sFOWN}, 6"); e(f"s_add_u32 s{sFOWN}, s{sFOWN}, {WS_FLG}")
        e("s_and_b32 s98, s2, 63"); e("s_lshl_b32 s98, s98, 2"); e(f"s_add_u32 s98, s98, s{sW}"); e("s_lshl_b32 s98, s98, 6"); e(f"s_add_u32 s98, s98, {WS_FLG}")
        e(f"v_and_b32 {T0}, 3, v0"); e(f"v_lshl_add_u32 {T0}, {T0}, 14, s98")
        e("s_and_b32 s98, s2, 0xf8"); e("s_lshl_b32 s98, s98, 8"); e(f"s_lshr_b32 s99, s{sHKV}, 1"); e("s_lshl_b32 s99, s99, 6")
        e("v_cmp_gt_u32 vcc, 16, v0"); e("s_add_u32 s98, s98, s99"); e(f"s_add_u32 s98, s98, {WS_FLG + 4}")
        e(f"v_and_b32 {T1}, 7, v0"); e(f"v_lshl_add_u32 {T1}, {T1}, 8, s98"); e(f"v_cndmask_b32 {T0}, {T1}, {T0}, vcc")
        e(f"v_accvgpr_write_b32 {a(aPRB)}, {T0}")
        e(f"s_lshl_b32 s98, s{sHKV}, 19"); e(f"s_lshl_b32 s99, s{sI}, 8"); e("s_add_u32 s98, s98, s99"); e("s_sub_u32 s99, 524288, s99")
        emit(mk_srd(SRD_WO, 12, 98, "s99"))
        e(f"v_lshlrev_b32 {U1}, 2, v5"); e(f"v_sub_u32 {U1}, v4, {U1}"); e(f"v_and_b32 {U2}, 1, {U1}"); e(f"v_lshlrev_b32 {U2}, 4, {U2}")
        e(f"v_mov_b32 {T0}, 0x3f80"); e(f"v_lshlrev_b32 {U2}, {U2}, {T0}"); e(f"v_lshrrev_b32 {U1}, 1, {U1}")
        e(f"v_cmp_eq_u32 vcc, 0, {U1}"); e(f"v_accvgpr_write_b32 {a(aE)}, 0"); e(f"v_accvgpr_write_b32 {a(aE+1)}, 0"); e(f"v_cndmask_b32 {T0}, 0, {U2}, vcc")
        e(f"v_cmp_eq_u32 vcc, 1, {U1}"); e(f"v_accvgpr_write_b32 {a(aE+4)}, 0"); e(f"v_accvgpr_write_b32 {a(aE+5)}, 0"); e(f"v_cndmask_b32 {T1}, 0, {U2}, vcc")
        e(f"v_accvgpr_write_b32 {a(aE+2)}, {T0}"); e(f"v_accvgpr_write_b32 {a(aE+3)}, {T1}")
        for mrel in (1, 2, 3, 0):
            e(f"s_add_u32 s99, s{sW}, {mrel}"); e("s_and_b32 s99, s99, 3"); e("s_mul_i32 s98, s99, 3072")
            if mrel > 1: e(f"s_add_u32 s98, s98, {(mrel-1)*1024}")
            e(f"v_add_u32 {U1}, s98, {v(vLIN)}"); e(f"v_accvgpr_write_b32 {a(aADR + (mrel - 1) % 4)}, {U1}")
        e(f"s_lshl_b32 s98, s{sW}, 2"); e(f"s_add_u32 s98, s98, {R_SP}"); e(f"v_lshl_add_u32 {U1}, v4, 4, s98")
        if "lsame" not in X: e(f"v_mul_u32_u24 {U2}, 1288, v5"); e(f"v_add_u32 {U1}, {U1}, {U2}")
        e(f"v_accvgpr_write_b32 {a(aADR+4)}, {U1}")
        e(f"v_lshlrev_b32 {U1}, 4, v4"); e(f"v_add_u32 {U1}, {R_SP}, {U1}"); e(f"v_accvgpr_write_b32 {a(aADR+5)}, {U1}")
        e(f"v_and_b32 {U1}, 1, v5"); e(f"v_lshlrev_b32 {U1}, 1, {U1}"); e(f"v_xor_b32 {U1}, v4, {U1}"); e(f"v_lshlrev_b32 {U1}, 4, {U1}"); e(f"v_lshl_add_u32 {U1}, v5, 12, {U1}")
        for q in range(4): e(f"v_xor_b32 {U2}, {q*64}, {U1}"); e(f"v_accvgpr_write_b32 {a(aADR+6+q)}, {U2}")
        e(f"v_lshl_add_u32 {U2}, v6, 2, v5"); e(f"v_lshlrev_b32 {U2}, 8, {U2}"); e(f"v_lshl_add_u32 {U2}, v7, 3, {U2}")
        e(f"v_and_b32 {T0}, 1, v5"); e(f"v_lshl_add_u32 {T0}, v6, 1, {T0}")
        e(f"s_lshl_b32 s98, s{sW}, 1")
        for k in range(2):
            e(f"s_add_u32 s99, s98, {k}")
            e(f"v_xor_b32 {U1}, s99, {T0}"); e(f"v_lshl_add_u32 {U1}, {U1}, 5, {U2}"); e(f"v_add_u32 {U1}, {R_A}, {U1}"); e(f"v_accvgpr_write_b32 {a(aADR+10+k)}, {U1}")
        for h in range(4):
            e(f"s_add_u32 s98, s{sI}, {h}"); e("s_and_b32 s98, s98, 3")
            e(f"s_mul_i32 s99, s98, {HEADSTRIDE}"); e(f"s_add_u32 s{sSIB+h}, s99, s100")
            e("s_lshl_b32 s98, s98, 2"); e(f"s_add_u32 s98, s98, s{sW}"); e(f"s_lshl_b32 s{sWOB+h}, s98, 15")
        for r in range(20): e(f"v_accvgpr_write_b32 {a(aL+r)}, 0")
        e(f"v_mov_b32 {U1}, 0x3f803f80")
        for r in range(4): e(f"v_accvgpr_write_b32 {a(aONE+r)}, {U1}")
        e(f"s_mov_b32 s{sQS}, {f2u(QSCALE)}"); e(f"s_lshl_b32 s98, s{sW}, 2")
        Q = v(vQW); Q1 = v(vQW + 1)
        e(f"v_lshrrev_b32 {Q}, 1, v5"); e(f"v_add_u32 {Q}, s98, {Q}"); e(f"v_xor_b32 {Q}, {Q}, v4"); e(f"v_lshlrev_b32 {Q}, 4, {Q}")
        e(f"v_lshl_add_u32 {Q}, v4, 8, {Q}"); e(f"v_and_b32 {Q1}, 1, v5"); e(f"v_lshl_add_u32 {Q}, {Q1}, 3, {Q}"); e(f"v_add_u32 {Q}, {R_QX}, {Q}"); e(f"v_xor_b32 {Q1}, 32, {Q}")
    fill = capture(setup)
    ne = min(opt("ne", 999), len(fill))
    while ne < len(fill) and glued(fill, ne): ne += 1
    early, fill = fill[:ne], fill[ne:]
    groups = list(c01[:n0])
    pin = [[f"buffer_store_dwordx4 v[76:79], {v(vLIN)}, {srd(SRD_PI)}, " + (f"0 offen offset:{j*1024}" if j < 4 else "s101 offen") + " sc1 @ip"] for j in range(5)] if EARLYINIT else []
    tch = []
    for nm, isK, t in (("tk0", True, 0), ("tv0", False, 0), ("tk1", True, 1)):
        n = opt(nm, 0)
        if n: tch.append([f"s_mul_i32 s58, s{sSTEP}, {t}", f"s_add_u32 s58, s58, s{sMIR}", f"s_lshr_b32 s59, s{sI}, 1", "s_lshl_b32 s59, s59, 12", "s_add_u32 s58, s58, s59",
                          f"s_mov_b64 exec, {(1 << n) - 1}" if n < 32 else "s_mov_b32 exec_hi, 0", f"buffer_load_dword {v(vJUNK)}, v3, {srd(SRD_K if isK else SRD_V)}, s58 offen @tch", "s_mov_b64 exec, -1"])
    tp = opt("tp", 13)
    if tp < 90: groups = groups[:tp] + tch + groups[tp:]; tch = []
    ipos = opt("ipos", 99)
    if ipos < 90: groups = groups[:ipos] + pin + groups[ipos:]; pin = []
    for _ in range(opt("pre", 4)): emit(groups.pop(0))
    emit(mk_srd(SRD_PI, 18, 98, WVS))
    per = opt("per", max(1, min(len(early), 260) // (len(groups) + 1))); k = 0
    while early:
        L.append("    " + early.pop(0)); k += 1
        if k >= per and groups and (not early or not glued(early, 0)): emit(groups.pop(0)); k = 0
    emit(flat(groups))
    fg = []
    for x in fill:
        if fg and x.split()[0] in GLUE: fg[-1].append(x)
        else: fg.append([x])
    flag_reset = ["s_mov_b64 exec, 1", f"v_mov_b32 v2, s{sFOWN}",
                  "global_store_dwordx2 v2, v[76:77], s[18:19] sc1 @frst", "s_mov_b64 exec, -1"]
    L.append("; ---- query projection")
    acc = vP; aX = aV; aWf = aV + 40; aX3 = aQ; aW3 = aK + 32
    def reads(cc, ks):
        buf = ks & 1
        r = [f"ds_read_b64_tr_b16 {a(aWf + buf*8 + dd*4 + jh*2, 2)}, {v(vWR+dd)} offset:{ks*8192 + jh*1024}" for dd in range(2) for jh in range(2)]
        return r + [f"ds_read_b128 {a(aX + buf*20 + j*4, 4)}, {v(vXR+ks)} offset:{j*4096} @p{cc}{ks}{j}" for j in range(5)]
    def wrd(ks): return [f"ds_read_b64_tr_b16 {a(aW3 + (ks*2+dd)*4 + jh*2, 2)}, {v(vWR+dd)} offset:{ks*8192 + jh*1024} @w{ks}" for dd in range(2) for jh in range(2)]
    def xrd(j, ks): return f"ds_read_b128 {a(aX3 + (j*4+ks)*4, 4)}, {v(vXR+ks)} offset:{j*4096} @x{j}{ks}"
    if OPT.get("at") == "split": emit(["s_mov_b64 exec, 1", f"v_mov_b32 v2, s{sFOWN}", "global_store_dwordx2 v2, v[76:77], s[18:19] sc1 @frst", "s_mov_b64 exec, -1"])
    stamp("setup")
    TL = OPT.get("tlb", "")
    if TL:
        assert not fill
        e("s_mov_b64 exec, 1"); e("v_mov_b32 v2, 0")
        if "v" in TL: e(f"buffer_load_dword {v(vJUNK)}, v2, {srd(SRD_V)}, 0 offen")
        if "k" in TL: e(f"buffer_load_dword {v(vJUNK)}, v2, {srd(SRD_K)}, 0 offen")
        if "w" in TL: e(f"buffer_load_dword {v(vJUNK)}, v2, {srd(SRD_WO)}, 0 offen")
        if "s" in TL:
            for h in range(4): e(f"buffer_load_dword {v(vJUNK)}, v2, {srd(SRD_O)}, s{sSIB+h} offen")
            e(f"v_mov_b32 v1, s{sFOWN}"); e(f"global_load_dword {v(vJUNK)}, v1, s[18:19]")
        if "o" in TL:
            e(f"s_mul_i32 s58, s{sB}, 81920"); e("v_mov_b32 v1, s58"); e(f"global_load_dword {v(vJUNK)}, v1, s[14:15]")
        if "d" in TL: e(f"global_load_dword {v(vJUNK)}, v2, s[16:17]")
        e("s_mov_b64 exec, -1")
    e("WAITVM frst" if OPT.get("at") == "split" else "WAITVM c0"); e("s_barrier"); stamp("c0")
    emit(reads(0, 0))
    TB = [x for x in OPT.get("tb", "K0,V0b").split(",") if x and x != "no"]
    if TB:
        tgrp = [f"s_bfe_u32 s58, s{sB}, {(1 << 16) | opt('tbit', 0)}", f"s_lshr_b32 s59, s{sI}, 1", "s_cmp_eq_u32 s58, s59", "s_cselect_b32 s58, 0, 0x10000", "s_cselect_b64 exec, -1, 1"]
        for x in TB:
            if len(x) > 2: tgrp.append("s_mov_b32 exec_hi, 0")
            tgrp += [f"s_bfe_u32 s59, s{sSEQ}, {(4 << 16) | (4*int(x[1]))}", "s_lshl_b32 s59, s59, 13", "s_or_b32 s59, s59, s58"] + (["s_or_b32 s59, s59, 4096"] if x.endswith("b") else [])
            tgrp.append(f"buffer_load_dword {v(vJUNK)}, v3, {srd(SRD_K if x[0] == 'K' else SRD_V)}, s59 offen @tch")
        if OPT.get("at") == "split":
            tgrp += ["s_mov_b64 exec, 1", f"s_lshl_b32 s59, s{sW}, 16", "s_or_b32 s58, s58, s59", f"s_cmp_eq_u32 s{sRANGE}, -1", "s_cselect_b32 s58, 0x10000, s58", f"s_lshl_b32 s59, s{sB}, 5", "s_or_b32 s58, s58, s59",
                     "s_mov_b32 s84, s16", "s_mov_b32 s85, s17", "s_mov_b32 s86, 256", "s_mov_b32 s87, 0x20000", "v_mov_b32 v1, 1", "v_mov_b32 v2, 0",
                     "buffer_atomic_add v1, v2, s[84:87], s58 offen sc1 @tch"]
        tgrp.append("s_mov_b64 exec, -1")
        if opt("tq", 10) == 0: emit(tgrp)
    M = []; G = {g: [] for g in range(-1, 160)}
    for cc in range(3):
        for ks in range(4):
            g0 = len(M); buf = ks & 1
            for j in range(5):
                for dd in range(2):
                    d = v(acc + (j*2+dd)*4, 4)
                    M.append(f"{MF} {d}, {a(aWf + buf*8 + dd*4, 4)}, {a(aX + buf*20 + j*4, 4)}, {'0' if (cc == 0 and ks == 0) else d}")
            G[g0 - 1].append(f"WAITLG p{cc}{ks}1"); G[g0 + 3].append(f"WAITLG p{cc}{ks}4")
            if ks < 3:
                r = reads(cc, ks + 1)
                G[g0] += r[0:3]; G[g0 + 1] += r[3:6]; G[g0 + 2] += r[6:9]
            else:
                dl = [53248, 53248, -106496][cc]
                adj = [f"v_add_u32 {v(vXR+q)}, {dl}, {v(vXR+q)}" for q in range(4)] + [f"v_add_u32 {v(vWR+q)}, {dl}, {v(vWR+q)}" for q in range(2)]
                for gi in range(3): G[g0 + gi] += adj[2*gi:2*gi+2]
                G[g0 + 3] += [f"WAITVM c{cc+1}" + ("x0" if cc == 2 and PROG else ""), "s_barrier", f"STAMP c{cc+1}"]
                r = reads(cc + 1, 0) if cc < 2 else (wrd(0) + [xrd(0, 0)] + wrd(1) + [xrd(0, 1)] + wrd(2) + [xrd(0, 2)])
                for gi in range(5): G[g0 + 4 + gi] += r[3*gi:3*gi+3]
    posts = []
    for j in range(5):
        g0 = len(M)
        for ks in range(4):
            for dd in range(2):
                d = v(acc + (j*2+dd)*4, 4)
                M.append(f"{MF} {d}, {a(aW3 + (ks*2+dd)*4, 4)}, {a(aX3 + (j*4+ks)*4, 4)}, {d}")
        if j == 0 and not PROG:
            G[g0 - 1].append("WAITLG x00"); G[g0] += wrd(3)[:3]; G[g0 + 1] += [wrd(3)[3], xrd(0, 3), "WAITLG x01"]
            G[g0 + 2] += [xrd(1, 0), xrd(1, 1)]; G[g0 + 3] += ["WAITLG x02", xrd(1, 2), xrd(1, 3)]
            G[g0 + 5] += ["WAITLG x03", "s_barrier"]
        elif j == 0:
            G[g0 - 1].append("WAITLG x00"); G[g0] += wrd(3)[:3]; G[g0 + 1] += [wrd(3)[3], xrd(0, 3), "WAITLG x01"]
            G[g0 + 2] += ["WAITVM c3x1", "s_barrier", xrd(1, 0)]; G[g0 + 3] += ["WAITLG x02", xrd(1, 1), xrd(1, 2)]; G[g0 + 4] += [xrd(1, 3)]
            G[g0 + 5] += ["WAITLG x03"]
        else:
            G[g0 - 1].append(f"WAITLG x{j}3")
            if j < 4:
                if PROG: G[g0 - 1] += [f"WAITVM c3x{j+1}", "s_barrier"]
                for ks in range(4): G[g0 + ks].append(xrd(j + 1, ks))
        for dd in range(2):
            r = acc + (j*2+dd)*4
            p = [f"v_mul_f32 {v(r+q)}, s{sQS}, {v(r+q)}" for q in range(4)]
            p += [f"v_cvt_pk_bf16_f32 {v(r)}, {v(r)}, {v(r+1)}", f"v_cvt_pk_bf16_f32 {v(r+1)}, {v(r+2)}, {v(r+3)}",
                  f"ds_write_b64 {v(vQW + dd)}, {v(r, 2)} offset:{j*4096} @qw"]
            posts += [(g0 + 8 + 2, x) for x in p]
    c2 = p1_dma(2); c3 = p1_dma(3); k0d = kv_dma(True, R_A, "K0"); k0d[0] = set_T(True, 0) + k0d[0]
    ka, kb, late, nv0, sp3 = opt("ka", 3), opt("kb", 8), opt("late", 22), opt("nv0", 4), opt("dsp3", 4)
    v0g = kv_dma(False, R_C, "V0"); v0g[0] = set_T(False, 0) + v0g[0]
    k1g = kv_dma(True, R_B, "K1"); k1g[0] = set_T(True, 1) + k1g[0]
    dq = [(0, g) for g in c01[n0:] + tch + c2[:ka]] + [(late, g) for g in c2[ka:kb]] + [(34, g) for g in c2[kb:] + c3[:ka]] + \
         [(40 + late, g) for g in c3[ka:kb]] + [(74, g) for g in c3[kb:] + (pin if ipos == 99 else []) + k0d[:ka]] + [(80 + opt("latek", late), g) for g in k0d[ka:kb] + ([] if OPT.get("at") == "split" else [flag_reset])] + \
         [(114, g) for g in k0d[kb:] + (pin if ipos == 98 else []) + k1g + v0g[:nv0]]
    if TB and opt("tq", 10):
        k = opt("tq", 10); dq.insert(k, (dq[k - 1][0], tgrp))
    left = []; t = 0
    rush = opt("rush", 0); last = [g for r_, g in dq if r_ == 114][:rush]
    for g in last: G[113] += list(g); dq.remove((114, g))
    for rdy, g in dq:
        t = max(t, rdy)
        while t < 160 and (sum(1 for x in G[t] if x.startswith("ds_read")) > (1 if t >= 120 else 0) or "s_barrier" in G[t]): t += 1
        if t < 160: G[t] = G[t] + list(g)
        else: left.append(g)
        t += 1 if t < 114 else sp3
    drain = sched(M, G, [posts, [(0, g) for g in fg] + [(0, "MARK fill")]], need={33: ["fill"]}, limit=20)
    for ks in range(4): e(f"v_add_u32 {v(vXR+ks)}, {R_QX}, {v(vXR+ks)}")
    e(f"s_mov_b32 s{SRD_D}, s16"); e(f"s_mov_b32 s{SRD_D+1}, s17"); e(f"s_mov_b32 s{SRD_D+2}, 256"); e(f"s_mov_b32 s{SRD_D+3}, 0x20000")
    drain(0); emit(left)
    e("WAITVM frst"); e("WAITLG qw"); e("s_barrier")
    stamp("Bq")
    def qrd(j): return [f"ds_read_b128 {a(aQ + (j*4+ds)*4, 4)}, {v(vXR+ds)} offset:{j*4096} @q{j}" for ds in range(4)]
    emit(qrd(0))
    e("WAITVM K0")
    emit(kreads(0, "k0"))
    for r in range(20): e(f"v_mov_b32 {v(vNM+r)}, 0")
    e(f"s_lshl_b32 s{sT1}, s{sB}, 5")
    e(f"s_cmp_eq_u32 s{sRANGE}, -1"); e("s_cbranch_scc1 L_rowmax")
    AT = OPT.get("at", "bq")
    if AT in ("bq", "split"):
        e(f"s_cmp_lg_u32 s{sW}, 0"); e("s_cbranch_scc1 L_noat")
        if AT == "split": e(f"s_and_b32 s58, s{sB}, 1"); e(f"s_lshr_b32 s59, s{sI}, 1"); e("s_cmp_eq_u32 s58, s59"); e("s_cbranch_scc1 L_noat")
        e("s_mov_b64 exec, 1"); e("v_mov_b32 v1, 1"); e("v_mov_b32 v2, 0")
        L.append(f"    buffer_atomic_add v1, v2, {srd(SRD_D)}, s{sT1} offen sc1")
        e("s_mov_b64 exec, -1")
    lab("L_noat")
    e("WAITLG q0"); emit(qrd(1)); e("WAITLG k0"); emit(qrd(2) + qrd(3))
    L.append("; ---- first score tile")
    k2g = kv_dma(True, R_A, "K2"); k2g[0] = set_T(True, 2) + k2g[0]
    v1g = kv_dma(False, R_D, "V1"); v1g[0] = set_T(False, 1) + v1g[0]
    dm = v0g[nv0:] + (v1g + k2g if VF else k2g + v1g)
    rdk = kreads(1, "k1"); rdv = vreads(0, "v0")
    for j in range(5):
        sb = (5 + j) & 1
        gaps = {g: [] for g in range(-1, 8)}
        if j > 0:
            gaps[-1].append(f"WAITLG q{j}")
            ex = exps(sb ^ 1); cv = cvts(sb ^ 1, j - 1)
            for n in range(8): gaps[n].append(ex[n])
            gaps[2].append(cv[0]); gaps[4].append(cv[1]); gaps[6].append(cv[2]); gaps[7] += ["s_nop 0", cv[3]]
        if j == 1: gaps[-1] += [f"v_add_u32 {v(vVRC+k)}, {R_C}, {v(vVR+k)}" for k in range(8)] + [f"v_mov_b32 {v(vSENT+q)}, -1" for q in range(4)]
        if j == 0:
            for n in range(8):
                if dm: gaps[n] += dm.pop(0)
            gaps[3] += ["WAITLG q1"] + qrd(4)
        else:
            for n in (0, 2, 4, 6):
                if dm: gaps[n] = dm.pop(0) + gaps[n]
            if j == 2:
                gaps[1].insert(0, "WAITVM K1")
                for n in (1, 3, 5, 7): gaps[n] += [rdk.pop(0), rdk.pop(0)]
            if j == 3: gaps[1].insert(0, "WAITVM V0")
            if j >= 3:
                for n in (1, 3, 5, 7): gaps[n] += [rdv.pop(0), rdv.pop(0)]
        interleave(qk(j, 0, sb), gaps)
    emit(flat(dm))
    e(f"s_mov_b32 s{sCNT}, 0")
    emit(set_T(True, 3) + set_T(False, 2))
    if OPT.get("hm"):
        me, mo = OPT["hm"].split(",")
        emit([f"s_lshl_b32 s58, s{sB}, 2", f"s_add_u32 s58, s58, s{sI}", "s_lshl_b32 s58, s58, 2", f"s_add_u32 s58, s58, s{sW}",
              "s_lshl_b32 s58, s58, 12", f"s_lshl_b32 s59, s{sI}, 8", "s_sub_u32 s58, s58, s59", "v_add_u32 v2, s58, v3",
              f"s_bitcmp1_b32 s{sB}, 0", f"s_cselect_b32 s{sOI}, {mo}, {me}"])
    e("s_waitcnt lgkmcnt(0)")
    stamp("pro")
    jitter(15, 9)
    L.append("; ---- main loop: key tiles 0..4")
    def base_iter(par):
        G = {g: [] for g in range(-1, 85)}; M = []
        for j in range(5):
            sb = (5*par + j) & 1
            M += qk(j, par ^ 1, sb) + pv(j, par)
            put_exp(G, 17*j, sb ^ 1, (j - 1) % 5)
        return M, G
    def half_va(par):
        kd = flat(kv_dma(True, KSLOT[par ^ 1], "lk", nop=False)); vd = flat(kv_dma(False, VSLOT[par], "lv", nop=False))
        G = {g: [] for g in range(-1, 80)}; M = []
        LR = [92, 93, 94, 95, 1]
        for j in range(5):
            sb = (5*par + j) & 1; b = 16*j; jp = (j - 1) % 5; r = vS + (sb ^ 1)*8
            M += qk(j, par ^ 1, sb) + pv(j, par)[:-1]
            ex = exps(sb ^ 1); cv = cvts(sb ^ 1, jp)
            for n in range(8):
                G[b + 2*n].append(ex[n])
                G[b + 2*n + 1].append(f"v_add_f32 {v(LR[jp])}, {v(LR[jp])}, {v(r + n)}")
                if n & 1: G[b + 2*n + 1].append(cv[n >> 1])
        dpos = [1, 5, 11, 15, 21, 25, 31, 35, 41, 45, 51, 55, 61, 65, 71, 75]; mpos = [-1, 17, 37, 57]
        ev = "vaexp" in X
        if ev:
            vpos = [27, 28, 29, 30, 32, 33, 34, 36, 38, 39, 40, 42, 43, 44, 46, 47]; kpos = [59, 60, 62, 63, 64, 66, 67, 68]; vw, kw = 26, 58; tpos = [69, 77, 23, 39]
        else:
            vpos = [27, 29, 29, 33, 33, 37, 39, 41, 43, 45, 47, 49, 49, 53, 53, 57]; kpos = [61, 63, 65, 67, 69, 69, 73, 73]; vw, kw = 25, 59; tpos = [77, 77, 19, 43]
        dma = vd + kd
        for p, s in zip(mpos, [s for s in dma if "m0" in s]): G[p].append(s)
        for p, s in zip(dpos, [s for s in dma if "m0" not in s]): G[p].append(s)
        G[kw].append(f"s_waitcnt vmcnt({sum(1 for p in dpos if p <= kw)})")
        for p, s in zip(kpos, kreads(par)): G[p].append(s)
        G[vw].append(f"s_waitcnt vmcnt({8 + sum(1 for p in dpos if p <= vw)})")
        for p, s in zip(vpos, vreads(par ^ 1)): G[p].append(s)
        for p, r in zip(tpos, (sTK, sTK2, sTV, sTV2)): G[p].append(f"s_add_u32 s{r}, s{r}, s{sSTEP}")
        if par == 0: G[13].append(f"s_add_u32 s{sCNT}, s{sCNT}, 1"); G[79].append(f"s_cmp_eq_u32 s{sCNT}, 3")
        G[79].insert(0, "s_waitcnt lgkmcnt(0)")
        G = {g: [s for s in l if not isv(s)] + [s for s in l if isv(s)] for g, l in G.items()}
        interleave(M, G)
    def half(par):
        if "va" in X or "vaexp" in X: return half_va(par)
        kd = flat(kv_dma(True, KSLOT[par ^ 1], "lk", nop=False)); vd = flat(kv_dma(False, VSLOT[par], "lv", nop=False))
        dma = vd + kd if VF else kd + vd
        M, G = base_iter(par)
        for p, s in zip(S["mpos"], [s for s in dma if "m0" in s]): G[p].append(s)
        for p, s in zip(S["dpos"], [s for s in dma if "m0" not in s]): G[p].append(s)
        G[S["kw"]].append(f"s_waitcnt vmcnt({(0 if VF else 8) + sum(1 for p in S['dpos'] if p <= S['kw'])})")
        for p, s in zip(S["kpos"], kreads(par)): G[p].append(s)
        G[S["vw"]].append(f"s_waitcnt vmcnt({(8 if VF else 0) + sum(1 for p in S['dpos'] if p <= S['vw'])})")
        for p, s in zip(S["vpos"], vreads(par ^ 1)): G[p].append(s)
        for p, q, r, w in ((S["tpos"][0], S["tpos"][1], sTK, sSK), (S["tpos"][2], S["tpos"][3], sTV, sSV)):
            G[16 if r == sTV else 1].append(f"s_lshr_b32 s{w}, s{w}, 3"); G[p].append(f"s_and_b32 s{r}, s{w}, 0xe000"); G[q].append(f"s_or_b32 s{r+1}, s{r}, 4096")
        if par == 0: G[79].append(f"s_add_u32 s{sCNT}, s{sCNT}, 1"); G[84].append(f"s_cmp_eq_u32 s{sCNT}, 3")
        if par == 1 and opt("hkb", 0): G[opt("hkb", 0)] += [f"s_cmp_eq_u32 s{sCNT}, {opt('hk', 1)}", "s_cbranch_scc1 L_hook", "LABEL L_back"]
        if VF: G[83].append("s_waitcnt lgkmcnt(0)")
        else: G[84].insert(0, "s_waitcnt lgkmcnt(15)"); G[7].append("s_waitcnt lgkmcnt(0)")
        G = {g: [s for s in l if not isv(s)] + [s for s in l if isv(s)] for g, l in G.items()}
        interleave(M, G)
    L.append(".p2align 6")
    for _ in range(opt("ph", 0)): L.append("    s_nop 0")
    lab("L_loop")
    WOT = [f"s_lshl_b32 s58, s{sB}, 2", f"s_add_u32 s58, s58, s{sI}", "s_lshl_b32 s58, s58, 2", f"s_add_u32 s58, s58, s{sW}",
           "s_lshl_b32 s58, s58, 12", f"s_lshl_b32 s59, s{sI}, 8", "s_sub_u32 s58, s58, s59", "v_add_u32 v2, s58, v3", "s_mov_b32 exec_hi, 0",
           f"buffer_load_dword v1, v2, {srd(SRD_WO)}, 0 offen", "s_mov_b32 exec_hi, -1"]
    HM = OPT.get("hm")
    hooks = []
    def hook():
        if not HM: return
        k = len(hooks); hooks.append(k)
        e(f"s_bitcmp1_b32 s{sOI}, 0"); e(f"s_cbranch_scc1 L_hk{k}"); lab(f"L_hr{k}"); e(f"s_lshr_b32 s{sOI}, s{sOI}, 1")
    if "unroll" in X:
        half(0); hook(); stamp("i0"); half(1); hook(); stamp("i1"); half(0); hook(); stamp("i2")
        if opt("wt5", -1) < 0 and not HM: e("s_branch L_hook")
        lab("L_back")
        half(1); hook(); stamp("i3"); half(0); e("s_branch L_exit")
    else:
        half(0)
        e("s_cbranch_scc1 L_exit")
        if opt("wt5", -1) >= 0 or HM: lab("L_back")
        else: e(f"s_cmp_eq_u32 s{sCNT}, {opt('hk', 2)}"); e("s_cbranch_scc1 L_hook"); lab("L_back")
        hook()
        half(1)
        hook()
        e("s_branch L_loop")
    lab("L_hook")
    if "wol" in X:
        emit([f"s_and_b32 s58, s{sB}, 1", f"s_lshr_b32 s59, s{sI}, 1", "s_cmp_eq_u32 s58, s59", "s_cbranch_scc1 L_back",
              f"s_and_b32 s58, s{sI}, 1", f"s_xor_b32 s59, s{sB}, 1", "s_lshl_b32 s59, s59, 1", "s_add_u32 s58, s58, s59", "s_lshl_b32 s58, s58, 2", f"s_add_u32 s58, s58, s{sW}",
              "s_lshl_b32 s58, s58, 13", f"s_lshl_b32 s59, s{sI}, 8", "s_sub_u32 s58, s58, s59", "v_add_u32 v2, s58, v3",
              f"buffer_load_dword v1, v2, {srd(SRD_WO)}, 0 offen", "s_branch L_back"])
    else:
        emit(WOT)
        if OPT.get("at") == "hook":
            e(f"s_cmp_lg_u32 s{sW}, 0"); e("s_cbranch_scc1 L_noat2"); e(f"s_cmp_eq_u32 s{sRANGE}, -1"); e("s_cbranch_scc1 L_noat2")
            e("s_mov_b64 exec, 1"); e("v_mov_b32 v1, 1"); e("v_mov_b32 v2, 0")
            L.append(f"    buffer_atomic_add v1, v2, {srd(SRD_D)}, s{sT1} offen sc1"); e("s_mov_b64 exec, -1"); lab("L_noat2")
        if "pfc2" in X:
            e("s_getpc_b64 s[58:59]"); lab("L_pc1")
            e(f"s_lshr_b32 s{sT3}, s2, 3"); e(f"s_lshl_b32 s{sT3}, s{sT3}, 2"); e(f"s_add_u32 s{sT3}, s{sT3}, s{sW}"); e(f"s_lshl_b32 s{sT3}, s{sT3}, 7")
            e(f"s_min_u32 s{sT3}, s{sT3}, L_end-L_pc1-4"); e(f"v_mov_b32 v2, s{sT3}")
            e("s_mov_b64 exec, 1"); L.append("    global_load_dword v1, v2, s[58:59]"); e("s_mov_b64 exec, -1")
        e("s_branch L_back")
    for k in hooks:
        nl = opt("hl", 16)
        lab(f"L_hk{k}"); e(f"s_mov_b64 exec, {(1 << nl) - 1}"); L.append(f"    buffer_load_dword v1, v2, {srd(SRD_WO)}, 0 offen"); e("s_mov_b64 exec, -1")
        e(f"v_add_u32 v2, {nl*128}, v2"); e(f"s_branch L_hr{k}")
    lab("L_exit")
    stamp("exit")
    jitter(31, 5)
    if "cnt" in X: e(f"s_mov_b32 s{sOI}, 0")
    L.append("; ---- key tile 5")
    VM.ops = (["V5"]*8 + ["K6"]*8 + ["V6"]*8 + ["K7"]*8) if VF else (["K6"]*8 + ["V5"]*8 + ["K7"]*8 + ["V6"]*8); LG.ops = ["kr"]*8 + ["vr"]*16
    vXW = vKR; vXRD = vKR + 3; vWOO = vOK; vLW = vOV; vLR = vOV + 1
    def wo_dma(h):
        g = [f"s_add_u32 m0, s{sSLOT}, {WREG[h]}", f"s_add_u32 s{sT3}, s{sWOB+h}, 16384"]
        for pp in range(8):
            if pp == 4: g += [f"s_add_u32 m0, s{sSLOT}, {WREG[h] + 4096}", "NEXTGAP"]
            g.append(f"buffer_load_dwordx4 {v(vWOO + (pp & 3))}, {srd(SRD_WO)}, s{sWOB+h if pp < 4 else sT3} offen offset:{(pp & 3)*1024} lds @wo{h}")
        return g
    def paced(items, t, step):
        r = []
        for x in items:
            r.append((t, x))
            if any(y.startswith("buffer") for y in aslist(x)): t += step
        return r
    def unpark(dst, k): return f"v_accvgpr_read_b32 {v(dst)}, {a(aADR + k)}"
    def pstore(j, data, tag):
        return f"buffer_store_dwordx4 {v(data, 4)}, {v(vLIN)}, {srd(SRD_PI)}, s{sTK2 if j < 4 else sTV2} offen offset:{(j & 3)*1024} sc1 @{tag}"
    def ostore(j, data, tag):
        return f"buffer_store_dwordx4 {v(data, 4)}, {v(vLIN)}, {srd(SRD_O)}, " + (f"s{sOOWN} offen offset:{j*1024}" if j < 4 else f"s{sTK} offen") + " sc1 @" + tag
    def setflag(k, tag): return ["v_mov_b32 v2, 0", f"v_mov_b32 v3, s{sFOWN}", ["s_mov_b64 exec, 1", f"global_store_dword v3, v2, s[18:19] offset:{4*k} sc1 @{tag}", "s_mov_b64 exec, -1"]]
    M, G = base_iter(1)
    G[-1] += ["v_mov_b32 v1, 0", f"buffer_load_dword {v(vJUNK)}, v1, {srd(SRD_D)}, s{sT1} offen sc1 @hs"]
    if opt("tch", 2) == 1: G[1] += ["s_mov_b32 exec_hi, 0xff", f"buffer_load_dword v2, v3, {srd(SRD_O)}, s{sOOWN} offen", "s_mov_b32 exec_hi, -1"]
    G[7].append("s_waitcnt lgkmcnt(0)")
    G[S["kw"]].append("WAITVM K7")
    for p, s in zip(S["kpos"], kreads(1, "k7")): G[p].append(s)
    G[S["vw"]].append("WAITVM V6")
    for p, s in zip(S["vpos"], vreads(0, "v6")): G[p].append(s)
    G[83].append("WAITLG k7")
    hw = max(S["kw"], S["vw"]) + 1
    v7 = [x.replace("s_nop 0", "NEXTGAP") for x in flat(kv_dma(False, VSLOT[1], "V7"))]
    vm = [(0, v7[0])] + paced(v7[2:], 1 if VF else 8, 2)
    if opt("wt5", -1) >= 0:
        vm += [(0, x) for x in WOT[:8]] + [(opt("wt5", -1), WOT[8:])]
    vm += paced([ostore(j, vSENT, "io") for j in range(5)], opt("ist", 24), opt("isp", 8))
    W0L = opt("w0t", 95) >= 85
    vm += [(20, unpark(vWOO + q, 6 + q)) for q in range(4)] + ([] if W0L else paced(wo_dma(0), opt("w0t", 95), opt("w0s", 3)))
    hsq = [f"s_add_u32 s{sTK}, s{sOOWN}, 4096", f"s_mov_b32 s{sTK2}, 5120",
           f"s_mov_b32 s{SRD_WS}, s18", f"s_mov_b32 s{SRD_WS+1}, s19", f"s_mov_b32 s{SRD_WS+2}, {WS_FLG + 65536}", f"s_mov_b32 s{SRD_WS+3}, 0x20000", f"s_mov_b32 s{sSPIN}, 0"]
    hsq = [(1, x) for x in hsq] + [(30, f"s_mov_b32 s{sTV2}, 9216"), (hw, "WAITVM hs"), (hw, f"v_readfirstlane_b32 s58, {v(vJUNK)}"), (hw, "NEXTGAP"),
           (hw, ["s_cmp_ge_u32 s58, 32", "s_cbranch_scc0 L_hs", "LABEL L_hsok"])]
    drain = sched(M, G, [hsq, vm], limits={1: opt('l5', 36)})
    drain(0); drain(1)
    stamp("t5")
    jitter(7, 11)
    L.append("; ---- key tiles 6 and 7, combine, output projection (pipelined over the five query tiles)")
    FO = [2, 3, 4, 5, 6, 7, 0, 1]
    HZ = opt("hz", 4)
    M = []; G = {7: ["s_waitcnt lgkmcnt(0)"]}; ix = {}
    for j in range(5):
        put_exp(G, len(M), (j & 1) ^ 1, (j - 1) % 5)
        M += qk(j, 1, j & 1) + pv(j, 0)
        if j >= 3: ix[f"p{j-3}"] = len(M); M += pv(j - 3, 1, FO)
    aW = [aK, aQ, aQ + 32, aV]
    aR = [aK + 32, aK + 44, aQ + 64]
    def msum(j):
        return [f"{MF} {v(oreg(k, j), 4)}, {a(aE + (2 if k == 0 else 0), 4)}, {a(aR[j % 3] + s*4, 4)}, {v(oreg(k, j), 4)}" for s in range(3) for k in range(2)]
    put_exp(G, len(M), 0, 4)
    BQ = [vS, vS + 4, vS + 8, vS + 12, vP, vP + 4, vP + 8, vP + 12, vNM, vNM + 4, vNM + 8, vNM + 12]
    vWR2 = vVR; vOB = vVR + 2; vVER = vVR + 3; vCHK = vVR + 4; vPRB = vVR + 5; vPRD = vVR + 6; vOWN = vVR + 7; vT = vP + 16
    def bread(j, h, st):
        if h == 0: return [f"ds_read_b128 {v(BQ[st*4 + ks], 4)}, {v(vLIN)} offset:{OWNB[j] + ks*1024} @b{j}{h}" for ks in range(4)]
        return [f"ds_read_b128 {v(BQ[st*4 + ks], 4)}, {v(vOB)} offset:{OBOFF[j] + h*4096 + ks*1024} @b{j}{h}" for ks in range(4)]
    def proj(j, h, st):
        return [f"{MF} {v(oreg(2 + nn, j), 4)}, {a(aW[h] + (ks*2+nn)*4, 4)}, {v(BQ[st*4 + ks], 4)}, {'0' if h == 0 and ks == 0 else v(oreg(2 + nn, j), 4)}"
                for ks in range(4) for nn in range(2)]
    for nm, mm in (("s0", msum(0)), ("p2", pv(2, 1, FO)), ("p3", pv(3, 1, FO)), ("p4", pv(4, 1, FO))):
        ix[nm] = len(M); M += mm
    need = {}; NE = opt("ne4", 0)
    sibrd = {}; B3 = 'b2' not in X; BO = opt('bo', 8); fg_ = [0]
    def group(j, h, st_, first, inbeat):
        g = len(M)
        if first: ix[f"q{j}"] = g
        M.extend(proj(j, h, st_)); ix[f"e{j}"] = len(M) - 1
        need.setdefault(g, []).append(f"!WAITLG b{j}{h}")
        r = bread(j, h, st_)
        if first and inbeat: sibrd[j] = r; return
        if first:
            need.setdefault(g - (BO if j else 7), []).extend([f"v{j}"] + ([OPT.get("pdm", "pp")] if j == opt("pd", 3) else []) + (["n4", "!WAITLG w4"] if j == (3 if "o4" in X else 4) else []) + ["!s_barrier", f"!STAMP d{j}", f"!MARK d{j}"])
        if first: g1 = g - (BO if j else 7); fg_[0] = g1
        else: g1 = max(g - 16, fg_[0] + 2) if B3 else g - 8
        if not first and B3: fg_[0] = g1
        for k in range(4): G.setdefault(g1 + k // 2, []).append(r[k])
    for b in (1, 2, 3, 4):
        ix[f"s{b}"] = len(M); M += msum(b)
        ix[f"o{b-1}"] = len(M); M += proj(b - 1, 0, 0)
        j = b - 5 + NE
        if j >= 0:
            for h in (1, 2, 3): group(j, h, h & 1, h == 1, True)
    st_ = 1
    for j in range(5):
        if j == 4 and "o4" in X:
            g = len(M); M.extend(proj(4, 0, st_)); need.setdefault(g, []).append("!WAITLG b40")
            for k, x in enumerate(bread(4, 0, st_)): G.setdefault(g - (16 if B3 else 8) + k // 2, []).append(x)
            st_ = (st_ + 1) % (3 if B3 else 2)
        for h in ((1, 2, 3) if (j < 4 or "o4" in X) else (0, 1, 2, 3)):
            group(j, h, st_, h == (1 if (j < 4 or "o4" in X) else 0), False); st_ = (st_ + 1) % (3 if B3 else 2)
    def wfr(h, base):
        return [f"ds_read_b64_tr_b16 {a(aW[h] + (ks*2+nn)*4 + jh*2, 2)}, {v(base+nn)} offset:{WREG[h] - R_A + ks*8192 + jh*4096} @f{h}" if h != 2 else
                f"ds_read_b64_tr_b16 {a(aW[h] + (ks*2+nn)*4 + jh*2, 2)}, {v(base+nn)} offset:{ks*8192 + jh*4096} @f{h}"
                for ks in range(4) for nn in range(2) for jh in range(2)]
    nx = [0]
    def xw(j):
        r = []; p = ix[f"p{j}"]
        for mrel in (1, 2, 3):
            t = vTMP + (nx[0] & 1)*4; nx[0] += 1
            ins = pack4(t, oreg(2*mrel, j), oreg(2*mrel + 1, j)) + [f"ds_write_b128 {v(vXW + mrel - 1)}, {v(t, 4)} offset:{XSLOT[j]} @x{j}"]
            r += [(p + 2*mrel - 1 + HZ, s) for s in ins]
            if mrel == 1: r.append((0, f"MARK xa{j}"))
        return r + [(p + 8 + HZ, f"ds_write_b32 {v(vLW)}, {a(aL + j*4)} offset:{j*256} @x{j}"), (0, f"MARK x{j}")]
    def xr(j):
        return [f"ds_read_b128 {v(vNM + j*4, 4)}, {v(vLR)} offset:{j*256} @l{j}"] + \
               [f"ds_read_b128 {a(aR[j % 3] + s*4, 4)}, {v(vXRD)} offset:{XSLOT[j] + s*1024} @r{j}" for s in range(3)] + [f"MARK r{j}"]
    def lsum(j):
        r = vNM + j*4
        return [(0, x) for x in [f"AFTER r{j} 2", f"WAITLG l{j}", f"v_add_f32 {v(r)}, {v(r)}, {v(r+1)}", f"v_add_f32 {v(r+2)}, {v(r+2)}, {v(r+3)}", f"v_add_f32 {v(r)}, {v(r)}, {v(r+2)}",
                f"v_subrev_u32 {v(r+1)}, {LO_BITS}, {v(r)}", [f"v_cmp_lt_u32 vcc, s{sRANGE}, {v(r+1)}", f"v_rcp_f32 {v(r)}, {v(r)}", "s_cbranch_vccnz L_fallback"]]]
    def norm(j):
        r0 = oreg(0, j); r1 = oreg(1, j); t = oreg(4, j)
        if "pk" in X: ins = [f"v_pk_mul_f32 {v(r+q, 2)}, {v(r+q, 2)}, {v(vNM+j*4, 2)} op_sel_hi:[1,0]" for r in (r0, r1) for q in (0, 2)] + pack4(t, r0, r1) + sanit(t)
        else: ins = [f"v_mul_f32 {v(r+q)}, {v(vNM+j*4)}, {v(r+q)}" for r in (r0, r1) for q in range(4)] + pack4(t, r0, r1) + sanit(t)
        ms = ostore(j, t, f"o{j}")
        PI = [int(x) for x in OPT.get("pi", "3,2,0,0,0").split(",")]
        pin_ = [pstore(k, vSENT, "ip") for k in range(sum(PI[:j]), sum(PI[:j+1]))]
        return [(ix[f"s{j}"] + 5 + HZ, x) for x in ins + [f"STAMP n{j}", ms, f"ds_write_b128 {v(vOWN)}, {v(t, 4)} offset:{OWNB[j]} @w{j}"] + pin_ + [f"MARK n{j}"]]
    def fetch(j):
        r = []
        for h in (1, 2, 3):
            dst = R_B + OBOFF[j] + h*4096
            if j < 4: r.append([f"s_add_u32 m0, s{sW1K}, {dst - j*1024}", "s_nop 0", f"buffer_load_dwordx4 {v(vLIN)}, {srd(SRD_O)}, s{sSIB+h} offen offset:{j*1024} sc1 lds @g{j}"])
            else: r.append([f"s_add_u32 m0, s{sW1K}, {dst}", f"s_add_u32 s{sT3}, s{sSIB+h}, 4096", f"buffer_load_dwordx4 {v(vLIN)}, {srd(SRD_O)}, s{sT3} offen sc1 lds @g{j}"])
        return r
    def vread(j): return [f"ds_read_b32 {v(vT + h)}, {v(vVER)} offset:{OBOFF[j] + h*4096} @t{j}" for h in (1, 2, 3)]
    def vtest(): return [f"v_max3_u32 {v(vT)}, {v(vT+1)}, {v(vT+2)}, {v(vT+3)}", f"v_cmp_eq_u32 vcc, -1, {v(vT)}"]
    def verify(j):
        return [[f"STAMP u{j}", f"WAITVM g{j}", f"STAMP w{j}"]] + vread(j) + [f"MARK t{j}", f"AFTER t{j} 3", f"WAITLG t{j}", vtest()[0], [vtest()[1], "s_nop 0", f"s_cbranch_vccnz L_refetch{j}", f"LABEL L_got{j}"], f"MARK v{j}"]
    def post(j):
        r0 = oreg(2, j)
        return [(ix[f"e{j}"] + HZ, x) for x in pack4(r0, r0, oreg(3, j)) + sanit(r0) + [pstore(j, r0, "pst")]]
    p0 = ix["p0"]
    hs = [(opt("fs", 62), x) for x in ["WAITVM io"] + setflag(0, "fs0")]
    hs += [(0, f"AFTER {OPT.get('fp', 'n3')} 0")] + [(0, x) for x in ["WAITVM ip"] + setflag(1, "fs1")] + [(0, "MARK fs1")]
    def bar(name, afters, waits): return [(0, f"AFTER {x} 0") for x in afters] + [(0, waits + ["s_barrier", f"STAMP {name}", f"MARK {name}"])]
    vs = [(40, unpark(vXW + q, q)) for q in range(4)] + [(40, unpark(vLW, 4)), (40, unpark(vLR, 5))]
    vs += xw(0) + bar("a", ["f0", "w1"], ["WAITVM wo1", "WAITLG x0", "WAITLG f0"]) + lsum(0) + [(0, "AFTER w3 0")] + norm(0) + xw(1) + bar("b1", ["f1"], ["WAITVM wo3", "WAITLG x1", "WAITLG f1"])
    for j in (1, 2, 3):
        vs += xw(j + 1) + lsum(j) + norm(j) + ([(0, f"AFTER n{j} {opt('hold', 4) - 1}")] if opt("hold", 4) else []) + bar(f"b{j+1}", {1: [], 2: ["f2"], 3: []}[j], {1: [], 2: ["WAITLG f2"], 3: []}[j] + [f"WAITLG w{j}"])
    vs += lsum(4) + norm(4)
    ps = []
    for j in range(5):
        p = post(j)
        ps += p[:-1] + ([(0, f"AFTER d{opt('pd', 3)} 0")] if j == 0 else []) + p[-1:]
    rs = [(opt("v7r", 36), "WAITVM V7")] + [(0, x) for x in vreads(1, "v7")] + [(0, "MARK v7")]
    rs += [(68, unpark(vWR2, 10)), (68, unpark(vWR2 + 1, 11))]
    adr = [(68, f"v_add_u32 {v(vOB)}, {R_B}, {v(vLIN)}"), (68, f"v_add_u32 {v(vVER)}, s{sW1K}, {v(vOB)}"),
           (68, f"v_accvgpr_read_b32 {v(vPRB)}, {a(aPRB)}"), (68, f"v_add_u32 {v(vOWN)}, s{sW1K}, {v(vLIN)}"), (0, "MARK adr")]
    rs += [(0, x) for x in wfr(0, vWR2)] + [(0, "MARK f0"), (0, "AFTER a 0")] + [(0, x) for x in xr(0)] + [(0, x) for x in wfr(1, vWR2)] + [(0, "MARK f1")]
    up = [f"v_add_u32 {v(vWR2+q)}, {R_C - R_A}, {v(vWR2+q)}" for q in range(2)]; dn = [f"v_subrev_u32 {v(vWR2+q)}, {R_C - R_A}, {v(vWR2+q)}" for q in range(2)]
    w2 = wfr(2, vWR2); w3 = wfr(3, vWR2)
    extra = {1: up + w2[:8], 2: w2[8:] + ["MARK f2"] + dn, 3: w3[:8], 4: w3[8:] + ["MARK f3"]}
    for j in (1, 2, 3, 4):
        rs += [(0, f"AFTER b{j} 0")] + [(ix[f"s{j-3}"] + 6 if j >= 3 else 0, x) for x in xr(j)]
        rs += [(ix[f"s{j}"] - 1, x) for x in bread(j - 1, 0, 0)] + [(0, f"MARK bo{j-1}")] + [(0, x) for x in extra[j]]
    MF4, MP = 0xF, 0xFF0000
    def probe(mask, tag=""): return [f"s_mov_b64 exec, {mask}", f"buffer_load_dword {v(vPRD)}, {v(vPRB)}, {srd(SRD_WS)}, 0 offen sc1" + tag, "s_mov_b64 exec, -1"]
    def test(mask): return [f"v_cmp_eq_u32 vcc, -1, {v(vPRD)}", "s_nop 0", f"s_and_b32 s58, vcc_lo, {mask}"]
    ds = (paced(wo_dma(0), opt("w0t", 95) - 85, opt("w0s", 3)) if W0L else []) + paced(wo_dma(1), opt("w1t", 36), opt("w1s", 3)) + [(0, "MARK w1")] + paced(wo_dma(2), opt("w2t", 62), opt("w2s", 3)) + [(0, "MARK w2")]
    ds += [(0, "AFTER a 0")] + [(0, y) for x in wo_dma(3) for y in ([x, "NEXTGAP"] if x.startswith("buffer") else [x])] + [(0, "AFTER adr 0"), (opt("pb", 112), probe(MF4, " @prb")), (0, "MARK w3")]
    ds += [(0, "AFTER b1 0"), (0, "WAITVM prb"), (0, test(MF4) + ["s_cbranch_scc1 L_waitf", "LABEL L_fok"])]
    FA = OPT.get("fa", "n2,n3,n4,n4,n4").split(","); FDL = [int(x) for x in OPT.get("fdl", "0,0,0,24,56").split(",")]
    for j in range(5):
        if j == 4: ds += [(0, f"AFTER {'b4' if NE >= 2 else 'd1'} 0")]
        ds += [(0, f"AFTER {FA[j]} {FDL[j]}")] + [(0, f"STAMP f{j}")] + [(0, y) for g in fetch(j) for y in [g] + ["NEXTGAP"]*opt("fst", 0)] + [(0, f"MARK g{j}")]
    ds += [(0, "AFTER fs1 0"), (0, probe(MP, " @prp")), (0, "MARK pp")]
    vf = []
    VDL = [int(x) for x in OPT.get("vdl", "20,30,40,40,40").split(",")]
    for j in range(5): vf += [(0, f"AFTER g{j} 1")] + [(ix[f"q{j}"] - (BO if j else 7) - opt("vb", 6), x) for x in verify(j)]
    G.setdefault(p0 - 1, []).extend(["WAITLG v7", "WAITVM wo0", "s_barrier", "STAMP bD"])
    need.setdefault(p0 - 1, []).extend(["v7"])
    need.setdefault(ix["q0"] + 16, []).extend(["f3", "!WAITLG f3"])
    for j in range(5): need.setdefault(ix[f"s{j}"], []).extend([f"r{j}"] + ([f"bo{j-1}"] if j else []) + ([f"xa{j+1}"] if j in (1, 2, 3) else []) + [f"!WAITLG r{j}"])
    for j in range(4): need.setdefault(ix[f"o{j}"], []).append(f"!WAITLG b{j}0")
    if opt("hold", 4):
        for j in (1, 2, 3): need.setdefault(ix[f"o{j-1}"] + 8 - opt("hold", 4), []).append(f"n{j}")
    OW = opt("ow", 2)
    if OW == 0: OUTA = ["v_lshlrev_b32 v9, 10, v4", "v_lshl_add_u32 v9, v5, 3, v9"]
    else:
        OUTA = ["v_lshrrev_b32 v1, 3, v4", "v_bfe_u32 v2, v4, 1, 1", "v_lshl_add_u32 v1, v1, 1, v2", "v_bfe_u32 v2, v4, 2, 1", "v_lshlrev_b32 v2, 1, v2",
                "v_xor_b32 v2, v2, v5", "v_lshl_add_u32 v1, v2, 2, v1", "v_and_b32 v2, 1, v4", "v_lshlrev_b32 v2, 4, v2", "v_mov_b32 v3, 0x3f80", "v_lshlrev_b32 v2, v2, v3"]
        OUTA += [[f"v_cmp_eq_u32 vcc, {m}, v1", "s_nop 1", f"v_cndmask_b32 {v(vTMP + m)}, 0, v2, vcc"] for m in range(8)]
        if OW == 1: OUTA += ["v_lshlrev_b32 v9, 10, v4", "v_lshl_add_u32 v9, v5, 4, v9"]
        else: OUTA += ["v_lshrrev_b32 v9, 2, v0", "v_lshlrev_b32 v9, 10, v9", "v_lshl_add_u32 v9, v7, 4, v9",
                       "v_lshlrev_b32 v10, 6, v4", "v_lshl_add_u32 v10, v5, 4, v10", f"v_add_u32 v10, s{sW1K}, v10"]
    fin = [f"s_and_b32 s{sT0}, s{sHKV}, 1", f"s_sub_u32 s{sT2}, 3, s{sT0}", f"s_mul_i32 s{sT0}, s{sT0}, 3", f"s_add_u32 s{sT0}, s{sT0}, s{sW}",
           "s_and_b32 s98, s2, 0xf8", f"s_mul_i32 s98, s98, {WGS}", f"s_lshr_b32 s99, s{sHKV}, 1", f"s_mul_i32 s99, s99, {WVS}", "s_add_u32 s98, s98, s99",
           f"s_lshl_b32 s99, s{sT0}, 10", "s_add_u32 s98, s98, s99", f"s_add_u32 s{sMODE}, s98, 5120",
           f"s_lshl_b32 s{sT0}, s{sT0}, 4", f"s_mul_i32 s98, s{sB}, 80", f"s_add_u32 s{sT0}, s{sT0}, s98", f"s_lshl_b32 s{sT0}, s{sT0}, 10",
           f"s_lshl_b32 s98, s{sI}, 8", f"s_add_u32 s{sT0}, s{sT0}, s98", f"s_lshr_b32 s98, s{sHKV}, 1", "s_lshl_b32 s98, s98, 6", f"s_add_u32 s{sT0}, s{sT0}, s98",
           ] + OUTA + [
           f"s_mov_b32 s{SRD_K}, s14", f"s_mov_b32 s{SRD_K+1}, s15", f"s_mov_b32 s{SRD_K+2}, 655360", f"s_mov_b32 s{SRD_K+3}, 0x20000"]
    drain = sched(M, G, [hs, ds, vf, vs, rs, ps, adr + [(0, "AFTER n4 2")] + [(ix["q1"], x) for x in fin]], need=need, limit=opt("lim", 16), limits={1: 28, 2: 24, 3: opt('lv', 16)})
    for k in range(7): drain(k)
    stamp("pst")
    if "cnt" in X: e(f"s_mov_b32 s{sCNT}, s{sOI}")
    e(f"s_cmp_ge_u32 s{sW}, s{sT2}"); e("s_cbranch_scc1 L_fin")
    e("WAITVM prp")
    emit(test(MP)); e("s_cbranch_scc1 L_waitp")
    lab("L_pok")
    if opt("slp", 0):
        e(f"s_bitcmp1_b32 s{sHKV}, 0"); e("s_cbranch_scc0 L_nosl"); e(f"s_sleep {opt('slp', 0)}"); lab("L_nosl")
    fB = vO + 100
    def redloads():
        e(f"s_mov_b32 s{sT1}, s{sMODE}")
        for p in range(8):
            e(f"buffer_load_dwordx4 {v(fB + p*4, 4)}, {v(vLIN)}, {srd(SRD_WS)}, s{sT1} offen sc1")
            if p < 7: e(f"s_add_u32 s{sT1}, s{sT1}, {WGS}")
    redloads()
    lab("L_red")
    e(f"v_mov_b32 {v(vCHK)}, 0")
    for p in range(8):
        e(f"s_waitcnt vmcnt({7-p})")
        for k in range(2):
            d = v(vS + k*4, 4)
            e(f"{MF} {d}, {v(vTMP + 4*k, 4) if OW else a(aE + (2 if k == 0 else 0), 4)}, {v(fB + p*4, 4)}, {'0' if p == 0 else d}")
            if k == 0: e(f"v_max_u32 {v(vCHK)}, {v(vCHK)}, {v(fB + p*4)}")
    e(f"v_cmp_eq_u32 vcc, -1, {v(vCHK)}")
    e("s_nop 4")
    e("s_cbranch_vccnz L_redo")
    lab("L_redok")
    e("s_nop 0")
    OF = OPT.get("outf", "sc1").replace("_", " ")
    if OW == 0:
        e(f"v_cvt_pk_bf16_f32 {v(vS)}, {v(vS)}, {v(vS+1)}"); e(f"v_cvt_pk_bf16_f32 {v(vS+1)}, {v(vS+2)}, {v(vS+3)}")
        e(f"v_cvt_pk_bf16_f32 {v(vS+4)}, {v(vS+4)}, {v(vS+5)}"); e(f"v_cvt_pk_bf16_f32 {v(vS+5)}, {v(vS+6)}, {v(vS+7)}")
        e(f"buffer_store_dwordx2 {v(vS, 2)}, v9, {srd(SRD_K)}, s{sT0} offen {OF}")
        e(f"buffer_store_dwordx2 {v(vS+4, 2)}, v9, {srd(SRD_K)}, s{sT0} offen offset:32 {OF}")
    else:
        emit(pack4(vS, vS, vS + 4))
        if OW == 2:
            e(f"ds_write_b128 v10, {v(vS, 4)}"); e("s_waitcnt lgkmcnt(0)"); e(f"ds_read_b128 {v(vS, 4)}, {v(vOWN)}"); e("s_waitcnt lgkmcnt(0)")
        e(f"buffer_store_dwordx4 {v(vS, 4)}, v9, {srd(SRD_K)}, s{sT0} offen {OF}")
    lab("L_fin")
    stamp("fin")
    if STAMPS and "cnt" in X:
        i = nstamp[0]; nstamp[0] += 1
        e(f"s_add_u32 s{sSTAMP+2*i}, s{sSTAMP+2*i-2}, s{sCNT}"); e(f"s_addc_u32 s{sSTAMP+2*i+1}, s{sSTAMP+2*i-1}, 0")
    write_stamps()
    lab("L_done")
    e("s_endpgm")
    L.append("; ---- out-of-line waits and rare paths")
    lab("L_redo")
    emit(spin("L_redok")); redloads(); e("s_branch L_red")
    lab("L_hs")
    e("v_mov_b32 v2, 0"); e("s_sleep 4")
    e(f"buffer_load_dword {v(vJUNK)}, v2, {srd(SRD_D)}, s{sT1} offen sc1"); e("s_waitcnt vmcnt(0)")
    emit(spin("L_hsok"))
    e(f"v_readfirstlane_b32 s58, {v(vJUNK)}"); e("s_nop 0"); e("s_cmp_ge_u32 s58, 32"); e("s_cbranch_scc0 L_hs"); e("s_branch L_hsok")
    for nm, mask, ok in (("L_waitf", MF4, "L_fok"), ("L_waitp", MP, "L_pok")):
        lab(nm)
        if "cnt" in X and nm == "L_waitf": e(f"s_add_u32 s{sOI}, s{sOI}, {1 << 15}")
        e("s_sleep 2"); emit(probe(mask)); e("s_waitcnt vmcnt(0)")
        emit(spin(ok)); emit(test(mask)); e(f"s_cbranch_scc1 {nm}"); e(f"s_branch {ok}")
    for j in range(5):
        lab(f"L_refetch{j}")
        if "cnt" in X: e(f"s_add_u32 s{sOI}, s{sOI}, {1 << (3*j)}")
        emit(spin(f"L_got{j}")); emit(fetch(j)); e("s_waitcnt vmcnt(0)")
        emit(vread(j)); e("s_waitcnt lgkmcnt(0)"); emit(vtest()); e("s_nop 1")
        e(f"s_cbranch_vccnz L_refetch{j}"); e(f"s_branch L_got{j}")
    lab("L_fallback")
    e("s_waitcnt vmcnt(0) lgkmcnt(0)")
    e("s_barrier")
    e(f"s_mov_b32 s{sRANGE}, -1")
    e("s_load_dwordx16 s[4:19], s[0:1], 0")
    e("s_branch L_restart")
    lab("L_rowmax")
    e("s_waitcnt vmcnt(0) lgkmcnt(0)")
    emit(qrd(1) + qrd(2)); e("s_waitcnt lgkmcnt(0)"); emit(qrd(3) + qrd(4))
    vA = vP; vM = vP + 4
    for ds in range(4): e(f"v_subrev_u32 {v(vA+ds)}, {R_A - R_D}, {v(vKR+ds)}")
    for j in range(5): e(f"v_mov_b32 {v(vM+j)}, 0xff800000")
    e(f"s_mov_b32 s{sTK}, 0"); e(f"s_mov_b32 s{sTK2}, 4096")
    lab("L_fbmax")
    emit(flat(kv_dma(True, R_D, "f")))
    e("s_waitcnt vmcnt(0)")
    emit(kreads(0, base=vA, buf=1))
    e("s_waitcnt lgkmcnt(0)")
    for j in range(5):
        emit(qk(j, 1, 0, cinit="0")); e("s_nop 7")
        for n in range(4): e(f"v_max3_f32 {v(vM+j)}, {v(vM+j)}, {v(vS+2*n)}, {v(vS+2*n+1)}")
    e(f"s_add_u32 s{sTK}, s{sTK}, 8192"); e(f"s_add_u32 s{sTK2}, s{sTK2}, 8192")
    e(f"s_cmp_lt_u32 s{sTK}, 65536"); e("s_cbranch_scc1 L_fbmax")
    for j in range(5):
        for op in ("v_permlane32_swap_b32", "v_permlane16_swap_b32"):
            e(f"v_mov_b32 v1, {v(vM+j)}"); e("s_nop 1"); e(f"{op} {v(vM+j)}, v1"); e("s_nop 1"); e(f"v_max_f32 {v(vM+j)}, {v(vM+j)}, v1")
    e(unpark(1, 4)); e(unpark(2, 5))
    for j in range(5): e(f"ds_write_b32 v1, {v(vM+j)} offset:{j*256}")
    e("s_waitcnt lgkmcnt(0)"); e("s_barrier")
    for j in range(5): e(f"ds_read_b128 {v(vNM+j*4, 4)}, v2 offset:{j*256}")
    e("s_waitcnt lgkmcnt(0)")
    for j in range(5):
        r = vNM + j*4
        e(f"v_max3_f32 {v(r)}, {v(r)}, {v(r+1)}, {v(r+2)}"); e(f"v_max_f32 {v(r)}, {v(r)}, {v(r+3)}"); e(f"v_sub_f32 {v(r)}, 0, {v(r)}")
        for q in (1, 2, 3): e(f"v_mov_b32 {v(r+q)}, {v(r)}")
    e("s_branch L_noat")
    lab("L_end")

DOC = """
; One workgroup per (batch b, query head): wg = hkv + 8*b + 64*i, head = 4*hkv + i.  Four waves, 512 registers each.
;     computes the true row maxima and uses those as m (softmax is invariant under the shift).
;  3. Per 16-query tile: the waves' partial O are summed through LDS, normalised and published in d_ws; the four heads of a
;     are published and summed by the workgroup that owns the output tile.
;  Hand-offs: write-through stores into areas that this launch first filled with 0xffffffff; a reader accepts a 16-byte
;  piece once its first word differs (payloads never carry that word).  Two flag words per wave say that the fills have
;  landed; they are reset at start, and a counter per batch in d_debug says that the resets have landed.
"""
hdr = open("standalone__gqa_block_cached__near_ridge.s.ref").read().split("\n")
for ln in hdr:
    if ln.startswith("; @launch"): continue
    if not ln.startswith(";"): break
    L.append(ln)
L.append("; @launch grid=(256,1,1) block=(256,1,1) lds=163840")
L.append('.amdgcn_target "amdgcn-amd-amdhsa--gfx950"')
L.append(".text")
L.extend(DOC.strip("\n").split("\n"))
kernel()
L.append('.section .rodata,"a"')
L.append(".p2align 6"); L.append(f".amdhsa_kernel {KN}")
for s in ["next_free_vgpr 512", "next_free_sgpr 102", "accum_offset 256", "group_segment_fixed_size 0", "kernarg_size 64", "user_sgpr_count 2", "user_sgpr_kernarg_segment_ptr 1", "system_sgpr_workgroup_id_x 1"]:
    L.append("  .amdhsa_" + s)
L.append(".end_amdhsa_kernel")
import hazard
L = hazard.fix(L)
print("\n".join(L))
```

```python
import sys, math, struct, re, os
sys.path.insert(0, os.path.dirname(os.path.abspath(__file__)))

X = {"pfc2"} | set(a[2:] for a in sys.argv[1:] if a.startswith("--") and "=" not in a)
OPT = dict(a[2:].split("=") for a in sys.argv[1:] if a.startswith("--") and "=" in a)
def opt(k, d): return int(OPT.get(k, d))
STAMPS = "stamps" in X
KN = "standalone__gqa_block_cached__near_ridge_kernel"
L = []

class Tr:
    def __init__(s): s.ops = []
    def add(s, tag): s.ops.append(tag)
    def need(s, tag):
        idx = max(i for i, t in enumerate(s.ops) if t == tag)
        return len(s.ops) - 1 - idx
VM = Tr(); LG = Tr()

def lab(s): L.append(s + ":")
def e(s):
    if s.startswith("LABEL "): lab(s[6:]); return
    if s.startswith("MARK "): return
    if s.startswith("STAMP "): stamp(s[6:]); return
    if s == "NEXTGAP": s = "s_nop 0"
    tag = None
    if " @" in s: s, tag = s.split(" @")
    op = s.split()[0]
    if op == "WAITVM":
        n = VM.need(s.split()[1]); s = f"s_waitcnt vmcnt({min(n, 63)})"
    elif op == "WAITLG":
        n = LG.need(s.split()[1]); s = f"s_waitcnt lgkmcnt({min(n, 15)})"
    elif op.startswith("buffer_") or op.startswith("global_"): VM.add(tag)
    elif op.startswith("ds_"): LG.add(tag)
    L.append("    " + s)
def aslist(it): return it if isinstance(it, list) else [it]
def emit(lst):
    for it in lst:
        for s in aslist(it): e(s)
def flat(groups): return [s for g in groups for s in aslist(g)]
def capture(fn):
    keep = list(L); del L[:]
    fn()
    out = [x.strip() for x in L]; L[:] = keep
    return out

QSCALE = 1.4426950408889634 / math.sqrt(128.0)
def f2u(x): return struct.unpack("<I", struct.pack("<f", x))[0]

S_ST = [0, 53248, 106496, 0]
R_D, R_QX, R_A, R_B, R_C, R_SP = 0, 32768, 53248, 86016, 118784, 151552
KSLOT = [R_A, R_B]; VSLOT = [R_C, R_D]
XSLOT = [0, 12288, 24576, 0, 12288]
OWNB = [36864, 40960, 45056, 49152, 36864]
OBOFF = [0, 16384, 32768, 49152, 0]
WREG = [R_A, R_B, R_C, R_A]
WS_PART = 8 << 20
WS_FLG = 16 << 20
WS_STAMP = 128 << 20
WGS = 40960; WVS = 10240
HEADSTRIDE = 64 * WGS
LO_BITS = 0x21800000
RANGE = 0x3C000000
sW, sHKV, sB, sI, sRANGE = 3, 20, 21, 22, 23
sWOB, sSIB, sOI = 4, 8, 12
SRD_X, SRD_WQ, SRD_K, SRD_V, SRD_O, SRD_WO, SRD_PI = 24, 28, 32, 36, 40, 44, 64
SRD_WS, SRD_D = 24, 28
sTK, sTK2, sTV, sTV2, sSLOT, sCNT = 48, 49, 50, 51, 52, 53
sT0, sT1, sT2, sT3 = 54, 55, 56, 57
sOOWN, sW5K, sSPIN, sFOWN = 60, 61, 62, 63
sSTAMP = 68
sMODE, sXCC, sWB, sXB, sSTEP, sMIR, sW1K, sQS = 89, 90, 91, 92, 93, 94, 95, 96
vKR = 8; vVR = 12; vOK = 20; vOV = 24; vLIN = 26; vJUNK = 27
vP = 28; vS = 48; vNM = 64; vTMP = 84; vO = 96
vVRC = vTMP; vSENT = vTMP + 8; vQW = 73
aQ = 0; aK = 80; aV = 144; aL = 208; aE = 228; aPRB = 234; aADR = 235; aONE = 248

def srd(r): return f"s[{r}:{r+3}]"
def v(r, n=1): return f"v{r}" if n == 1 else f"v[{r}:{r+n-1}]"
def a(r, n=1): return f"a{r}" if n == 1 else f"a[{r}:{r+n-1}]"
MF = "v_mfma_f32_16x16x32_bf16"
SPIN_MAX = opt("spin", 400000)

nstamp = [0]
def stamp(name=""):
    if OPT.get("delay") == name:
        for _ in range(8): L.append("    s_nop 15")
    if not STAMPS: return
    sel = OPT.get("st")
    if sel and name not in sel.split(","): return
    i = nstamp[0]; nstamp[0] += 1
    assert sSTAMP + 2*i + 1 < 89
    sys.stderr.write(f"{i}:{name} ")
    L.append(f"    {'s_memtime' if 'cyc' in X else 's_memrealtime'} s[{sSTAMP+2*i}:{sSTAMP+2*i+1}]")
    L.append("    s_waitcnt lgkmcnt(0)")
def write_stamps():
    if not STAMPS: return
    if "amp" in X:
        e("s_cmp_ge_u32 s2, 8"); e("s_cbranch_scc1 L_done")
        e(f"s_cmp_lg_u32 s{sW}, 0"); e("s_cbranch_scc1 L_done")
        e("s_memrealtime s[80:81]"); e("s_waitcnt lgkmcnt(0)")
        e(f"s_sub_u32 s82, s{sSTAMP+2}, s{sSTAMP}"); e("s_min_u32 s82, s82, 5000"); e("s_mul_i32 s82, s82, 10"); e("s_add_u32 s82, s82, s80")
        lab("L_amp")
        e("s_memrealtime s[84:85]"); e("s_waitcnt lgkmcnt(0)"); e("s_sub_u32 s86, s84, s82"); e("s_cmp_lt_i32 s86, 0"); e("s_cbranch_scc1 L_amp")
        return
    n = nstamp[0]
    e("s_lshl_b32 s58, s2, 2"); e(f"s_add_u32 s58, s58, s{sW}"); e(f"s_mul_i32 s58, s58, {n*8}"); e(f"s_add_u32 s58, s58, {WS_STAMP}")
    e("s_add_u32 s58, s18, s58"); e("s_addc_u32 s59, s19, 0")
    e("s_mov_b64 exec, 1"); e("v_mov_b32 v1, 0")
    for i in range(n):
        e(f"v_mov_b32 v2, s{sSTAMP+2*i}"); e(f"v_mov_b32 v3, s{sSTAMP+2*i+1}")
        e(f"global_store_dwordx2 v1, v[2:3], s[58:59] offset:{i*8}"); e("s_nop 1")
    sys.stderr.write(f"\nstamps: {n}\n")

njit = [0]
def jitter(mask, sh):
    if "jitter" not in X: return
    k = njit[0]; njit[0] += 1
    e(f"s_mul_i32 s98, s2, {2654435761 >> (k + 3)}"); e(f"s_mul_i32 s99, s{sW}, {40503 * (k + 1)}"); e("s_add_u32 s98, s98, s99")
    e(f"s_lshr_b32 s98, s98, {sh}"); e(f"s_and_b32 s98, s98, {mask}")
    lab(f"L_jit{k}"); e("s_cmp_eq_u32 s98, 0"); e(f"s_cbranch_scc1 L_jite{k}"); e("s_sleep 8"); e("s_sub_u32 s98, s98, 1"); e(f"s_branch L_jit{k}"); lab(f"L_jite{k}")
def mk_srd(r, pbase, off_sgpr, size):
    return [f"s_add_u32 s{r}, s{pbase}, s{off_sgpr}", f"s_addc_u32 s{r+1}, s{pbase+1}, 0", f"s_mov_b32 s{r+2}, {size}", f"s_mov_b32 s{r+3}, 0x20000"]

PSEUDO = ("MARK", "LABEL", "STAMP")
WIDE = ("ds_write_b128", "buffer_store_dwordx4")
def isv(s): return s.startswith("v_")
def gaptime(ins):
    ins = [s for s in ins if not s.startswith(PSEUDO)]
    nv = [s for s in ins if not isv(s)]
    t = 4
    if nv: t += 20 if nv[0].startswith(WIDE) else 4
    first = True
    for s in ins:
        if not isv(s):
            if first: first = False; continue
            t += 24 if s.startswith(WIDE) else 4
        else:
            t = max(t, 8) + (8 if s.startswith(("v_exp", "v_rcp")) else 4)
    return t
def order_gap(items):
    def indep(k):
        x = items[k]
        if isinstance(x, list) or x.startswith(("v_",) + PSEUDO + WIDE + ("ds_write",)): return False
        return all(isinstance(y, str) and isv(y) and not y.startswith(("v_accvgpr_read", "v_mov", "v_cmp", "v_readf", "v_add_u32", "v_subrev")) for y in items[:k])
    for k in range(1, len(items)):
        if indep(k): items.insert(0, items.pop(k)); break
    return items
def interleave(mfmas, gaps):
    emit(gaps.get(-1, []))
    for i, m in enumerate(mfmas):
        e(m); emit(gaps.get(i, []))
def sched(mfmas, fixed, streams, need=None, limit=16, limits=None):
    need = need or {}
    streams = [list(s) for s in streams]
    done = {}
    cur = [0]
    def put(it):
        for s in aslist(it):
            if s.startswith("MARK "): done[s[5:]] = cur[0]
            e(s)
    def flush(mark):
        if mark in done: return
        for st in streams:
            if any(f"MARK {mark}" in aslist(it) for _, it in st):
                while mark not in done:
                    it = st.pop(0)[1]
                    if isinstance(it, str) and it.startswith("AFTER "): flush(it.split()[1]); continue
                    put(it)
                return
        raise Exception("mark " + mark)
    cur[0] = -1
    for it in fixed.get(-1, []): put(it)
    for i, m in enumerate(mfmas):
        cur[0] = i - 1
        for mk in need.get(i, []):
            if mk.startswith("!"): put(mk[1:])
            else: flush(mk)
        e(m)
        cur[0] = i
        items = list(fixed.get(i, []))
        closed = any(s.startswith("v_exp") for s in flat(items))
        blocked = set(); prog = True; seen = dict(done)
        for s in flat(items):
            if s.startswith("MARK "): seen[s[5:]] = i
        while prog:
            prog = False
            for k, st in enumerate(streams):
                if k in blocked or not st: continue
                rdy, it = st[0]
                if it == "NEXTGAP": st.pop(0); blocked.add(k); continue
                if isinstance(it, str) and it.startswith("AFTER "):
                    _, mk, d = it.split()
                    if mk in seen and seen[mk] + int(d) <= i: st.pop(0); prog = True; break
                    continue
                if rdy > i: continue
                real = [s for s in aslist(it) if not s.startswith(PSEUDO)]
                empty = not [s for s in flat(items) if not s.startswith(PSEUDO)]
                if not real or (not closed and (empty or gaptime(flat(items) + real) <= (limits or {}).get(k, limit))):
                    st.pop(0); items.append(it); prog = True
                    for s in aslist(it):
                        if s.startswith("MARK "): seen[s[5:]] = i
                    break
        for it in order_gap(items): put(it)
    cur[0] = len(mfmas)
    def drain(k):
        st = streams[k]
        while st:
            it = st.pop(0)[1]
            if isinstance(it, str) and it.startswith("AFTER "): flush(it.split()[1]); continue
            put(it)
    return drain

def kv_dma(isK, slot_base, tag, nop=True):
    g = []
    for p in range(8):
        grp = []
        if p % 4 == 0:
            grp.append(f"s_add_u32 m0, s{sSLOT}, {slot_base + (p // 4) * 4096}")
            if nop: grp.append("s_nop 0")
        vo = vOK + (p >> 1) if isK else vOV + ((p >> 1) & 1)
        so = (sTK if isK else sTV) + (0 if p < 4 else 1)
        grp.append(f"buffer_load_dwordx4 {v(vo)}, {srd(SRD_K if isK else SRD_V)}, s{so} offen offset:{(p % 4)*1024} lds @{tag}")
        g.append(grp)
    return g
SEQ = {"mirror": ["01234567", "76543210", "76543210"], "pair": ["01234567", "10325476", "02143657"], "pair0": ["01234567", "10325476", "10325476"],
       "same": ["01234567"]*3, "quad": ["01234567", "23016745", "01452367"], "quad2": ["01234567", "23016745", "04512367"]}[OPT.get("seq", "mirror")]
def seqword(q): return sum(int(c) << (4*n) for n, c in enumerate(q))
def seqtail(q, t0): return sum(int(c) << (13 + 3*n) for n, c in enumerate(q[t0:]))
sSEQ, sSK, sSV = sMIR, sSTEP, sXCC
def set_T(isK, t):
    r = sTK if isK else sTV
    return [f"s_bfe_u32 s{r}, s{sSEQ}, {(4 << 16) | (4*t)}", f"s_lshl_b32 s{r}, s{r}, 13", f"s_or_b32 s{r+1}, s{r}, 4096"]
def kreads(slot, tag="kr", base=vKR, buf=None):
    buf = slot if buf is None else buf
    return [f"ds_read_b128 {a(aK + buf*32 + (kt*4+ds)*4, 4)}, {v(base+ds)} offset:{(KSLOT[slot]-R_A) + kt*1024} @{tag}" for kt in range(2) for ds in range(4)]
def vreads(slot, tag="vr"):
    base = vVRC if slot == 0 else vVR
    return [f"ds_read_b64_tr_b16 {a(aV + slot*32 + k*4 + jh*2, 2)}, {v(base+k)} offset:{jh*1024} @{tag}" for k in range(8) for jh in range(2)]
def qk(j, kbuf, sbuf, cinit=None):
    m = []
    for kt in range(2):
        for ds in range(4):
            d = v(vS + sbuf*8 + kt*4, 4)
            c = (cinit or v(vNM + j*4, 4)) if ds == 0 else d
            m.append(f"{MF} {d}, {a(aK + kbuf*32 + (kt*4+ds)*4, 4)}, {a(aQ + (j*4+ds)*4, 4)}, {c}")
    return m
def oreg(k, j): return vO + (k*5+j)*4
def pv(j, vbuf, ks=range(8)):
    m = [f"{MF} {v(oreg(k, j), 4)}, {a(aV + vbuf*32 + k*4, 4)}, {v(vP + j*4, 4)}, {v(oreg(k, j), 4)}" for k in ks]
    m.append(f"{MF} {a(aL + j*4, 4)}, {a(aONE, 4)}, {v(vP + j*4, 4)}, {a(aL + j*4, 4)}")
    return m
def exps(sbuf): return [f"v_exp_f32 {v(vS + sbuf*8 + n)}, {v(vS + sbuf*8 + n)}" for n in range(8)]
def cvts(sbuf, j): return [f"v_cvt_pk_bf16_f32 {v(vP + j*4 + n)}, {v(vS + sbuf*8 + 2*n)}, {v(vS + sbuf*8 + 2*n+1)}" for n in range(4)]
def put_exp(G, base, sbuf, j):
    ex = exps(sbuf); cv = cvts(sbuf, j)
    for n in range(8): G.setdefault(base + 2*n, []).append(ex[n])
    for n in range(4): G.setdefault(base + 4*n + 3, []).append(cv[n])
def pack4(t, r0, r1):
    return [f"v_cvt_pk_bf16_f32 {v(t)}, {v(r0)}, {v(r0+1)}", f"v_cvt_pk_bf16_f32 {v(t+1)}, {v(r0+2)}, {v(r0+3)}",
            f"v_cvt_pk_bf16_f32 {v(t+2)}, {v(r1)}, {v(r1+1)}", f"v_cvt_pk_bf16_f32 {v(t+3)}, {v(r1+2)}, {v(r1+3)}"]
def sanit(t): return [f"v_min_u32 {v(t)}, -2, {v(t)}"]
def spin(lbl): return [f"s_add_u32 s{sSPIN}, s{sSPIN}, 1", f"s_cmp_ge_u32 s{sSPIN}, {SPIN_MAX}", f"s_cbranch_scc1 {lbl}"]
if "loopinit" not in X and "earlyinit" not in X: X.add("lateinit")
EARLYINIT = "earlyinit" in X
LINIT = opt("linit", 0)
if LINIT: X.discard("lateinit"); X.add("wt")
LATEINIT = "lateinit" in X or EARLYINIT or LINIT
P_INIT0 = f"buffer_store_dwordx4 {v(vSENT, 4)}, {v(vLIN)}, {srd(SRD_PI)}, 0 offen sc1"
TOUCH = ["s_mov_b64 exec, 0xff", f"buffer_load_dword {v(vJUNK)}, v3, {srd(SRD_O)}, s{sOI} offen"] + \
        ([f"buffer_load_dword {v(vJUNK)}, v2, {srd(SRD_WO)}, s{sOI} offen"] if "wsp" in X else []) + ["s_mov_b64 exec, -1"]
S = dict(dpos=[1, 5, 9, 13, 20, 24, 28, 32, 37, 43, 49, 54, 60, 66, 71, 77], mpos=[-1, 16, 35, 58],
         kw=33, kpos=[33, 35, 39, 39, 41, 43, 45, 47],
         vw=50, vpos=[50, 52, 52, 56, 56, 60, 62, 64, 64, 67, 67, 69, 69, 73, 73, 75], tpos=[18, 47, 77, 79])
VF = "kfirst" not in X
if VF:
    S = dict(dpos=[9, 13, 18, 22, 26, 30, 35, 39, 45, 49, 54, 58, 64, 69, 73, 77], mpos=[5, 24, 41, 60],
             vw=28, vpos=[28, 30, 32, 33, 33, 35, 37, 39, 43, 43, 47, 47, 50, 50, 52, 52],
             kw=56, kpos=[56, 60, 62, 64, 66, 67, 67, 69], tpos=[71, 81, 33 + 8, 43 + 2])
if VF and OPT.get("sched") == "b":
    S = dict(dpos=[1, 5, 11, 16, 22, 26, 32, 37, 43, 47, 52, 58, 64, 69, 73, 77], mpos=[-1, 18, 39, 60],
             vw=28, vpos=[28, 30, 30, 33, 33, 35, 35, 39, 41, 43, 45, 47, 49, 50, 50, 52],
             kw=60, kpos=[62, 64, 66, 67, 67, 69, 71, 73], tpos=[75, 81, 24, 41])
if VF and OPT.get("sched") == "c":
    S = dict(dpos=[1, 5, 9, 13, 18, 22, 26, 30, 35, 39, 45, 49, 54, 58, 62, 66], mpos=[-1, 16, 33, 52],
             vw=37, vpos=[39, 41, 43, 43, 45, 47, 47, 49, 50, 50, 52, 54, 56, 56, 58, 60],
             kw=64, kpos=[64, 67, 67, 69, 69, 71, 73, 73], tpos=[60, 75, 20, 32])
GLUE = ("s_addc_u32", "s_cselect_b32", "s_subb_u32")
def glued(lst, k):
    return lst[k].split()[0] in GLUE or (k + 1 < len(lst) and lst[k].startswith("s_mov_b32") and lst[k + 1].startswith("s_cselect"))

def kernel():
    L.append(f".globl {KN}"); L.append(".p2align 8"); L.append(f".type {KN},@function"); lab(KN)
    e("s_cmp_ge_u32 s2, 256"); e("s_cbranch_scc1 L_done")
    if STAMPS and "raw" in X: L.append("    s_memtime s[84:85]")
    e("s_load_dwordx16 s[4:19], s[0:1], 0")
    e("s_getpc_b64 s[58:59]"); lab("L_pc0")
    e(f"s_and_b32 s{sT3}, s2, 0xf8"); e(f"s_lshl_b32 s{sT3}, s{sT3}, 5"); e(f"v_add_u32 v2, s{sT3}, v0"); e("v_lshlrev_b32 v2, 2, v2"); e("v_and_b32 v2, 0x7f80, v2")
    e("v_min_u32 v2, L_end-L_pc0-4, v2"); e(f"global_load_dword {v(vJUNK)}, v2, s[58:59] @pfc")
    e("v_lshrrev_b32 v1, 6, v0")
    e("v_and_b32 v0, 63, v0")
    e(f"v_readfirstlane_b32 s{sW}, v1")
    e(f"s_mov_b32 s{sRANGE}, {RANGE}")
    lab("L_restart")
    e(f"s_and_b32 s{sHKV}, s2, 7"); e(f"s_bfe_u32 s{sB}, s2, {(3 << 16) | 3}"); e(f"s_lshr_b32 s{sI}, s2, 6")
    stamp("start")
    jitter(63, 7)
    e("v_lshlrev_b32 v3, 7, v0")
    e("v_and_b32 v4, 15, v0"); e("v_lshrrev_b32 v5, 4, v0"); e("v_bfe_u32 v6, v0, 2, 2"); e("v_and_b32 v7, 3, v0")
    vXO = vTMP; vWO = vTMP + 4; vXR = vTMP + 6; vWR = vTMP + 10
    e("v_xor_b32 v1, v4, v5")
    e(f"s_lshl_b32 s{sT0}, s{sW}, 2"); e(f"v_xor_b32 v2, s{sT0}, v1"); e("v_lshlrev_b32 v2, 4, v2"); e(f"v_lshl_add_u32 {v(vXO)}, v5, 10, v2")
    e("v_lshlrev_b32 v2, 1, v5"); e("v_xor_b32 v2, v4, v2"); e("v_lshlrev_b32 v2, 4, v2")
    e(f"v_lshl_add_u32 {v(vWO)}, v5, 13, v2"); e(f"v_xor_b32 {v(vWO+1)}, 128, {v(vWO)}")
    e(f"v_lshl_add_u32 {v(vOV)}, v5, 8, v2"); e(f"v_xor_b32 {v(vOV+1)}, 128, {v(vOV)}")
    e(f"s_mul_i32 s58, s{sB}, 81920")
    e(f"s_lshl_b32 s59, s{sHKV}, 2"); e(f"s_add_u32 s59, s59, s{sI}"); e("s_lshl_b32 s59, s59, 8")
    e(f"s_sub_u32 s{sT3}, 4194304, s59")
    e(f"s_lshl_b32 s{sT0}, s{sW}, 12"); e(f"s_mul_i32 s{sW5K}, s{sW}, 5120"); e(f"s_lshl_b32 s{sW1K}, s{sW}, 10")
    e(f"s_lshl_b32 s{sT2}, s{sW}, 18"); e(f"s_lshl_b32 s{sSLOT}, s{sW}, 13")
    XB = [sTK, sTK2, sXB, sT0]; WB = [sTV, sTV2, sWB, sT2]
    e(f"s_add_u32 s{sCNT}, s{sB}, s{sI}")
    for cc in range(4):
        e(f"s_add_u32 s{sSPIN}, s{sCNT}, {cc}"); e(f"s_and_b32 s{sSPIN}, s{sSPIN}, 3")
        e(f"s_lshl_b32 s{sOOWN}, s{sSPIN}, 8"); e(f"s_add_u32 s{XB[cc]}, s{sT0}, s{sOOWN}")
        e(f"s_lshl_b32 s{sOOWN}, s{sSPIN}, 20"); e(f"s_add_u32 s{WB[cc]}, s{sT2}, s{sOOWN}")
    e(f"v_lshlrev_b32 {v(vLIN)}, 4, v0")
    e(f"s_mul_i32 s98, s2, {WGS}"); e(f"s_lshl_b32 s99, s{sW5K}, 1"); e("s_add_u32 s98, s98, s99"); e("s_mov_b32 s101, 9216")
    for q in range(4): e(f"v_mov_b32 v{76+q}, -1")
    e("s_waitcnt lgkmcnt(0)")
    emit(mk_srd(SRD_X, 4, 58, 81920)); emit(mk_srd(SRD_WQ, 10, 59, f"s{sT3}"))
    stamp("k")
    PROG = "prog" in X
    def p1_dma(cc):
        gx = [[f"s_add_u32 m0, s{sW1K}, {S_ST[cc] + pp*4096}", f"s_add_u32 s{sT3}, s{XB[cc]}, {pp*16384}",
               f"buffer_load_dwordx4 {v(vXO)}, {srd(SRD_X)}, s{sT3} offen lds @c{cc}" + (f"x{pp}" if cc == 3 and PROG else "")] for pp in range(5)]
        gw = [[f"s_add_u32 m0, s{sSLOT}, {S_ST[cc] + 20480 + pp*1024}", f"s_add_u32 s{sT3}, s{WB[cc]}, {4*pp*8192}",
               f"buffer_load_dwordx4 {v(vWO + ((pp >> 1) & 1))}, {srd(SRD_WQ)}, s{sT3} offen lds @c{cc}"] for pp in range(8)]
        return gw + gx if cc == 3 and PROG else gx + gw
    c01 = p1_dma(0) + p1_dma(1)
    n0 = opt("n0", 13)
    t0, t1, t2, u1, u2 = 68, 69, 70, 71, 72
    def setup():
        U1, U2, T0, T1, T2 = v(u1), v(u2), v(t0), v(t1), v(t2)
        e(f"s_lshl_b32 s98, s{sB}, 3"); e(f"s_add_u32 s98, s98, s{sHKV}"); e("s_lshl_b32 s98, s98, 18")
        e(f"s_lshl_b32 s99, s{sW}, 16"); e("s_add_u32 s98, s98, s99")
        emit(mk_srd(SRD_K, 6, 98, 65536)); emit(mk_srd(SRD_V, 8, 98, 65536))
        e(f"s_bitcmp1_b32 s{sB}, 0")
        for r, f in ((sSEQ, seqword), (sSK, lambda q: seqtail(q, 3)), (sSV, lambda q: seqtail(q, 2))):
            e(f"s_mov_b32 s{r}, {f(SEQ[1])}"); e(f"s_cselect_b32 s{r}, {f(SEQ[2])}, s{r}")
        e(f"s_bitcmp1_b32 s{sI}, 0")
        for r, f in ((sSEQ, seqword), (sSK, lambda q: seqtail(q, 3)), (sSV, lambda q: seqtail(q, 2))):
            e(f"s_cselect_b32 s{r}, s{r}, {f(SEQ[0])}")
        e(f"v_lshlrev_b32 {U2}, 4, v1"); e(f"v_lshl_add_u32 {v(vXR)}, v4, 8, {U2}")
        for ks in range(1, 4): e(f"v_xor_b32 {v(vXR+ks)}, {ks*64}, {v(vXR)}")
        e(f"v_lshl_add_u32 {v(vOK)}, v5, 8, {U2}")
        for q in range(1, 4): e(f"v_xor_b32 {v(vOK+q)}, {q*64}, {v(vOK)}")
        e(f"v_lshrrev_b32 {T0}, 2, v4"); e(f"v_lshlrev_b32 {T0}, 3, {T0}"); e(f"v_and_b32 {U1}, 3, v4"); e(f"v_add_u32 {T0}, {T0}, {U1}")
        e(f"v_lshl_add_u32 {U2}, {T0}, 8, {U2}"); e(f"v_add_u32 {U2}, s{sSLOT}, {U2}"); e(f"v_add_u32 {v(vKR)}, {R_A}, {U2}")
        for ds in range(1, 4): e(f"v_xor_b32 {v(vKR+ds)}, {ds*64}, {v(vKR)}")
        e(f"v_lshl_add_u32 {U2}, v5, 3, v6"); e(f"v_lshlrev_b32 {U2}, 8, {U2}"); e(f"v_lshl_add_u32 {U2}, v7, 3, {U2}")
        e(f"v_and_b32 {T0}, 1, v5"); e(f"v_lshl_add_u32 {T0}, {T0}, 2, v6")
        e(f"s_lshl_b32 s98, s{sW}, 1")
        for k in range(8):
            e(f"s_add_u32 s99, s98, {k}"); e("s_and_b32 s99, s99, 7")
            e(f"v_xor_b32 {U1}, s99, {T0}"); e(f"v_lshl_add_u32 {U1}, {U1}, 5, {U2}")
            if k < 2: e(f"v_add_u32 {v(vWR+k)}, 20480, {U1}")
            e(f"v_add_u32 {v(vVR+k)}, s{sSLOT}, {U1}")
        for r in range(160): e(f"v_mov_b32 {v(vO+r)}, 0")
        e("s_and_b32 s98, s2, 63"); e(f"s_mul_i32 s98, s98, {WGS}"); emit(mk_srd(SRD_O, 18, 98, 3*HEADSTRIDE + WGS))
        e(f"s_mul_i32 s{sOOWN}, s{sI}, {HEADSTRIDE}"); e(f"s_lshl_b32 s100, s{sW5K}, 1"); e(f"s_add_u32 s{sOOWN}, s{sOOWN}, s100")
        e(f"s_lshl_b32 s{sFOWN}, s2, 2"); e(f"s_add_u32 s{sFOWN}, s{sFOWN}, s{sW}"); e(f"s_lshl_b32 s{sFOWN}, s{sFOWN}, 6"); e(f"s_add_u32 s{sFOWN}, s{sFOWN}, {WS_FLG}")
        e("s_and_b32 s98, s2, 63"); e("s_lshl_b32 s98, s98, 2"); e(f"s_add_u32 s98, s98, s{sW}"); e("s_lshl_b32 s98, s98, 6"); e(f"s_add_u32 s98, s98, {WS_FLG}")
        e(f"v_and_b32 {T0}, 3, v0"); e(f"v_lshl_add_u32 {T0}, {T0}, 14, s98")
        e("s_and_b32 s98, s2, 0xf8"); e("s_lshl_b32 s98, s98, 8"); e(f"s_lshr_b32 s99, s{sHKV}, 1"); e("s_lshl_b32 s99, s99, 6")
        e("v_cmp_gt_u32 vcc, 16, v0"); e("s_add_u32 s98, s98, s99"); e(f"s_add_u32 s98, s98, {WS_FLG + 4}")
        e(f"v_and_b32 {T1}, 7, v0"); e(f"v_lshl_add_u32 {T1}, {T1}, 8, s98"); e(f"v_cndmask_b32 {T0}, {T1}, {T0}, vcc")
        e(f"v_accvgpr_write_b32 {a(aPRB)}, {T0}")
        e(f"s_lshl_b32 s98, s{sHKV}, 19"); e(f"s_lshl_b32 s99, s{sI}, 8"); e("s_add_u32 s98, s98, s99"); e("s_sub_u32 s99, 524288, s99")
        emit(mk_srd(SRD_WO, 12, 98, "s99"))
        e(f"v_lshlrev_b32 {U1}, 2, v5"); e(f"v_sub_u32 {U1}, v4, {U1}"); e(f"v_and_b32 {U2}, 1, {U1}"); e(f"v_lshlrev_b32 {U2}, 4, {U2}")
        e(f"v_mov_b32 {T0}, 0x3f80"); e(f"v_lshlrev_b32 {U2}, {U2}, {T0}"); e(f"v_lshrrev_b32 {U1}, 1, {U1}")
        e(f"v_cmp_eq_u32 vcc, 0, {U1}"); e(f"v_accvgpr_write_b32 {a(aE)}, 0"); e(f"v_accvgpr_write_b32 {a(aE+1)}, 0"); e(f"v_cndmask_b32 {T0}, 0, {U2}, vcc")
        e(f"v_cmp_eq_u32 vcc, 1, {U1}"); e(f"v_accvgpr_write_b32 {a(aE+4)}, 0"); e(f"v_accvgpr_write_b32 {a(aE+5)}, 0"); e(f"v_cndmask_b32 {T1}, 0, {U2}, vcc")
        e(f"v_accvgpr_write_b32 {a(aE+2)}, {T0}"); e(f"v_accvgpr_write_b32 {a(aE+3)}, {T1}")
        for mrel in (1, 2, 3, 0):
            e(f"s_add_u32 s99, s{sW}, {mrel}"); e("s_and_b32 s99, s99, 3"); e("s_mul_i32 s98, s99, 3072")
            if mrel > 1: e(f"s_add_u32 s98, s98, {(mrel-1)*1024}")
            e(f"v_add_u32 {U1}, s98, {v(vLIN)}"); e(f"v_accvgpr_write_b32 {a(aADR + (mrel - 1) % 4)}, {U1}")
        e(f"s_lshl_b32 s98, s{sW}, 2"); e(f"s_add_u32 s98, s98, {R_SP}"); e(f"v_lshl_add_u32 {U1}, v4, 4, s98")
        if "lsame" not in X: e(f"v_mul_u32_u24 {U2}, 1288, v5"); e(f"v_add_u32 {U1}, {U1}, {U2}")
        e(f"v_accvgpr_write_b32 {a(aADR+4)}, {U1}")
        e(f"v_lshlrev_b32 {U1}, 4, v4"); e(f"v_add_u32 {U1}, {R_SP}, {U1}"); e(f"v_accvgpr_write_b32 {a(aADR+5)}, {U1}")
        e(f"v_and_b32 {U1}, 1, v5"); e(f"v_lshlrev_b32 {U1}, 1, {U1}"); e(f"v_xor_b32 {U1}, v4, {U1}"); e(f"v_lshlrev_b32 {U1}, 4, {U1}"); e(f"v_lshl_add_u32 {U1}, v5, 12, {U1}")
        for q in range(4): e(f"v_xor_b32 {U2}, {q*64}, {U1}"); e(f"v_accvgpr_write_b32 {a(aADR+6+q)}, {U2}")
        e(f"v_lshl_add_u32 {U2}, v6, 2, v5"); e(f"v_lshlrev_b32 {U2}, 8, {U2}"); e(f"v_lshl_add_u32 {U2}, v7, 3, {U2}")
        e(f"v_and_b32 {T0}, 1, v5"); e(f"v_lshl_add_u32 {T0}, v6, 1, {T0}")
        e(f"s_lshl_b32 s98, s{sW}, 1")
        for k in range(2):
            e(f"s_add_u32 s99, s98, {k}")
            e(f"v_xor_b32 {U1}, s99, {T0}"); e(f"v_lshl_add_u32 {U1}, {U1}, 5, {U2}"); e(f"v_add_u32 {U1}, {R_A}, {U1}"); e(f"v_accvgpr_write_b32 {a(aADR+10+k)}, {U1}")
        for h in range(4):
            e(f"s_add_u32 s98, s{sI}, {h}"); e("s_and_b32 s98, s98, 3")
            e(f"s_mul_i32 s99, s98, {HEADSTRIDE}"); e(f"s_add_u32 s{sSIB+h}, s99, s100")
            e("s_lshl_b32 s98, s98, 2"); e(f"s_add_u32 s98, s98, s{sW}"); e(f"s_lshl_b32 s{sWOB+h}, s98, 15")
        for r in range(20): e(f"v_accvgpr_write_b32 {a(aL+r)}, 0")
        e(f"v_mov_b32 {U1}, 0x3f803f80")
        for r in range(4): e(f"v_accvgpr_write_b32 {a(aONE+r)}, {U1}")
        e(f"s_mov_b32 s{sQS}, {f2u(QSCALE)}"); e(f"s_lshl_b32 s98, s{sW}, 2")
        Q = v(vQW); Q1 = v(vQW + 1)
        e(f"v_lshrrev_b32 {Q}, 1, v5"); e(f"v_add_u32 {Q}, s98, {Q}"); e(f"v_xor_b32 {Q}, {Q}, v4"); e(f"v_lshlrev_b32 {Q}, 4, {Q}")
        e(f"v_lshl_add_u32 {Q}, v4, 8, {Q}"); e(f"v_and_b32 {Q1}, 1, v5"); e(f"v_lshl_add_u32 {Q}, {Q1}, 3, {Q}"); e(f"v_add_u32 {Q}, {R_QX}, {Q}"); e(f"v_xor_b32 {Q1}, 32, {Q}")
    fill = capture(setup)
    ne = min(opt("ne", 999), len(fill))
    while ne < len(fill) and glued(fill, ne): ne += 1
    early, fill = fill[:ne], fill[ne:]
    groups = list(c01[:n0])
    pin = [[f"buffer_store_dwordx4 v[76:79], {v(vLIN)}, {srd(SRD_PI)}, " + (f"0 offen offset:{j*1024}" if j < 4 else "s101 offen") + " sc1 @ip"] for j in range(5)] if EARLYINIT else []
    tch = []
    for nm, isK, t in (("tk0", True, 0), ("tv0", False, 0), ("tk1", True, 1)):
        n = opt(nm, 0)
        if n: tch.append([f"s_mul_i32 s58, s{sSTEP}, {t}", f"s_add_u32 s58, s58, s{sMIR}", f"s_lshr_b32 s59, s{sI}, 1", "s_lshl_b32 s59, s59, 12", "s_add_u32 s58, s58, s59",
                          f"s_mov_b64 exec, {(1 << n) - 1}" if n < 32 else "s_mov_b32 exec_hi, 0", f"buffer_load_dword {v(vJUNK)}, v3, {srd(SRD_K if isK else SRD_V)}, s58 offen @tch", "s_mov_b64 exec, -1"])
    tp = opt("tp", 13)
    if tp < 90: groups = groups[:tp] + tch + groups[tp:]; tch = []
    ipos = opt("ipos", 99)
    if ipos < 90: groups = groups[:ipos] + pin + groups[ipos:]; pin = []
    for _ in range(opt("pre", 4)): emit(groups.pop(0))
    emit(mk_srd(SRD_PI, 18, 98, WVS))
    per = opt("per", max(1, min(len(early), 260) // (len(groups) + 1))); k = 0
    while early:
        L.append("    " + early.pop(0)); k += 1
        if k >= per and groups and (not early or not glued(early, 0)): emit(groups.pop(0)); k = 0
    emit(flat(groups))
    fg = []
    for x in fill:
        if fg and x.split()[0] in GLUE: fg[-1].append(x)
        else: fg.append([x])
    flag_reset = ["s_mov_b64 exec, 1", f"v_mov_b32 v2, s{sFOWN}",
                  "global_store_dwordx2 v2, v[76:77], s[18:19] sc1 @frst", "s_mov_b64 exec, -1"]
    L.append("; ---- query projection")
    acc = vP; aX = aV; aWf = aV + 40; aX3 = aQ; aW3 = aK + 32
    def reads(cc, ks):
        buf = ks & 1
        r = [f"ds_read_b64_tr_b16 {a(aWf + buf*8 + dd*4 + jh*2, 2)}, {v(vWR+dd)} offset:{ks*8192 + jh*1024}" for dd in range(2) for jh in range(2)]
        return r + [f"ds_read_b128 {a(aX + buf*20 + j*4, 4)}, {v(vXR+ks)} offset:{j*4096} @p{cc}{ks}{j}" for j in range(5)]
    def wrd(ks): return [f"ds_read_b64_tr_b16 {a(aW3 + (ks*2+dd)*4 + jh*2, 2)}, {v(vWR+dd)} offset:{ks*8192 + jh*1024} @w{ks}" for dd in range(2) for jh in range(2)]
    def xrd(j, ks): return f"ds_read_b128 {a(aX3 + (j*4+ks)*4, 4)}, {v(vXR+ks)} offset:{j*4096} @x{j}{ks}"
    if OPT.get("at") == "split": emit(["s_mov_b64 exec, 1", f"v_mov_b32 v2, s{sFOWN}", "global_store_dwordx2 v2, v[76:77], s[18:19] sc1 @frst", "s_mov_b64 exec, -1"])
    stamp("setup")
    TL = OPT.get("tlb", "")
    if TL:
        assert not fill
        e("s_mov_b64 exec, 1"); e("v_mov_b32 v2, 0")
        if "v" in TL: e(f"buffer_load_dword {v(vJUNK)}, v2, {srd(SRD_V)}, 0 offen")
        if "k" in TL: e(f"buffer_load_dword {v(vJUNK)}, v2, {srd(SRD_K)}, 0 offen")
        if "w" in TL: e(f"buffer_load_dword {v(vJUNK)}, v2, {srd(SRD_WO)}, 0 offen")
        if "s" in TL:
            for h in range(4): e(f"buffer_load_dword {v(vJUNK)}, v2, {srd(SRD_O)}, s{sSIB+h} offen")
            e(f"v_mov_b32 v1, s{sFOWN}"); e(f"global_load_dword {v(vJUNK)}, v1, s[18:19]")
        if "o" in TL:
            e(f"s_mul_i32 s58, s{sB}, 81920"); e("v_mov_b32 v1, s58"); e(f"global_load_dword {v(vJUNK)}, v1, s[14:15]")
        if "d" in TL: e(f"global_load_dword {v(vJUNK)}, v2, s[16:17]")
        e("s_mov_b64 exec, -1")
    TB = [x for x in OPT.get("tb", "V0,V1").split(",") if x and x != "no"]
    if TB:
        tgrp = [f"s_bfe_u32 s58, s{sB}, {(1 << 16) | opt('tbit', 0)}", f"s_lshr_b32 s59, s{sI}, 1", "s_cmp_eq_u32 s58, s59", "s_cselect_b32 s58, 0, 0x10000", "s_cselect_b64 exec, -1, 1"]
        for x in TB:
            if len(x) > 2: tgrp.append("s_mov_b32 exec_hi, 0")
            tgrp += [f"s_bfe_u32 s59, s{sSEQ}, {(4 << 16) | (4*int(x[1]))}", "s_lshl_b32 s59, s59, 13", "s_or_b32 s59, s59, s58"] + (["s_or_b32 s59, s59, 4096"] if x.endswith("b") else [])
            tgrp.append(f"buffer_load_dword {v(vJUNK)}, v3, {srd(SRD_K if x[0] == 'K' else SRD_V)}, s59 offen @tch")
        if OPT.get("at") == "split":
            tgrp += ["s_mov_b64 exec, 1", f"s_lshl_b32 s59, s{sW}, 16", "s_or_b32 s58, s58, s59", f"s_cmp_eq_u32 s{sRANGE}, -1", "s_cselect_b32 s58, 0x10000, s58", f"s_lshl_b32 s59, s{sB}, 5", "s_or_b32 s58, s58, s59",
                     "s_mov_b32 s84, s16", "s_mov_b32 s85, s17", "s_mov_b32 s86, 256", "s_mov_b32 s87, 0x20000", "v_mov_b32 v1, 1", "v_mov_b32 v2, 0",
                     "buffer_atomic_add v1, v2, s[84:87], s58 offen sc1 @tch"]
        tgrp.append("s_mov_b64 exec, -1")
        if opt("tq", -1) == -1: emit(tgrp)
    e("WAITVM frst" if OPT.get("at") == "split" else "WAITVM c0"); e("s_barrier"); stamp("c0")
    emit(reads(0, 0))
    if TB and opt("tq", -1) == 0: emit(tgrp)
    M = []; G = {g: [] for g in range(-1, 160)}
    for cc in range(3):
        for ks in range(4):
            g0 = len(M); buf = ks & 1
            for j in range(5):
                for dd in range(2):
                    d = v(acc + (j*2+dd)*4, 4)
                    M.append(f"{MF} {d}, {a(aWf + buf*8 + dd*4, 4)}, {a(aX + buf*20 + j*4, 4)}, {'0' if (cc == 0 and ks == 0) else d}")
            G[g0 - 1].append(f"WAITLG p{cc}{ks}1"); G[g0 + 3].append(f"WAITLG p{cc}{ks}4")
            if ks < 3:
                r = reads(cc, ks + 1)
                G[g0] += r[0:3]; G[g0 + 1] += r[3:6]; G[g0 + 2] += r[6:9]
            else:
                dl = [53248, 53248, -106496][cc]
                adj = [f"v_add_u32 {v(vXR+q)}, {dl}, {v(vXR+q)}" for q in range(4)] + [f"v_add_u32 {v(vWR+q)}, {dl}, {v(vWR+q)}" for q in range(2)]
                for gi in range(3): G[g0 + gi] += adj[2*gi:2*gi+2]
                G[g0 + 3] += [f"WAITVM c{cc+1}" + ("x0" if cc == 2 and PROG else ""), "s_barrier", f"STAMP c{cc+1}"]
                r = reads(cc + 1, 0) if cc < 2 else (wrd(0) + [xrd(0, 0)] + wrd(1) + [xrd(0, 1)] + wrd(2) + [xrd(0, 2)])
                for gi in range(5): G[g0 + 4 + gi] += r[3*gi:3*gi+3]
    posts = []
    for j in range(5):
        g0 = len(M)
        for ks in range(4):
            for dd in range(2):
                d = v(acc + (j*2+dd)*4, 4)
                M.append(f"{MF} {d}, {a(aW3 + (ks*2+dd)*4, 4)}, {a(aX3 + (j*4+ks)*4, 4)}, {d}")
        if j == 0 and not PROG:
            G[g0 - 1].append("WAITLG x00"); G[g0] += wrd(3)[:3]; G[g0 + 1] += [wrd(3)[3], xrd(0, 3), "WAITLG x01"]
            G[g0 + 2] += [xrd(1, 0), xrd(1, 1)]; G[g0 + 3] += ["WAITLG x02", xrd(1, 2), xrd(1, 3)]
            G[g0 + 5] += ["WAITLG x03", "s_barrier"]
        elif j == 0:
            G[g0 - 1].append("WAITLG x00"); G[g0] += wrd(3)[:3]; G[g0 + 1] += [wrd(3)[3], xrd(0, 3), "WAITLG x01"]
            G[g0 + 2] += ["WAITVM c3x1", "s_barrier", xrd(1, 0)]; G[g0 + 3] += ["WAITLG x02", xrd(1, 1), xrd(1, 2)]; G[g0 + 4] += [xrd(1, 3)]
            G[g0 + 5] += ["WAITLG x03"]
        else:
            G[g0 - 1].append(f"WAITLG x{j}3")
            if j < 4:
                if PROG: G[g0 - 1] += [f"WAITVM c3x{j+1}", "s_barrier"]
                for ks in range(4): G[g0 + ks].append(xrd(j + 1, ks))
        for dd in range(2):
            r = acc + (j*2+dd)*4
            p = [f"v_mul_f32 {v(r+q)}, s{sQS}, {v(r+q)}" for q in range(4)]
            p += [f"v_cvt_pk_bf16_f32 {v(r)}, {v(r)}, {v(r+1)}", f"v_cvt_pk_bf16_f32 {v(r+1)}, {v(r+2)}, {v(r+3)}",
                  f"ds_write_b64 {v(vQW + dd)}, {v(r, 2)} offset:{j*4096} @qw"]
            posts += [(g0 + 8 + 2, x) for x in p]
    c2 = p1_dma(2); c3 = p1_dma(3); k0d = kv_dma(True, R_A, "K0"); k0d[0] = set_T(True, 0) + k0d[0]
    ka, kb, late, nv0, sp3 = opt("ka", 3), opt("kb", 8), opt("late", 22), opt("nv0", 4), opt("dsp3", 4)
    v0g = kv_dma(False, R_C, "V0"); v0g[0] = set_T(False, 0) + v0g[0]
    k1g = kv_dma(True, R_B, "K1"); k1g[0] = set_T(True, 1) + k1g[0]
    dq = [(0, g) for g in c01[n0:] + tch + c2[:ka]] + [(late, g) for g in c2[ka:kb]] + [(34, g) for g in c2[kb:] + c3[:ka]] + \
         [(40 + late, g) for g in c3[ka:kb]] + [(74, g) for g in c3[kb:] + (pin if ipos == 99 else []) + k0d[:ka]] + [(80 + opt("latek", late), g) for g in k0d[ka:kb] + ([] if OPT.get("at") == "split" else [flag_reset])] + \
         [(114, g) for g in k0d[kb:] + (pin if ipos == 98 else []) + k1g + v0g[:nv0]]
    if TB and opt("tq", -1) > 0:
        k = opt("tq", -1); dq.insert(k, (dq[k - 1][0], tgrp))
    left = []; t = 0
    rush = opt("rush", 0); last = [g for r_, g in dq if r_ == 114][:rush]
    for g in last: G[113] += list(g); dq.remove((114, g))
    for rdy, g in dq:
        t = max(t, rdy)
        while t < 160 and (sum(1 for x in G[t] if x.startswith("ds_read")) > (1 if t >= 120 else 0) or "s_barrier" in G[t]): t += 1
        if t < 160: G[t] = G[t] + list(g)
        else: left.append(g)
        t += 1 if t < 114 else sp3
    drain = sched(M, G, [posts, [(0, g) for g in fg] + [(0, "MARK fill")]], need={33: ["fill"]}, limit=20)
    for ks in range(4): e(f"v_add_u32 {v(vXR+ks)}, {R_QX}, {v(vXR+ks)}")
    e(f"s_mov_b32 s{SRD_D}, s16"); e(f"s_mov_b32 s{SRD_D+1}, s17"); e(f"s_mov_b32 s{SRD_D+2}, 256"); e(f"s_mov_b32 s{SRD_D+3}, 0x20000")
    drain(0); emit(left)
    e("WAITVM frst"); e("WAITLG qw"); e("s_barrier")
    stamp("Bq")
    def qrd(j): return [f"ds_read_b128 {a(aQ + (j*4+ds)*4, 4)}, {v(vXR+ds)} offset:{j*4096} @q{j}" for ds in range(4)]
    emit(qrd(0))
    e("WAITVM K0")
    emit(kreads(0, "k0"))
    for r in range(20): e(f"v_mov_b32 {v(vNM+r)}, 0")
    e(f"s_lshl_b32 s{sT1}, s{sB}, 5")
    e(f"s_cmp_eq_u32 s{sRANGE}, -1"); e("s_cbranch_scc1 L_rowmax")
    AT = OPT.get("at", "bq")
    if AT in ("bq", "split"):
        e(f"s_cmp_lg_u32 s{sW}, 0"); e("s_cbranch_scc1 L_noat")
        if AT == "split": e(f"s_and_b32 s58, s{sB}, 1"); e(f"s_lshr_b32 s59, s{sI}, 1"); e("s_cmp_eq_u32 s58, s59"); e("s_cbranch_scc1 L_noat")
        e("s_mov_b64 exec, 1"); e("v_mov_b32 v1, 1"); e("v_mov_b32 v2, 0")
        L.append(f"    buffer_atomic_add v1, v2, {srd(SRD_D)}, s{sT1} offen sc1")
        e("s_mov_b64 exec, -1")
    lab("L_noat")
    e("WAITLG q0"); emit(qrd(1)); e("WAITLG k0"); emit(qrd(2) + qrd(3))
    L.append("; ---- first score tile")
    k2g = kv_dma(True, R_A, "K2"); k2g[0] = set_T(True, 2) + k2g[0]
    v1g = kv_dma(False, R_D, "V1"); v1g[0] = set_T(False, 1) + v1g[0]
    dm = v0g[nv0:] + (v1g + k2g if VF else k2g + v1g)
    rdk = kreads(1, "k1"); rdv = vreads(0, "v0")
    for j in range(5):
        sb = (5 + j) & 1
        gaps = {g: [] for g in range(-1, 8)}
        if j > 0:
            gaps[-1].append(f"WAITLG q{j}")
            ex = exps(sb ^ 1); cv = cvts(sb ^ 1, j - 1)
            for n in range(8): gaps[n].append(ex[n])
            gaps[2].append(cv[0]); gaps[4].append(cv[1]); gaps[6].append(cv[2]); gaps[7] += ["s_nop 0", cv[3]]
        if j == 1: gaps[-1] += [f"v_add_u32 {v(vVRC+k)}, {R_C}, {v(vVR+k)}" for k in range(8)] + [f"v_mov_b32 {v(vSENT+q)}, -1" for q in range(4)]
        if j == 0:
            for n in range(8):
                if dm: gaps[n] += dm.pop(0)
            gaps[3] += ["WAITLG q1"] + qrd(4)
        else:
            for n in (0, 2, 4, 6):
                if dm: gaps[n] = dm.pop(0) + gaps[n]
            if j == 2:
                gaps[1].insert(0, "WAITVM K1")
                for n in (1, 3, 5, 7): gaps[n] += [rdk.pop(0), rdk.pop(0)]
            if j == 3: gaps[1].insert(0, "WAITVM V0")
            if j >= 3:
                for n in (1, 3, 5, 7): gaps[n] += [rdv.pop(0), rdv.pop(0)]
        interleave(qk(j, 0, sb), gaps)
    emit(flat(dm))
    e(f"s_mov_b32 s{sCNT}, 0")
    emit(set_T(True, 3) + set_T(False, 2))
    if OPT.get("hm"):
        me, mo = OPT["hm"].split(",")
        emit([f"s_lshl_b32 s58, s{sB}, 2", f"s_add_u32 s58, s58, s{sI}", "s_lshl_b32 s58, s58, 2", f"s_add_u32 s58, s58, s{sW}",
              "s_lshl_b32 s58, s58, 12", f"s_lshl_b32 s59, s{sI}, 8", "s_sub_u32 s58, s58, s59", "v_add_u32 v2, s58, v3",
              f"s_bitcmp1_b32 s{sB}, 0", f"s_cselect_b32 s{sOI}, {mo}, {me}"])
    e("s_waitcnt lgkmcnt(0)")
    stamp("pro")
    jitter(15, 9)
    L.append("; ---- main loop: key tiles 0..4")
    def base_iter(par):
        G = {g: [] for g in range(-1, 85)}; M = []
        for j in range(5):
            sb = (5*par + j) & 1
            M += qk(j, par ^ 1, sb) + pv(j, par)
            put_exp(G, 17*j, sb ^ 1, (j - 1) % 5)
        return M, G
    def half_va(par):
        kd = flat(kv_dma(True, KSLOT[par ^ 1], "lk", nop=False)); vd = flat(kv_dma(False, VSLOT[par], "lv", nop=False))
        G = {g: [] for g in range(-1, 80)}; M = []
        LR = [92, 93, 94, 95, 1]
        for j in range(5):
            sb = (5*par + j) & 1; b = 16*j; jp = (j - 1) % 5; r = vS + (sb ^ 1)*8
            M += qk(j, par ^ 1, sb) + pv(j, par)[:-1]
            ex = exps(sb ^ 1); cv = cvts(sb ^ 1, jp)
            for n in range(8):
                G[b + 2*n].append(ex[n])
                G[b + 2*n + 1].append(f"v_add_f32 {v(LR[jp])}, {v(LR[jp])}, {v(r + n)}")
                if n & 1: G[b + 2*n + 1].append(cv[n >> 1])
        dpos = [1, 5, 11, 15, 21, 25, 31, 35, 41, 45, 51, 55, 61, 65, 71, 75]; mpos = [-1, 17, 37, 57]
        ev = "vaexp" in X
        if ev:
            vpos = [27, 28, 29, 30, 32, 33, 34, 36, 38, 39, 40, 42, 43, 44, 46, 47]; kpos = [59, 60, 62, 63, 64, 66, 67, 68]; vw, kw = 26, 58; tpos = [69, 77, 23, 39]
        else:
            vpos = [27, 29, 29, 33, 33, 37, 39, 41, 43, 45, 47, 49, 49, 53, 53, 57]; kpos = [61, 63, 65, 67, 69, 69, 73, 73]; vw, kw = 25, 59; tpos = [77, 77, 19, 43]
        dma = vd + kd
        for p, s in zip(mpos, [s for s in dma if "m0" in s]): G[p].append(s)
        for p, s in zip(dpos, [s for s in dma if "m0" not in s]): G[p].append(s)
        G[kw].append(f"s_waitcnt vmcnt({sum(1 for p in dpos if p <= kw)})")
        for p, s in zip(kpos, kreads(par)): G[p].append(s)
        G[vw].append(f"s_waitcnt vmcnt({8 + sum(1 for p in dpos if p <= vw)})")
        for p, s in zip(vpos, vreads(par ^ 1)): G[p].append(s)
        for p, r in zip(tpos, (sTK, sTK2, sTV, sTV2)): G[p].append(f"s_add_u32 s{r}, s{r}, s{sSTEP}")
        if par == 0: G[13].append(f"s_add_u32 s{sCNT}, s{sCNT}, 1"); G[79].append(f"s_cmp_eq_u32 s{sCNT}, 3")
        G[79].insert(0, "s_waitcnt lgkmcnt(0)")
        G = {g: [s for s in l if not isv(s)] + [s for s in l if isv(s)] for g, l in G.items()}
        interleave(M, G)
    def half(par):
        if "va" in X or "vaexp" in X: return half_va(par)
        kd = flat(kv_dma(True, KSLOT[par ^ 1], "lk", nop=False)); vd = flat(kv_dma(False, VSLOT[par], "lv", nop=False))
        dma = vd + kd if VF else kd + vd
        M, G = base_iter(par)
        for p, s in zip(S["mpos"], [s for s in dma if "m0" in s]): G[p].append(s)
        for p, s in zip(S["dpos"], [s for s in dma if "m0" not in s]): G[p].append(s)
        G[S["kw"]].append(f"s_waitcnt vmcnt({(0 if VF else 8) + sum(1 for p in S['dpos'] if p <= S['kw'])})")
        for p, s in zip(S["kpos"], kreads(par)): G[p].append(s)
        G[S["vw"]].append(f"s_waitcnt vmcnt({(8 if VF else 0) + sum(1 for p in S['dpos'] if p <= S['vw'])})")
        for p, s in zip(S["vpos"], vreads(par ^ 1)): G[p].append(s)
        for p, q, r, w in ((S["tpos"][0], S["tpos"][1], sTK, sSK), (S["tpos"][2], S["tpos"][3], sTV, sSV)):
            G[16 if r == sTV else 1].append(f"s_lshr_b32 s{w}, s{w}, 3"); G[p].append(f"s_and_b32 s{r}, s{w}, 0xe000"); G[q].append(f"s_or_b32 s{r+1}, s{r}, 4096")
        if par == 0: G[79].append(f"s_add_u32 s{sCNT}, s{sCNT}, 1"); G[84].append(f"s_cmp_eq_u32 s{sCNT}, 3")
        if par == 1 and opt("hkb", 0): G[opt("hkb", 0)] += [f"s_cmp_eq_u32 s{sCNT}, {opt('hk', 1)}", "s_cbranch_scc1 L_hook", "LABEL L_back"]
        if VF: G[83].append("s_waitcnt lgkmcnt(0)")
        else: G[84].insert(0, "s_waitcnt lgkmcnt(15)"); G[7].append("s_waitcnt lgkmcnt(0)")
        G = {g: [s for s in l if not isv(s)] + [s for s in l if isv(s)] for g, l in G.items()}
        interleave(M, G)
    L.append(".p2align 6")
    for _ in range(opt("ph", 0)): L.append("    s_nop 0")
    lab("L_loop")
    WOT = [f"s_lshl_b32 s58, s{sB}, 2", f"s_add_u32 s58, s58, s{sI}", "s_lshl_b32 s58, s58, 2", f"s_add_u32 s58, s58, s{sW}",
           "s_lshl_b32 s58, s58, 12", f"s_lshl_b32 s59, s{sI}, 8", "s_sub_u32 s58, s58, s59", "v_add_u32 v2, s58, v3", "s_mov_b32 exec_hi, 0",
           f"buffer_load_dword v1, v2, {srd(SRD_WO)}, 0 offen", "s_mov_b32 exec_hi, -1"]
    HM = OPT.get("hm")
    hooks = []
    def hook():
        if not HM: return
        k = len(hooks); hooks.append(k)
        e(f"s_bitcmp1_b32 s{sOI}, 0"); e(f"s_cbranch_scc1 L_hk{k}"); lab(f"L_hr{k}"); e(f"s_lshr_b32 s{sOI}, s{sOI}, 1")
    if "unroll" in X:
        half(0); hook(); stamp("i0"); half(1); hook(); stamp("i1"); half(0); hook(); stamp("i2")
        if opt("wt5", -1) < 0 and not HM: e("s_branch L_hook")
        lab("L_back")
        half(1); hook(); stamp("i3"); half(0); e("s_branch L_exit")
    else:
        half(0)
        e("s_cbranch_scc1 L_exit")
        if opt("wt5", -1) >= 0 or HM: lab("L_back")
        else: e(f"s_cmp_eq_u32 s{sCNT}, {opt('hk', 2)}"); e("s_cbranch_scc1 L_hook"); lab("L_back")
        hook()
        half(1)
        hook()
        e("s_branch L_loop")
    lab("L_hook")
    if "wol" in X:
        emit([f"s_and_b32 s58, s{sB}, 1", f"s_lshr_b32 s59, s{sI}, 1", "s_cmp_eq_u32 s58, s59", "s_cbranch_scc1 L_back",
              f"s_and_b32 s58, s{sI}, 1", f"s_xor_b32 s59, s{sB}, 1", "s_lshl_b32 s59, s59, 1", "s_add_u32 s58, s58, s59", "s_lshl_b32 s58, s58, 2", f"s_add_u32 s58, s58, s{sW}",
              "s_lshl_b32 s58, s58, 13", f"s_lshl_b32 s59, s{sI}, 8", "s_sub_u32 s58, s58, s59", "v_add_u32 v2, s58, v3",
              f"buffer_load_dword v1, v2, {srd(SRD_WO)}, 0 offen", "s_branch L_back"])
    else:
        emit(WOT)
        if OPT.get("at") == "hook":
            e(f"s_cmp_lg_u32 s{sW}, 0"); e("s_cbranch_scc1 L_noat2"); e(f"s_cmp_eq_u32 s{sRANGE}, -1"); e("s_cbranch_scc1 L_noat2")
            e("s_mov_b64 exec, 1"); e("v_mov_b32 v1, 1"); e("v_mov_b32 v2, 0")
            L.append(f"    buffer_atomic_add v1, v2, {srd(SRD_D)}, s{sT1} offen sc1"); e("s_mov_b64 exec, -1"); lab("L_noat2")
        if "pfc2" in X:
            e("s_getpc_b64 s[58:59]"); lab("L_pc1")
            e(f"s_lshr_b32 s{sT3}, s2, 3"); e(f"s_lshl_b32 s{sT3}, s{sT3}, 2"); e(f"s_add_u32 s{sT3}, s{sT3}, s{sW}"); e(f"s_lshl_b32 s{sT3}, s{sT3}, 7")
            e(f"s_min_u32 s{sT3}, s{sT3}, L_end-L_pc1-4"); e(f"v_mov_b32 v2, s{sT3}")
            e("s_mov_b64 exec, 1"); L.append("    global_load_dword v1, v2, s[58:59]"); e("s_mov_b64 exec, -1")
        e("s_branch L_back")
    for k in hooks:
        nl = opt("hl", 16)
        lab(f"L_hk{k}"); e(f"s_mov_b64 exec, {(1 << nl) - 1}"); L.append(f"    buffer_load_dword v1, v2, {srd(SRD_WO)}, 0 offen"); e("s_mov_b64 exec, -1")
        e(f"v_add_u32 v2, {nl*128}, v2"); e(f"s_branch L_hr{k}")
    lab("L_exit")
    stamp("exit")
    jitter(31, 5)
    if "cnt" in X: e(f"s_mov_b32 s{sOI}, 0")
    L.append("; ---- key tile 5")
    VM.ops = (["V5"]*8 + ["K6"]*8 + ["V6"]*8 + ["K7"]*8) if VF else (["K6"]*8 + ["V5"]*8 + ["K7"]*8 + ["V6"]*8); LG.ops = ["kr"]*8 + ["vr"]*16
    vXW = vKR; vXRD = vKR + 3; vWOO = vOK; vLW = vOV; vLR = vOV + 1
    def wo_dma(h):
        g = [f"s_add_u32 m0, s{sSLOT}, {WREG[h]}", f"s_add_u32 s{sT3}, s{sWOB+h}, 16384"]
        for pp in range(8):
            if pp == 4: g += [f"s_add_u32 m0, s{sSLOT}, {WREG[h] + 4096}", "NEXTGAP"]
            g.append(f"buffer_load_dwordx4 {v(vWOO + (pp & 3))}, {srd(SRD_WO)}, s{sWOB+h if pp < 4 else sT3} offen offset:{(pp & 3)*1024} lds @wo{h}")
        return g
    def paced(items, t, step):
        r = []
        for x in items:
            r.append((t, x))
            if any(y.startswith("buffer") for y in aslist(x)): t += step
        return r
    def unpark(dst, k): return f"v_accvgpr_read_b32 {v(dst)}, {a(aADR + k)}"
    def pstore(j, data, tag):
        return f"buffer_store_dwordx4 {v(data, 4)}, {v(vLIN)}, {srd(SRD_PI)}, s{sTK2 if j < 4 else sTV2} offen offset:{(j & 3)*1024} sc1 @{tag}"
    def ostore(j, data, tag):
        return f"buffer_store_dwordx4 {v(data, 4)}, {v(vLIN)}, {srd(SRD_O)}, " + (f"s{sOOWN} offen offset:{j*1024}" if j < 4 else f"s{sTK} offen") + " sc1 @" + tag
    def setflag(k, tag): return ["v_mov_b32 v2, 0", f"v_mov_b32 v3, s{sFOWN}", ["s_mov_b64 exec, 1", f"global_store_dword v3, v2, s[18:19] offset:{4*k} sc1 @{tag}", "s_mov_b64 exec, -1"]]
    M, G = base_iter(1)
    G[-1] += ["v_mov_b32 v1, 0", f"buffer_load_dword {v(vJUNK)}, v1, {srd(SRD_D)}, s{sT1} offen sc1 @hs"]
    if opt("tch", 2) == 1: G[1] += ["s_mov_b32 exec_hi, 0xff", f"buffer_load_dword v2, v3, {srd(SRD_O)}, s{sOOWN} offen", "s_mov_b32 exec_hi, -1"]
    G[7].append("s_waitcnt lgkmcnt(0)")
    G[S["kw"]].append("WAITVM K7")
    for p, s in zip(S["kpos"], kreads(1, "k7")): G[p].append(s)
    G[S["vw"]].append("WAITVM V6")
    for p, s in zip(S["vpos"], vreads(0, "v6")): G[p].append(s)
    G[83].append("WAITLG k7")
    hw = max(S["kw"], S["vw"]) + 1
    v7 = [x.replace("s_nop 0", "NEXTGAP") for x in flat(kv_dma(False, VSLOT[1], "V7"))]
    vm = [(0, v7[0])] + paced(v7[2:], 1 if VF else 8, 2)
    if opt("wt5", -1) >= 0:
        vm += [(0, x) for x in WOT[:8]] + [(opt("wt5", -1), WOT[8:])]
    vm += paced([ostore(j, vSENT, "io") for j in range(5)], opt("ist", 24), opt("isp", 8))
    W0L = opt("w0t", 95) >= 85
    vm += [(20, unpark(vWOO + q, 6 + q)) for q in range(4)] + ([] if W0L else paced(wo_dma(0), opt("w0t", 95), opt("w0s", 3)))
    hsq = [f"s_add_u32 s{sTK}, s{sOOWN}, 4096", f"s_mov_b32 s{sTK2}, 5120",
           f"s_mov_b32 s{SRD_WS}, s18", f"s_mov_b32 s{SRD_WS+1}, s19", f"s_mov_b32 s{SRD_WS+2}, {WS_FLG + 65536}", f"s_mov_b32 s{SRD_WS+3}, 0x20000", f"s_mov_b32 s{sSPIN}, 0"]
    hsq = [(1, x) for x in hsq] + [(30, f"s_mov_b32 s{sTV2}, 9216"), (hw, "WAITVM hs"), (hw, f"v_readfirstlane_b32 s58, {v(vJUNK)}"), (hw, "NEXTGAP"),
           (hw, ["s_cmp_ge_u32 s58, 32", "s_cbranch_scc0 L_hs", "LABEL L_hsok"])]
    drain = sched(M, G, [hsq, vm], limits={1: opt('l5', 36)})
    drain(0); drain(1)
    stamp("t5")
    jitter(7, 11)
    L.append("; ---- key tiles 6 and 7, combine, output projection (pipelined over the five query tiles)")
    FO = [2, 3, 4, 5, 6, 7, 0, 1]
    HZ = opt("hz", 4)
    M = []; G = {7: ["s_waitcnt lgkmcnt(0)"]}; ix = {}
    for j in range(5):
        put_exp(G, len(M), (j & 1) ^ 1, (j - 1) % 5)
        M += qk(j, 1, j & 1) + pv(j, 0)
        if j >= 3: ix[f"p{j-3}"] = len(M); M += pv(j - 3, 1, FO)
    aW = [aK, aQ, aQ + 32, aV]
    aR = [aK + 32, aK + 44, aQ + 64]
    def msum(j):
        return [f"{MF} {v(oreg(k, j), 4)}, {a(aE + (2 if k == 0 else 0), 4)}, {a(aR[j % 3] + s*4, 4)}, {v(oreg(k, j), 4)}" for s in range(3) for k in range(2)]
    put_exp(G, len(M), 0, 4)
    BQ = [vS, vS + 4, vS + 8, vS + 12, vP, vP + 4, vP + 8, vP + 12, vNM, vNM + 4, vNM + 8, vNM + 12]
    vWR2 = vVR; vOB = vVR + 2; vVER = vVR + 3; vCHK = vVR + 4; vPRB = vVR + 5; vPRD = vVR + 6; vOWN = vVR + 7; vT = vP + 16
    def bread(j, h, st):
        if h == 0: return [f"ds_read_b128 {v(BQ[st*4 + ks], 4)}, {v(vLIN)} offset:{OWNB[j] + ks*1024} @b{j}{h}" for ks in range(4)]
        return [f"ds_read_b128 {v(BQ[st*4 + ks], 4)}, {v(vOB)} offset:{OBOFF[j] + h*4096 + ks*1024} @b{j}{h}" for ks in range(4)]
    def proj(j, h, st):
        return [f"{MF} {v(oreg(2 + nn, j), 4)}, {a(aW[h] + (ks*2+nn)*4, 4)}, {v(BQ[st*4 + ks], 4)}, {'0' if h == 0 and ks == 0 else v(oreg(2 + nn, j), 4)}"
                for ks in range(4) for nn in range(2)]
    for nm, mm in (("s0", msum(0)), ("p2", pv(2, 1, FO)), ("p3", pv(3, 1, FO)), ("p4", pv(4, 1, FO))):
        ix[nm] = len(M); M += mm
    need = {}; NE = opt("ne4", 0)
    sibrd = {}; B3 = 'b2' not in X; BO = opt('bo', 8); fg_ = [0]
    def group(j, h, st_, first, inbeat):
        g = len(M)
        if first: ix[f"q{j}"] = g
        M.extend(proj(j, h, st_)); ix[f"e{j}"] = len(M) - 1
        need.setdefault(g, []).append(f"!WAITLG b{j}{h}")
        r = bread(j, h, st_)
        if first and inbeat: sibrd[j] = r; return
        if first:
            need.setdefault(g - (BO if j else 7), []).extend([f"v{j}"] + ([OPT.get("pdm", "pp")] if j == opt("pd", 3) else []) + (["n4", "!WAITLG w4"] if j == (3 if "o4" in X else 4) else []) + ["!s_barrier", f"!STAMP d{j}", f"!MARK d{j}"])
        if first: g1 = g - (BO if j else 7); fg_[0] = g1
        else: g1 = max(g - 16, fg_[0] + 2) if B3 else g - 8
        if not first and B3: fg_[0] = g1
        for k in range(4): G.setdefault(g1 + k // 2, []).append(r[k])
    for b in (1, 2, 3, 4):
        ix[f"s{b}"] = len(M); M += msum(b)
        ix[f"o{b-1}"] = len(M); M += proj(b - 1, 0, 0)
        j = b - 5 + NE
        if j >= 0:
            for h in (1, 2, 3): group(j, h, h & 1, h == 1, True)
    st_ = 1
    for j in range(5):
        if j == 4 and "o4" in X:
            g = len(M); M.extend(proj(4, 0, st_)); need.setdefault(g, []).append("!WAITLG b40")
            for k, x in enumerate(bread(4, 0, st_)): G.setdefault(g - (16 if B3 else 8) + k // 2, []).append(x)
            st_ = (st_ + 1) % (3 if B3 else 2)
        for h in ((1, 2, 3) if (j < 4 or "o4" in X) else (0, 1, 2, 3)):
            group(j, h, st_, h == (1 if (j < 4 or "o4" in X) else 0), False); st_ = (st_ + 1) % (3 if B3 else 2)
    def wfr(h, base):
        return [f"ds_read_b64_tr_b16 {a(aW[h] + (ks*2+nn)*4 + jh*2, 2)}, {v(base+nn)} offset:{WREG[h] - R_A + ks*8192 + jh*4096} @f{h}" if h != 2 else
                f"ds_read_b64_tr_b16 {a(aW[h] + (ks*2+nn)*4 + jh*2, 2)}, {v(base+nn)} offset:{ks*8192 + jh*4096} @f{h}"
                for ks in range(4) for nn in range(2) for jh in range(2)]
    nx = [0]
    def xw(j):
        r = []; p = ix[f"p{j}"]
        for mrel in (1, 2, 3):
            t = vTMP + (nx[0] & 1)*4; nx[0] += 1
            ins = pack4(t, oreg(2*mrel, j), oreg(2*mrel + 1, j)) + [f"ds_write_b128 {v(vXW + mrel - 1)}, {v(t, 4)} offset:{XSLOT[j]} @x{j}"]
            r += [(p + 2*mrel - 1 + HZ, s) for s in ins]
            if mrel == 1: r.append((0, f"MARK xa{j}"))
        return r + [(p + 8 + HZ, f"ds_write_b32 {v(vLW)}, {a(aL + j*4)} offset:{j*256} @x{j}"), (0, f"MARK x{j}")]
    def xr(j):
        return [f"ds_read_b128 {v(vNM + j*4, 4)}, {v(vLR)} offset:{j*256} @l{j}"] + \
               [f"ds_read_b128 {a(aR[j % 3] + s*4, 4)}, {v(vXRD)} offset:{XSLOT[j] + s*1024} @r{j}" for s in range(3)] + [f"MARK r{j}"]
    def lsum(j):
        r = vNM + j*4
        return [(0, x) for x in [f"AFTER r{j} 2", f"WAITLG l{j}", f"v_add_f32 {v(r)}, {v(r)}, {v(r+1)}", f"v_add_f32 {v(r+2)}, {v(r+2)}, {v(r+3)}", f"v_add_f32 {v(r)}, {v(r)}, {v(r+2)}",
                f"v_subrev_u32 {v(r+1)}, {LO_BITS}, {v(r)}", [f"v_cmp_lt_u32 vcc, s{sRANGE}, {v(r+1)}", f"v_rcp_f32 {v(r)}, {v(r)}", "s_cbranch_vccnz L_fallback"]]]
    def norm(j):
        r0 = oreg(0, j); r1 = oreg(1, j); t = oreg(4, j)
        if "pk" in X: ins = [f"v_pk_mul_f32 {v(r+q, 2)}, {v(r+q, 2)}, {v(vNM+j*4, 2)} op_sel_hi:[1,0]" for r in (r0, r1) for q in (0, 2)] + pack4(t, r0, r1) + sanit(t)
        else: ins = [f"v_mul_f32 {v(r+q)}, {v(vNM+j*4)}, {v(r+q)}" for r in (r0, r1) for q in range(4)] + pack4(t, r0, r1) + sanit(t)
        ms = ostore(j, t, f"o{j}")
        PI = [int(x) for x in OPT.get("pi", "3,2,0,0,0").split(",")]
        pin_ = [pstore(k, vSENT, "ip") for k in range(sum(PI[:j]), sum(PI[:j+1]))]
        return [(ix[f"s{j}"] + 5 + HZ, x) for x in ins + [f"STAMP n{j}", ms, f"ds_write_b128 {v(vOWN)}, {v(t, 4)} offset:{OWNB[j]} @w{j}"] + pin_ + [f"MARK n{j}"]]
    def fetch(j):
        r = []
        for h in (1, 2, 3):
            dst = R_B + OBOFF[j] + h*4096
            if j < 4: r.append([f"s_add_u32 m0, s{sW1K}, {dst - j*1024}", "s_nop 0", f"buffer_load_dwordx4 {v(vLIN)}, {srd(SRD_O)}, s{sSIB+h} offen offset:{j*1024} sc1 lds @g{j}"])
            else: r.append([f"s_add_u32 m0, s{sW1K}, {dst}", f"s_add_u32 s{sT3}, s{sSIB+h}, 4096", f"buffer_load_dwordx4 {v(vLIN)}, {srd(SRD_O)}, s{sT3} offen sc1 lds @g{j}"])
        return r
    def vread(j): return [f"ds_read_b32 {v(vT + h)}, {v(vVER)} offset:{OBOFF[j] + h*4096} @t{j}" for h in (1, 2, 3)]
    def vtest(): return [f"v_max3_u32 {v(vT)}, {v(vT+1)}, {v(vT+2)}, {v(vT+3)}", f"v_cmp_eq_u32 vcc, -1, {v(vT)}"]
    def verify(j):
        return [[f"STAMP u{j}", f"WAITVM g{j}", f"STAMP w{j}"]] + vread(j) + [f"MARK t{j}", f"AFTER t{j} 3", f"WAITLG t{j}", vtest()[0], [vtest()[1], "s_nop 0", f"s_cbranch_vccnz L_refetch{j}", f"LABEL L_got{j}"], f"MARK v{j}"]
    def post(j):
        r0 = oreg(2, j)
        return [(ix[f"e{j}"] + HZ, x) for x in pack4(r0, r0, oreg(3, j)) + sanit(r0) + [pstore(j, r0, "pst")]]
    p0 = ix["p0"]
    hs = [(opt("fs", 62), x) for x in ["WAITVM io"] + setflag(0, "fs0")]
    hs += [(0, f"AFTER {OPT.get('fp', 'n3')} 0")] + [(0, x) for x in ["WAITVM ip"] + setflag(1, "fs1")] + [(0, "MARK fs1")]
    def bar(name, afters, waits): return [(0, f"AFTER {x} 0") for x in afters] + [(0, waits + ["s_barrier", f"STAMP {name}", f"MARK {name}"])]
    vs = [(40, unpark(vXW + q, q)) for q in range(4)] + [(40, unpark(vLW, 4)), (40, unpark(vLR, 5))]
    vs += xw(0) + bar("a", ["f0", "w1"], ["WAITVM wo1", "WAITLG x0", "WAITLG f0"]) + lsum(0) + [(0, "AFTER w3 0")] + norm(0) + xw(1) + bar("b1", ["f1"], ["WAITVM wo3", "WAITLG x1", "WAITLG f1"])
    for j in (1, 2, 3):
        vs += xw(j + 1) + lsum(j) + norm(j) + ([(0, f"AFTER n{j} {opt('hold', 4) - 1}")] if opt("hold", 4) else []) + bar(f"b{j+1}", {1: [], 2: ["f2"], 3: []}[j], {1: [], 2: ["WAITLG f2"], 3: []}[j] + [f"WAITLG w{j}"])
    vs += lsum(4) + norm(4)
    ps = []
    for j in range(5):
        p = post(j)
        ps += p[:-1] + ([(0, f"AFTER d{opt('pd', 3)} 0")] if j == 0 else []) + p[-1:]
    rs = [(opt("v7r", 36), "WAITVM V7")] + [(0, x) for x in vreads(1, "v7")] + [(0, "MARK v7")]
    rs += [(68, unpark(vWR2, 10)), (68, unpark(vWR2 + 1, 11))]
    adr = [(68, f"v_add_u32 {v(vOB)}, {R_B}, {v(vLIN)}"), (68, f"v_add_u32 {v(vVER)}, s{sW1K}, {v(vOB)}"),
           (68, f"v_accvgpr_read_b32 {v(vPRB)}, {a(aPRB)}"), (68, f"v_add_u32 {v(vOWN)}, s{sW1K}, {v(vLIN)}"), (0, "MARK adr")]
    rs += [(0, x) for x in wfr(0, vWR2)] + [(0, "MARK f0"), (0, "AFTER a 0")] + [(0, x) for x in xr(0)] + [(0, x) for x in wfr(1, vWR2)] + [(0, "MARK f1")]
    up = [f"v_add_u32 {v(vWR2+q)}, {R_C - R_A}, {v(vWR2+q)}" for q in range(2)]; dn = [f"v_subrev_u32 {v(vWR2+q)}, {R_C - R_A}, {v(vWR2+q)}" for q in range(2)]
    w2 = wfr(2, vWR2); w3 = wfr(3, vWR2)
    extra = {1: up + w2[:8], 2: w2[8:] + ["MARK f2"] + dn, 3: w3[:8], 4: w3[8:] + ["MARK f3"]}
    for j in (1, 2, 3, 4):
        rs += [(0, f"AFTER b{j} 0")] + [(ix[f"s{j-3}"] + 6 if j >= 3 else 0, x) for x in xr(j)]
        rs += [(ix[f"s{j}"] - 1, x) for x in bread(j - 1, 0, 0)] + [(0, f"MARK bo{j-1}")] + [(0, x) for x in extra[j]]
    MF4, MP = 0xF, 0xFF0000
    def probe(mask, tag=""): return [f"s_mov_b64 exec, {mask}", f"buffer_load_dword {v(vPRD)}, {v(vPRB)}, {srd(SRD_WS)}, 0 offen sc1" + tag, "s_mov_b64 exec, -1"]
    def test(mask): return [f"v_cmp_eq_u32 vcc, -1, {v(vPRD)}", "s_nop 0", f"s_and_b32 s58, vcc_lo, {mask}"]
    ds = (paced(wo_dma(0), opt("w0t", 95) - 85, opt("w0s", 3)) if W0L else []) + paced(wo_dma(1), opt("w1t", 36), opt("w1s", 3)) + [(0, "MARK w1")] + paced(wo_dma(2), opt("w2t", 62), opt("w2s", 3)) + [(0, "MARK w2")]
    ds += [(0, "AFTER a 0")] + [(0, y) for x in wo_dma(3) for y in ([x, "NEXTGAP"] if x.startswith("buffer") else [x])] + [(0, "AFTER adr 0"), (opt("pb", 112), probe(MF4, " @prb")), (0, "MARK w3")]
    ds += [(0, "AFTER b1 0"), (0, "WAITVM prb"), (0, test(MF4) + ["s_cbranch_scc1 L_waitf", "LABEL L_fok"])]
    FA = OPT.get("fa", "n2,n3,n4,n4,n4").split(","); FDL = [int(x) for x in OPT.get("fdl", "0,0,0,24,56").split(",")]
    for j in range(5):
        if j == 4: ds += [(0, f"AFTER {'b4' if NE >= 2 else 'd1'} 0")]
        ds += [(0, f"AFTER {FA[j]} {FDL[j]}")] + [(0, f"STAMP f{j}")] + [(0, y) for g in fetch(j) for y in [g] + ["NEXTGAP"]*opt("fst", 0)] + [(0, f"MARK g{j}")]
    ds += [(0, "AFTER fs1 0"), (0, probe(MP, " @prp")), (0, "MARK pp")]
    vf = []
    VDL = [int(x) for x in OPT.get("vdl", "20,30,40,40,40").split(",")]
    for j in range(5): vf += [(0, f"AFTER g{j} 1")] + [(ix[f"q{j}"] - (BO if j else 7) - opt("vb", 6), x) for x in verify(j)]
    G.setdefault(p0 - 1, []).extend(["WAITLG v7", "WAITVM wo0", "s_barrier", "STAMP bD"])
    need.setdefault(p0 - 1, []).extend(["v7"])
    need.setdefault(ix["q0"] + 16, []).extend(["f3", "!WAITLG f3"])
    for j in range(5): need.setdefault(ix[f"s{j}"], []).extend([f"r{j}"] + ([f"bo{j-1}"] if j else []) + ([f"xa{j+1}"] if j in (1, 2, 3) else []) + [f"!WAITLG r{j}"])
    for j in range(4): need.setdefault(ix[f"o{j}"], []).append(f"!WAITLG b{j}0")
    if opt("hold", 4):
        for j in (1, 2, 3): need.setdefault(ix[f"o{j-1}"] + 8 - opt("hold", 4), []).append(f"n{j}")
    OW = opt("ow", 2)
    if OW == 0: OUTA = ["v_lshlrev_b32 v9, 10, v4", "v_lshl_add_u32 v9, v5, 3, v9"]
    else:
        OUTA = ["v_lshrrev_b32 v1, 3, v4", "v_bfe_u32 v2, v4, 1, 1", "v_lshl_add_u32 v1, v1, 1, v2", "v_bfe_u32 v2, v4, 2, 1", "v_lshlrev_b32 v2, 1, v2",
                "v_xor_b32 v2, v2, v5", "v_lshl_add_u32 v1, v2, 2, v1", "v_and_b32 v2, 1, v4", "v_lshlrev_b32 v2, 4, v2", "v_mov_b32 v3, 0x3f80", "v_lshlrev_b32 v2, v2, v3"]
        OUTA += [[f"v_cmp_eq_u32 vcc, {m}, v1", "s_nop 1", f"v_cndmask_b32 {v(vTMP + m)}, 0, v2, vcc"] for m in range(8)]
        if OW == 1: OUTA += ["v_lshlrev_b32 v9, 10, v4", "v_lshl_add_u32 v9, v5, 4, v9"]
        else: OUTA += ["v_lshrrev_b32 v9, 2, v0", "v_lshlrev_b32 v9, 10, v9", "v_lshl_add_u32 v9, v7, 4, v9",
                       "v_lshlrev_b32 v10, 6, v4", "v_lshl_add_u32 v10, v5, 4, v10", f"v_add_u32 v10, s{sW1K}, v10"]
    fin = [f"s_and_b32 s{sT0}, s{sHKV}, 1", f"s_sub_u32 s{sT2}, 3, s{sT0}", f"s_mul_i32 s{sT0}, s{sT0}, 3", f"s_add_u32 s{sT0}, s{sT0}, s{sW}",
           "s_and_b32 s98, s2, 0xf8", f"s_mul_i32 s98, s98, {WGS}", f"s_lshr_b32 s99, s{sHKV}, 1", f"s_mul_i32 s99, s99, {WVS}", "s_add_u32 s98, s98, s99",
           f"s_lshl_b32 s99, s{sT0}, 10", "s_add_u32 s98, s98, s99", f"s_add_u32 s{sMODE}, s98, 5120",
           f"s_lshl_b32 s{sT0}, s{sT0}, 4", f"s_mul_i32 s98, s{sB}, 80", f"s_add_u32 s{sT0}, s{sT0}, s98", f"s_lshl_b32 s{sT0}, s{sT0}, 10",
           f"s_lshl_b32 s98, s{sI}, 8", f"s_add_u32 s{sT0}, s{sT0}, s98", f"s_lshr_b32 s98, s{sHKV}, 1", "s_lshl_b32 s98, s98, 6", f"s_add_u32 s{sT0}, s{sT0}, s98",
           ] + OUTA + [
           f"s_mov_b32 s{SRD_K}, s14", f"s_mov_b32 s{SRD_K+1}, s15", f"s_mov_b32 s{SRD_K+2}, 655360", f"s_mov_b32 s{SRD_K+3}, 0x20000"]
    drain = sched(M, G, [hs, ds, vf, vs, rs, ps, adr + [(0, "AFTER n4 2")] + [(ix["q1"], x) for x in fin]], need=need, limit=opt("lim", 16), limits={1: 28, 2: 24, 3: opt('lv', 16)})
    for k in range(7): drain(k)
    stamp("pst")
    if "cnt" in X: e(f"s_mov_b32 s{sCNT}, s{sOI}")
    e(f"s_cmp_ge_u32 s{sW}, s{sT2}"); e("s_cbranch_scc1 L_fin")
    e("WAITVM prp")
    emit(test(MP)); e("s_cbranch_scc1 L_waitp")
    lab("L_pok")
    if opt("slp", 0):
        e(f"s_bitcmp1_b32 s{sHKV}, 0"); e("s_cbranch_scc0 L_nosl"); e(f"s_sleep {opt('slp', 0)}"); lab("L_nosl")
    fB = vO + 100
    def redloads():
        e(f"s_mov_b32 s{sT1}, s{sMODE}")
        for p in range(8):
            e(f"buffer_load_dwordx4 {v(fB + p*4, 4)}, {v(vLIN)}, {srd(SRD_WS)}, s{sT1} offen sc1")
            if p < 7: e(f"s_add_u32 s{sT1}, s{sT1}, {WGS}")
    redloads()
    lab("L_red")
    e(f"v_mov_b32 {v(vCHK)}, 0")
    for p in range(8):
        e(f"s_waitcnt vmcnt({7-p})")
        for k in range(2):
            d = v(vS + k*4, 4)
            e(f"{MF} {d}, {v(vTMP + 4*k, 4) if OW else a(aE + (2 if k == 0 else 0), 4)}, {v(fB + p*4, 4)}, {'0' if p == 0 else d}")
            if k == 0: e(f"v_max_u32 {v(vCHK)}, {v(vCHK)}, {v(fB + p*4)}")
    e(f"v_cmp_eq_u32 vcc, -1, {v(vCHK)}")
    e("s_nop 4")
    e("s_cbranch_vccnz L_redo")
    lab("L_redok")
    e("s_nop 0")
    OF = OPT.get("outf", "sc1").replace("_", " ")
    if OW == 0:
        e(f"v_cvt_pk_bf16_f32 {v(vS)}, {v(vS)}, {v(vS+1)}"); e(f"v_cvt_pk_bf16_f32 {v(vS+1)}, {v(vS+2)}, {v(vS+3)}")
        e(f"v_cvt_pk_bf16_f32 {v(vS+4)}, {v(vS+4)}, {v(vS+5)}"); e(f"v_cvt_pk_bf16_f32 {v(vS+5)}, {v(vS+6)}, {v(vS+7)}")
        e(f"buffer_store_dwordx2 {v(vS, 2)}, v9, {srd(SRD_K)}, s{sT0} offen {OF}")
        e(f"buffer_store_dwordx2 {v(vS+4, 2)}, v9, {srd(SRD_K)}, s{sT0} offen offset:32 {OF}")
    else:
        emit(pack4(vS, vS, vS + 4))
        if OW == 2:
            e(f"ds_write_b128 v10, {v(vS, 4)}"); e("s_waitcnt lgkmcnt(0)"); e(f"ds_read_b128 {v(vS, 4)}, {v(vOWN)}"); e("s_waitcnt lgkmcnt(0)")
        e(f"buffer_store_dwordx4 {v(vS, 4)}, v9, {srd(SRD_K)}, s{sT0} offen {OF}")
    lab("L_fin")
    stamp("fin")
    if STAMPS and "cnt" in X:
        i = nstamp[0]; nstamp[0] += 1
        e(f"s_add_u32 s{sSTAMP+2*i}, s{sSTAMP+2*i-2}, s{sCNT}"); e(f"s_addc_u32 s{sSTAMP+2*i+1}, s{sSTAMP+2*i-1}, 0")
    write_stamps()
    lab("L_done")
    e("s_endpgm")
    L.append("; ---- out-of-line waits and rare paths")
    lab("L_redo")
    emit(spin("L_redok")); redloads(); e("s_branch L_red")
    lab("L_hs")
    e("v_mov_b32 v2, 0"); e("s_sleep 4")
    e(f"buffer_load_dword {v(vJUNK)}, v2, {srd(SRD_D)}, s{sT1} offen sc1"); e("s_waitcnt vmcnt(0)")
    emit(spin("L_hsok"))
    e(f"v_readfirstlane_b32 s58, {v(vJUNK)}"); e("s_nop 0"); e("s_cmp_ge_u32 s58, 32"); e("s_cbranch_scc0 L_hs"); e("s_branch L_hsok")
    for nm, mask, ok in (("L_waitf", MF4, "L_fok"), ("L_waitp", MP, "L_pok")):
        lab(nm)
        if "cnt" in X and nm == "L_waitf": e(f"s_add_u32 s{sOI}, s{sOI}, {1 << 15}")
        e("s_sleep 2"); emit(probe(mask)); e("s_waitcnt vmcnt(0)")
        emit(spin(ok)); emit(test(mask)); e(f"s_cbranch_scc1 {nm}"); e(f"s_branch {ok}")
    for j in range(5):
        lab(f"L_refetch{j}")
        if "cnt" in X: e(f"s_add_u32 s{sOI}, s{sOI}, {1 << (3*j)}")
        emit(spin(f"L_got{j}")); emit(fetch(j)); e("s_waitcnt vmcnt(0)")
        emit(vread(j)); e("s_waitcnt lgkmcnt(0)"); emit(vtest()); e("s_nop 1")
        e(f"s_cbranch_vccnz L_refetch{j}"); e(f"s_branch L_got{j}")
    lab("L_fallback")
    e("s_waitcnt vmcnt(0) lgkmcnt(0)")
    e("s_barrier")
    e(f"s_mov_b32 s{sRANGE}, -1")
    e("s_load_dwordx16 s[4:19], s[0:1], 0")
    e("s_branch L_restart")
    lab("L_rowmax")
    e("s_waitcnt vmcnt(0) lgkmcnt(0)")
    emit(qrd(1) + qrd(2)); e("s_waitcnt lgkmcnt(0)"); emit(qrd(3) + qrd(4))
    vA = vP; vM = vP + 4
    for ds in range(4): e(f"v_subrev_u32 {v(vA+ds)}, {R_A - R_D}, {v(vKR+ds)}")
    for j in range(5): e(f"v_mov_b32 {v(vM+j)}, 0xff800000")
    e(f"s_mov_b32 s{sTK}, 0"); e(f"s_mov_b32 s{sTK2}, 4096")
    lab("L_fbmax")
    emit(flat(kv_dma(True, R_D, "f")))
    e("s_waitcnt vmcnt(0)")
    emit(kreads(0, base=vA, buf=1))
    e("s_waitcnt lgkmcnt(0)")
    for j in range(5):
        emit(qk(j, 1, 0, cinit="0")); e("s_nop 7")
        for n in range(4): e(f"v_max3_f32 {v(vM+j)}, {v(vM+j)}, {v(vS+2*n)}, {v(vS+2*n+1)}")
    e(f"s_add_u32 s{sTK}, s{sTK}, 8192"); e(f"s_add_u32 s{sTK2}, s{sTK2}, 8192")
    e(f"s_cmp_lt_u32 s{sTK}, 65536"); e("s_cbranch_scc1 L_fbmax")
    for j in range(5):
        for op in ("v_permlane32_swap_b32", "v_permlane16_swap_b32"):
            e(f"v_mov_b32 v1, {v(vM+j)}"); e("s_nop 1"); e(f"{op} {v(vM+j)}, v1"); e("s_nop 1"); e(f"v_max_f32 {v(vM+j)}, {v(vM+j)}, v1")
    e(unpark(1, 4)); e(unpark(2, 5))
    for j in range(5): e(f"ds_write_b32 v1, {v(vM+j)} offset:{j*256}")
    e("s_waitcnt lgkmcnt(0)"); e("s_barrier")
    for j in range(5): e(f"ds_read_b128 {v(vNM+j*4, 4)}, v2 offset:{j*256}")
    e("s_waitcnt lgkmcnt(0)")
    for j in range(5):
        r = vNM + j*4
        e(f"v_max3_f32 {v(r)}, {v(r)}, {v(r+1)}, {v(r+2)}"); e(f"v_max_f32 {v(r)}, {v(r)}, {v(r+3)}"); e(f"v_sub_f32 {v(r)}, 0, {v(r)}")
        for q in (1, 2, 3): e(f"v_mov_b32 {v(r+q)}, {v(r)}")
    e("s_branch L_noat")
    lab("L_end")

DOC = """
; One workgroup per (batch b, query head): wg = hkv + 8*b + 64*i, head = 4*hkv + i.  Four waves, 512 registers each.
;     computes the true row maxima and uses those as m (softmax is invariant under the shift).
;  3. Per 16-query tile: the waves' partial O are summed through LDS, normalised and published in d_ws; the four heads of a
;     are published and summed by the workgroup that owns the output tile.
;  Hand-offs: write-through stores into areas that this launch first filled with 0xffffffff; a reader accepts a 16-byte
;  piece once its first word differs (payloads never carry that word).  Two flag words per wave say that the fills have
;  landed; they are reset at start, and a counter per batch in d_debug says that the resets have landed.
"""
hdr = open("standalone__gqa_block_cached__near_ridge.s.ref").read().split("\n")
for ln in hdr:
    if ln.startswith("; @launch"): continue
    if not ln.startswith(";"): break
    L.append(ln)
L.append("; @launch grid=(256,1,1) block=(256,1,1) lds=163840")
L.append('.amdgcn_target "amdgcn-amd-amdhsa--gfx950"')
L.append(".text")
L.extend(DOC.strip("\n").split("\n"))
kernel()
L.append('.section .rodata,"a"')
L.append(".p2align 6"); L.append(f".amdhsa_kernel {KN}")
for s in ["next_free_vgpr 512", "next_free_sgpr 102", "accum_offset 256", "group_segment_fixed_size 0", "kernarg_size 64", "user_sgpr_count 2", "user_sgpr_kernarg_segment_ptr 1", "system_sgpr_workgroup_id_x 1"]:
    L.append("  .amdhsa_" + s)
L.append(".end_amdhsa_kernel")
import hazard
L = hazard.fix(L)
print("\n".join(L))
```

```python
import sys, math, struct, re, os
sys.path.insert(0, os.path.dirname(os.path.abspath(__file__)))

X = {"pfc2"} | set(a[2:] for a in sys.argv[1:] if a.startswith("--") and "=" not in a)
OPT = dict(a[2:].split("=") for a in sys.argv[1:] if a.startswith("--") and "=" in a)
def opt(k, d): return int(OPT.get(k, d))
STAMPS = "stamps" in X
KN = "standalone__gqa_block_cached__near_ridge_kernel"
L = []

class Tr:
    def __init__(s): s.ops = []
    def add(s, tag): s.ops.append(tag)
    def need(s, tag):
        idx = max(i for i, t in enumerate(s.ops) if t == tag)
        return len(s.ops) - 1 - idx
VM = Tr(); LG = Tr()

def lab(s): L.append(s + ":")
def e(s):
    if s.startswith("LABEL "): lab(s[6:]); return
    if s.startswith("MARK "): return
    if s.startswith("STAMP "): stamp(s[6:]); return
    if s == "NEXTGAP": s = "s_nop 0"
    tag = None
    if " @" in s: s, tag = s.split(" @")
    op = s.split()[0]
    if op == "WAITVM":
        n = VM.need(s.split()[1]); s = f"s_waitcnt vmcnt({min(n, 63)})"
    elif op == "WAITLG":
        n = LG.need(s.split()[1]); s = f"s_waitcnt lgkmcnt({min(n, 15)})"
    elif op.startswith("buffer_") or op.startswith("global_"): VM.add(tag)
    elif op.startswith("ds_"): LG.add(tag)
    L.append("    " + s)
def aslist(it): return it if isinstance(it, list) else [it]
def emit(lst):
    for it in lst:
        for s in aslist(it): e(s)
def flat(groups): return [s for g in groups for s in aslist(g)]
def capture(fn):
    keep = list(L); del L[:]
    fn()
    out = [x.strip() for x in L]; L[:] = keep
    return out

QSCALE = 1.4426950408889634 / math.sqrt(128.0)
def f2u(x): return struct.unpack("<I", struct.pack("<f", x))[0]

S_ST = [0, 53248, 106496, 0]
R_D, R_QX, R_A, R_B, R_C, R_SP = 0, 32768, 53248, 86016, 118784, 151552
KSLOT = [R_A, R_B]; VSLOT = [R_C, R_D]
XSLOT = [0, 12288, 24576, 0, 12288]
OWNB = [36864, 40960, 45056, 49152, 36864]
OBOFF = [0, 16384, 32768, 49152, 0]
WREG = [R_A, R_B, R_C, R_A]
WS_PART = 8 << 20
WS_FLG = 16 << 20
WS_STAMP = 128 << 20
WGS = 40960; WVS = 10240
HEADSTRIDE = 64 * WGS
LO_BITS = 0x21800000
RANGE = 0x3C000000
sW, sHKV, sB, sI, sRANGE = 3, 20, 21, 22, 23
sWOB, sSIB, sOI = 4, 8, 12
SRD_X, SRD_WQ, SRD_K, SRD_V, SRD_O, SRD_WO, SRD_PI = 24, 28, 32, 36, 40, 44, 64
SRD_WS, SRD_D = 24, 28
sTK, sTK2, sTV, sTV2, sSLOT, sCNT = 48, 49, 50, 51, 52, 53
sT0, sT1, sT2, sT3 = 54, 55, 56, 57
sOOWN, sW5K, sSPIN, sFOWN = 60, 61, 62, 63
sSTAMP = 68
sMODE, sXCC, sWB, sXB, sSTEP, sMIR, sW1K, sQS = 89, 90, 91, 92, 93, 94, 95, 96
vKR = 8; vVR = 12; vOK = 20; vOV = 24; vLIN = 26; vJUNK = 27
vP = 28; vS = 48; vNM = 64; vTMP = 84; vO = 96
vVRC = vTMP; vSENT = vTMP + 8; vQW = 73
aQ = 0; aK = 80; aV = 144; aL = 208; aE = 228; aPRB = 234; aADR = 235; aONE = 248

def srd(r): return f"s[{r}:{r+3}]"
def v(r, n=1): return f"v{r}" if n == 1 else f"v[{r}:{r+n-1}]"
def a(r, n=1): return f"a{r}" if n == 1 else f"a[{r}:{r+n-1}]"
MF = "v_mfma_f32_16x16x32_bf16"
SPIN_MAX = opt("spin", 400000)

nstamp = [0]
def stamp(name=""):
    if OPT.get("delay") == name:
        for _ in range(8): L.append("    s_nop 15")
    if not STAMPS: return
    sel = OPT.get("st")
    if sel and name not in sel.split(","): return
    i = nstamp[0]; nstamp[0] += 1
    assert sSTAMP + 2*i + 1 < 89
    sys.stderr.write(f"{i}:{name} ")
    L.append(f"    {'s_memtime' if 'cyc' in X else 's_memrealtime'} s[{sSTAMP+2*i}:{sSTAMP+2*i+1}]")
    L.append("    s_waitcnt lgkmcnt(0)")
def write_stamps():
    if not STAMPS: return
    if "amp" in X:
        e("s_cmp_ge_u32 s2, 8"); e("s_cbranch_scc1 L_done")
        e(f"s_cmp_lg_u32 s{sW}, 0"); e("s_cbranch_scc1 L_done")
        e("s_memrealtime s[80:81]"); e("s_waitcnt lgkmcnt(0)")
        e(f"s_sub_u32 s82, s{sSTAMP+2}, s{sSTAMP}"); e("s_min_u32 s82, s82, 5000"); e("s_mul_i32 s82, s82, 10"); e("s_add_u32 s82, s82, s80")
        lab("L_amp")
        e("s_memrealtime s[84:85]"); e("s_waitcnt lgkmcnt(0)"); e("s_sub_u32 s86, s84, s82"); e("s_cmp_lt_i32 s86, 0"); e("s_cbranch_scc1 L_amp")
        return
    n = nstamp[0]
    e("s_lshl_b32 s58, s2, 2"); e(f"s_add_u32 s58, s58, s{sW}"); e(f"s_mul_i32 s58, s58, {n*8}"); e(f"s_add_u32 s58, s58, {WS_STAMP}")
    e("s_add_u32 s58, s18, s58"); e("s_addc_u32 s59, s19, 0")
    e("s_mov_b64 exec, 1"); e("v_mov_b32 v1, 0")
    for i in range(n):
        e(f"v_mov_b32 v2, s{sSTAMP+2*i}"); e(f"v_mov_b32 v3, s{sSTAMP+2*i+1}")
        e(f"global_store_dwordx2 v1, v[2:3], s[58:59] offset:{i*8}"); e("s_nop 1")
    sys.stderr.write(f"\nstamps: {n}\n")

njit = [0]
def jitter(mask, sh):
    if "jitter" not in X: return
    k = njit[0]; njit[0] += 1
    e(f"s_mul_i32 s98, s2, {2654435761 >> (k + 3)}"); e(f"s_mul_i32 s99, s{sW}, {40503 * (k + 1)}"); e("s_add_u32 s98, s98, s99")
    e(f"s_lshr_b32 s98, s98, {sh}"); e(f"s_and_b32 s98, s98, {mask}")
    lab(f"L_jit{k}"); e("s_cmp_eq_u32 s98, 0"); e(f"s_cbranch_scc1 L_jite{k}"); e("s_sleep 8"); e("s_sub_u32 s98, s98, 1"); e(f"s_branch L_jit{k}"); lab(f"L_jite{k}")
def mk_srd(r, pbase, off_sgpr, size):
    return [f"s_add_u32 s{r}, s{pbase}, s{off_sgpr}", f"s_addc_u32 s{r+1}, s{pbase+1}, 0", f"s_mov_b32 s{r+2}, {size}", f"s_mov_b32 s{r+3}, 0x20000"]

PSEUDO = ("MARK", "LABEL", "STAMP")
WIDE = ("ds_write_b128", "buffer_store_dwordx4")
def isv(s): return s.startswith("v_")
def gaptime(ins):
    ins = [s for s in ins if not s.startswith(PSEUDO)]
    nv = [s for s in ins if not isv(s)]
    t = 4
    if nv: t += 20 if nv[0].startswith(WIDE) else 4
    first = True
    for s in ins:
        if not isv(s):
            if first: first = False; continue
            t += 24 if s.startswith(WIDE) else 4
        else:
            t = max(t, 8) + (8 if s.startswith(("v_exp", "v_rcp")) else 4)
    return t
def order_gap(items):
    def indep(k):
        x = items[k]
        if isinstance(x, list) or x.startswith(("v_",) + PSEUDO + WIDE + ("ds_write",)): return False
        return all(isinstance(y, str) and isv(y) and not y.startswith(("v_accvgpr_read", "v_mov", "v_cmp", "v_readf", "v_add_u32", "v_subrev")) for y in items[:k])
    for k in range(1, len(items)):
        if indep(k): items.insert(0, items.pop(k)); break
    return items
def interleave(mfmas, gaps):
    emit(gaps.get(-1, []))
    for i, m in enumerate(mfmas):
        e(m); emit(gaps.get(i, []))
def sched(mfmas, fixed, streams, need=None, limit=16, limits=None):
    need = need or {}
    streams = [list(s) for s in streams]
    done = {}
    cur = [0]
    def put(it):
        for s in aslist(it):
            if s.startswith("MARK "): done[s[5:]] = cur[0]
            e(s)
    def flush(mark):
        if mark in done: return
        for st in streams:
            if any(f"MARK {mark}" in aslist(it) for _, it in st):
                while mark not in done:
                    it = st.pop(0)[1]
                    if isinstance(it, str) and it.startswith("AFTER "): flush(it.split()[1]); continue
                    put(it)
                return
        raise Exception("mark " + mark)
    cur[0] = -1
    for it in fixed.get(-1, []): put(it)
    for i, m in enumerate(mfmas):
        cur[0] = i - 1
        for mk in need.get(i, []):
            if mk.startswith("!"): put(mk[1:])
            else: flush(mk)
        e(m)
        cur[0] = i
        items = list(fixed.get(i, []))
        closed = any(s.startswith("v_exp") for s in flat(items))
        blocked = set(); prog = True; seen = dict(done)
        for s in flat(items):
            if s.startswith("MARK "): seen[s[5:]] = i
        while prog:
            prog = False
            for k, st in enumerate(streams):
                if k in blocked or not st: continue
                rdy, it = st[0]
                if it == "NEXTGAP": st.pop(0); blocked.add(k); continue
                if isinstance(it, str) and it.startswith("AFTER "):
                    _, mk, d = it.split()
                    if mk in seen and seen[mk] + int(d) <= i: st.pop(0); prog = True; break
                    continue
                if rdy > i: continue
                real = [s for s in aslist(it) if not s.startswith(PSEUDO)]
                empty = not [s for s in flat(items) if not s.startswith(PSEUDO)]
                if not real or (not closed and (empty or gaptime(flat(items) + real) <= (limits or {}).get(k, limit))):
                    st.pop(0); items.append(it); prog = True
                    for s in aslist(it):
                        if s.startswith("MARK "): seen[s[5:]] = i
                    break
        for it in order_gap(items): put(it)
    cur[0] = len(mfmas)
    def drain(k):
        st = streams[k]
        while st:
            it = st.pop(0)[1]
            if isinstance(it, str) and it.startswith("AFTER "): flush(it.split()[1]); continue
            put(it)
    return drain

def kv_dma(isK, slot_base, tag, nop=True):
    g = []
    for p in range(8):
        grp = []
        if p % 4 == 0:
            grp.append(f"s_add_u32 m0, s{sSLOT}, {slot_base + (p // 4) * 4096}")
            if nop: grp.append("s_nop 0")
        vo = vOK + (p >> 1) if isK else vOV + ((p >> 1) & 1)
        so = (sTK if isK else sTV) + (0 if p < 4 else 1)
        grp.append(f"buffer_load_dwordx4 {v(vo)}, {srd(SRD_K if isK else SRD_V)}, s{so} offen offset:{(p % 4)*1024} lds @{tag}")
        g.append(grp)
    return g
SEQ = {"mirror": ["01234567", "76543210", "76543210"], "pair": ["01234567", "10325476", "02143657"], "pair0": ["01234567", "10325476", "10325476"],
       "same": ["01234567"]*3, "quad": ["01234567", "23016745", "01452367"], "quad2": ["01234567", "23016745", "04512367"]}[OPT.get("seq", "mirror")]
def seqword(q): return sum(int(c) << (4*n) for n, c in enumerate(q))
def seqtail(q, t0): return sum(int(c) << (13 + 3*n) for n, c in enumerate(q[t0:]))
sSEQ, sSK, sSV = sMIR, sSTEP, sXCC
def set_T(isK, t):
    r = sTK if isK else sTV
    return [f"s_bfe_u32 s{r}, s{sSEQ}, {(4 << 16) | (4*t)}", f"s_lshl_b32 s{r}, s{r}, 13", f"s_or_b32 s{r+1}, s{r}, 4096"]
def kreads(slot, tag="kr", base=vKR, buf=None):
    buf = slot if buf is None else buf
    return [f"ds_read_b128 {a(aK + buf*32 + (kt*4+ds)*4, 4)}, {v(base+ds)} offset:{(KSLOT[slot]-R_A) + kt*1024} @{tag}" for kt in range(2) for ds in range(4)]
def vreads(slot, tag="vr"):
    base = vVRC if slot == 0 else vVR
    return [f"ds_read_b64_tr_b16 {a(aV + slot*32 + k*4 + jh*2, 2)}, {v(base+k)} offset:{jh*1024} @{tag}" for k in range(8) for jh in range(2)]
def qk(j, kbuf, sbuf, cinit=None):
    m = []
    for kt in range(2):
        for ds in range(4):
            d = v(vS + sbuf*8 + kt*4, 4)
            c = (cinit or v(vNM + j*4, 4)) if ds == 0 else d
            m.append(f"{MF} {d}, {a(aK + kbuf*32 + (kt*4+ds)*4, 4)}, {a(aQ + (j*4+ds)*4, 4)}, {c}")
    return m
def oreg(k, j): return vO + (k*5+j)*4
def pv(j, vbuf, ks=range(8)):
    m = [f"{MF} {v(oreg(k, j), 4)}, {a(aV + vbuf*32 + k*4, 4)}, {v(vP + j*4, 4)}, {v(oreg(k, j), 4)}" for k in ks]
    m.append(f"{MF} {a(aL + j*4, 4)}, {a(aONE, 4)}, {v(vP + j*4, 4)}, {a(aL + j*4, 4)}")
    return m
def exps(sbuf): return [f"v_exp_f32 {v(vS + sbuf*8 + n)}, {v(vS + sbuf*8 + n)}" for n in range(8)]
def cvts(sbuf, j): return [f"v_cvt_pk_bf16_f32 {v(vP + j*4 + n)}, {v(vS + sbuf*8 + 2*n)}, {v(vS + sbuf*8 + 2*n+1)}" for n in range(4)]
def put_exp(G, base, sbuf, j):
    ex = exps(sbuf); cv = cvts(sbuf, j)
    for n in range(8): G.setdefault(base + 2*n, []).append(ex[n])
    for n in range(4): G.setdefault(base + 4*n + 3, []).append(cv[n])
def pack4(t, r0, r1):
    return [f"v_cvt_pk_bf16_f32 {v(t)}, {v(r0)}, {v(r0+1)}", f"v_cvt_pk_bf16_f32 {v(t+1)}, {v(r0+2)}, {v(r0+3)}",
            f"v_cvt_pk_bf16_f32 {v(t+2)}, {v(r1)}, {v(r1+1)}", f"v_cvt_pk_bf16_f32 {v(t+3)}, {v(r1+2)}, {v(r1+3)}"]
def sanit(t): return [f"v_min_u32 {v(t)}, -2, {v(t)}"]
def spin(lbl): return [f"s_add_u32 s{sSPIN}, s{sSPIN}, 1", f"s_cmp_ge_u32 s{sSPIN}, {SPIN_MAX}", f"s_cbranch_scc1 {lbl}"]
if "loopinit" not in X and "earlyinit" not in X: X.add("lateinit")
EARLYINIT = "earlyinit" in X
LINIT = opt("linit", 0)
if LINIT: X.discard("lateinit"); X.add("wt")
LATEINIT = "lateinit" in X or EARLYINIT or LINIT
P_INIT0 = f"buffer_store_dwordx4 {v(vSENT, 4)}, {v(vLIN)}, {srd(SRD_PI)}, 0 offen sc1"
TOUCH = ["s_mov_b64 exec, 0xff", f"buffer_load_dword {v(vJUNK)}, v3, {srd(SRD_O)}, s{sOI} offen"] + \
        ([f"buffer_load_dword {v(vJUNK)}, v2, {srd(SRD_WO)}, s{sOI} offen"] if "wsp" in X else []) + ["s_mov_b64 exec, -1"]
S = dict(dpos=[1, 5, 9, 13, 20, 24, 28, 32, 37, 43, 49, 54, 60, 66, 71, 77], mpos=[-1, 16, 35, 58],
         kw=33, kpos=[33, 35, 39, 39, 41, 43, 45, 47],
         vw=50, vpos=[50, 52, 52, 56, 56, 60, 62, 64, 64, 67, 67, 69, 69, 73, 73, 75], tpos=[18, 47, 77, 79])
VF = "kfirst" not in X
if VF:
    S = dict(dpos=[9, 13, 18, 22, 26, 30, 35, 39, 45, 49, 54, 58, 64, 69, 73, 77], mpos=[5, 24, 41, 60],
             vw=28, vpos=[28, 30, 32, 33, 33, 35, 37, 39, 43, 43, 47, 47, 50, 50, 52, 52],
             kw=56, kpos=[56, 60, 62, 64, 66, 67, 67, 69], tpos=[71, 81, 33 + 8, 43 + 2])
if VF and OPT.get("sched") == "b":
    S = dict(dpos=[1, 5, 11, 16, 22, 26, 32, 37, 43, 47, 52, 58, 64, 69, 73, 77], mpos=[-1, 18, 39, 60],
             vw=28, vpos=[28, 30, 30, 33, 33, 35, 35, 39, 41, 43, 45, 47, 49, 50, 50, 52],
             kw=60, kpos=[62, 64, 66, 67, 67, 69, 71, 73], tpos=[75, 81, 24, 41])
if VF and OPT.get("sched") == "c":
    S = dict(dpos=[1, 5, 9, 13, 18, 22, 26, 30, 35, 39, 45, 49, 54, 58, 62, 66], mpos=[-1, 16, 33, 52],
             vw=37, vpos=[39, 41, 43, 43, 45, 47, 47, 49, 50, 50, 52, 54, 56, 56, 58, 60],
             kw=64, kpos=[64, 67, 67, 69, 69, 71, 73, 73], tpos=[60, 75, 20, 32])
GLUE = ("s_addc_u32", "s_cselect_b32", "s_subb_u32")
def glued(lst, k):
    return lst[k].split()[0] in GLUE or (k + 1 < len(lst) and lst[k].startswith("s_mov_b32") and lst[k + 1].startswith("s_cselect"))

def kernel():
    L.append(f".globl {KN}"); L.append(".p2align 8"); L.append(f".type {KN},@function"); lab(KN)
    e("s_cmp_ge_u32 s2, 256"); e("s_cbranch_scc1 L_done")
    if STAMPS and "raw" in X: L.append("    s_memtime s[84:85]")
    e("s_load_dwordx16 s[4:19], s[0:1], 0")
    e("s_getpc_b64 s[58:59]"); lab("L_pc0")
    e(f"s_and_b32 s{sT3}, s2, 0xf8"); e(f"s_lshl_b32 s{sT3}, s{sT3}, 5"); e(f"v_add_u32 v2, s{sT3}, v0"); e("v_lshlrev_b32 v2, 2, v2"); e("v_and_b32 v2, 0x7f80, v2")
    e("v_min_u32 v2, L_end-L_pc0-4, v2"); e(f"global_load_dword {v(vJUNK)}, v2, s[58:59] @pfc")
    e("v_lshrrev_b32 v1, 6, v0")
    e("v_and_b32 v0, 63, v0")
    e(f"v_readfirstlane_b32 s{sW}, v1")
    e(f"s_mov_b32 s{sRANGE}, {RANGE}")
    lab("L_restart")
    e(f"s_and_b32 s{sHKV}, s2, 7"); e(f"s_bfe_u32 s{sB}, s2, {(3 << 16) | 3}"); e(f"s_lshr_b32 s{sI}, s2, 6")
    stamp("start")
    jitter(63, 7)
    e("v_lshlrev_b32 v3, 7, v0")
    e("v_and_b32 v4, 15, v0"); e("v_lshrrev_b32 v5, 4, v0"); e("v_bfe_u32 v6, v0, 2, 2"); e("v_and_b32 v7, 3, v0")
    vXO = vTMP; vWO = vTMP + 4; vXR = vTMP + 6; vWR = vTMP + 10
    e("v_xor_b32 v1, v4, v5")
    e(f"s_lshl_b32 s{sT0}, s{sW}, 2"); e(f"v_xor_b32 v2, s{sT0}, v1"); e("v_lshlrev_b32 v2, 4, v2"); e(f"v_lshl_add_u32 {v(vXO)}, v5, 10, v2")
    e("v_lshlrev_b32 v2, 1, v5"); e("v_xor_b32 v2, v4, v2"); e("v_lshlrev_b32 v2, 4, v2")
    e(f"v_lshl_add_u32 {v(vWO)}, v5, 13, v2"); e(f"v_xor_b32 {v(vWO+1)}, 128, {v(vWO)}")
    e(f"v_lshl_add_u32 {v(vOV)}, v5, 8, v2"); e(f"v_xor_b32 {v(vOV+1)}, 128, {v(vOV)}")
    e(f"s_mul_i32 s58, s{sB}, 81920")
    e(f"s_lshl_b32 s59, s{sHKV}, 2"); e(f"s_add_u32 s59, s59, s{sI}"); e("s_lshl_b32 s59, s59, 8")
    e(f"s_sub_u32 s{sT3}, 4194304, s59")
    e(f"s_lshl_b32 s{sT0}, s{sW}, 12"); e(f"s_mul_i32 s{sW5K}, s{sW}, 5120"); e(f"s_lshl_b32 s{sW1K}, s{sW}, 10")
    e(f"s_lshl_b32 s{sT2}, s{sW}, 18"); e(f"s_lshl_b32 s{sSLOT}, s{sW}, 13")
    XB = [sTK, sTK2, sXB, sT0]; WB = [sTV, sTV2, sWB, sT2]
    e(f"s_add_u32 s{sCNT}, s{sB}, s{sI}")
    for cc in range(4):
        e(f"s_add_u32 s{sSPIN}, s{sCNT}, {cc}"); e(f"s_and_b32 s{sSPIN}, s{sSPIN}, 3")
        e(f"s_lshl_b32 s{sOOWN}, s{sSPIN}, 8"); e(f"s_add_u32 s{XB[cc]}, s{sT0}, s{sOOWN}")
        e(f"s_lshl_b32 s{sOOWN}, s{sSPIN}, 20"); e(f"s_add_u32 s{WB[cc]}, s{sT2}, s{sOOWN}")
    e(f"v_lshlrev_b32 {v(vLIN)}, 4, v0")
    e(f"s_mul_i32 s98, s2, {WGS}"); e(f"s_lshl_b32 s99, s{sW5K}, 1"); e("s_add_u32 s98, s98, s99"); e("s_mov_b32 s101, 9216")
    for q in range(4): e(f"v_mov_b32 v{76+q}, -1")
    e("s_waitcnt lgkmcnt(0)")
    emit(mk_srd(SRD_X, 4, 58, 81920)); emit(mk_srd(SRD_WQ, 10, 59, f"s{sT3}"))
    stamp("k")
    PROG = "prog" in X
    def p1_dma(cc):
        gx = [[f"s_add_u32 m0, s{sW1K}, {S_ST[cc] + pp*4096}", f"s_add_u32 s{sT3}, s{XB[cc]}, {pp*16384}",
               f"buffer_load_dwordx4 {v(vXO)}, {srd(SRD_X)}, s{sT3} offen lds @c{cc}" + (f"x{pp}" if cc == 3 and PROG else "")] for pp in range(5)]
        gw = [[f"s_add_u32 m0, s{sSLOT}, {S_ST[cc] + 20480 + pp*1024}", f"s_add_u32 s{sT3}, s{WB[cc]}, {4*pp*8192}",
               f"buffer_load_dwordx4 {v(vWO + ((pp >> 1) & 1))}, {srd(SRD_WQ)}, s{sT3} offen lds @c{cc}"] for pp in range(8)]
        return gw + gx if cc == 3 and PROG else gx + gw
    c01 = p1_dma(0) + p1_dma(1)
    n0 = opt("n0", 16)
    t0, t1, t2, u1, u2 = 68, 69, 70, 71, 72
    def setup():
        U1, U2, T0, T1, T2 = v(u1), v(u2), v(t0), v(t1), v(t2)
        e(f"s_lshl_b32 s98, s{sB}, 3"); e(f"s_add_u32 s98, s98, s{sHKV}"); e("s_lshl_b32 s98, s98, 18")
        e(f"s_lshl_b32 s99, s{sW}, 16"); e("s_add_u32 s98, s98, s99")
        emit(mk_srd(SRD_K, 6, 98, 65536)); emit(mk_srd(SRD_V, 8, 98, 65536))
        e(f"s_bitcmp1_b32 s{sB}, 0")
        for r, f in ((sSEQ, seqword), (sSK, lambda q: seqtail(q, 3)), (sSV, lambda q: seqtail(q, 2))):
            e(f"s_mov_b32 s{r}, {f(SEQ[1])}"); e(f"s_cselect_b32 s{r}, {f(SEQ[2])}, s{r}")
        e(f"s_bitcmp1_b32 s{sI}, 0")
        for r, f in ((sSEQ, seqword), (sSK, lambda q: seqtail(q, 3)), (sSV, lambda q: seqtail(q, 2))):
            e(f"s_cselect_b32 s{r}, s{r}, {f(SEQ[0])}")
        e(f"v_lshlrev_b32 {U2}, 4, v1"); e(f"v_lshl_add_u32 {v(vXR)}, v4, 8, {U2}")
        for ks in range(1, 4): e(f"v_xor_b32 {v(vXR+ks)}, {ks*64}, {v(vXR)}")
        e(f"v_lshl_add_u32 {v(vOK)}, v5, 8, {U2}")
        for q in range(1, 4): e(f"v_xor_b32 {v(vOK+q)}, {q*64}, {v(vOK)}")
        e(f"v_lshrrev_b32 {T0}, 2, v4"); e(f"v_lshlrev_b32 {T0}, 3, {T0}"); e(f"v_and_b32 {U1}, 3, v4"); e(f"v_add_u32 {T0}, {T0}, {U1}")
        e(f"v_lshl_add_u32 {U2}, {T0}, 8, {U2}"); e(f"v_add_u32 {U2}, s{sSLOT}, {U2}"); e(f"v_add_u32 {v(vKR)}, {R_A}, {U2}")
        for ds in range(1, 4): e(f"v_xor_b32 {v(vKR+ds)}, {ds*64}, {v(vKR)}")
        e(f"v_lshl_add_u32 {U2}, v5, 3, v6"); e(f"v_lshlrev_b32 {U2}, 8, {U2}"); e(f"v_lshl_add_u32 {U2}, v7, 3, {U2}")
        e(f"v_and_b32 {T0}, 1, v5"); e(f"v_lshl_add_u32 {T0}, {T0}, 2, v6")
        e(f"s_lshl_b32 s98, s{sW}, 1")
        for k in range(8):
            e(f"s_add_u32 s99, s98, {k}"); e("s_and_b32 s99, s99, 7")
            e(f"v_xor_b32 {U1}, s99, {T0}"); e(f"v_lshl_add_u32 {U1}, {U1}, 5, {U2}")
            if k < 2: e(f"v_add_u32 {v(vWR+k)}, 20480, {U1}")
            e(f"v_add_u32 {v(vVR+k)}, s{sSLOT}, {U1}")
        for r in range(160): e(f"v_mov_b32 {v(vO+r)}, 0")
        e("s_and_b32 s98, s2, 63"); e(f"s_mul_i32 s98, s98, {WGS}"); emit(mk_srd(SRD_O, 18, 98, 3*HEADSTRIDE + WGS))
        e(f"s_mul_i32 s{sOOWN}, s{sI}, {HEADSTRIDE}"); e(f"s_lshl_b32 s100, s{sW5K}, 1"); e(f"s_add_u32 s{sOOWN}, s{sOOWN}, s100")
        e(f"s_lshl_b32 s{sFOWN}, s2, 2"); e(f"s_add_u32 s{sFOWN}, s{sFOWN}, s{sW}"); e(f"s_lshl_b32 s{sFOWN}, s{sFOWN}, 6"); e(f"s_add_u32 s{sFOWN}, s{sFOWN}, {WS_FLG}")
        e("s_and_b32 s98, s2, 63"); e("s_lshl_b32 s98, s98, 2"); e(f"s_add_u32 s98, s98, s{sW}"); e("s_lshl_b32 s98, s98, 6"); e(f"s_add_u32 s98, s98, {WS_FLG}")
        e(f"v_and_b32 {T0}, 3, v0"); e(f"v_lshl_add_u32 {T0}, {T0}, 14, s98")
        e("s_and_b32 s98, s2, 0xf8"); e("s_lshl_b32 s98, s98, 8"); e(f"s_lshr_b32 s99, s{sHKV}, 1"); e("s_lshl_b32 s99, s99, 6")
        e("v_cmp_gt_u32 vcc, 16, v0"); e("s_add_u32 s98, s98, s99"); e(f"s_add_u32 s98, s98, {WS_FLG + 4}")
        e(f"v_and_b32 {T1}, 7, v0"); e(f"v_lshl_add_u32 {T1}, {T1}, 8, s98"); e(f"v_cndmask_b32 {T0}, {T1}, {T0}, vcc")
        e(f"v_accvgpr_write_b32 {a(aPRB)}, {T0}")
        e(f"s_lshl_b32 s98, s{sHKV}, 19"); e(f"s_lshl_b32 s99, s{sI}, 8"); e("s_add_u32 s98, s98, s99"); e("s_sub_u32 s99, 524288, s99")
        emit(mk_srd(SRD_WO, 12, 98, "s99"))
        e(f"v_lshlrev_b32 {U1}, 2, v5"); e(f"v_sub_u32 {U1}, v4, {U1}"); e(f"v_and_b32 {U2}, 1, {U1}"); e(f"v_lshlrev_b32 {U2}, 4, {U2}")
        e(f"v_mov_b32 {T0}, 0x3f80"); e(f"v_lshlrev_b32 {U2}, {U2}, {T0}"); e(f"v_lshrrev_b32 {U1}, 1, {U1}")
        e(f"v_cmp_eq_u32 vcc, 0, {U1}"); e(f"v_accvgpr_write_b32 {a(aE)}, 0"); e(f"v_accvgpr_write_b32 {a(aE+1)}, 0"); e(f"v_cndmask_b32 {T0}, 0, {U2}, vcc")
        e(f"v_cmp_eq_u32 vcc, 1, {U1}"); e(f"v_accvgpr_write_b32 {a(aE+4)}, 0"); e(f"v_accvgpr_write_b32 {a(aE+5)}, 0"); e(f"v_cndmask_b32 {T1}, 0, {U2}, vcc")
        e(f"v_accvgpr_write_b32 {a(aE+2)}, {T0}"); e(f"v_accvgpr_write_b32 {a(aE+3)}, {T1}")
        for mrel in (1, 2, 3, 0):
            e(f"s_add_u32 s99, s{sW}, {mrel}"); e("s_and_b32 s99, s99, 3"); e("s_mul_i32 s98, s99, 3072")
            if mrel > 1: e(f"s_add_u32 s98, s98, {(mrel-1)*1024}")
            e(f"v_add_u32 {U1}, s98, {v(vLIN)}"); e(f"v_accvgpr_write_b32 {a(aADR + (mrel - 1) % 4)}, {U1}")
        e(f"s_lshl_b32 s98, s{sW}, 2"); e(f"s_add_u32 s98, s98, {R_SP}"); e(f"v_lshl_add_u32 {U1}, v4, 4, s98")
        if "lsame" not in X: e(f"v_mul_u32_u24 {U2}, 1288, v5"); e(f"v_add_u32 {U1}, {U1}, {U2}")
        e(f"v_accvgpr_write_b32 {a(aADR+4)}, {U1}")
        e(f"v_lshlrev_b32 {U1}, 4, v4"); e(f"v_add_u32 {U1}, {R_SP}, {U1}"); e(f"v_accvgpr_write_b32 {a(aADR+5)}, {U1}")
        e(f"v_and_b32 {U1}, 1, v5"); e(f"v_lshlrev_b32 {U1}, 1, {U1}"); e(f"v_xor_b32 {U1}, v4, {U1}"); e(f"v_lshlrev_b32 {U1}, 4, {U1}"); e(f"v_lshl_add_u32 {U1}, v5, 12, {U1}")
        for q in range(4): e(f"v_xor_b32 {U2}, {q*64}, {U1}"); e(f"v_accvgpr_write_b32 {a(aADR+6+q)}, {U2}")
        e(f"v_lshl_add_u32 {U2}, v6, 2, v5"); e(f"v_lshlrev_b32 {U2}, 8, {U2}"); e(f"v_lshl_add_u32 {U2}, v7, 3, {U2}")
        e(f"v_and_b32 {T0}, 1, v5"); e(f"v_lshl_add_u32 {T0}, v6, 1, {T0}")
        e(f"s_lshl_b32 s98, s{sW}, 1")
        for k in range(2):
            e(f"s_add_u32 s99, s98, {k}")
            e(f"v_xor_b32 {U1}, s99, {T0}"); e(f"v_lshl_add_u32 {U1}, {U1}, 5, {U2}"); e(f"v_add_u32 {U1}, {R_A}, {U1}"); e(f"v_accvgpr_write_b32 {a(aADR+10+k)}, {U1}")
        for h in range(4):
            e(f"s_add_u32 s98, s{sI}, {h}"); e("s_and_b32 s98, s98, 3")
            e(f"s_mul_i32 s99, s98, {HEADSTRIDE}"); e(f"s_add_u32 s{sSIB+h}, s99, s100")
            e("s_lshl_b32 s98, s98, 2"); e(f"s_add_u32 s98, s98, s{sW}"); e(f"s_lshl_b32 s{sWOB+h}, s98, 15")
        for r in range(20): e(f"v_accvgpr_write_b32 {a(aL+r)}, 0")
        e(f"v_mov_b32 {U1}, 0x3f803f80")
        for r in range(4): e(f"v_accvgpr_write_b32 {a(aONE+r)}, {U1}")
        e(f"s_mov_b32 s{sQS}, {f2u(QSCALE)}"); e(f"s_lshl_b32 s98, s{sW}, 2")
        Q = v(vQW); Q1 = v(vQW + 1)
        e(f"v_lshrrev_b32 {Q}, 1, v5"); e(f"v_add_u32 {Q}, s98, {Q}"); e(f"v_xor_b32 {Q}, {Q}, v4"); e(f"v_lshlrev_b32 {Q}, 4, {Q}")
        e(f"v_lshl_add_u32 {Q}, v4, 8, {Q}"); e(f"v_and_b32 {Q1}, 1, v5"); e(f"v_lshl_add_u32 {Q}, {Q1}, 3, {Q}"); e(f"v_add_u32 {Q}, {R_QX}, {Q}"); e(f"v_xor_b32 {Q1}, 32, {Q}")
    fill = capture(setup)
    ne = min(opt("ne", 999), len(fill))
    while ne < len(fill) and glued(fill, ne): ne += 1
    early, fill = fill[:ne], fill[ne:]
    groups = list(c01[:n0])
    pin = [[f"buffer_store_dwordx4 v[76:79], {v(vLIN)}, {srd(SRD_PI)}, " + (f"0 offen offset:{j*1024}" if j < 4 else "s101 offen") + " sc1 @ip"] for j in range(5)] if EARLYINIT else []
    tch = []
    for nm, isK, t in (("tk0", True, 0), ("tv0", False, 0), ("tk1", True, 1)):
        n = opt(nm, 0)
        if n: tch.append([f"s_mul_i32 s58, s{sSTEP}, {t}", f"s_add_u32 s58, s58, s{sMIR}", f"s_lshr_b32 s59, s{sI}, 1", "s_lshl_b32 s59, s59, 12", "s_add_u32 s58, s58, s59",
                          f"s_mov_b64 exec, {(1 << n) - 1}" if n < 32 else "s_mov_b32 exec_hi, 0", f"buffer_load_dword {v(vJUNK)}, v3, {srd(SRD_K if isK else SRD_V)}, s58 offen @tch", "s_mov_b64 exec, -1"])
    tp = opt("tp", 13)
    if tp < 90: groups = groups[:tp] + tch + groups[tp:]; tch = []
    ipos = opt("ipos", 99)
    if ipos < 90: groups = groups[:ipos] + pin + groups[ipos:]; pin = []
    for _ in range(opt("pre", 4)): emit(groups.pop(0))
    emit(mk_srd(SRD_PI, 18, 98, WVS))
    per = opt("per", max(1, min(len(early), 260) // (len(groups) + 1))); k = 0
    while early:
        L.append("    " + early.pop(0)); k += 1
        if k >= per and groups and (not early or not glued(early, 0)): emit(groups.pop(0)); k = 0
    emit(flat(groups))
    fg = []
    for x in fill:
        if fg and x.split()[0] in GLUE: fg[-1].append(x)
        else: fg.append([x])
    flag_reset = ["s_mov_b64 exec, 1", f"v_mov_b32 v2, s{sFOWN}",
                  "global_store_dwordx2 v2, v[76:77], s[18:19] sc1 @frst", "s_mov_b64 exec, -1"]
    L.append("; ---- query projection")
    acc = vP; aX = aV; aWf = aV + 40; aX3 = aQ; aW3 = aK + 32
    def reads(cc, ks):
        buf = ks & 1
        r = [f"ds_read_b64_tr_b16 {a(aWf + buf*8 + dd*4 + jh*2, 2)}, {v(vWR+dd)} offset:{ks*8192 + jh*1024}" for dd in range(2) for jh in range(2)]
        return r + [f"ds_read_b128 {a(aX + buf*20 + j*4, 4)}, {v(vXR+ks)} offset:{j*4096} @p{cc}{ks}{j}" for j in range(5)]
    def wrd(ks): return [f"ds_read_b64_tr_b16 {a(aW3 + (ks*2+dd)*4 + jh*2, 2)}, {v(vWR+dd)} offset:{ks*8192 + jh*1024} @w{ks}" for dd in range(2) for jh in range(2)]
    def xrd(j, ks): return f"ds_read_b128 {a(aX3 + (j*4+ks)*4, 4)}, {v(vXR+ks)} offset:{j*4096} @x{j}{ks}"
    if OPT.get("at") == "split": emit(["s_mov_b64 exec, 1", f"v_mov_b32 v2, s{sFOWN}", "global_store_dwordx2 v2, v[76:77], s[18:19] sc1 @frst", "s_mov_b64 exec, -1"])
    stamp("setup")
    TL = OPT.get("tlb", "")
    if TL:
        assert not fill
        e("s_mov_b64 exec, 1"); e("v_mov_b32 v2, 0")
        if "v" in TL: e(f"buffer_load_dword {v(vJUNK)}, v2, {srd(SRD_V)}, 0 offen")
        if "k" in TL: e(f"buffer_load_dword {v(vJUNK)}, v2, {srd(SRD_K)}, 0 offen")
        if "w" in TL: e(f"buffer_load_dword {v(vJUNK)}, v2, {srd(SRD_WO)}, 0 offen")
        if "s" in TL:
            for h in range(4): e(f"buffer_load_dword {v(vJUNK)}, v2, {srd(SRD_O)}, s{sSIB+h} offen")
            e(f"v_mov_b32 v1, s{sFOWN}"); e(f"global_load_dword {v(vJUNK)}, v1, s[18:19]")
        if "o" in TL:
            e(f"s_mul_i32 s58, s{sB}, 81920"); e("v_mov_b32 v1, s58"); e(f"global_load_dword {v(vJUNK)}, v1, s[14:15]")
        if "d" in TL: e(f"global_load_dword {v(vJUNK)}, v2, s[16:17]")
        e("s_mov_b64 exec, -1")
    TB = [x for x in OPT.get("tb", "K0,V0b").split(",") if x and x != "no"]
    if TB:
        tgrp = [f"s_bfe_u32 s58, s{sB}, {(1 << 16) | opt('tbit', 0)}", f"s_lshr_b32 s59, s{sI}, 1", "s_cmp_eq_u32 s58, s59", "s_cselect_b32 s58, 0, 0x10000", "s_cselect_b64 exec, -1, 1"]
        for x in TB:
            if len(x) > 2: tgrp.append("s_mov_b32 exec_hi, 0")
            tgrp += [f"s_bfe_u32 s59, s{sSEQ}, {(4 << 16) | (4*int(x[1]))}", "s_lshl_b32 s59, s59, 13", "s_or_b32 s59, s59, s58"] + (["s_or_b32 s59, s59, 4096"] if x.endswith("b") else [])
            tgrp.append(f"buffer_load_dword {v(vJUNK)}, v3, {srd(SRD_K if x[0] == 'K' else SRD_V)}, s59 offen @tch")
        if OPT.get("at") == "split":
            tgrp += ["s_mov_b64 exec, 1", f"s_lshl_b32 s59, s{sW}, 16", "s_or_b32 s58, s58, s59", f"s_cmp_eq_u32 s{sRANGE}, -1", "s_cselect_b32 s58, 0x10000, s58", f"s_lshl_b32 s59, s{sB}, 5", "s_or_b32 s58, s58, s59",
                     "s_mov_b32 s84, s16", "s_mov_b32 s85, s17", "s_mov_b32 s86, 256", "s_mov_b32 s87, 0x20000", "v_mov_b32 v1, 1", "v_mov_b32 v2, 0",
                     "buffer_atomic_add v1, v2, s[84:87], s58 offen sc1 @tch"]
        tgrp.append("s_mov_b64 exec, -1")
        if opt("tq", 10) == -1: emit(tgrp)
    e("WAITVM frst" if OPT.get("at") == "split" else "WAITVM c0"); e("s_barrier"); stamp("c0")
    emit(reads(0, 0))
    if TB and opt("tq", 10) == 0: emit(tgrp)
    M = []; G = {g: [] for g in range(-1, 160)}
    for cc in range(3):
        for ks in range(4):
            g0 = len(M); buf = ks & 1
            for j in range(5):
                for dd in range(2):
                    d = v(acc + (j*2+dd)*4, 4)
                    M.append(f"{MF} {d}, {a(aWf + buf*8 + dd*4, 4)}, {a(aX + buf*20 + j*4, 4)}, {'0' if (cc == 0 and ks == 0) else d}")
            G[g0 - 1].append(f"WAITLG p{cc}{ks}1"); G[g0 + 3].append(f"WAITLG p{cc}{ks}4")
            if ks < 3:
                r = reads(cc, ks + 1)
                G[g0] += r[0:3]; G[g0 + 1] += r[3:6]; G[g0 + 2] += r[6:9]
            else:
                dl = [53248, 53248, -106496][cc]
                adj = [f"v_add_u32 {v(vXR+q)}, {dl}, {v(vXR+q)}" for q in range(4)] + [f"v_add_u32 {v(vWR+q)}, {dl}, {v(vWR+q)}" for q in range(2)]
                for gi in range(3): G[g0 + gi] += adj[2*gi:2*gi+2]
                G[g0 + 3] += [f"WAITVM c{cc+1}" + ("x0" if cc == 2 and PROG else ""), "s_barrier", f"STAMP c{cc+1}"]
                r = reads(cc + 1, 0) if cc < 2 else (wrd(0) + [xrd(0, 0)] + wrd(1) + [xrd(0, 1)] + wrd(2) + [xrd(0, 2)])
                for gi in range(5): G[g0 + 4 + gi] += r[3*gi:3*gi+3]
    posts = []
    for j in range(5):
        g0 = len(M)
        for ks in range(4):
            for dd in range(2):
                d = v(acc + (j*2+dd)*4, 4)
                M.append(f"{MF} {d}, {a(aW3 + (ks*2+dd)*4, 4)}, {a(aX3 + (j*4+ks)*4, 4)}, {d}")
        if j == 0 and not PROG:
            G[g0 - 1].append("WAITLG x00"); G[g0] += wrd(3)[:3]; G[g0 + 1] += [wrd(3)[3], xrd(0, 3), "WAITLG x01"]
            G[g0 + 2] += [xrd(1, 0), xrd(1, 1)]; G[g0 + 3] += ["WAITLG x02", xrd(1, 2), xrd(1, 3)]
            G[g0 + 5] += ["WAITLG x03", "s_barrier"]
        elif j == 0:
            G[g0 - 1].append("WAITLG x00"); G[g0] += wrd(3)[:3]; G[g0 + 1] += [wrd(3)[3], xrd(0, 3), "WAITLG x01"]
            G[g0 + 2] += ["WAITVM c3x1", "s_barrier", xrd(1, 0)]; G[g0 + 3] += ["WAITLG x02", xrd(1, 1), xrd(1, 2)]; G[g0 + 4] += [xrd(1, 3)]
            G[g0 + 5] += ["WAITLG x03"]
        else:
            G[g0 - 1].append(f"WAITLG x{j}3")
            if j < 4:
                if PROG: G[g0 - 1] += [f"WAITVM c3x{j+1}", "s_barrier"]
                for ks in range(4): G[g0 + ks].append(xrd(j + 1, ks))
        for dd in range(2):
            r = acc + (j*2+dd)*4
            p = [f"v_mul_f32 {v(r+q)}, s{sQS}, {v(r+q)}" for q in range(4)]
            p += [f"v_cvt_pk_bf16_f32 {v(r)}, {v(r)}, {v(r+1)}", f"v_cvt_pk_bf16_f32 {v(r+1)}, {v(r+2)}, {v(r+3)}",
                  f"ds_write_b64 {v(vQW + dd)}, {v(r, 2)} offset:{j*4096} @qw"]
            posts += [(g0 + 8 + 2, x) for x in p]
    c2 = p1_dma(2); c3 = p1_dma(3); k0d = kv_dma(True, R_A, "K0"); k0d[0] = set_T(True, 0) + k0d[0]
    ka, kb, late, nv0, sp3 = opt("ka", 3), opt("kb", 8), opt("late", 22), opt("nv0", 4), opt("dsp3", 4)
    v0g = kv_dma(False, R_C, "V0"); v0g[0] = set_T(False, 0) + v0g[0]
    k1g = kv_dma(True, R_B, "K1"); k1g[0] = set_T(True, 1) + k1g[0]
    dq = [(0, g) for g in c01[n0:] + tch + c2[:ka]] + [(late, g) for g in c2[ka:kb]] + [(34, g) for g in c2[kb:] + c3[:ka]] + \
         [(40 + late, g) for g in c3[ka:kb]] + [(74, g) for g in c3[kb:] + (pin if ipos == 99 else []) + k0d[:ka]] + [(80 + opt("latek", late), g) for g in k0d[ka:kb] + ([] if OPT.get("at") == "split" else [flag_reset])] + \
         [(114, g) for g in k0d[kb:] + (pin if ipos == 98 else []) + k1g + v0g[:nv0]]
    if TB and opt("tq", 10) > 0:
        k = opt("tq", 10); dq.insert(k, (dq[k - 1][0], tgrp))
    left = []; t = 0
    rush = opt("rush", 0); last = [g for r_, g in dq if r_ == 114][:rush]
    for g in last: G[113] += list(g); dq.remove((114, g))
    for rdy, g in dq:
        t = max(t, rdy)
        while t < 160 and (sum(1 for x in G[t] if x.startswith("ds_read")) > (1 if t >= 120 else 0) or "s_barrier" in G[t]): t += 1
        if t < 160: G[t] = G[t] + list(g)
        else: left.append(g)
        t += 1 if t < 114 else sp3
    drain = sched(M, G, [posts, [(0, g) for g in fg] + [(0, "MARK fill")]], need={33: ["fill"]}, limit=20)
    for ks in range(4): e(f"v_add_u32 {v(vXR+ks)}, {R_QX}, {v(vXR+ks)}")
    e(f"s_mov_b32 s{SRD_D}, s16"); e(f"s_mov_b32 s{SRD_D+1}, s17"); e(f"s_mov_b32 s{SRD_D+2}, 256"); e(f"s_mov_b32 s{SRD_D+3}, 0x20000")
    drain(0); emit(left)
    e("WAITVM frst"); e("WAITLG qw"); e("s_barrier")
    stamp("Bq")
    def qrd(j): return [f"ds_read_b128 {a(aQ + (j*4+ds)*4, 4)}, {v(vXR+ds)} offset:{j*4096} @q{j}" for ds in range(4)]
    emit(qrd(0))
    e("WAITVM K0")
    emit(kreads(0, "k0"))
    for r in range(20): e(f"v_mov_b32 {v(vNM+r)}, 0")
    e(f"s_lshl_b32 s{sT1}, s{sB}, 5")
    e(f"s_cmp_eq_u32 s{sRANGE}, -1"); e("s_cbranch_scc1 L_rowmax")
    AT = OPT.get("at", "bq")
    if AT in ("bq", "split"):
        e(f"s_cmp_lg_u32 s{sW}, 0"); e("s_cbranch_scc1 L_noat")
        if AT == "split": e(f"s_and_b32 s58, s{sB}, 1"); e(f"s_lshr_b32 s59, s{sI}, 1"); e("s_cmp_eq_u32 s58, s59"); e("s_cbranch_scc1 L_noat")
        e("s_mov_b64 exec, 1"); e("v_mov_b32 v1, 1"); e("v_mov_b32 v2, 0")
        L.append(f"    buffer_atomic_add v1, v2, {srd(SRD_D)}, s{sT1} offen sc1")
        e("s_mov_b64 exec, -1")
    lab("L_noat")
    e("WAITLG q0"); emit(qrd(1)); e("WAITLG k0"); emit(qrd(2) + qrd(3))
    L.append("; ---- first score tile")
    k2g = kv_dma(True, R_A, "K2"); k2g[0] = set_T(True, 2) + k2g[0]
    v1g = kv_dma(False, R_D, "V1"); v1g[0] = set_T(False, 1) + v1g[0]
    dm = v0g[nv0:] + (v1g + k2g if VF else k2g + v1g)
    rdk = kreads(1, "k1"); rdv = vreads(0, "v0")
    for j in range(5):
        sb = (5 + j) & 1
        gaps = {g: [] for g in range(-1, 8)}
        if j > 0:
            gaps[-1].append(f"WAITLG q{j}")
            ex = exps(sb ^ 1); cv = cvts(sb ^ 1, j - 1)
            for n in range(8): gaps[n].append(ex[n])
            gaps[2].append(cv[0]); gaps[4].append(cv[1]); gaps[6].append(cv[2]); gaps[7] += ["s_nop 0", cv[3]]
        if j == 1: gaps[-1] += [f"v_add_u32 {v(vVRC+k)}, {R_C}, {v(vVR+k)}" for k in range(8)] + [f"v_mov_b32 {v(vSENT+q)}, -1" for q in range(4)]
        if j == 0:
            for n in range(8):
                if dm: gaps[n] += dm.pop(0)
            gaps[3] += ["WAITLG q1"] + qrd(4)
        else:
            for n in (0, 2, 4, 6):
                if dm: gaps[n] = dm.pop(0) + gaps[n]
            if j == 2:
                gaps[1].insert(0, "WAITVM K1")
                for n in (1, 3, 5, 7): gaps[n] += [rdk.pop(0), rdk.pop(0)]
            if j == 3: gaps[1].insert(0, "WAITVM V0")
            if j >= 3:
                for n in (1, 3, 5, 7): gaps[n] += [rdv.pop(0), rdv.pop(0)]
        interleave(qk(j, 0, sb), gaps)
    emit(flat(dm))
    e(f"s_mov_b32 s{sCNT}, 0")
    emit(set_T(True, 3) + set_T(False, 2))
    if OPT.get("hm"):
        me, mo = OPT["hm"].split(",")
        emit([f"s_lshl_b32 s58, s{sB}, 2", f"s_add_u32 s58, s58, s{sI}", "s_lshl_b32 s58, s58, 2", f"s_add_u32 s58, s58, s{sW}",
              "s_lshl_b32 s58, s58, 12", f"s_lshl_b32 s59, s{sI}, 8", "s_sub_u32 s58, s58, s59", "v_add_u32 v2, s58, v3",
              f"s_bitcmp1_b32 s{sB}, 0", f"s_cselect_b32 s{sOI}, {mo}, {me}"])
    e("s_waitcnt lgkmcnt(0)")
    stamp("pro")
    jitter(15, 9)
    L.append("; ---- main loop: key tiles 0..4")
    def base_iter(par):
        G = {g: [] for g in range(-1, 85)}; M = []
        for j in range(5):
            sb = (5*par + j) & 1
            M += qk(j, par ^ 1, sb) + pv(j, par)
            put_exp(G, 17*j, sb ^ 1, (j - 1) % 5)
        return M, G
    def half_va(par):
        kd = flat(kv_dma(True, KSLOT[par ^ 1], "lk", nop=False)); vd = flat(kv_dma(False, VSLOT[par], "lv", nop=False))
        G = {g: [] for g in range(-1, 80)}; M = []
        LR = [92, 93, 94, 95, 1]
        for j in range(5):
            sb = (5*par + j) & 1; b = 16*j; jp = (j - 1) % 5; r = vS + (sb ^ 1)*8
            M += qk(j, par ^ 1, sb) + pv(j, par)[:-1]
            ex = exps(sb ^ 1); cv = cvts(sb ^ 1, jp)
            for n in range(8):
                G[b + 2*n].append(ex[n])
                G[b + 2*n + 1].append(f"v_add_f32 {v(LR[jp])}, {v(LR[jp])}, {v(r + n)}")
                if n & 1: G[b + 2*n + 1].append(cv[n >> 1])
        dpos = [1, 5, 11, 15, 21, 25, 31, 35, 41, 45, 51, 55, 61, 65, 71, 75]; mpos = [-1, 17, 37, 57]
        ev = "vaexp" in X
        if ev:
            vpos = [27, 28, 29, 30, 32, 33, 34, 36, 38, 39, 40, 42, 43, 44, 46, 47]; kpos = [59, 60, 62, 63, 64, 66, 67, 68]; vw, kw = 26, 58; tpos = [69, 77, 23, 39]
        else:
            vpos = [27, 29, 29, 33, 33, 37, 39, 41, 43, 45, 47, 49, 49, 53, 53, 57]; kpos = [61, 63, 65, 67, 69, 69, 73, 73]; vw, kw = 25, 59; tpos = [77, 77, 19, 43]
        dma = vd + kd
        for p, s in zip(mpos, [s for s in dma if "m0" in s]): G[p].append(s)
        for p, s in zip(dpos, [s for s in dma if "m0" not in s]): G[p].append(s)
        G[kw].append(f"s_waitcnt vmcnt({sum(1 for p in dpos if p <= kw)})")
        for p, s in zip(kpos, kreads(par)): G[p].append(s)
        G[vw].append(f"s_waitcnt vmcnt({8 + sum(1 for p in dpos if p <= vw)})")
        for p, s in zip(vpos, vreads(par ^ 1)): G[p].append(s)
        for p, r in zip(tpos, (sTK, sTK2, sTV, sTV2)): G[p].append(f"s_add_u32 s{r}, s{r}, s{sSTEP}")
        if par == 0: G[13].append(f"s_add_u32 s{sCNT}, s{sCNT}, 1"); G[79].append(f"s_cmp_eq_u32 s{sCNT}, 3")
        G[79].insert(0, "s_waitcnt lgkmcnt(0)")
        G = {g: [s for s in l if not isv(s)] + [s for s in l if isv(s)] for g, l in G.items()}
        interleave(M, G)
    def half(par):
        if "va" in X or "vaexp" in X: return half_va(par)
        kd = flat(kv_dma(True, KSLOT[par ^ 1], "lk", nop=False)); vd = flat(kv_dma(False, VSLOT[par], "lv", nop=False))
        dma = vd + kd if VF else kd + vd
        M, G = base_iter(par)
        for p, s in zip(S["mpos"], [s for s in dma if "m0" in s]): G[p].append(s)
        for p, s in zip(S["dpos"], [s for s in dma if "m0" not in s]): G[p].append(s)
        G[S["kw"]].append(f"s_waitcnt vmcnt({(0 if VF else 8) + sum(1 for p in S['dpos'] if p <= S['kw'])})")
        for p, s in zip(S["kpos"], kreads(par)): G[p].append(s)
        G[S["vw"]].append(f"s_waitcnt vmcnt({(8 if VF else 0) + sum(1 for p in S['dpos'] if p <= S['vw'])})")
        for p, s in zip(S["vpos"], vreads(par ^ 1)): G[p].append(s)
        for p, q, r, w in ((S["tpos"][0], S["tpos"][1], sTK, sSK), (S["tpos"][2], S["tpos"][3], sTV, sSV)):
            G[16 if r == sTV else 1].append(f"s_lshr_b32 s{w}, s{w}, 3"); G[p].append(f"s_and_b32 s{r}, s{w}, 0xe000"); G[q].append(f"s_or_b32 s{r+1}, s{r}, 4096")
        if par == 0: G[79].append(f"s_add_u32 s{sCNT}, s{sCNT}, 1"); G[84].append(f"s_cmp_eq_u32 s{sCNT}, 3")
        if par == 1 and opt("hkb", 0): G[opt("hkb", 0)] += [f"s_cmp_eq_u32 s{sCNT}, {opt('hk', 1)}", "s_cbranch_scc1 L_hook", "LABEL L_back"]
        if VF: G[83].append("s_waitcnt lgkmcnt(0)")
        else: G[84].insert(0, "s_waitcnt lgkmcnt(15)"); G[7].append("s_waitcnt lgkmcnt(0)")
        G = {g: [s for s in l if not isv(s)] + [s for s in l if isv(s)] for g, l in G.items()}
        interleave(M, G)
    L.append(".p2align 6")
    for _ in range(opt("ph", 0)): L.append("    s_nop 0")
    lab("L_loop")
    WOT = [f"s_lshl_b32 s58, s{sB}, 2", f"s_add_u32 s58, s58, s{sI}", "s_lshl_b32 s58, s58, 2", f"s_add_u32 s58, s58, s{sW}",
           "s_lshl_b32 s58, s58, 12", f"s_lshl_b32 s59, s{sI}, 8", "s_sub_u32 s58, s58, s59", "v_add_u32 v2, s58, v3", "s_mov_b32 exec_hi, 0",
           f"buffer_load_dword v1, v2, {srd(SRD_WO)}, 0 offen", "s_mov_b32 exec_hi, -1"]
    HM = OPT.get("hm")
    hooks = []
    def hook():
        if not HM: return
        k = len(hooks); hooks.append(k)
        e(f"s_bitcmp1_b32 s{sOI}, 0"); e(f"s_cbranch_scc1 L_hk{k}"); lab(f"L_hr{k}"); e(f"s_lshr_b32 s{sOI}, s{sOI}, 1")
    if "unroll" in X:
        half(0); hook(); stamp("i0"); half(1); hook(); stamp("i1"); half(0); hook(); stamp("i2")
        if opt("wt5", -1) < 0 and not HM: e("s_branch L_hook")
        lab("L_back")
        half(1); hook(); stamp("i3"); half(0); e("s_branch L_exit")
    else:
        half(0)
        e("s_cbranch_scc1 L_exit")
        if opt("wt5", -1) >= 0 or HM: lab("L_back")
        else: e(f"s_cmp_eq_u32 s{sCNT}, {opt('hk', 2)}"); e("s_cbranch_scc1 L_hook"); lab("L_back")
        hook()
        half(1)
        hook()
        e("s_branch L_loop")
    lab("L_hook")
    if "wol" in X:
        emit([f"s_and_b32 s58, s{sB}, 1", f"s_lshr_b32 s59, s{sI}, 1", "s_cmp_eq_u32 s58, s59", "s_cbranch_scc1 L_back",
              f"s_and_b32 s58, s{sI}, 1", f"s_xor_b32 s59, s{sB}, 1", "s_lshl_b32 s59, s59, 1", "s_add_u32 s58, s58, s59", "s_lshl_b32 s58, s58, 2", f"s_add_u32 s58, s58, s{sW}",
              "s_lshl_b32 s58, s58, 13", f"s_lshl_b32 s59, s{sI}, 8", "s_sub_u32 s58, s58, s59", "v_add_u32 v2, s58, v3",
              f"buffer_load_dword v1, v2, {srd(SRD_WO)}, 0 offen", "s_branch L_back"])
    else:
        emit(WOT)
        if OPT.get("at") == "hook":
            e(f"s_cmp_lg_u32 s{sW}, 0"); e("s_cbranch_scc1 L_noat2"); e(f"s_cmp_eq_u32 s{sRANGE}, -1"); e("s_cbranch_scc1 L_noat2")
            e("s_mov_b64 exec, 1"); e("v_mov_b32 v1, 1"); e("v_mov_b32 v2, 0")
            L.append(f"    buffer_atomic_add v1, v2, {srd(SRD_D)}, s{sT1} offen sc1"); e("s_mov_b64 exec, -1"); lab("L_noat2")
        if "pfc2" in X:
            e("s_getpc_b64 s[58:59]"); lab("L_pc1")
            e(f"s_lshr_b32 s{sT3}, s2, 3"); e(f"s_lshl_b32 s{sT3}, s{sT3}, 2"); e(f"s_add_u32 s{sT3}, s{sT3}, s{sW}"); e(f"s_lshl_b32 s{sT3}, s{sT3}, 7")
            e(f"s_min_u32 s{sT3}, s{sT3}, L_end-L_pc1-4"); e(f"v_mov_b32 v2, s{sT3}")
            e("s_mov_b64 exec, 1"); L.append("    global_load_dword v1, v2, s[58:59]"); e("s_mov_b64 exec, -1")
        e("s_branch L_back")
    for k in hooks:
        nl = opt("hl", 16)
        lab(f"L_hk{k}"); e(f"s_mov_b64 exec, {(1 << nl) - 1}"); L.append(f"    buffer_load_dword v1, v2, {srd(SRD_WO)}, 0 offen"); e("s_mov_b64 exec, -1")
        e(f"v_add_u32 v2, {nl*128}, v2"); e(f"s_branch L_hr{k}")
    lab("L_exit")
    stamp("exit")
    jitter(31, 5)
    if "cnt" in X: e(f"s_mov_b32 s{sOI}, 0")
    L.append("; ---- key tile 5")
    VM.ops = (["V5"]*8 + ["K6"]*8 + ["V6"]*8 + ["K7"]*8) if VF else (["K6"]*8 + ["V5"]*8 + ["K7"]*8 + ["V6"]*8); LG.ops = ["kr"]*8 + ["vr"]*16
    vXW = vKR; vXRD = vKR + 3; vWOO = vOK; vLW = vOV; vLR = vOV + 1
    def wo_dma(h):
        g = [f"s_add_u32 m0, s{sSLOT}, {WREG[h]}", f"s_add_u32 s{sT3}, s{sWOB+h}, 16384"]
        for pp in range(8):
            if pp == 4: g += [f"s_add_u32 m0, s{sSLOT}, {WREG[h] + 4096}", "NEXTGAP"]
            g.append(f"buffer_load_dwordx4 {v(vWOO + (pp & 3))}, {srd(SRD_WO)}, s{sWOB+h if pp < 4 else sT3} offen offset:{(pp & 3)*1024} lds @wo{h}")
        return g
    def paced(items, t, step):
        r = []
        for x in items:
            r.append((t, x))
            if any(y.startswith("buffer") for y in aslist(x)): t += step
        return r
    def unpark(dst, k): return f"v_accvgpr_read_b32 {v(dst)}, {a(aADR + k)}"
    def pstore(j, data, tag):
        return f"buffer_store_dwordx4 {v(data, 4)}, {v(vLIN)}, {srd(SRD_PI)}, s{sTK2 if j < 4 else sTV2} offen offset:{(j & 3)*1024} sc1 @{tag}"
    def ostore(j, data, tag):
        return f"buffer_store_dwordx4 {v(data, 4)}, {v(vLIN)}, {srd(SRD_O)}, " + (f"s{sOOWN} offen offset:{j*1024}" if j < 4 else f"s{sTK} offen") + " sc1 @" + tag
    def setflag(k, tag): return ["v_mov_b32 v2, 0", f"v_mov_b32 v3, s{sFOWN}", ["s_mov_b64 exec, 1", f"global_store_dword v3, v2, s[18:19] offset:{4*k} sc1 @{tag}", "s_mov_b64 exec, -1"]]
    M, G = base_iter(1)
    G[-1] += ["v_mov_b32 v1, 0", f"buffer_load_dword {v(vJUNK)}, v1, {srd(SRD_D)}, s{sT1} offen sc1 @hs"]
    if opt("tch", 2) == 1: G[1] += ["s_mov_b32 exec_hi, 0xff", f"buffer_load_dword v2, v3, {srd(SRD_O)}, s{sOOWN} offen", "s_mov_b32 exec_hi, -1"]
    if not VF: G[7].append("s_waitcnt lgkmcnt(0)")
    G[S["kw"]].append("WAITVM K7")
    for p, s in zip(S["kpos"], kreads(1, "k7")): G[p].append(s)
    G[S["vw"]].append("WAITVM V6")
    for p, s in zip(S["vpos"], vreads(0, "v6")): G[p].append(s)
    G[83].append("WAITLG k7")
    hw = max(S["kw"], S["vw"]) + 1
    v7 = [x.replace("s_nop 0", "NEXTGAP") for x in flat(kv_dma(False, VSLOT[1], "V7"))]
    vm = [(0, v7[0])] + paced(v7[2:], 1 if VF else 8, 2)
    if opt("wt5", -1) >= 0:
        vm += [(0, x) for x in WOT[:8]] + [(opt("wt5", -1), WOT[8:])]
    vm += paced([ostore(j, vSENT, "io") for j in range(5)], opt("ist", 24), opt("isp", 8))
    W0L = opt("w0t", 95) >= 85
    vm += [(20, unpark(vWOO + q, 6 + q)) for q in range(4)] + ([] if W0L else paced(wo_dma(0), opt("w0t", 95), opt("w0s", 3)))
    hsq = [f"s_add_u32 s{sTK}, s{sOOWN}, 4096", f"s_mov_b32 s{sTK2}, 5120",
           f"s_mov_b32 s{SRD_WS}, s18", f"s_mov_b32 s{SRD_WS+1}, s19", f"s_mov_b32 s{SRD_WS+2}, {WS_FLG + 65536}", f"s_mov_b32 s{SRD_WS+3}, 0x20000", f"s_mov_b32 s{sSPIN}, 0"]
    hsq = [(1, x) for x in hsq] + [(30, f"s_mov_b32 s{sTV2}, 9216"), (hw, "WAITVM hs"), (hw, f"v_readfirstlane_b32 s58, {v(vJUNK)}"), (hw, "NEXTGAP"),
           (hw, ["s_cmp_ge_u32 s58, 32", "s_cbranch_scc0 L_hs", "LABEL L_hsok"])]
    drain = sched(M, G, [hsq, vm], limits={1: opt('l5', 36)})
    drain(0); drain(1)
    stamp("t5")
    jitter(7, 11)
    L.append("; ---- key tiles 6 and 7, combine, output projection (pipelined over the five query tiles)")
    FO = [2, 3, 4, 5, 6, 7, 0, 1]
    HZ = opt("hz", 4)
    M = []; G = {} if VF else {7: ["s_waitcnt lgkmcnt(0)"]}; ix = {}
    for j in range(5):
        put_exp(G, len(M), (j & 1) ^ 1, (j - 1) % 5)
        M += qk(j, 1, j & 1) + pv(j, 0)
        if j >= 3: ix[f"p{j-3}"] = len(M); M += pv(j - 3, 1, FO)
    aW = [aK, aQ, aQ + 32, aV]
    aR = [aK + 32, aK + 44, aQ + 64]
    def msum(j):
        return [f"{MF} {v(oreg(k, j), 4)}, {a(aE + (2 if k == 0 else 0), 4)}, {a(aR[j % 3] + s*4, 4)}, {v(oreg(k, j), 4)}" for s in range(3) for k in range(2)]
    put_exp(G, len(M), 0, 4)
    BQ = [vS, vS + 4, vS + 8, vS + 12, vP, vP + 4, vP + 8, vP + 12, vNM, vNM + 4, vNM + 8, vNM + 12]
    vWR2 = vVR; vOB = vVR + 2; vVER = vVR + 3; vCHK = vVR + 4; vPRB = vVR + 5; vPRD = vVR + 6; vOWN = vVR + 7; vT = vP + 16
    def bread(j, h, st):
        if h == 0: return [f"ds_read_b128 {v(BQ[st*4 + ks], 4)}, {v(vLIN)} offset:{OWNB[j] + ks*1024} @b{j}{h}" for ks in range(4)]
        return [f"ds_read_b128 {v(BQ[st*4 + ks], 4)}, {v(vOB)} offset:{OBOFF[j] + h*4096 + ks*1024} @b{j}{h}" for ks in range(4)]
    def proj(j, h, st):
        return [f"{MF} {v(oreg(2 + nn, j), 4)}, {a(aW[h] + (ks*2+nn)*4, 4)}, {v(BQ[st*4 + ks], 4)}, {'0' if h == 0 and ks == 0 else v(oreg(2 + nn, j), 4)}"
                for ks in range(4) for nn in range(2)]
    for nm, mm in (("s0", msum(0)), ("p2", pv(2, 1, FO)), ("p3", pv(3, 1, FO)), ("p4", pv(4, 1, FO))):
        ix[nm] = len(M); M += mm
    need = {}; NE = opt("ne4", 0)
    sibrd = {}; B3 = 'b2' not in X; BO = opt('bo', 8); fg_ = [0]
    def group(j, h, st_, first, inbeat):
        g = len(M)
        if first: ix[f"q{j}"] = g
        M.extend(proj(j, h, st_)); ix[f"e{j}"] = len(M) - 1
        need.setdefault(g, []).append(f"!WAITLG b{j}{h}")
        r = bread(j, h, st_)
        if first and inbeat: sibrd[j] = r; return
        if first:
            need.setdefault(g - (BO if j else 7), []).extend([f"v{j}"] + ([OPT.get("pdm", "pp")] if j == opt("pd", 3) else []) + (["n4", "!WAITLG w4"] if j == (3 if "o4" in X else 4) else []) + ["!s_barrier", f"!STAMP d{j}", f"!MARK d{j}"])
        if first: g1 = g - (BO if j else 7); fg_[0] = g1
        else: g1 = max(g - 16, fg_[0] + 2) if B3 else g - 8
        if not first and B3: fg_[0] = g1
        for k in range(4): G.setdefault(g1 + k // 2, []).append(r[k])
    for b in (1, 2, 3, 4):
        ix[f"s{b}"] = len(M); M += msum(b)
        ix[f"o{b-1}"] = len(M); M += proj(b - 1, 0, 0)
        j = b - 5 + NE
        if j >= 0:
            for h in (1, 2, 3): group(j, h, h & 1, h == 1, True)
    st_ = 1
    for j in range(5):
        if j == 4 and "o4" in X:
            g = len(M); M.extend(proj(4, 0, st_)); need.setdefault(g, []).append("!WAITLG b40")
            for k, x in enumerate(bread(4, 0, st_)): G.setdefault(g - (16 if B3 else 8) + k // 2, []).append(x)
            st_ = (st_ + 1) % (3 if B3 else 2)
        for h in ((1, 2, 3) if (j < 4 or "o4" in X) else (0, 1, 2, 3)):
            group(j, h, st_, h == (1 if (j < 4 or "o4" in X) else 0), False); st_ = (st_ + 1) % (3 if B3 else 2)
    def wfr(h, base):
        return [f"ds_read_b64_tr_b16 {a(aW[h] + (ks*2+nn)*4 + jh*2, 2)}, {v(base+nn)} offset:{WREG[h] - R_A + ks*8192 + jh*4096} @f{h}" if h != 2 else
                f"ds_read_b64_tr_b16 {a(aW[h] + (ks*2+nn)*4 + jh*2, 2)}, {v(base+nn)} offset:{ks*8192 + jh*4096} @f{h}"
                for ks in range(4) for nn in range(2) for jh in range(2)]
    nx = [0]
    def xw(j):
        r = []; p = ix[f"p{j}"]
        for mrel in (1, 2, 3):
            t = vTMP + (nx[0] & 1)*4; nx[0] += 1
            ins = pack4(t, oreg(2*mrel, j), oreg(2*mrel + 1, j)) + [f"ds_write_b128 {v(vXW + mrel - 1)}, {v(t, 4)} offset:{XSLOT[j]} @x{j}"]
            r += [(p + 2*mrel - 1 + HZ, s) for s in ins]
            if mrel == 1: r.append((0, f"MARK xa{j}"))
        return r + [(p + 8 + HZ, f"ds_write_b32 {v(vLW)}, {a(aL + j*4)} offset:{j*256} @x{j}"), (0, f"MARK x{j}")]
    def xr(j):
        return [f"ds_read_b128 {v(vNM + j*4, 4)}, {v(vLR)} offset:{j*256} @l{j}"] + \
               [f"ds_read_b128 {a(aR[j % 3] + s*4, 4)}, {v(vXRD)} offset:{XSLOT[j] + s*1024} @r{j}" for s in range(3)] + [f"MARK r{j}"]
    def lsum(j):
        r = vNM + j*4
        return [(0, x) for x in [f"AFTER r{j} 2", f"WAITLG l{j}", f"v_add_f32 {v(r)}, {v(r)}, {v(r+1)}", f"v_add_f32 {v(r+2)}, {v(r+2)}, {v(r+3)}", f"v_add_f32 {v(r)}, {v(r)}, {v(r+2)}",
                f"v_subrev_u32 {v(r+1)}, {LO_BITS}, {v(r)}", [f"v_cmp_lt_u32 vcc, s{sRANGE}, {v(r+1)}", f"v_rcp_f32 {v(r)}, {v(r)}", "s_cbranch_vccnz L_fallback"]]]
    def norm(j):
        r0 = oreg(0, j); r1 = oreg(1, j); t = oreg(4, j)
        if "pk" in X: ins = [f"v_pk_mul_f32 {v(r+q, 2)}, {v(r+q, 2)}, {v(vNM+j*4, 2)} op_sel_hi:[1,0]" for r in (r0, r1) for q in (0, 2)] + pack4(t, r0, r1) + sanit(t)
        else: ins = [f"v_mul_f32 {v(r+q)}, {v(vNM+j*4)}, {v(r+q)}" for r in (r0, r1) for q in range(4)] + pack4(t, r0, r1) + sanit(t)
        ms = ostore(j, t, f"o{j}")
        PI = [int(x) for x in OPT.get("pi", "3,2,0,0,0").split(",")]
        pin_ = [pstore(k, vSENT, "ip") for k in range(sum(PI[:j]), sum(PI[:j+1]))]
        return [(ix[f"s{j}"] + 5 + HZ, x) for x in ins + [f"STAMP n{j}", ms, f"ds_write_b128 {v(vOWN)}, {v(t, 4)} offset:{OWNB[j]} @w{j}"] + pin_ + [f"MARK n{j}"]]
    def fetch(j):
        r = []
        for h in (1, 2, 3):
            dst = R_B + OBOFF[j] + h*4096
            if j < 4: r.append([f"s_add_u32 m0, s{sW1K}, {dst - j*1024}", "s_nop 0", f"buffer_load_dwordx4 {v(vLIN)}, {srd(SRD_O)}, s{sSIB+h} offen offset:{j*1024} sc1 lds @g{j}"])
            else: r.append([f"s_add_u32 m0, s{sW1K}, {dst}", f"s_add_u32 s{sT3}, s{sSIB+h}, 4096", f"buffer_load_dwordx4 {v(vLIN)}, {srd(SRD_O)}, s{sT3} offen sc1 lds @g{j}"])
        return r
    def vread(j): return [f"ds_read_b32 {v(vT + h)}, {v(vVER)} offset:{OBOFF[j] + h*4096} @t{j}" for h in (1, 2, 3)]
    def vtest(): return [f"v_max3_u32 {v(vT)}, {v(vT+1)}, {v(vT+2)}, {v(vT+3)}", f"v_cmp_eq_u32 vcc, -1, {v(vT)}"]
    def verify(j):
        return [[f"STAMP u{j}", f"WAITVM g{j}", f"STAMP w{j}"]] + vread(j) + [f"MARK t{j}", f"AFTER t{j} 3", f"WAITLG t{j}", vtest()[0], [vtest()[1], "s_nop 0", f"s_cbranch_vccnz L_refetch{j}", f"LABEL L_got{j}"], f"MARK v{j}"]
    def post(j):
        r0 = oreg(2, j)
        return [(ix[f"e{j}"] + HZ, x) for x in pack4(r0, r0, oreg(3, j)) + sanit(r0) + [pstore(j, r0, "pst")]]
    p0 = ix["p0"]
    hs = [(opt("fs", 62), x) for x in ["WAITVM io"] + setflag(0, "fs0")]
    hs += [(0, f"AFTER {OPT.get('fp', 'n3')} 0")] + [(0, x) for x in ["WAITVM ip"] + setflag(1, "fs1")] + [(0, "MARK fs1")]
    def bar(name, afters, waits): return [(0, f"AFTER {x} 0") for x in afters] + [(0, waits + ["s_barrier", f"STAMP {name}", f"MARK {name}"])]
    vs = [(40, unpark(vXW + q, q)) for q in range(4)] + [(40, unpark(vLW, 4)), (40, unpark(vLR, 5))]
    vs += xw(0) + bar("a", ["f0", "w1"], ["WAITVM wo1", "WAITLG x0", "WAITLG f0"]) + lsum(0) + [(0, "AFTER w3 0")] + norm(0) + xw(1) + bar("b1", ["f1"], ["WAITVM wo3", "WAITLG x1", "WAITLG f1"])
    for j in (1, 2, 3):
        vs += xw(j + 1) + lsum(j) + norm(j) + ([(0, f"AFTER n{j} {opt('hold', 4) - 1}")] if opt("hold", 4) else []) + bar(f"b{j+1}", {1: [], 2: ["f2"], 3: []}[j], {1: [], 2: ["WAITLG f2"], 3: []}[j] + [f"WAITLG w{j}"])
    vs += lsum(4) + norm(4)
    ps = []
    for j in range(5):
        p = post(j)
        ps += p[:-1] + ([(0, f"AFTER d{opt('pd', 3)} 0")] if j == 0 else []) + p[-1:]
    rs = [(opt("v7r", 36), "WAITVM V7")] + [(0, x) for x in vreads(1, "v7")] + [(0, "MARK v7")]
    rs += [(68, unpark(vWR2, 10)), (68, unpark(vWR2 + 1, 11))]
    adr = [(68, f"v_add_u32 {v(vOB)}, {R_B}, {v(vLIN)}"), (68, f"v_add_u32 {v(vVER)}, s{sW1K}, {v(vOB)}"),
           (68, f"v_accvgpr_read_b32 {v(vPRB)}, {a(aPRB)}"), (68, f"v_add_u32 {v(vOWN)}, s{sW1K}, {v(vLIN)}"), (0, "MARK adr")]
    rs += [(0, x) for x in wfr(0, vWR2)] + [(0, "MARK f0"), (0, "AFTER a 0")] + [(0, x) for x in xr(0)] + [(0, x) for x in wfr(1, vWR2)] + [(0, "MARK f1")]
    up = [f"v_add_u32 {v(vWR2+q)}, {R_C - R_A}, {v(vWR2+q)}" for q in range(2)]; dn = [f"v_subrev_u32 {v(vWR2+q)}, {R_C - R_A}, {v(vWR2+q)}" for q in range(2)]
    w2 = wfr(2, vWR2); w3 = wfr(3, vWR2)
    extra = {1: up + w2[:8], 2: w2[8:] + ["MARK f2"] + dn, 3: w3[:8], 4: w3[8:] + ["MARK f3"]}
    for j in (1, 2, 3, 4):
        rs += [(0, f"AFTER b{j} 0")] + [(ix[f"s{j-3}"] + 6 if j >= 3 else 0, x) for x in xr(j)]
        rs += [(ix[f"s{j}"] - 1, x) for x in bread(j - 1, 0, 0)] + [(0, f"MARK bo{j-1}")] + [(0, x) for x in extra[j]]
    MF4, MP = 0xF, 0xFF0000
    def probe(mask, tag=""): return [f"s_mov_b64 exec, {mask}", f"buffer_load_dword {v(vPRD)}, {v(vPRB)}, {srd(SRD_WS)}, 0 offen sc1" + tag, "s_mov_b64 exec, -1"]
    def test(mask): return [f"v_cmp_eq_u32 vcc, -1, {v(vPRD)}", "s_nop 0", f"s_and_b32 s58, vcc_lo, {mask}"]
    ds = (paced(wo_dma(0), opt("w0t", 95) - 85, opt("w0s", 3)) if W0L else []) + paced(wo_dma(1), opt("w1t", 36), opt("w1s", 3)) + [(0, "MARK w1")] + paced(wo_dma(2), opt("w2t", 62), opt("w2s", 3)) + [(0, "MARK w2")]
    ds += [(0, "AFTER a 0")] + [(0, y) for x in wo_dma(3) for y in ([x, "NEXTGAP"] if x.startswith("buffer") else [x])] + [(0, "AFTER adr 0"), (opt("pb", 112), probe(MF4, " @prb")), (0, "MARK w3")]
    ds += [(0, "AFTER b1 0"), (0, "WAITVM prb"), (0, test(MF4) + ["s_cbranch_scc1 L_waitf", "LABEL L_fok"])]
    FA = OPT.get("fa", "n2,n3,n4,n4,n4").split(","); FDL = [int(x) for x in OPT.get("fdl", "0,0,0,24,56").split(",")]
    for j in range(5):
        if j == 4: ds += [(0, f"AFTER {'b4' if NE >= 2 else 'd1'} 0")]
        ds += [(0, f"AFTER {FA[j]} {FDL[j]}")] + [(0, f"STAMP f{j}")] + [(0, y) for g in fetch(j) for y in [g] + ["NEXTGAP"]*opt("fst", 0)] + [(0, f"MARK g{j}")]
    ds += [(0, "AFTER fs1 0"), (0, probe(MP, " @prp")), (0, "MARK pp")]
    vf = []
    VDL = [int(x) for x in OPT.get("vdl", "20,30,40,40,40").split(",")]
    for j in range(5): vf += [(0, f"AFTER g{j} 1")] + [(ix[f"q{j}"] - (BO if j else 7) - opt("vb", 6), x) for x in verify(j)]
    G.setdefault(p0 - 1, []).extend(["WAITLG v7", "WAITVM wo0", "s_barrier", "STAMP bD"])
    need.setdefault(p0 - 1, []).extend(["v7"])
    need.setdefault(ix["q0"] + 16, []).extend(["f3", "!WAITLG f3"])
    for j in range(5): need.setdefault(ix[f"s{j}"], []).extend([f"r{j}"] + ([f"bo{j-1}"] if j else []) + ([f"xa{j+1}"] if j in (1, 2, 3) else []) + [f"!WAITLG r{j}"])
    for j in range(4): need.setdefault(ix[f"o{j}"], []).append(f"!WAITLG b{j}0")
    if opt("hold", 4):
        for j in (1, 2, 3): need.setdefault(ix[f"o{j-1}"] + 8 - opt("hold", 4), []).append(f"n{j}")
    OW = opt("ow", 2)
    if OW == 0: OUTA = ["v_lshlrev_b32 v9, 10, v4", "v_lshl_add_u32 v9, v5, 3, v9"]
    else:
        OUTA = ["v_lshrrev_b32 v1, 3, v4", "v_bfe_u32 v2, v4, 1, 1", "v_lshl_add_u32 v1, v1, 1, v2", "v_bfe_u32 v2, v4, 2, 1", "v_lshlrev_b32 v2, 1, v2",
                "v_xor_b32 v2, v2, v5", "v_lshl_add_u32 v1, v2, 2, v1", "v_and_b32 v2, 1, v4", "v_lshlrev_b32 v2, 4, v2", "v_mov_b32 v3, 0x3f80", "v_lshlrev_b32 v2, v2, v3"]
        OUTA += [[f"v_cmp_eq_u32 vcc, {m}, v1", "s_nop 1", f"v_cndmask_b32 {v(vTMP + m)}, 0, v2, vcc"] for m in range(8)]
        if OW == 1: OUTA += ["v_lshlrev_b32 v9, 10, v4", "v_lshl_add_u32 v9, v5, 4, v9"]
        else: OUTA += ["v_lshrrev_b32 v9, 2, v0", "v_lshlrev_b32 v9, 10, v9", "v_lshl_add_u32 v9, v7, 4, v9",
                       "v_lshlrev_b32 v10, 6, v4", "v_lshl_add_u32 v10, v5, 4, v10", f"v_add_u32 v10, s{sW1K}, v10"]
    fin = [f"s_and_b32 s{sT0}, s{sHKV}, 1", f"s_sub_u32 s{sT2}, 3, s{sT0}", f"s_mul_i32 s{sT0}, s{sT0}, 3", f"s_add_u32 s{sT0}, s{sT0}, s{sW}",
           "s_and_b32 s98, s2, 0xf8", f"s_mul_i32 s98, s98, {WGS}", f"s_lshr_b32 s99, s{sHKV}, 1", f"s_mul_i32 s99, s99, {WVS}", "s_add_u32 s98, s98, s99",
           f"s_lshl_b32 s99, s{sT0}, 10", "s_add_u32 s98, s98, s99", f"s_add_u32 s{sMODE}, s98, 5120",
           f"s_lshl_b32 s{sT0}, s{sT0}, 4", f"s_mul_i32 s98, s{sB}, 80", f"s_add_u32 s{sT0}, s{sT0}, s98", f"s_lshl_b32 s{sT0}, s{sT0}, 10",
           f"s_lshl_b32 s98, s{sI}, 8", f"s_add_u32 s{sT0}, s{sT0}, s98", f"s_lshr_b32 s98, s{sHKV}, 1", "s_lshl_b32 s98, s98, 6", f"s_add_u32 s{sT0}, s{sT0}, s98",
           ] + OUTA + [
           f"s_mov_b32 s{SRD_K}, s14", f"s_mov_b32 s{SRD_K+1}, s15", f"s_mov_b32 s{SRD_K+2}, 655360", f"s_mov_b32 s{SRD_K+3}, 0x20000"]
    drain = sched(M, G, [hs, ds, vf, vs, rs, ps, adr + [(0, "AFTER n4 2")] + [(ix["q1"], x) for x in fin]], need=need, limit=opt("lim", 16), limits={1: 28, 2: 24, 3: opt('lv', 16)})
    for k in range(7): drain(k)
    stamp("pst")
    if "cnt" in X: e(f"s_mov_b32 s{sCNT}, s{sOI}")
    e(f"s_cmp_ge_u32 s{sW}, s{sT2}"); e("s_cbranch_scc1 L_fin")
    e("WAITVM prp")
    emit(test(MP)); e("s_cbranch_scc1 L_waitp")
    lab("L_pok")
    if opt("slp", 0):
        e(f"s_bitcmp1_b32 s{sHKV}, 0"); e("s_cbranch_scc0 L_nosl"); e(f"s_sleep {opt('slp', 0)}"); lab("L_nosl")
    fB = vO + 100
    def redloads():
        e(f"s_mov_b32 s{sT1}, s{sMODE}")
        for p in range(8):
            e(f"buffer_load_dwordx4 {v(fB + p*4, 4)}, {v(vLIN)}, {srd(SRD_WS)}, s{sT1} offen sc1")
            if p < 7: e(f"s_add_u32 s{sT1}, s{sT1}, {WGS}")
    redloads()
    lab("L_red")
    e(f"v_mov_b32 {v(vCHK)}, 0")
    for p in range(8):
        e(f"s_waitcnt vmcnt({7-p})")
        for k in range(2):
            d = v(vS + k*4, 4)
            e(f"{MF} {d}, {v(vTMP + 4*k, 4) if OW else a(aE + (2 if k == 0 else 0), 4)}, {v(fB + p*4, 4)}, {'0' if p == 0 else d}")
            if k == 0: e(f"v_max_u32 {v(vCHK)}, {v(vCHK)}, {v(fB + p*4)}")
    e(f"v_cmp_eq_u32 vcc, -1, {v(vCHK)}")
    e("s_nop 4")
    e("s_cbranch_vccnz L_redo")
    lab("L_redok")
    e("s_nop 0")
    OF = OPT.get("outf", "sc1").replace("_", " ")
    if OW == 0:
        e(f"v_cvt_pk_bf16_f32 {v(vS)}, {v(vS)}, {v(vS+1)}"); e(f"v_cvt_pk_bf16_f32 {v(vS+1)}, {v(vS+2)}, {v(vS+3)}")
        e(f"v_cvt_pk_bf16_f32 {v(vS+4)}, {v(vS+4)}, {v(vS+5)}"); e(f"v_cvt_pk_bf16_f32 {v(vS+5)}, {v(vS+6)}, {v(vS+7)}")
        e(f"buffer_store_dwordx2 {v(vS, 2)}, v9, {srd(SRD_K)}, s{sT0} offen {OF}")
        e(f"buffer_store_dwordx2 {v(vS+4, 2)}, v9, {srd(SRD_K)}, s{sT0} offen offset:32 {OF}")
    else:
        emit(pack4(vS, vS, vS + 4))
        if OW == 2:
            e(f"ds_write_b128 v10, {v(vS, 4)}"); e("s_waitcnt lgkmcnt(0)"); e(f"ds_read_b128 {v(vS, 4)}, {v(vOWN)}"); e("s_waitcnt lgkmcnt(0)")
        e(f"buffer_store_dwordx4 {v(vS, 4)}, v9, {srd(SRD_K)}, s{sT0} offen {OF}")
    lab("L_fin")
    stamp("fin")
    if STAMPS and "cnt" in X:
        i = nstamp[0]; nstamp[0] += 1
        e(f"s_add_u32 s{sSTAMP+2*i}, s{sSTAMP+2*i-2}, s{sCNT}"); e(f"s_addc_u32 s{sSTAMP+2*i+1}, s{sSTAMP+2*i-1}, 0")
    write_stamps()
    lab("L_done")
    e("s_endpgm")
    L.append("; ---- out-of-line waits and rare paths")
    lab("L_redo")
    emit(spin("L_redok")); redloads(); e("s_branch L_red")
    lab("L_hs")
    e("v_mov_b32 v2, 0"); e("s_sleep 4")
    e(f"buffer_load_dword {v(vJUNK)}, v2, {srd(SRD_D)}, s{sT1} offen sc1"); e("s_waitcnt vmcnt(0)")
    emit(spin("L_hsok"))
    e(f"v_readfirstlane_b32 s58, {v(vJUNK)}"); e("s_nop 0"); e("s_cmp_ge_u32 s58, 32"); e("s_cbranch_scc0 L_hs"); e("s_branch L_hsok")
    for nm, mask, ok in (("L_waitf", MF4, "L_fok"), ("L_waitp", MP, "L_pok")):
        lab(nm)
        if "cnt" in X and nm == "L_waitf": e(f"s_add_u32 s{sOI}, s{sOI}, {1 << 15}")
        e("s_sleep 2"); emit(probe(mask)); e("s_waitcnt vmcnt(0)")
        emit(spin(ok)); emit(test(mask)); e(f"s_cbranch_scc1 {nm}"); e(f"s_branch {ok}")
    for j in range(5):
        lab(f"L_refetch{j}")
        if "cnt" in X: e(f"s_add_u32 s{sOI}, s{sOI}, {1 << (3*j)}")
        emit(spin(f"L_got{j}")); emit(fetch(j)); e("s_waitcnt vmcnt(0)")
        emit(vread(j)); e("s_waitcnt lgkmcnt(0)"); emit(vtest()); e("s_nop 1")
        e(f"s_cbranch_vccnz L_refetch{j}"); e(f"s_branch L_got{j}")
    lab("L_fallback")
    e("s_waitcnt vmcnt(0) lgkmcnt(0)")
    e("s_barrier")
    e(f"s_mov_b32 s{sRANGE}, -1")
    e("s_load_dwordx16 s[4:19], s[0:1], 0")
    e("s_branch L_restart")
    lab("L_rowmax")
    e("s_waitcnt vmcnt(0) lgkmcnt(0)")
    emit(qrd(1) + qrd(2)); e("s_waitcnt lgkmcnt(0)"); emit(qrd(3) + qrd(4))
    vA = vP; vM = vP + 4
    for ds in range(4): e(f"v_subrev_u32 {v(vA+ds)}, {R_A - R_D}, {v(vKR+ds)}")
    for j in range(5): e(f"v_mov_b32 {v(vM+j)}, 0xff800000")
    e(f"s_mov_b32 s{sTK}, 0"); e(f"s_mov_b32 s{sTK2}, 4096")
    lab("L_fbmax")
    emit(flat(kv_dma(True, R_D, "f")))
    e("s_waitcnt vmcnt(0)")
    emit(kreads(0, base=vA, buf=1))
    e("s_waitcnt lgkmcnt(0)")
    for j in range(5):
        emit(qk(j, 1, 0, cinit="0")); e("s_nop 7")
        for n in range(4): e(f"v_max3_f32 {v(vM+j)}, {v(vM+j)}, {v(vS+2*n)}, {v(vS+2*n+1)}")
    e(f"s_add_u32 s{sTK}, s{sTK}, 8192"); e(f"s_add_u32 s{sTK2}, s{sTK2}, 8192")
    e(f"s_cmp_lt_u32 s{sTK}, 65536"); e("s_cbranch_scc1 L_fbmax")
    for j in range(5):
        for op in ("v_permlane32_swap_b32", "v_permlane16_swap_b32"):
            e(f"v_mov_b32 v1, {v(vM+j)}"); e("s_nop 1"); e(f"{op} {v(vM+j)}, v1"); e("s_nop 1"); e(f"v_max_f32 {v(vM+j)}, {v(vM+j)}, v1")
    e(unpark(1, 4)); e(unpark(2, 5))
    for j in range(5): e(f"ds_write_b32 v1, {v(vM+j)} offset:{j*256}")
    e("s_waitcnt lgkmcnt(0)"); e("s_barrier")
    for j in range(5): e(f"ds_read_b128 {v(vNM+j*4, 4)}, v2 offset:{j*256}")
    e("s_waitcnt lgkmcnt(0)")
    for j in range(5):
        r = vNM + j*4
        e(f"v_max3_f32 {v(r)}, {v(r)}, {v(r+1)}, {v(r+2)}"); e(f"v_max_f32 {v(r)}, {v(r)}, {v(r+3)}"); e(f"v_sub_f32 {v(r)}, 0, {v(r)}")
        for q in (1, 2, 3): e(f"v_mov_b32 {v(r+q)}, {v(r)}")
    e("s_branch L_noat")
    lab("L_end")

DOC = """
; One workgroup per (batch b, query head): wg = hkv + 8*b + 64*i, head = 4*hkv + i.  Four waves, 512 registers each.
;     computes the true row maxima and uses those as m (softmax is invariant under the shift).
;  3. Per 16-query tile: the waves' partial O are summed through LDS, normalised and published in d_ws; the four heads of a
;     are published and summed by the workgroup that owns the output tile.
;  Hand-offs: write-through stores into areas that this launch first filled with 0xffffffff; a reader accepts a 16-byte
;  piece once its first word differs (payloads never carry that word).  Two flag words per wave say that the fills have
;  landed; they are reset at start, and a counter per batch in d_debug says that the resets have landed.
"""
hdr = open("standalone__gqa_block_cached__near_ridge.s.ref").read().split("\n")
for ln in hdr:
    if ln.startswith("; @launch"): continue
    if not ln.startswith(";"): break
    L.append(ln)
L.append("; @launch grid=(256,1,1) block=(256,1,1) lds=163840")
L.append('.amdgcn_target "amdgcn-amd-amdhsa--gfx950"')
L.append(".text")
L.extend(DOC.strip("\n").split("\n"))
kernel()
L.append('.section .rodata,"a"')
L.append(".p2align 6"); L.append(f".amdhsa_kernel {KN}")
for s in ["next_free_vgpr 512", "next_free_sgpr 102", "accum_offset 256", "group_segment_fixed_size 0", "kernarg_size 64", "user_sgpr_count 2", "user_sgpr_kernarg_segment_ptr 1", "system_sgpr_workgroup_id_x 1"]:
    L.append("  .amdhsa_" + s)
L.append(".end_amdhsa_kernel")
import hazard
def merge_waits(lines):
    out = []
    for ln in lines:
        m = ln.strip().startswith("s_waitcnt")
        if m and out and out[-1].strip().startswith("s_waitcnt"):
            c = {}
            for k, n in re.findall(r"(vmcnt|lgkmcnt)\((\d+)\)", out[-1] + ln): c[k] = min(int(n), c.get(k, 99))
            out[-1] = "    s_waitcnt " + " ".join(f"{k}({n})" for k, n in sorted(c.items(), reverse=True))
        else: out.append(ln)
    return out
if "nomerge" not in X: L = merge_waits(L)
L = hazard.fix(L)
print("\n".join(L))
```
